```python
import torch

def _softmax(x, axis=-1):
    return torch.softmax(x, dim=axis)
def _gelu(x):
    return torch.nn.functional.gelu(x, approximate="tanh")
def _silu(x):
    return torch.nn.functional.silu(x)
def _sigmoid(x):
    return torch.sigmoid(x)
def _layernorm(x, axis=-1, eps=1e-5):
    m = x.mean(dim=axis, keepdim=True)
    v = x.var(dim=axis, keepdim=True, unbiased=False)
    return (x - m) / torch.sqrt(v + eps)
def _scatter_add(tgt, idx, src, axis=0):
    return tgt.clone().index_add_(axis, idx, src)
def _segment_sum(src, seg, n):
    out = torch.zeros((n,) + src.shape[1:], dtype=src.dtype)
    return out.index_add_(0, seg, src)
def _pad(x, pw):
    flat = tuple(v for pair in reversed(pw) for v in pair)
    return torch.nn.functional.pad(x, flat)

kernel_name = 'recurrent_scan__gqa_block_cached__geglu_ffn__decode'

def setup_inputs():

    _w = (lambda a: (lambda t: t.to(torch.bfloat16) if t.is_floating_point() else t)(torch.as_tensor(a)))
    def _A_setup():
        B, Sq, D = 1, 1, 512
        Hq, Hkv, Sk, Dh = 32, 8, 65536, 128
        assert Hq % Hkv == 0, (Hq, Hkv)
        return {
            "x": _w((lambda *s: torch.randn(*s, dtype=torch.bfloat16) * 0.05)(B, Sq, D)),
            "k_cache": _w((lambda *s: torch.randn(*s, dtype=torch.bfloat16) * 1.6)(B, Hkv, Sk, Dh)),
            "v_cache": _w((lambda *s: torch.randn(*s, dtype=torch.bfloat16) * 0.8)(B, Hkv, Sk, Dh)),
            "wq": _w((lambda *s: torch.randn(*s, dtype=torch.bfloat16) * 1.6)(D, Hq * Dh) * (D ** -0.5)),
            "wo": _w((lambda *s: torch.randn(*s, dtype=torch.bfloat16) * 0.8)(Hq * Dh, D) * ((Hq * Dh) ** -0.5)),
        }
    _A_in = _A_setup()

    def _B_setup():
        B, S, D, F = 1, 1, 512, 1792
        return {
            "x": _w((lambda *s: torch.randn(*s, dtype=torch.bfloat16) * 0.05)(B, S, D)),
            "w_gate": _w((lambda *s: torch.randn(*s, dtype=torch.bfloat16) * 0.2)(D, F)),
            "w_up": _w((lambda *s: torch.randn(*s, dtype=torch.bfloat16) * 0.2)(D, F)),
            "w_down": _w((lambda *s: torch.randn(*s, dtype=torch.bfloat16) * 0.2)(F, D)),
        }
    _B_in = _B_setup()

    return {
        "A_x": _A_in["x"],
        "A_k_cache": _A_in["k_cache"],
        "A_v_cache": _A_in["v_cache"],
        "A_wq": _A_in["wq"],
        "A_wo": _A_in["wo"],
        "B_x": _B_in["x"],
        "B_w_gate": _B_in["w_gate"],
        "B_w_up": _B_in["w_up"],
        "B_w_down": _B_in["w_down"],
    }

def reference(A_x, A_k_cache, A_v_cache, A_wq, A_wo, B_x, B_w_gate, B_w_up, B_w_down):
    def _A_ref(x, k_cache, v_cache, wq, wo):
        B, Sq, D = x.shape
        Hq, Dh = 32, 128
        Hkv = k_cache.shape[1]
        rep = Hq // Hkv
        q = (lambda x, *d: x.permute(*d))((x @ wq).reshape(B, Sq, Hq, Dh), 0, 2, 1, 3)
        k = (lambda x, n, axis: torch.repeat_interleave(x, n, dim=axis))(k_cache, rep, axis=1)
        v = (lambda x, n, axis: torch.repeat_interleave(x, n, dim=axis))(v_cache, rep, axis=1)
        scores = torch.einsum("bhqd,bhkd->bhqk", q, k) * (Dh ** -0.5)
        p = _softmax(scores, axis=-1)
        o = torch.einsum("bhqk,bhkd->bhqd", p, v)
        return (lambda x, *d: x.permute(*d))(o, 0, 2, 1, 3).reshape(B, Sq, Hq * Dh) @ wo

    def _B_ref(x, w_gate, w_up, w_down):
        return (_gelu(x @ w_gate) * (x @ w_up)) @ w_down

    x = A_x
    xn = _layernorm(x, axis=-1)
    s = _A_ref(xn, A_k_cache, A_v_cache, A_wq, A_wo)
    g = _silu(_B_ref(xn, B_w_gate, B_w_up, B_w_down))
    return x + s * g
```

```python
import re
TRANS=('v_exp_f32','v_log_f32','v_rcp_f32','v_rsq_f32','v_sqrt_f32','v_sin_f32','v_cos_f32','v_rcp_iflag_f32')
def regs(op):
    op=op.strip()
    if op.startswith('-'): op=op[1:]
    m=re.fullmatch(r'abs\((.*)\)',op)
    if m: op=m.group(1)
    m=re.fullmatch(r'\|(.*)\|',op)
    if m: op=m.group(1)
    m=re.fullmatch(r'([vsa])(\d+)',op)
    if m: return {(m.group(1),int(m.group(2)))}
    m=re.fullmatch(r'([vsa])\[(\d+):(\d+)\]',op)
    if m: return {(m.group(1),i) for i in range(int(m.group(2)),int(m.group(3))+1)}
    if op in('vcc','vcc_lo','vcc_hi'): return {('s','vcc')}
    if op in('exec','exec_lo','exec_hi'): return {('s','exec')}
    if op=='m0': return {('s','m0')}
    return set()
class I:
    def __init__(s,text):
        s.text=text; t=text.split(';')[0].strip()
        s.label=None; s.target=None; s.mn=''; s.ops=[]; s.mods=''
        s.w=set(); s.r=set(); s.cls='other'; s.ws=1; s.A=s.B=s.C=set(); s.dpp=False; s.sdata=set()
        if t.endswith(':'): s.label=t[:-1]; s.cls='label'; s.ws=0; return
        if t=='' or t.startswith('.'): s.cls='dir'; s.ws=0; return
        p=t.split(None,1); s.mn=p[0]; rest=p[1] if len(p)>1 else ''
        ops=[];cur='';d=0
        for ch in rest:
            if ch in '[(': d+=1
            if ch in '])': d-=1
            if ch==',' and d==0: ops.append(cur.strip()); cur=''
            else: cur+=ch
        if cur.strip():
            q=cur.strip().split(None,1); ops.append(q[0]); s.mods=q[1] if len(q)>1 else ''
        s.ops=ops; mn=s.mn
        R=lambda l:set().union(*[regs(o) for o in l]) if l else set()
        if mn=='s_nop': s.cls='nop'; s.ws=int(ops[0],0)+1
        elif mn.startswith('s_cbranch') or mn=='s_branch': s.cls='branch'; s.target=ops[0]
        elif mn in('s_waitcnt','s_barrier','s_setprio','s_sleep','s_endpgm'): s.cls='ctl'
        elif mn.startswith(('s_load','s_memtime','s_memrealtime','s_atomic','s_buffer_load')):
            s.cls='smem'; s.w=R(ops[:1]); s.r=R(ops[1:])
        elif mn.startswith('s_cmp') or mn.startswith('s_bitcmp'): s.cls='salu'; s.r=R(ops)
        elif mn.startswith('s_'):
            s.cls='salu'; s.w=R(ops[:1]); s.r=R(ops[1:])
            if 'saveexec' in mn: s.w|={('s','exec')}; s.r|={('s','exec')}
        elif mn.startswith('v_mfma'):
            s.cls='mfma'; s.w=R(ops[:1]); s.A=R(ops[1:2]); s.B=R(ops[2:3]); s.C=R(ops[3:4]); s.r=s.A|s.B|s.C
            s.passes=8 if '32x32' in mn else 4
        elif mn.startswith('v_'):
            s.cls='valu'; base=re.sub(r'_(e32|e64|dpp|sdwa)$','',mn)
            s.trans=base in TRANS
            s.dpp=mn.endswith('_dpp')
            if base.startswith('v_permlane'): s.w=R(ops[:2]); s.r=R(ops[:2])
            elif base in('v_add_co_u32','v_addc_co_u32','v_sub_co_u32','v_subb_co_u32'): s.w=R(ops[:2]); s.r=R(ops[2:])
            else:
                s.w=R(ops[:1]); s.r=R(ops[1:])
                if base.startswith(('v_fmac','v_dot2c','v_writelane','v_pk_fmac')) or s.dpp: s.r|=R(ops[:1])
        elif mn.startswith('ds_'):
            s.cls='ds'
            if mn.startswith(('ds_read','ds_bpermute','ds_permute','ds_swizzle')) or '_rtn' in mn: s.w=R(ops[:1]); s.r=R(ops[1:])
            else: s.r=R(ops)
        elif mn.startswith(('buffer_','global_')):
            s.cls='vmem'
            lds=(' lds' in ' '+s.mods) or '_lds_' in mn
            s.lds=lds
            if 'load' in mn and not lds: s.w=R(ops[:1]); s.r=R(ops[1:])
            elif 'atomic' in mn and 'sc0' in s.mods: s.w=R(ops[:1]); s.r=R(ops)
            else: s.r=R(ops)
            if lds: s.r|={('s','m0')}
            if 'store' in mn and ('x4' in mn or 'x3' in mn):
                s.sdata=R(ops[:1]) if mn.startswith('buffer') else R(ops[1:2])
def need(p,c):
    n=0
    V=lambda S:{x for x in S if x[0] in 'va'}
    Sg=lambda S:{x for x in S if x[0]=='s'}
    if p.cls=='valu':
        vw=V(p.w); sw=Sg(p.w)
        if c.cls=='mfma' and vw&c.r: n=max(n,2)
        if c.cls=='valu':
            if c.dpp and vw&c.r: n=max(n,2)
            if c.mn.startswith('v_permlane') and vw&c.r: n=max(n,2)
            if c.mn.startswith(('v_readlane','v_readfirstlane')) and vw&c.r: n=max(n,1)
            if p.trans and vw&c.r: n=max(n,1)
            if sw&c.r: n=max(n,4 if c.mn.startswith(('v_readlane','v_writelane')) else 2)
        if c.cls in('vmem','ds') and p.trans and vw&c.r: n=max(n,1)
        if c.cls=='vmem' and sw&c.r: n=max(n,5)
        if c.cls=='smem' and sw&c.r: n=max(n,5)
        if c.cls in('salu','branch') and sw&(c.r|({('s','vcc')} if 'vcc' in c.mn else set())): n=max(n,1)
    if p.cls=='salu' and ('s','m0') in p.w:
        if c.cls=='vmem' and getattr(c,'lds',False): n=max(n,1)
        if c.cls=='valu' and ('s','m0') in c.r: n=max(n,1)
    if p.cls=='mfma':
        k={4:(8,6,3),8:(12,10,7)}[p.passes]
        if c.cls=='mfma':
            if p.w&(c.A|c.B): n=max(n,k[0])
            if p.w&c.C and p.w!=c.C: n=max(n,k[1])
            if p.w&c.w and not (p.w==c.C): n=max(n,k[1])
        elif c.cls in('valu','vmem','ds'):
            if p.w&(c.r|c.w): n=max(n,k[0])
            if c.cls=='valu' and p.C&c.w: n=max(n,k[2])
    if p.cls=='vmem' and p.sdata and c.cls in('valu','ds','vmem','mfma') and p.sdata&c.w: n=max(n,2)
    return n
class Asm:
    def __init__(s): s.l=[]
    def __call__(s,text):
        for t in text.split('\n'):
            t=t.strip()
            if t: s.l.append(I(t))
    def fix(s):
        nins=0
        while True:
            L=s.l; lab={x.label:i for i,x in enumerate(L) if x.label}
            src={}
            for i,x in enumerate(L):
                if x.target: src.setdefault(lab[x.target],[]).append(i)
            def preds(i):
                o=[]
                if i>0 and L[i-1].mn not in('s_branch','s_endpgm'): o.append(i-1)
                o+=src.get(i,[])
                return o
            fixed=False
            for i,c in enumerate(L):
                if c.cls in('label','dir','nop','ctl'): continue
                worst=0; seen={}
                st=[(j,0) for j in preds(i)]
                while st:
                    j,d=st.pop()
                    if d>=12 or seen.get(j,99)<=d: continue
                    seen[j]=d
                    worst=max(worst,need(L[j],c)-d)
                    for k in preds(j): st.append((k,d+L[j].ws))
                if worst>0:
                    L.insert(i,I(f's_nop {worst-1}')); nins+=1; fixed=True; break
            if not fixed: break
        return nins
    def text(s):
        return '\n'.join((x.text if x.cls in('label','dir') else '    '+x.text) for x in s.l)+'\n'
```

```python
import sys, argparse, struct
from asmlib import Asm
NAME='recurrent_scan__gqa_block_cached__geglu_ffn__decode_kernel'
HDR=open('recurrent_scan__gqa_block_cached__geglu_ffn__decode.s.ref').read().split('; Override launch')[0]
def f2u(x): return struct.unpack('<I',struct.pack('<f',x))[0]
LOG2E=f2u(1.4426950408889634); SCALE=f2u(128**-0.5)
R=19; SLOT=8192; RING=R*SLOT
MISC=RING
L_FULL=MISC; L_QRDY=MISC+4; L_REL=MISC+16; L_O16=MISC+64; L_XN=MISC+1024; L_Q=MISC+3072
W_QG=0x1000; W_ML=0x10000; W_P2=0x100000; W_S3=0x200000; W_B3=0x300000; W_ST=0x400000; WS_SZ=0x480000
def gen(mapping='hx', N=20, diag=0, pol='nt', wpol='nt'):
    a=Asm()
    sB,sW=2,3
    pX,pK,pV,pWQ,pWO,pWG,pWU,pWD,pOUT,pWS=4,6,8,10,12,16,18,20,22,26
    sH,sC,sU,sF,sT,sTO=48,49,50,51,52,53
    sFull,sG,sSlot,sSlotV,sMin,sKo,sVo,sTmp,sTmp2,sCnt,sGmR=54,55,56,57,58,59,60,61,62,63,64
    sScale,sL2e,sMask,sXf,sCw=65,66,67,68,69
    sSt=70
    vSt=159
    uid=[0]
    def lab(p): uid[0]+=1; return f'L_{p}_{uid[0]}'
    def srd(d,p,size):
        a(f's_mov_b32 s{d}, s{p}\ns_mov_b32 s{d+1}, s{p+1}\ns_mov_b32 s{d+2}, {size:#x}\ns_mov_b32 s{d+3}, 0x20000')
    def stamp(k):
        if diag: a(f's_memrealtime s[{sSt}:{sSt+1}]\ns_waitcnt lgkmcnt(0)\nv_writelane_b32 v{vSt}, s{sSt}, {k}')
    def stamp_out(srd_ws):
        if diag:
            a(f's_mul_i32 s{sTmp}, s{sB}, 5\ns_add_u32 s{sTmp}, s{sTmp}, s{sW}\ns_lshl_b32 s{sTmp}, s{sTmp}, 8\ns_add_u32 s{sTmp}, s{sTmp}, {W_ST:#x}')
            a(f's_mov_b64 exec, -1\nv_lshlrev_b32 v1, 2, v0\nbuffer_store_dword v{vSt}, v1, s[{srd_ws}:{srd_ws+3}], s{sTmp} offen')
    def timeout():
        a(f's_sub_u32 s{sTO}, s{sTO}, 1\ns_cbranch_scc1 L_end')
    def wait_full(sreg_or_imm, vtmp, vaddr):
        ok=lab('fok'); p=lab('fp')
        x=f's{sreg_or_imm[1]}' if sreg_or_imm[0]=='s' else str(sreg_or_imm[1])
        a(f's_cmp_gt_u32 s{sFull}, {x}\ns_cbranch_scc1 {ok}')
        a(f'{p}:\nds_read_b32 v{vtmp}, v{vaddr}')
        timeout()
        a(f's_waitcnt lgkmcnt(0)\nv_readfirstlane_b32 s{sFull}, v{vtmp}\ns_cmp_gt_u32 s{sFull}, {x}\ns_cbranch_scc0 {p}\n{ok}:')
    def bfr(dst,src,tmp=None):
        a(f'v_cvt_pk_bf16_f32 v{dst}, v{src}, v{src}\nv_and_b32 v{dst}, 0xffff0000, v{dst}')
    def allred(op, vs, ts, lo=(8,4,2,1)):
        for r in lo:
            for v in vs: a(f'{op}_dpp v{v}, v{v}, v{v} row_ror:{r} row_mask:0xf bank_mask:0xf')
        for sw in (16,32):
            for v,t in zip(vs,ts): a(f'v_mov_b32 v{t}, v{v}')
            for v,t in zip(vs,ts): a(f'v_permlane{sw}_swap_b32 v{v}, v{t}')
            for v,t in zip(vs,ts): a(f'{op} v{v}, v{v}, v{t}')
    TAGCHK=lambda acc,t,first: (f'v_xor_b32 v{acc}, s{sT}, v{t}' if first else f'v_bitop3_b32 v{acc}, v{t}, s{sT}, v{acc} bitop3:0xbe')

    a(f'{NAME}:')
    a(f's_cmp_ge_u32 s{sB}, 256\ns_cbranch_scc1 L_end')
    a('s_load_dwordx16 s[4:19], s[0:1], 0\ns_load_dwordx8 s[20:27], s[0:1], 64')
    if diag: a(f'v_mov_b32 v{vSt}, 0')
    a(f'v_lshrrev_b32 v1, 6, v0\nv_and_b32 v0, 63, v0\nv_readfirstlane_b32 s{sW}, v1')
    a(f's_and_b32 s{sTmp}, s{sB}, 7\ns_lshr_b32 s{sTmp2}, s{sB}, 3')
    a(f's_lshl_b32 s{sU}, s{sTmp}, 5\ns_add_u32 s{sU}, s{sU}, s{sTmp2}')
    a(f's_mul_i32 s{sF}, s{sTmp}, 28\ns_add_u32 s{sF}, s{sF}, s{sTmp2}')
    a(f's_cmp_lt_u32 s{sTmp2}, 28\ns_cselect_b32 s{sF}, s{sF}, 0x100000')
    if mapping=='hx': a(f's_mov_b32 s{sH}, s{sTmp}\ns_mov_b32 s{sC}, s{sTmp2}')
    else: a(f's_lshr_b32 s{sH}, s{sB}, 5\ns_and_b32 s{sC}, s{sB}, 31')
    a(f's_mov_b32 s{sTO}, 200000\ns_mov_b32 s{sFull}, 0')
    a(f'v_lshrrev_b32 v2, 4, v0\nv_and_b32 v3, 15, v0')
    a(f's_cmp_lg_u32 s{sW}, 0\ns_cbranch_scc1 L_cons')
    vK0,vV0,vWQ,vFF,vFA,vRA,vF=4,8,10,11,12,13,14
    a('s_setprio 3')
    a(f'v_xor_b32 v{vK0}, v2, v3\nv_lshlrev_b32 v{vK0}, 4, v{vK0}\nv_lshl_add_u32 v{vK0}, v2, 8, v{vK0}')
    for k in (1,2,3): a(f'v_xor_b32 v{vK0+k}, {64*k}, v{vK0}')
    a(f'v_lshlrev_b32 v{vV0}, 1, v2\nv_xor_b32 v{vV0}, v{vV0}, v3\nv_lshlrev_b32 v{vV0}, 4, v{vV0}\nv_lshl_add_u32 v{vV0}, v2, 8, v{vV0}\nv_xor_b32 v{vV0+1}, 128, v{vV0}')
    a(f'v_lshrrev_b32 v{vWQ}, 1, v0\nv_lshlrev_b32 v{vWQ}, 13, v{vWQ}\nv_and_b32 v1, 1, v0\nv_lshl_add_u32 v{vWQ}, v1, 4, v{vWQ}')
    a(f'v_mul_u32_u24 v{vFF}, 3584, v0')
    a(f'v_mov_b32 v{vFA}, {L_FULL}\nv_mov_b32 v{vRA}, {L_REL}\nv_mov_b32 v{vF}, 0\nds_write_b32 v{vFA}, v{vF}')
    a(f's_lshl_b32 s{sKo}, s{sH}, 24\ns_lshl_b32 s{sTmp}, s{sC}, 19\ns_add_u32 s{sKo}, s{sKo}, s{sTmp}\ns_mov_b32 s{sVo}, s{sKo}')
    a('s_waitcnt lgkmcnt(0)')
    dK,dV,dWQ,dWG,dWU,dWSl=28,32,36,40,44,72
    srd(dWQ,pWQ,512*4096*2); srd(dK,pK,1<<27); srd(dV,pV,1<<27); srd(dWG,pWG,512*1792*2); srd(dWU,pWU,512*1792*2)
    if diag: srd(dWSl,pWS,WS_SZ)
    stamp(0)
    issued=[0]; pub=[0]
    def pace(static=True):
        if issued[0]>N-4:
            a(f's_waitcnt vmcnt({N-4})')
            g=(issued[0]-(N-4))//8
            if g>pub[0]:
                pub[0]=g
                a(f'v_mov_b32 v{vF}, {g}\nds_write_b32 v{vFA}, v{vF}')
    def sub(kind, g, sb):
        base=(g%R)*SLOT+4096*sb
        a(f's_mov_b32 m0, {base:#x}')
        for k in range(4):
            n=4*sb+k
            if kind=='K':
                if k==0: a(f's_add_u32 s{sTmp}, s{sKo}, {4096*sb}')
                a(f'buffer_load_dwordx4 v{vK0+k}, s[{dK}:{dK+3}], s{sTmp} offen offset:{1024*k} {pol} lds')
            elif kind=='V':
                if k==0: a(f's_add_u32 s{sTmp}, s{sVo}, {4096*sb}')
                a(f'buffer_load_dwordx4 v{vV0+(k&1)}, s[{dV}:{dV+3}], s{sTmp} offen offset:{1024*k} {pol} lds')
            elif kind in('WQ0','WQ1'):
                n+=8*(kind=='WQ1')
                a(f's_add_u32 s{sTmp}, s{sTmp2}, {262144*n-1024*k}')
                a(f'buffer_load_dwordx4 v{vWQ}, s[{dWQ}:{dWQ+3}], s{sTmp} offen offset:{1024*k} {wpol} lds')
            elif kind in('G','U'):
                d=dWG if kind=='G' else dWU
                a(f's_add_u32 s{sTmp}, s{sCnt}, {64*3584*n-1024*k}')
                a(f'buffer_load_dwordx4 v{vFF}, s[{d}:{d+3}], s{sTmp} offen offset:{1024*k} {wpol} lds')
        issued[0]+=4
    a(f's_lshl_b32 s{sTmp2}, s{sU}, 5\ns_lshl_b32 s{sCnt}, s{sF}, 4')
    barrier_done=False
    for g,kind in enumerate(['WQ0','WQ1','G','K','U']):
        for sb in range(2):
            if issued[0]>N-4 and not barrier_done:
                a('s_barrier'); barrier_done=True
            pace(); sub(kind,g,sb)
        if kind=='K': a(f's_add_u32 s{sKo}, s{sKo}, 8192')
    assert barrier_done
    assert (N-4)%4==0
    a(f's_mov_b32 s{sG}, 5\ns_mov_b32 s{sSlot}, {5*SLOT}\ns_mov_b32 s{sMin}, 0\ns_mov_b32 s{sCnt}, 63')
    def relcheck():
        ok=lab('rok'); p=lab('rp')
        a(f's_sub_i32 s{sGmR}, s{sG}, {R}\ns_cmp_gt_i32 s{sMin}, s{sGmR}\ns_cbranch_scc1 {ok}')
        a(f'{p}:\nds_read_b128 v[16:19], v{vRA}'); timeout()
        a(f's_waitcnt lgkmcnt(0)\nv_min3_i32 v16, v16, v17, v18\nv_min_i32 v16, v16, v19\nv_readfirstlane_b32 s{sMin}, v16\ns_cmp_gt_i32 s{sMin}, s{sGmR}\ns_cbranch_scc0 {p}\n{ok}:')
    def dyn_group(kind):
        relcheck()
        so=sKo if kind=='K' else sVo
        for sb in range(2):
            a(f's_waitcnt vmcnt({N-4})')
            if (4*sb-(N-4))%8==0:
                back=((N-4)-4*sb)//8
                a(f's_sub_u32 s{sTmp}, s{sG}, {back}\nv_mov_b32 v{vF}, s{sTmp}\nds_write_b32 v{vFA}, v{vF}')
            if sb==0: a(f's_mov_b32 m0, s{sSlot}')
            else: a(f's_add_u32 m0, s{sSlot}, 4096')
            a(f's_add_u32 s{sTmp}, s{so}, {4096*sb}')
            for k in range(4):
                if kind=='K': a(f'buffer_load_dwordx4 v{vK0+k}, s[{dK}:{dK+3}], s{sTmp} offen offset:{1024*k} {pol} lds')
                else: a(f'buffer_load_dwordx4 v{vV0+(k&1)}, s[{dV}:{dV+3}], s{sTmp} offen offset:{1024*k} {pol} lds')
        a(f's_add_u32 s{so}, s{so}, 8192\ns_add_u32 s{sG}, s{sG}, 1\ns_add_u32 s{sSlot}, s{sSlot}, {SLOT}\ns_cmp_eq_u32 s{sSlot}, {RING}\ns_cselect_b32 s{sSlot}, 0, s{sSlot}')
    a('L_lloop:')
    dyn_group('K'); dyn_group('V')
    a(f's_sub_u32 s{sCnt}, s{sCnt}, 1\ns_cmp_lg_u32 s{sCnt}, 0\ns_cbranch_scc1 L_lloop')
    a(f's_mov_b32 s{sG}, 132'); relcheck()
    seq=[129,130];
    def pubv(v): a(f'v_mov_b32 v{vF}, {v}\nds_write_b32 v{vFA}, v{vF}')
    tot=8*131
    last=None
    for sb in range(2):
        a(f's_waitcnt vmcnt({N-4})')
        g=(tot-(N-4))//8
        if g!=last and (tot-(N-4))%8==0: pubv(g); last=g
        a(f's_mov_b32 m0, {(132%R)*SLOT+4096*sb:#x}\ns_add_u32 s{sTmp}, s{sVo}, {4096*sb}')
        for k in range(4): a(f'buffer_load_dwordx4 v{vV0+(k&1)}, s[{dV}:{dV+3}], s{sTmp} offen offset:{1024*k} {pol} lds')
        tot+=4
    stamp(1)
    for left in range(((N-4)//8)*8,-1,-8):
        g=(tot-left)//8
        a(f's_waitcnt vmcnt({left})'); pubv(133 if left==0 else (132 if g==131 else g))
    stamp(2)
    stamp_out(dWSl)
    a('s_endpgm')
    a('L_cons:')
    vFA,vRA,vKp,vVp,vM,vMb,vL,vTm=4,5,6,7,8,9,10,11
    vQ=12; vO=28; vK=60; vV=92; vS=124; vA=132; vP=140; vT=144; vAd=148; vL16=156
    dWS,dX,dWD,dWO,dOUT=28,32,36,40,44
    a(f's_sub_u32 s{sCw}, s{sW}, 1')
    a(f'v_mov_b32 v{vFA}, {L_FULL}\ns_lshl_b32 s{sTmp}, s{sCw}, 2\ns_add_u32 s{sTmp}, s{sTmp}, {L_REL}\nv_mov_b32 v{vRA}, s{sTmp}')
    a(f's_lshl_b32 s{sG}, s{sCw}, 1\ns_add_u32 s{sG}, s{sG}, 3')
    a(f's_lshl_b32 s{sTmp}, s{sCw}, 1\ns_cmp_ge_u32 s{sCw}, 2\ns_cselect_b32 s{sTmp}, s{sG}, s{sTmp}\nv_mov_b32 v1, s{sTmp}\nds_write_b32 v{vRA}, v1')
    a(f'v_mov_b32 v1, 0\nds_write_b32 v{vFA}, v1 offset:4')
    a(f's_mov_b32 s{sScale}, {SCALE:#x}\ns_mov_b32 s{sL2e}, {LOG2E:#x}')
    a(f'v_xor_b32 v{vKp}, v2, v3\nv_lshlrev_b32 v{vKp}, 4, v{vKp}\nv_lshl_add_u32 v{vKp}, v3, 8, v{vKp}')
    a(f'v_lshrrev_b32 v1, 2, v3\nv_lshl_add_u32 v1, v2, 2, v1\nv_and_b32 v{vVp}, 7, v1\nv_lshlrev_b32 v{vVp}, 5, v{vVp}\nv_lshl_add_u32 v{vVp}, v1, 8, v{vVp}\nv_and_b32 v{vTm}, 3, v0\nv_lshl_add_u32 v{vVp}, v{vTm}, 3, v{vVp}')
    a(f'v_lshlrev_b32 v{vL16}, 4, v0')
    a('s_waitcnt lgkmcnt(0)')
    a(f's_load_dword s{sT}, s[{pWS}:{pWS+1}], 0')
    a(f's_lshl_b32 s{sTmp}, s{sU}, 2\ns_load_dword s{sXf}, s[{pX}:{pX+1}], s{sTmp}')
    srd(dWS,pWS,WS_SZ); srd(dX,pX,1024); srd(dWD,pWD,1792*512*2); srd(dWO,pWO,4096*512*2); srd(dOUT,pOUT,1024)
    stamp(0)
    a(f's_cmp_ge_u32 s{sCw}, 2\ns_cbranch_scc1 L_idle')
    vx=vK; vxf=vK+4; vWD=vO; vAf=vV
    a(f'buffer_load_dwordx4 v[{vx}:{vx+3}], v{vL16}, s[{dX}:{dX+3}], 0 offen')
    a(f's_cmp_eq_u32 s{sCw}, 0\ns_cbranch_scc1 L_nowd')
    a(f's_lshl_b32 s{sTmp}, s{sF}, 13\ns_cmp_lt_u32 s{sF}, 224\ns_cselect_b32 s{sTmp}, s{sTmp}, 0x10000000\ns_add_u32 s{sTmp2}, s{sTmp}, 4096')
    for j in range(8): a(f'buffer_load_dwordx4 v[{vWD+4*j}:{vWD+4*j+3}], v{vL16}, s[{dWD}:{dWD+3}], s{sTmp if j<4 else sTmp2} offen offset:{1024*(j&3)} {wpol}')
    a('s_barrier\ns_waitcnt vmcnt(8) lgkmcnt(0)\ns_branch L_ln')
    a('L_nowd:\ns_barrier\ns_waitcnt vmcnt(0) lgkmcnt(0)\nL_ln:')
    a(f's_add_u32 s{sT}, s{sT}, 1')
    stamp(1)
    for j in range(4): a(f'v_lshlrev_b32 v{vxf+2*j}, 16, v{vx+j}\nv_and_b32 v{vxf+2*j+1}, 0xffff0000, v{vx+j}')
    t0=vxf+8; t1=t0+1; t2=t0+2; vd=t0+4
    a(f'v_add_f32 v{t0}, v{vxf}, v{vxf+1}\nv_add_f32 v{t1}, v{vxf+2}, v{vxf+3}\nv_add_f32 v{t2}, v{vxf+4}, v{vxf+5}\nv_add_f32 v{t0}, v{t0}, v{t1}\nv_add_f32 v{t1}, v{vxf+6}, v{vxf+7}\nv_add_f32 v{t0}, v{t0}, v{t2}\nv_add_f32 v{t0}, v{t0}, v{t1}')
    allred('v_add_f32',[t0],[t1])
    a(f'v_mul_f32 v{t0}, {f2u(1/512.):#x}, v{t0}')
    for j in range(8): a(f'v_sub_f32 v{vd+j}, v{vxf+j}, v{t0}')
    a(f'v_mul_f32 v{t2}, v{vd}, v{vd}')
    for j in range(1,8): a(f'v_fmac_f32 v{t2}, v{vd+j}, v{vd+j}')
    allred('v_add_f32',[t2],[t1])
    a(f'v_mul_f32 v{t2}, {f2u(1/512.):#x}, v{t2}')
    bfr(t0,t0); bfr(t2,t2)
    a(f'v_add_f32 v{t2}, {f2u(1e-5):#x}, v{t2}'); bfr(t2,t2)
    a(f'v_sqrt_f32 v{t2}, v{t2}'); bfr(t2,t2)
    a(f'v_rcp_f32 v{t2}, v{t2}')
    for j in range(8): a(f'v_sub_f32 v{vd+j}, v{vxf+j}, v{t0}')
    for j in range(4): a(f'v_cvt_pk_bf16_f32 v{vx+j}, v{vd+2*j}, v{vd+2*j+1}')
    for j in range(4): a(f'v_lshlrev_b32 v{vd+2*j}, 16, v{vx+j}\nv_and_b32 v{vd+2*j+1}, 0xffff0000, v{vx+j}')
    for j in range(8): a(f'v_mul_f32 v{vd+j}, v{vd+j}, v{t2}')
    for j in range(4): a(f'v_cvt_pk_bf16_f32 v{vx+j}, v{vd+2*j}, v{vd+2*j+1}')
    a(f's_lshl_b32 s{sTmp}, s{sCw}, 10\ns_add_u32 s{sTmp}, s{sTmp}, {L_XN}\nv_add_u32 v{t0}, s{sTmp}, v{vL16}\nds_write_b128 v{t0}, v[{vx}:{vx+3}]')
    a(f'v_lshl_add_u32 v{t0}, v2, 3, s{sTmp}')
    for j in range(16):
        if j==12: a('s_waitcnt lgkmcnt(4)')
        a(f'ds_read2_b64 v[{vAf+4*j}:{vAf+4*j+3}], v{t0} offset0:{8*j} offset1:{8*j+4}')
    vBf=vK; vD=vQ
    def gemv(vpat, stride, j0, j1):
        def rd(j):
            b=vBf+4*(j%8)
            a(f'ds_read_b64_tr_b16 v[{b}:{b+1}], v{vpat} offset:{stride*j}\nds_read_b64_tr_b16 v[{b+2}:{b+3}], v{vpat} offset:{stride*j+stride//2}')
        for j in range(j0,min(j0+5,j1)): rd(j)
        for j in range(j0,j1):
            if j+5<j1: rd(j+5)
            a(f's_waitcnt lgkmcnt({2*(min(j+5,j1-1)-j)})')
            b=vBf+4*(j%8)
            a(f'v_mfma_f32_16x16x32_bf16 v[{vD}:{vD+3}], v[{vAf+4*j}:{vAf+4*j+3}], v[{b}:{b+3}], '+('0' if j==0 else f'v[{vD}:{vD+3}]'))
    vpt=vQ+4; w0,w1,w2,w3=vQ+8,vQ+9,vQ+10,vQ+11
    a(f's_cmp_eq_u32 s{sCw}, 0\ns_cbranch_scc0 L_ffn')
    a(f'v_lshlrev_b32 v{vpt}, 5, v1\nv_lshl_add_u32 v{vpt}, v{vTm}, 3, v{vpt}')
    stamp(2)
    wait_full(('i',0),w0,vFA); gemv(vpt,1024,0,8)
    wait_full(('i',1),w0,vFA); stamp(3); gemv(vpt,1024,8,16)
    a(f'v_mov_b32 v{w0}, 3\nds_write_b32 v{vRA}, v{w0}')
    a(f'v_mov_b32_dpp v{w1}, v{vD} quad_perm:[1,0,3,2] row_mask:0xf bank_mask:0xf\nv_cvt_pk_bf16_f32 v{w0}, v{vD}, v{w1}\nv_mov_b32 v{w1}, s{sT}\nv_mov_b32 v{w3}, s{sT}')
    a(f'v_mov_b32_dpp v{w2}, v{w0} quad_perm:[2,3,0,1] row_mask:0xf bank_mask:0xf')
    a(f's_lshl_b32 s{sTmp}, s{sU}, 6\ns_add_u32 s{sTmp}, s{sTmp}, {W_QG:#x}\nv_lshlrev_b32 v{vpt}, 2, v0\ns_mov_b64 exec, 0x1111')
    a(f'buffer_store_dwordx4 v[{w0}:{w3}], v{vpt}, s[{dWS}:{dWS+3}], s{sTmp} offen sc1\ns_mov_b64 exec, -1')
    stamp(4)
    a(f's_lshl_b32 s{sTmp}, s{sH}, 11\ns_add_u32 s{sTmp}, s{sTmp}, {W_QG:#x}')
    a('L_qpoll:')
    a(f'buffer_load_dwordx4 v[{vK}:{vK+3}], v{vL16}, s[{dWS}:{dWS+3}], s{sTmp} offen sc1\nbuffer_load_dwordx4 v[{vK+4}:{vK+7}], v{vL16}, s[{dWS}:{dWS+3}], s{sTmp} offen offset:1024 sc1')
    timeout()
    a('s_waitcnt vmcnt(0)')
    for i,t in enumerate((vK+1,vK+3,vK+5,vK+7)): a(TAGCHK(w0,t,i==0))
    a(f'v_cmp_ne_u32 vcc, 0, v{w0}\ns_cbranch_vccnz L_qpoll')
    a(f'v_lshlrev_b32 v{vpt}, 3, v0\nv_add_u32 v{vpt}, {L_Q}, v{vpt}\nds_write2_b32 v{vpt}, v{vK}, v{vK+2} offset0:0 offset1:1\nds_write2_b32 v{vpt}, v{vK+4}, v{vK+6} offset0:128 offset1:129')
    a(f'v_mov_b32 v{w0}, 1\nds_write_b32 v{vFA}, v{w0} offset:4')
    stamp(5)
    a('s_branch L_qready')
    a('L_ffn:')
    a(f's_cmp_lt_u32 s{sF}, 224\ns_cbranch_scc0 L_ffn_skip')
    a(f'v_and_b32 v{w0}, 1, v0\nv_lshlrev_b32 v{vpt}, 4, v1\nv_lshl_add_u32 v{vpt}, v{w0}, 3, v{vpt}\nv_and_b32 v{w0}, 2, v0\nv_lshl_add_u32 v{vpt}, v{w0}, 13, v{vpt}\nv_add_u32 v{vpt}, {2*SLOT}, v{vpt}')
    stamp(2)
    wait_full(('i',4),w0,vFA); stamp(3); gemv(vpt,512,0,16)
    a(f'v_mov_b32 v{w0}, 5\nds_write_b32 v{vRA}, v{w0}')
    bfr(w0,vD)
    k1=-2*0.7978845608028654*1.4426950408889634
    a(f'v_mul_f32 v{w1}, v{w0}, v{w0}\nv_mul_f32 v{w1}, {f2u(0.044715):#x}, v{w1}\nv_fma_f32 v{w1}, v{w1}, v{w0}, v{w0}\nv_mul_f32 v{w1}, {f2u(k1):#x}, v{w1}\nv_exp_f32 v{w1}, v{w1}\nv_add_f32 v{w1}, 1.0, v{w1}\nv_rcp_f32 v{w1}, v{w1}\nv_mul_f32 v{w1}, v{w0}, v{w1}')
    bfr(w1,w1)
    a(f'v_mov_b32_dpp v{w2}, v{w0} row_ror:8 row_mask:0xf bank_mask:0xf\nv_mul_f32 v{w1}, v{w1}, v{w2}'); bfr(w1,w1)
    a('s_waitcnt vmcnt(0)')
    acc=vK; un=vK+16
    for k in range(4): a(f'v_mov_b32 v{acc+4*k}, 0\nv_mov_b32 v{acc+4*k+1}, s{sT}\nv_mov_b32 v{acc+4*k+2}, 0\nv_mov_b32 v{acc+4*k+3}, s{sT}')
    for j in range(8):
        for k in range(4): a(f'v_lshlrev_b32 v{un+2*k}, 16, v{vWD+4*j+k}\nv_and_b32 v{un+2*k+1}, 0xffff0000, v{vWD+4*j+k}')
        for k in range(8): a(f'v_fmac_f32_dpp v{acc+2*k}, v{w1}, v{un+k} row_newbcast:{j} row_mask:0xf bank_mask:0xf')
    a(f's_lshl_b32 s{sTmp}, s{sF}, 12\ns_add_u32 s{sTmp}, s{sTmp}, {W_B3:#x}')
    for k in range(4): a(f'buffer_store_dwordx4 v[{acc+4*k}:{acc+4*k+3}], v{vL16}, s[{dWS}:{dWS+3}], s{sTmp} offen offset:{1024*k} sc1')
    stamp(4)
    a('s_branch L_waitq')
    a(f'L_ffn_skip:\nv_mov_b32 v{w0}, 5\nds_write_b32 v{vRA}, v{w0}\ns_waitcnt vmcnt(0)\ns_branch L_waitq')
    a(f'L_idle:\ns_barrier\ns_waitcnt lgkmcnt(0)\ns_add_u32 s{sT}, s{sT}, 1')
    a('L_waitq:')
    a(f'ds_read_b32 v{w0}, v{vFA} offset:4'); timeout()
    a(f's_waitcnt lgkmcnt(0)\nv_readfirstlane_b32 s{sTmp}, v{w0}\ns_cmp_eq_u32 s{sTmp}, 1\ns_cbranch_scc0 L_waitq')
    a('L_qready:')
    a(f'v_lshlrev_b32 v{vT}, 8, v{vTm}\nv_lshl_add_u32 v{vT}, v2, 4, v{vT}\nv_add_u32 v{vT}, {L_Q}, v{vT}')
    for s in range(4): a(f'ds_read_b128 v[{vQ+4*s}:{vQ+4*s+3}], v{vT} offset:{64*s}')
    for i in range(32): a(f'v_mov_b32 v{vO+i}, 0')
    a(f'v_mov_b32 v{vM}, 0xff800000\nv_mov_b32 v{vMb}, 0\nv_mov_b32 v{vL}, 0')
    a(f's_lshl_b32 s{sSlot}, s{sG}, 13\ns_add_u32 s{sSlotV}, s{sSlot}, {3*SLOT}\ns_mov_b32 s{sCnt}, 16')
    stamp(6)
    a('L_step:')
    wait_full(('s',sG),vT,vFA)
    a(f'v_add_u32 v{vAd+4}, s{sSlot}, v{vKp}')
    for s in (1,2,3): a(f'v_xor_b32 v{vAd+4+s}, {64*s}, v{vAd+4}')
    for t in range(2):
        for s in range(4): a(f'ds_read_b128 v[{vK+16*t+4*s}:{vK+16*t+4*s+3}], v{vAd+4+s} offset:{4096*t}')
    a(f's_add_u32 s{sG}, s{sG}, 3\nv_mov_b32 v{vT}, s{sG}')
    for t in range(2):
        a(f's_waitcnt lgkmcnt({4-4*t})')
        if t==1: a(f'ds_write_b32 v{vRA}, v{vT}')
        for s in range(4):
            a(f'v_mfma_f32_16x16x32_bf16 v[{vS+4*t}:{vS+4*t+3}], v[{vK+16*t+4*s}:{vK+16*t+4*s+3}], v[{vQ+4*s}:{vQ+4*s+3}], '+('0' if s==0 else f'v[{vS+4*t}:{vS+4*t+3}]'))
    vVa=vK
    a(f'v_add_u32 v{vAd+1}, s{sSlotV}, v{vVp}')
    for j in range(4): a(f'v_cvt_pk_bf16_f32 v{vP+j}, v{vS+2*j}, v{vS+2*j+1}')
    for j in range(4): a(f'v_lshlrev_b32 v{vA+2*j}, 16, v{vP+j}\nv_and_b32 v{vA+2*j+1}, 0xffff0000, v{vP+j}')
    for j in range(8): a(f'v_mul_f32 v{vA+j}, s{sScale}, v{vA+j}')
    for j in range(4): a(f'v_cvt_pk_bf16_f32 v{vP+j}, v{vA+2*j}, v{vA+2*j+1}')
    for j in range(4): a(f'v_lshlrev_b32 v{vA+2*j}, 16, v{vP+j}\nv_and_b32 v{vA+2*j+1}, 0xffff0000, v{vP+j}')
    a(f'v_max3_f32 v{vT}, v{vA}, v{vA+1}, v{vA+2}\nv_max3_f32 v{vT+1}, v{vA+3}, v{vA+4}, v{vA+5}\nv_max3_f32 v{vT+2}, v{vA+6}, v{vA+7}, v{vM}\nv_max3_f32 v{vT}, v{vT}, v{vT+1}, v{vT+2}')
    allred('v_max_f32',[vT],[vT+1],lo=())
    for db in range(1,8): a(f'v_xor_b32 v{vVa+db}, {32*db}, v{vAd+1}')
    a(f'v_cmp_gt_f32 vcc, v{vT}, v{vM}\ns_cbranch_vccz L_norescale')
    a(f'v_sub_f32 v{vT+1}, v{vM}, v{vT}\nv_mul_f32 v{vT+1}, s{sL2e}, v{vT+1}\nv_exp_f32 v{vT+1}, v{vT+1}\nv_mov_b32 v{vM}, v{vT}\nv_mul_f32 v{vMb}, s{sL2e}, v{vT}\nv_mul_f32 v{vL}, v{vL}, v{vT+1}')
    for i in range(32): a(f'v_mul_f32 v{vO+i}, v{vO+i}, v{vT+1}')
    a('L_norescale:')
    for j in range(8): a(f'v_fma_f32 v{vA+j}, v{vA+j}, s{sL2e}, -v{vMb}')
    for j in range(8): a(f'v_exp_f32 v{vA+j}, v{vA+j}')
    for j in range(4): a(f'v_cvt_pk_bf16_f32 v{vP+j}, v{vA+2*j}, v{vA+2*j+1}')
    a(f'v_add_f32 v{vT}, v{vA}, v{vA+1}\nv_add_f32 v{vT+1}, v{vA+2}, v{vA+3}\nv_add_f32 v{vT+2}, v{vA+4}, v{vA+5}\nv_add_f32 v{vT+3}, v{vA+6}, v{vA+7}')
    a(f'v_add_f32 v{vT}, v{vT}, v{vT+1}\nv_add_f32 v{vT+2}, v{vT+2}, v{vT+3}\nv_add_f32 v{vT}, v{vT}, v{vT+2}\nv_add_f32 v{vL}, v{vL}, v{vT}')
    wait_full(('s',sG),vT,vFA)
    def rdv(db):
        ad=vAd+1 if db==0 else vVa+db
        a(f'ds_read_b64_tr_b16 v[{vV+4*db}:{vV+4*db+1}], v{ad}\nds_read_b64_tr_b16 v[{vV+4*db+2}:{vV+4*db+3}], v{ad} offset:4096')
    for db in range(6): rdv(db)
    a(f's_add_u32 s{sG}, s{sG}, 5\nv_mov_b32 v{vT}, s{sG}')
    for db in range(8):
        a(f's_waitcnt lgkmcnt({2*(min(db+5,7)-db)})')
        if db==7: a(f'ds_write_b32 v{vRA}, v{vT}')
        a(f'v_mfma_f32_16x16x32_bf16 v[{vO+4*db}:{vO+4*db+3}], v[{vV+4*db}:{vV+4*db+3}], v[{vP}:{vP+3}], v[{vO+4*db}:{vO+4*db+3}]')
        if db+6<8: rdv(db+6)
    for sl in (sSlot,sSlotV):
        a(f's_add_u32 s{sl}, s{sl}, {8*SLOT}\ns_sub_u32 s{sTmp}, s{sl}, {RING}\ns_cselect_b32 s{sl}, s{sl}, s{sTmp}')
    a(f's_sub_u32 s{sCnt}, s{sCnt}, 1\ns_cmp_lg_u32 s{sCnt}, 0\ns_cbranch_scc1 L_step')
    stamp(7)
    slotc=lambda c:((123+2*c)%R)*SLOT
    assert [slotc(c) for c in range(4)]==[slotc(0)+2*SLOT*c for c in range(4)]
    allred('v_add_f32',[vL],[vT],lo=())
    a(f's_lshl_b32 s{sTmp}, s{sCw}, 14\ns_add_u32 s{sTmp}, s{sTmp}, {slotc(0)}')
    a(f'v_lshlrev_b32 v{vT}, 9, v3\nv_lshl_add_u32 v{vT}, v2, 4, v{vT}\nv_add_u32 v{vT}, s{sTmp}, v{vT}')
    a(f'v_lshl_add_u32 v{vT+1}, v3, 3, s{sTmp}\nv_mov_b32 v{vMb}, v{vL}')
    a('s_mov_b32 exec_lo, 0x000f000f\ns_mov_b32 exec_hi, 0x000f000f')
    for db in range(8): a(f'ds_write_b128 v{vT}, v[{vO+4*db}:{vO+4*db+3}] offset:{64*db}')
    a(f'ds_write_b64 v{vT+1}, v[{vM}:{vM+1}] offset:2048\ns_mov_b64 exec, -1')
    wait_full(('i',129),vT,vFA)
    vWO=vK; vWf=vV; vB3=vQ
    a(f's_lshl_b32 s{sTmp}, s{sH}, 5\ns_add_u32 s{sTmp}, s{sTmp}, s{sC}\ns_lshl_b32 s{sTmp}, s{sTmp}, 14\ns_lshl_b32 s{sTmp2}, s{sCw}, 8\ns_add_u32 s{sTmp}, s{sTmp}, s{sTmp2}\nv_lshlrev_b32 v{vT}, 2, v0')
    for i in range(16):
        a(f'buffer_load_dword v{vWO+i}, v{vT}, s[{dWO}:{dWO+3}], s{sTmp} offen offset:{1024*(i&3)} {wpol}')
        if i&3==3 and i<15: a(f's_add_u32 s{sTmp}, s{sTmp}, 4096')
    a('s_waitcnt lgkmcnt(0)\ns_barrier')
    stamp(8)
    a(f's_lshl_b32 s{sTmp}, s{sCw}, 3\ns_add_u32 s{sTmp}, s{sTmp}, {slotc(0)+2048}\nv_mov_b32 v{vT}, s{sTmp}')
    a(f's_lshl_b32 s{sTmp}, s{sCw}, 9\ns_add_u32 s{sTmp}, s{sTmp}, {slotc(0)}\nv_lshl_add_u32 v{vT+1}, v0, 3, s{sTmp}')
    vml=vS; vo2=vA
    for w in range(4): a(f'ds_read_b64 v[{vml+2*w}:{vml+2*w+1}], v{vT} offset:{2*SLOT*w}')
    for w in range(4): a(f'ds_read_b64 v[{vo2+2*w}:{vo2+2*w+1}], v{vT+1} offset:{2*SLOT*w}')
    r=vO
    a(f'v_mov_b32 v{r+1}, s{sT}\nv_mov_b32 v{r+3}, s{sT}\nv_mov_b32 v{r+5}, s{sT}\nv_mov_b32 v{r+7}, s{sT}')
    a(f's_lshl_b32 s{sTmp}, s{sH}, 5\ns_add_u32 s{sTmp}, s{sTmp}, s{sC}\ns_lshl_b32 s{sTmp2}, s{sTmp}, 7\ns_lshl_b32 s{sTmp}, s{sTmp}, 12')
    a(f's_lshl_b32 s{sCnt}, s{sCw}, 10\ns_add_u32 s{sTmp}, s{sTmp}, s{sCnt}\ns_add_u32 s{sTmp}, s{sTmp}, {W_P2:#x}')
    a(f's_lshl_b32 s{sCnt}, s{sCw}, 4\ns_add_u32 s{sTmp2}, s{sTmp2}, s{sCnt}\ns_add_u32 s{sTmp2}, s{sTmp2}, {W_ML:#x}')
    a(f's_waitcnt lgkmcnt(4)\nv_max3_f32 v{r+4}, v{vml}, v{vml+2}, v{vml+4}\nv_max_f32 v{r+4}, v{r+4}, v{vml+6}')
    for w in range(4): a(f'v_sub_f32 v{vml+2*w}, v{vml+2*w}, v{r+4}')
    for w in range(4): a(f'v_mul_f32 v{vml+2*w}, s{sL2e}, v{vml+2*w}')
    for w in range(4): a(f'v_exp_f32 v{vml+2*w}, v{vml+2*w}')
    a(f's_waitcnt lgkmcnt(0)\nv_mul_f32 v{r}, v{vml}, v{vo2}\nv_mul_f32 v{r+2}, v{vml}, v{vo2+1}\nv_mul_f32 v{r+6}, v{vml}, v{vml+1}')
    for w in range(1,4): a(f'v_fmac_f32 v{r}, v{vml+2*w}, v{vo2+2*w}\nv_fmac_f32 v{r+2}, v{vml+2*w}, v{vo2+2*w+1}\nv_fmac_f32 v{r+6}, v{vml+2*w}, v{vml+2*w+1}')
    a(f'buffer_store_dwordx4 v[{r}:{r+3}], v{vL16}, s[{dWS}:{dWS+3}], s{sTmp} offen sc1')
    a(f's_mov_b64 exec, 1\nbuffer_store_dwordx4 v[{r+4}:{r+7}], off, s[{dWS}:{dWS+3}], s{sTmp2} sc1\ns_mov_b64 exec, -1')
    stamp(9)
    def unpack_wo():
        for i in range(16): a(f'v_lshlrev_b32 v{vWf+2*i}, 16, v{vWO+i}\nv_and_b32 v{vWf+2*i+1}, 0xffff0000, v{vWO+i}')
    a(f's_cmp_eq_u32 s{sCw}, 0\ns_cbranch_scc1 L_st2\ns_cmp_eq_u32 s{sCw}, 1\ns_cbranch_scc1 L_b3')
    a('s_waitcnt vmcnt(2)'); a('s_branch L_unp')
    a('L_b3:')
    vb=vO+8
    a(f's_and_b32 s{sTmp}, s{sU}, 3\ns_lshl_b32 s{sTmp}, s{sTmp}, 10\ns_lshr_b32 s{sTmp2}, s{sU}, 2\ns_lshl_b32 s{sTmp2}, s{sTmp2}, 4\ns_add_u32 s{sTmp}, s{sTmp}, s{sTmp2}\ns_add_u32 s{sKo}, s{sTmp}, {W_B3:#x}')
    a(f'v_lshlrev_b32 v{vT}, 12, v0\nv_mov_b32 v{vb+12}, 0\nv_mov_b32 v{vb+13}, s{sT}\nv_mov_b32 v{vb+14}, 0\nv_mov_b32 v{vb+15}, s{sT}')
    a('L_b3poll:')
    for i in range(4):
        a(f's_add_u32 s{sTmp}, s{sKo}, {0x40000*i:#x}')
        if i==3: a('s_mov_b32 exec_hi, 0')
        a(f'buffer_load_dwordx4 v[{vb+4*i}:{vb+4*i+3}], v{vT}, s[{dWS}:{dWS+3}], s{sTmp} offen sc1')
    a('s_mov_b64 exec, -1'); timeout()
    a('s_waitcnt vmcnt(0)')
    for i in range(8): a(TAGCHK(vT+1,vb+2*i+1,i==0))
    a(f'v_cmp_ne_u32 vcc, 0, v{vT+1}\ns_cbranch_vccnz L_b3poll')
    g0,g1=vM,vMb
    a(f'v_add_f32 v{g0}, v{vb}, v{vb+4}\nv_add_f32 v{g1}, v{vb+2}, v{vb+6}\nv_add_f32 v{vb+8}, v{vb+8}, v{vb+12}\nv_add_f32 v{vb+10}, v{vb+10}, v{vb+14}\nv_add_f32 v{g0}, v{g0}, v{vb+8}\nv_add_f32 v{g1}, v{g1}, v{vb+10}')
    allred('v_add_f32',[g0,g1],[vT+1,vT+2])
    for g,t in ((g0,vT+1),(g1,vT+2)):
        bfr(g,g)
        a(f'v_mul_f32 v{t}, s{sL2e}, v{g}\nv_exp_f32 v{t}, -v{t}\nv_add_f32 v{t}, 1.0, v{t}\nv_rcp_f32 v{t}, v{t}\nv_mul_f32 v{g}, v{g}, v{t}')
        bfr(g,g)
    stamp(10)
    a('s_branch L_unp')
    a('L_st2:')
    po=vO+8; pm=vS
    a(f'v_lshrrev_b32 v{vT}, 3, v0\nv_and_b32 v{vT+1}, 7, v0\nv_lshlrev_b32 v{vT+2}, 7, v{vT}\nv_lshlrev_b32 v{vT}, 12, v{vT}\nv_lshl_add_u32 v{vT}, v{vT+1}, 4, v{vT}')
    a(f's_lshl_b32 s{sKo}, s{sH}, 17\ns_lshl_b32 s{sTmp}, s{sC}, 7\ns_add_u32 s{sKo}, s{sKo}, s{sTmp}\ns_add_u32 s{sKo}, s{sKo}, {W_P2:#x}')
    a(f's_lshl_b32 s{sVo}, s{sH}, 12\ns_lshr_b32 s{sTmp}, s{sC}, 3\ns_lshl_b32 s{sTmp}, s{sTmp}, 4\ns_add_u32 s{sVo}, s{sVo}, s{sTmp}\ns_add_u32 s{sVo}, s{sVo}, {W_ML:#x}')
    a('s_waitcnt vmcnt(2)'); unpack_wo()
    a('L_s2poll:')
    for i in range(4):
        a(f's_add_u32 s{sTmp}, s{sKo}, {0x8000*i:#x}')
        a(f'buffer_load_dwordx4 v[{po+4*i}:{po+4*i+3}], v{vT}, s[{dWS}:{dWS+3}], s{sTmp} offen sc1')
        a(f'buffer_load_dwordx4 v[{pm+4*i}:{pm+4*i+3}], v{vT+2}, s[{dWS}:{dWS+3}], s{sVo} offen offset:{1024*i} sc1')
    timeout()
    a('s_waitcnt vmcnt(0)')
    for i in range(8): a(TAGCHK(vT+1,po+2*i+1,i==0))
    for i in range(8): a(TAGCHK(vT+1,pm+2*i+1,False))
    a(f'v_cmp_ne_u32 vcc, 0, v{vT+1}\ns_cbranch_vccnz L_s2poll')
    stamp(10)
    mx=vM
    a(f'v_max3_f32 v{mx}, v{pm}, v{pm+4}, v{pm+8}\nv_max_f32 v{mx}, v{mx}, v{pm+12}')
    allred('v_max_f32',[mx],[vT+1],lo=(8,))
    for i in range(4): a(f'v_sub_f32 v{pm+4*i}, v{pm+4*i}, v{mx}')
    for i in range(4): a(f'v_mul_f32 v{pm+4*i}, s{sL2e}, v{pm+4*i}')
    for i in range(4): a(f'v_exp_f32 v{pm+4*i}, v{pm+4*i}')
    o0,o1,ls=vO,vO+1,vO+2
    a(f'v_mul_f32 v{o0}, v{pm}, v{po}\nv_mul_f32 v{o1}, v{pm}, v{po+2}\nv_mul_f32 v{ls}, v{pm}, v{pm+2}')
    for i in range(1,4): a(f'v_fmac_f32 v{o0}, v{pm+4*i}, v{po+4*i}\nv_fmac_f32 v{o1}, v{pm+4*i}, v{po+4*i+2}\nv_fmac_f32 v{ls}, v{pm+4*i}, v{pm+4*i+2}')
    allred('v_add_f32',[o0,o1,ls],[vT+1,vT+2,vT+3],lo=(8,))
    a(f'v_rcp_f32 v{ls}, v{ls}\nv_and_b32 v{vT+1}, 7, v0\nv_lshlrev_b32 v{vT+1}, 3, v{vT+1}\nv_add_u32 v{vT+1}, {L_O16}, v{vT+1}\nv_mul_f32 v{o0}, v{o0}, v{ls}\nv_mul_f32 v{o1}, v{o1}, v{ls}')
    a(f'v_cvt_pk_bf16_f32 v{ls}, v{o0}, v{o1}\nv_lshlrev_b32 v{o0}, 16, v{ls}\nv_and_b32 v{o1}, 0xffff0000, v{ls}\nds_write_b64 v{vT+1}, v[{o0}:{o1}]')
    a('s_branch L_bar2')
    a('L_unp:'); unpack_wo()
    a('L_bar2:')
    a(f'v_lshlrev_b32 v{vT}, 2, v3\nv_add_u32 v{vT}, {L_O16}, v{vT}')
    a(f'v_mov_b32 v{r}, 0\nv_mov_b32 v{r+1}, s{sT}\nv_mov_b32 v{r+2}, 0\nv_mov_b32 v{r+3}, s{sT}')
    a(f's_lshl_b32 s{sTmp}, s{sB}, 12\ns_lshl_b32 s{sTmp2}, s{sCw}, 10\ns_add_u32 s{sTmp}, s{sTmp}, s{sTmp2}\ns_add_u32 s{sTmp}, s{sTmp}, {W_S3:#x}')
    a(f's_waitcnt lgkmcnt(0)\ns_barrier\nds_read_b32 v{vT+1}, v{vT}\ns_waitcnt lgkmcnt(0)')
    for i in range(16):
        a(f'v_fmac_f32_dpp v{r}, v{vT+1}, v{vWf+2*i} row_newbcast:{i} row_mask:0xf bank_mask:0xf\nv_fmac_f32_dpp v{r+2}, v{vT+1}, v{vWf+2*i+1} row_newbcast:{i} row_mask:0xf bank_mask:0xf')
    a(f'buffer_store_dwordx4 v[{r}:{r+3}], v{vL16}, s[{dWS}:{dWS+3}], s{sTmp} offen sc1')
    stamp(11)
    a(f's_cmp_eq_u32 s{sCw}, 1\ns_cbranch_scc0 L_fin')
    a(f's_lshl_b32 s{sKo}, s{sU}, 4\ns_add_u32 s{sKo}, s{sKo}, {W_S3:#x}\nv_lshlrev_b32 v{vT}, 12, v0')
    a('L_s3poll:')
    for i in range(4):
        a(f's_add_u32 s{sTmp}, s{sKo}, {0x40000*i:#x}')
        a(f'buffer_load_dwordx4 v[{vb+4*i}:{vb+4*i+3}], v{vT}, s[{dWS}:{dWS+3}], s{sTmp} offen sc1')
    timeout()
    a('s_waitcnt vmcnt(0)')
    for i in range(8): a(TAGCHK(vT+1,vb+2*i+1,i==0))
    a(f'v_cmp_ne_u32 vcc, 0, v{vT+1}\ns_cbranch_vccnz L_s3poll')
    stamp(12)
    s0,s1=vO,vO+1
    a(f'v_add_f32 v{s0}, v{vb}, v{vb+4}\nv_add_f32 v{s1}, v{vb+2}, v{vb+6}\nv_add_f32 v{vb+8}, v{vb+8}, v{vb+12}\nv_add_f32 v{vb+10}, v{vb+10}, v{vb+14}\nv_add_f32 v{s0}, v{s0}, v{vb+8}\nv_add_f32 v{s1}, v{s1}, v{vb+10}')
    allred('v_add_f32',[s0,s1],[vT+1,vT+2])
    a(f'v_cvt_pk_bf16_f32 v{vT}, v{s0}, v{s1}\nv_lshlrev_b32 v{s0}, 16, v{vT}\nv_and_b32 v{s1}, 0xffff0000, v{vT}\nv_mul_f32 v{s0}, v{s0}, v{g0}\nv_mul_f32 v{s1}, v{s1}, v{g1}')
    a(f'v_cvt_pk_bf16_f32 v{vT}, v{s0}, v{s1}\nv_lshlrev_b32 v{s0}, 16, v{vT}\nv_and_b32 v{s1}, 0xffff0000, v{vT}')
    a(f's_lshl_b32 s{sTmp}, s{sXf}, 16\ns_and_b32 s{sTmp2}, s{sXf}, 0xffff0000\nv_add_f32 v{s0}, s{sTmp}, v{s0}\nv_add_f32 v{s1}, s{sTmp2}, v{s1}\nv_cvt_pk_bf16_f32 v{vT}, v{s0}, v{s1}')
    a(f's_lshl_b32 s{sTmp}, s{sU}, 2\ns_mov_b64 exec, 1\nbuffer_store_dword v{vT}, off, s[{dOUT}:{dOUT+3}], s{sTmp}')
    a(f's_cmp_eq_u32 s{sU}, 0\ns_cbranch_scc0 L_fin\nv_mov_b32 v{vT+1}, s{sT}\nbuffer_store_dword v{vT+1}, off, s[{dWS}:{dWS+3}], 0')
    a('L_fin:')
    stamp(13)
    stamp_out(dWS)
    a('L_end:\ns_endpgm')
    n=a.fix()
    out=HDR+f'; @launch grid=(256,1,1) block=(320,1,1) lds=163840\n'
    out+=f'.amdgcn_target "amdgcn-amd-amdhsa--gfx950"\n.text\n.globl {NAME}\n.p2align 8\n.type {NAME},@function\n'
    out+=a.text()
    out+=f'''.section .rodata,"a"
.p2align 6
.amdhsa_kernel {NAME}
  .amdhsa_next_free_vgpr 160
  .amdhsa_next_free_sgpr 96
  .amdhsa_accum_offset 160
  .amdhsa_group_segment_fixed_size 0
  .amdhsa_kernarg_size 96
  .amdhsa_user_sgpr_count 2
  .amdhsa_user_sgpr_kernarg_segment_ptr 1
  .amdhsa_system_sgpr_workgroup_id_x 1
  .amdhsa_float_denorm_mode_32 3
.end_amdhsa_kernel
'''
    return out
if __name__=='__main__':
    kw=eval('dict(%s)'%(sys.argv[1] if len(sys.argv)>1 else ''))
    sys.stdout.write(gen(**kw))
```

```python
import sys, argparse, struct
from asmlib import Asm
NAME='recurrent_scan__gqa_block_cached__geglu_ffn__decode_kernel'
HDR=open('recurrent_scan__gqa_block_cached__geglu_ffn__decode.s.ref').read().split('; Override launch')[0]
def f2u(x): return struct.unpack('<I',struct.pack('<f',x))[0]
LOG2E=f2u(1.4426950408889634); SCALE=f2u(128**-0.5)
R=19; SLOT=8192; RING=R*SLOT
MISC=RING
L_FULL=MISC; L_QRDY=MISC+4; L_REL=MISC+16; L_O16=MISC+64; L_XN=MISC+1024; L_Q=MISC+3072
W_QG=0x1000; W_ML=0x10000; W_P2=0x100000; W_S3=0x200000; W_B3=0x300000; W_ST=0x400000; WS_SZ=0x480000
def gen(mapping='hx', N=20, diag=0, pol='nt', wpol='nt', rs=2):
    a=Asm()
    sB,sW=2,3
    pX,pK,pV,pWQ,pWO,pWG,pWU,pWD,pOUT,pWS=4,6,8,10,12,16,18,20,22,26
    sH,sC,sU,sF,sT,sTO=48,49,50,51,52,53
    sFull,sG,sSlot,sSlotV,sMin,sKo,sVo,sTmp,sTmp2,sCnt,sGmR=54,55,56,57,58,59,60,61,62,63,64
    sScale,sL2e,sMask,sXf,sCw=65,66,67,68,69
    sSt=70
    vSt=159
    uid=[0]
    def lab(p): uid[0]+=1; return f'L_{p}_{uid[0]}'
    def srd(d,p,size):
        a(f's_mov_b32 s{d}, s{p}\ns_mov_b32 s{d+1}, s{p+1}\ns_mov_b32 s{d+2}, {size:#x}\ns_mov_b32 s{d+3}, 0x20000')
    def stamp(k):
        if diag: a(f's_memrealtime s[{sSt}:{sSt+1}]\ns_waitcnt lgkmcnt(0)\nv_writelane_b32 v{vSt}, s{sSt}, {k}')
    def stamp_out(srd_ws):
        if diag:
            a(f's_mul_i32 s{sTmp}, s{sB}, 5\ns_add_u32 s{sTmp}, s{sTmp}, s{sW}\ns_lshl_b32 s{sTmp}, s{sTmp}, 8\ns_add_u32 s{sTmp}, s{sTmp}, {W_ST:#x}')
            a(f's_mov_b64 exec, -1\nv_lshlrev_b32 v1, 2, v0\nbuffer_store_dword v{vSt}, v1, s[{srd_ws}:{srd_ws+3}], s{sTmp} offen')
    def timeout():
        a(f's_sub_u32 s{sTO}, s{sTO}, 1\ns_cbranch_scc1 L_end')
    def wait_full(sreg_or_imm, vtmp, vaddr):
        ok=lab('fok'); p=lab('fp')
        x=f's{sreg_or_imm[1]}' if sreg_or_imm[0]=='s' else str(sreg_or_imm[1])
        a(f's_cmp_gt_u32 s{sFull}, {x}\ns_cbranch_scc1 {ok}')
        a(f'{p}:\nds_read_b32 v{vtmp}, v{vaddr}')
        timeout()
        a(f's_waitcnt lgkmcnt(0)\nv_readfirstlane_b32 s{sFull}, v{vtmp}\ns_cmp_gt_u32 s{sFull}, {x}\ns_cbranch_scc0 {p}\n{ok}:')
    def bfr(dst,src,tmp=None):
        a(f'v_cvt_pk_bf16_f32 v{dst}, v{src}, v{src}\nv_and_b32 v{dst}, 0xffff0000, v{dst}')
    def allred(op, vs, ts, lo=(8,4,2,1)):
        for r in lo:
            for v in vs: a(f'{op}_dpp v{v}, v{v}, v{v} row_ror:{r} row_mask:0xf bank_mask:0xf')
        for sw in (16,32):
            for v,t in zip(vs,ts): a(f'v_mov_b32 v{t}, v{v}')
            for v,t in zip(vs,ts): a(f'v_permlane{sw}_swap_b32 v{v}, v{t}')
            for v,t in zip(vs,ts): a(f'{op} v{v}, v{v}, v{t}')
    TAGCHK=lambda acc,t,first: (f'v_xor_b32 v{acc}, s{sT}, v{t}' if first else f'v_bitop3_b32 v{acc}, v{t}, s{sT}, v{acc} bitop3:0xbe')

    a(f'{NAME}:')
    a(f's_cmp_ge_u32 s{sB}, 256\ns_cbranch_scc1 L_end')
    a('s_load_dwordx16 s[4:19], s[0:1], 0\ns_load_dwordx8 s[20:27], s[0:1], 64')
    if diag: a(f'v_mov_b32 v{vSt}, 0')
    a(f'v_lshrrev_b32 v1, 6, v0\nv_and_b32 v0, 63, v0\nv_readfirstlane_b32 s{sW}, v1')
    a(f's_and_b32 s{sTmp}, s{sB}, 7\ns_lshr_b32 s{sTmp2}, s{sB}, 3')
    a(f's_lshl_b32 s{sU}, s{sTmp}, 5\ns_add_u32 s{sU}, s{sU}, s{sTmp2}')
    a(f's_mul_i32 s{sF}, s{sTmp}, 28\ns_add_u32 s{sF}, s{sF}, s{sTmp2}')
    a(f's_cmp_lt_u32 s{sTmp2}, 28\ns_cselect_b32 s{sF}, s{sF}, 0x100000')
    if mapping=='hx': a(f's_mov_b32 s{sH}, s{sTmp}\ns_mov_b32 s{sC}, s{sTmp2}')
    else: a(f's_lshr_b32 s{sH}, s{sB}, 5\ns_and_b32 s{sC}, s{sB}, 31')
    a(f's_mov_b32 s{sTO}, 200000\ns_mov_b32 s{sFull}, 0')
    a(f'v_lshrrev_b32 v2, 4, v0\nv_and_b32 v3, 15, v0')
    a(f's_cmp_lg_u32 s{sW}, 0\ns_cbranch_scc1 L_cons')
    vK0,vV0,vWQ,vFF,vFA,vRA,vF=4,8,10,11,12,13,14
    a('s_setprio 3')
    a(f'v_xor_b32 v{vK0}, v2, v3\nv_lshlrev_b32 v{vK0}, 4, v{vK0}\nv_lshl_add_u32 v{vK0}, v2, 8, v{vK0}')
    for k in (1,2,3): a(f'v_xor_b32 v{vK0+k}, {64*k}, v{vK0}')
    a(f'v_lshlrev_b32 v{vV0}, 1, v2\nv_xor_b32 v{vV0}, v{vV0}, v3\nv_lshlrev_b32 v{vV0}, 4, v{vV0}\nv_lshl_add_u32 v{vV0}, v2, 8, v{vV0}\nv_xor_b32 v{vV0+1}, 128, v{vV0}')
    a(f'v_lshrrev_b32 v{vWQ}, 1, v0\nv_lshlrev_b32 v{vWQ}, 13, v{vWQ}\nv_and_b32 v1, 1, v0\nv_lshl_add_u32 v{vWQ}, v1, 4, v{vWQ}')
    a(f'v_mul_u32_u24 v{vFF}, 3584, v0')
    a(f'v_mov_b32 v{vFA}, {L_FULL}\nv_mov_b32 v{vRA}, {L_REL}\nv_mov_b32 v{vF}, 0\nds_write_b32 v{vFA}, v{vF}')
    a(f's_lshl_b32 s{sKo}, s{sH}, 24\ns_lshl_b32 s{sTmp}, s{sC}, 19\ns_add_u32 s{sKo}, s{sKo}, s{sTmp}\ns_mov_b32 s{sVo}, s{sKo}')
    a('s_waitcnt lgkmcnt(0)')
    dK,dV,dWQ,dWG,dWU,dWSl=28,32,36,40,44,72
    srd(dWQ,pWQ,512*4096*2); srd(dK,pK,1<<27); srd(dV,pV,1<<27); srd(dWG,pWG,512*1792*2); srd(dWU,pWU,512*1792*2)
    if diag: srd(dWSl,pWS,WS_SZ)
    stamp(0)
    issued=[0]; pub=[0]
    def pace(static=True):
        if issued[0]>N-4:
            a(f's_waitcnt vmcnt({N-4})')
            g=(issued[0]-(N-4))//8
            if g>pub[0]:
                pub[0]=g
                a(f'v_mov_b32 v{vF}, {g}\nds_write_b32 v{vFA}, v{vF}')
    def sub(kind, g, sb):
        base=(g%R)*SLOT+4096*sb
        a(f's_mov_b32 m0, {base:#x}')
        for k in range(4):
            n=4*sb+k
            if kind=='K':
                if k==0: a(f's_add_u32 s{sTmp}, s{sKo}, {4096*sb}')
                a(f'buffer_load_dwordx4 v{vK0+k}, s[{dK}:{dK+3}], s{sTmp} offen offset:{1024*k} {pol} lds')
            elif kind=='V':
                if k==0: a(f's_add_u32 s{sTmp}, s{sVo}, {4096*sb}')
                a(f'buffer_load_dwordx4 v{vV0+(k&1)}, s[{dV}:{dV+3}], s{sTmp} offen offset:{1024*k} {pol} lds')
            elif kind in('WQ0','WQ1'):
                n+=8*(kind=='WQ1')
                a(f's_add_u32 s{sTmp}, s{sTmp2}, {262144*n-1024*k}')
                a(f'buffer_load_dwordx4 v{vWQ}, s[{dWQ}:{dWQ+3}], s{sTmp} offen offset:{1024*k} {wpol} lds')
            elif kind in('G','U'):
                d=dWG if kind=='G' else dWU
                a(f's_add_u32 s{sTmp}, s{sCnt}, {64*3584*n-1024*k}')
                a(f'buffer_load_dwordx4 v{vFF}, s[{d}:{d+3}], s{sTmp} offen offset:{1024*k} {wpol} lds')
        issued[0]+=4
    a(f's_lshl_b32 s{sTmp2}, s{sU}, 5\ns_lshl_b32 s{sCnt}, s{sF}, 4')
    barrier_done=False
    for g,kind in enumerate(['WQ0','WQ1','G','K','U']):
        for sb in range(2):
            if issued[0]>N-4 and not barrier_done:
                a('s_barrier'); barrier_done=True
            pace(); sub(kind,g,sb)
        if kind=='K': a(f's_add_u32 s{sKo}, s{sKo}, 8192')
    assert barrier_done
    assert (N-4)%4==0
    a(f's_mov_b32 s{sG}, 5\ns_mov_b32 s{sSlot}, {5*SLOT}\ns_mov_b32 s{sMin}, 0\ns_mov_b32 s{sCnt}, 63')
    def relcheck():
        ok=lab('rok'); p=lab('rp')
        a(f's_sub_i32 s{sGmR}, s{sG}, {R}\ns_cmp_gt_i32 s{sMin}, s{sGmR}\ns_cbranch_scc1 {ok}')
        a(f'{p}:\nds_read_b128 v[16:19], v{vRA}'); timeout()
        a(f's_waitcnt lgkmcnt(0)\nv_min3_i32 v16, v16, v17, v18\nv_min_i32 v16, v16, v19\nv_readfirstlane_b32 s{sMin}, v16\ns_cmp_gt_i32 s{sMin}, s{sGmR}\ns_cbranch_scc0 {p}\n{ok}:')
    def dyn_group(kind):
        relcheck()
        so=sKo if kind=='K' else sVo
        for sb in range(2):
            a(f's_waitcnt vmcnt({N-4})')
            if (4*sb-(N-4))%8==0:
                back=((N-4)-4*sb)//8
                a(f's_sub_u32 s{sTmp}, s{sG}, {back}\nv_mov_b32 v{vF}, s{sTmp}\nds_write_b32 v{vFA}, v{vF}')
            if sb==0: a(f's_mov_b32 m0, s{sSlot}')
            else: a(f's_add_u32 m0, s{sSlot}, 4096')
            a(f's_add_u32 s{sTmp}, s{so}, {4096*sb}')
            for k in range(4):
                if kind=='K': a(f'buffer_load_dwordx4 v{vK0+k}, s[{dK}:{dK+3}], s{sTmp} offen offset:{1024*k} {pol} lds')
                else: a(f'buffer_load_dwordx4 v{vV0+(k&1)}, s[{dV}:{dV+3}], s{sTmp} offen offset:{1024*k} {pol} lds')
        a(f's_add_u32 s{so}, s{so}, 8192\ns_add_u32 s{sG}, s{sG}, 1\ns_add_u32 s{sSlot}, s{sSlot}, {SLOT}\ns_cmp_eq_u32 s{sSlot}, {RING}\ns_cselect_b32 s{sSlot}, 0, s{sSlot}')
    a('L_lloop:')
    dyn_group('K'); dyn_group('V')
    a(f's_sub_u32 s{sCnt}, s{sCnt}, 1\ns_cmp_lg_u32 s{sCnt}, 0\ns_cbranch_scc1 L_lloop')
    a(f's_mov_b32 s{sG}, 132'); relcheck()
    seq=[129,130];
    def pubv(v): a(f'v_mov_b32 v{vF}, {v}\nds_write_b32 v{vFA}, v{vF}')
    tot=8*131
    last=None
    for sb in range(2):
        a(f's_waitcnt vmcnt({N-4})')
        g=(tot-(N-4))//8
        if g!=last and (tot-(N-4))%8==0: pubv(g); last=g
        a(f's_mov_b32 m0, {(132%R)*SLOT+4096*sb:#x}\ns_add_u32 s{sTmp}, s{sVo}, {4096*sb}')
        for k in range(4): a(f'buffer_load_dwordx4 v{vV0+(k&1)}, s[{dV}:{dV+3}], s{sTmp} offen offset:{1024*k} {pol} lds')
        tot+=4
    stamp(1)
    for left in range(((N-4)//8)*8,-1,-8):
        g=(tot-left)//8
        a(f's_waitcnt vmcnt({left})'); pubv(133 if left==0 else (132 if g==131 else g))
    stamp(2)
    stamp_out(dWSl)
    a('s_endpgm')
    a('L_cons:')
    vFA,vRA,vKp,vVp,vM,vMb,vL,vTm=4,5,6,7,8,9,10,11
    vQ=12; vO=28; vK=60; vV=92; vS=124; vA=132; vP=140; vT=144; vAd=148; vL16=156
    dWS,dX,dWD,dWO,dOUT=28,32,36,40,44
    a(f's_sub_u32 s{sCw}, s{sW}, 1')
    a(f'v_mov_b32 v{vFA}, {L_FULL}\ns_lshl_b32 s{sTmp}, s{sCw}, 2\ns_add_u32 s{sTmp}, s{sTmp}, {L_REL}\nv_mov_b32 v{vRA}, s{sTmp}')
    a(f's_lshl_b32 s{sG}, s{sCw}, 1\ns_add_u32 s{sG}, s{sG}, 3')
    a(f's_lshl_b32 s{sTmp}, s{sCw}, 1\ns_cmp_ge_u32 s{sCw}, 2\ns_cselect_b32 s{sTmp}, s{sG}, s{sTmp}\nv_mov_b32 v1, s{sTmp}\nds_write_b32 v{vRA}, v1')
    a(f'v_mov_b32 v1, 0\nds_write_b32 v{vFA}, v1 offset:4')
    a(f's_mov_b32 s{sScale}, {SCALE:#x}\ns_mov_b32 s{sL2e}, {LOG2E:#x}')
    a(f'v_xor_b32 v{vKp}, v2, v3\nv_lshlrev_b32 v{vKp}, 4, v{vKp}\nv_lshl_add_u32 v{vKp}, v3, 8, v{vKp}')
    a(f'v_lshrrev_b32 v1, 2, v3\nv_lshl_add_u32 v1, v2, 2, v1\nv_and_b32 v{vVp}, 7, v1\nv_lshlrev_b32 v{vVp}, 5, v{vVp}\nv_lshl_add_u32 v{vVp}, v1, 8, v{vVp}\nv_and_b32 v{vTm}, 3, v0\nv_lshl_add_u32 v{vVp}, v{vTm}, 3, v{vVp}')
    a(f'v_lshlrev_b32 v{vL16}, 4, v0')
    a('s_waitcnt lgkmcnt(0)')
    a(f's_load_dword s{sT}, s[{pWS}:{pWS+1}], 0')
    a(f's_lshl_b32 s{sTmp}, s{sU}, 2\ns_load_dword s{sXf}, s[{pX}:{pX+1}], s{sTmp}')
    srd(dWS,pWS,WS_SZ); srd(dX,pX,1024); srd(dWD,pWD,1792*512*2); srd(dWO,pWO,4096*512*2); srd(dOUT,pOUT,1024)
    stamp(0)
    a(f's_cmp_ge_u32 s{sCw}, 2\ns_cbranch_scc1 L_idle')
    vx=vK; vxf=vK+4; vWD=vO; vAf=vV
    a(f'buffer_load_dwordx4 v[{vx}:{vx+3}], v{vL16}, s[{dX}:{dX+3}], 0 offen')
    a(f's_cmp_eq_u32 s{sCw}, 0\ns_cbranch_scc1 L_nowd')
    a(f's_lshl_b32 s{sTmp}, s{sF}, 13\ns_cmp_lt_u32 s{sF}, 224\ns_cselect_b32 s{sTmp}, s{sTmp}, 0x10000000\ns_add_u32 s{sTmp2}, s{sTmp}, 4096')
    for j in range(8): a(f'buffer_load_dwordx4 v[{vWD+4*j}:{vWD+4*j+3}], v{vL16}, s[{dWD}:{dWD+3}], s{sTmp if j<4 else sTmp2} offen offset:{1024*(j&3)} {wpol}')
    a('s_barrier\ns_waitcnt vmcnt(8) lgkmcnt(0)\ns_branch L_ln')
    a('L_nowd:\ns_barrier\ns_waitcnt vmcnt(0) lgkmcnt(0)\nL_ln:')
    a(f's_add_u32 s{sT}, s{sT}, 1')
    stamp(1)
    for j in range(4): a(f'v_lshlrev_b32 v{vxf+2*j}, 16, v{vx+j}\nv_and_b32 v{vxf+2*j+1}, 0xffff0000, v{vx+j}')
    t0=vxf+8; t1=t0+1; t2=t0+2; vd=t0+4
    a(f'v_add_f32 v{t0}, v{vxf}, v{vxf+1}\nv_add_f32 v{t1}, v{vxf+2}, v{vxf+3}\nv_add_f32 v{t2}, v{vxf+4}, v{vxf+5}\nv_add_f32 v{t0}, v{t0}, v{t1}\nv_add_f32 v{t1}, v{vxf+6}, v{vxf+7}\nv_add_f32 v{t0}, v{t0}, v{t2}\nv_add_f32 v{t0}, v{t0}, v{t1}')
    allred('v_add_f32',[t0],[t1])
    a(f'v_mul_f32 v{t0}, {f2u(1/512.):#x}, v{t0}')
    for j in range(8): a(f'v_sub_f32 v{vd+j}, v{vxf+j}, v{t0}')
    a(f'v_mul_f32 v{t2}, v{vd}, v{vd}')
    for j in range(1,8): a(f'v_fmac_f32 v{t2}, v{vd+j}, v{vd+j}')
    allred('v_add_f32',[t2],[t1])
    a(f'v_mul_f32 v{t2}, {f2u(1/512.):#x}, v{t2}')
    bfr(t0,t0); bfr(t2,t2)
    a(f'v_add_f32 v{t2}, {f2u(1e-5):#x}, v{t2}'); bfr(t2,t2)
    a(f'v_sqrt_f32 v{t2}, v{t2}'); bfr(t2,t2)
    a(f'v_rcp_f32 v{t2}, v{t2}')
    for j in range(8): a(f'v_sub_f32 v{vd+j}, v{vxf+j}, v{t0}')
    for j in range(4): a(f'v_cvt_pk_bf16_f32 v{vx+j}, v{vd+2*j}, v{vd+2*j+1}')
    for j in range(4): a(f'v_lshlrev_b32 v{vd+2*j}, 16, v{vx+j}\nv_and_b32 v{vd+2*j+1}, 0xffff0000, v{vx+j}')
    for j in range(8): a(f'v_mul_f32 v{vd+j}, v{vd+j}, v{t2}')
    for j in range(4): a(f'v_cvt_pk_bf16_f32 v{vx+j}, v{vd+2*j}, v{vd+2*j+1}')
    a(f's_lshl_b32 s{sTmp}, s{sCw}, 10\ns_add_u32 s{sTmp}, s{sTmp}, {L_XN}\nv_add_u32 v{t0}, s{sTmp}, v{vL16}\nds_write_b128 v{t0}, v[{vx}:{vx+3}]')
    a(f'v_lshl_add_u32 v{t0}, v2, 3, s{sTmp}')
    for j in range(16):
        if j==12: a('s_waitcnt lgkmcnt(4)')
        a(f'ds_read2_b64 v[{vAf+4*j}:{vAf+4*j+3}], v{t0} offset0:{8*j} offset1:{8*j+4}')
    vBf=vK; vD=vQ
    def gemv(vpat, stride, j0, j1):
        def rd(j):
            b=vBf+4*(j%8)
            a(f'ds_read_b64_tr_b16 v[{b}:{b+1}], v{vpat} offset:{stride*j}\nds_read_b64_tr_b16 v[{b+2}:{b+3}], v{vpat} offset:{stride*j+stride//2}')
        for j in range(j0,min(j0+5,j1)): rd(j)
        for j in range(j0,j1):
            if j+5<j1: rd(j+5)
            a(f's_waitcnt lgkmcnt({2*(min(j+5,j1-1)-j)})')
            b=vBf+4*(j%8)
            a(f'v_mfma_f32_16x16x32_bf16 v[{vD}:{vD+3}], v[{vAf+4*j}:{vAf+4*j+3}], v[{b}:{b+3}], '+('0' if j==0 else f'v[{vD}:{vD+3}]'))
    vpt=vQ+4; w0,w1,w2,w3=vQ+8,vQ+9,vQ+10,vQ+11
    a(f's_cmp_eq_u32 s{sCw}, 0\ns_cbranch_scc0 L_ffn')
    a(f'v_lshlrev_b32 v{vpt}, 5, v1\nv_lshl_add_u32 v{vpt}, v{vTm}, 3, v{vpt}')
    stamp(2)
    wait_full(('i',0),w0,vFA); gemv(vpt,1024,0,8)
    wait_full(('i',1),w0,vFA); stamp(3); gemv(vpt,1024,8,16)
    a(f'v_mov_b32 v{w0}, 3\nds_write_b32 v{vRA}, v{w0}')
    a(f'v_mov_b32_dpp v{w1}, v{vD} quad_perm:[1,0,3,2] row_mask:0xf bank_mask:0xf\nv_cvt_pk_bf16_f32 v{w0}, v{vD}, v{w1}\nv_mov_b32 v{w1}, s{sT}\nv_mov_b32 v{w3}, s{sT}')
    a(f'v_mov_b32_dpp v{w2}, v{w0} quad_perm:[2,3,0,1] row_mask:0xf bank_mask:0xf')
    a(f's_lshl_b32 s{sTmp}, s{sU}, 6\ns_add_u32 s{sTmp}, s{sTmp}, {W_QG:#x}\nv_lshlrev_b32 v{vpt}, 2, v0\ns_mov_b64 exec, 0x1111')
    a(f'buffer_store_dwordx4 v[{w0}:{w3}], v{vpt}, s[{dWS}:{dWS+3}], s{sTmp} offen sc1\ns_mov_b64 exec, -1')
    stamp(4)
    a(f's_lshl_b32 s{sTmp}, s{sH}, 11\ns_add_u32 s{sTmp}, s{sTmp}, {W_QG:#x}')
    a('L_qpoll:')
    a(f'buffer_load_dwordx4 v[{vK}:{vK+3}], v{vL16}, s[{dWS}:{dWS+3}], s{sTmp} offen sc1\nbuffer_load_dwordx4 v[{vK+4}:{vK+7}], v{vL16}, s[{dWS}:{dWS+3}], s{sTmp} offen offset:1024 sc1')
    timeout()
    a('s_waitcnt vmcnt(0)')
    for i,t in enumerate((vK+1,vK+3,vK+5,vK+7)): a(TAGCHK(w0,t,i==0))
    a(f'v_cmp_ne_u32 vcc, 0, v{w0}\ns_cbranch_vccnz L_qpoll')
    a(f'v_lshlrev_b32 v{vpt}, 3, v0\nv_add_u32 v{vpt}, {L_Q}, v{vpt}\nds_write2_b32 v{vpt}, v{vK}, v{vK+2} offset0:0 offset1:1\nds_write2_b32 v{vpt}, v{vK+4}, v{vK+6} offset0:128 offset1:129')
    a(f'v_mov_b32 v{w0}, 1\nds_write_b32 v{vFA}, v{w0} offset:4')
    stamp(5)
    a('s_branch L_qready')
    a('L_ffn:')
    a(f's_cmp_lt_u32 s{sF}, 224\ns_cbranch_scc0 L_ffn_skip')
    a(f'v_and_b32 v{w0}, 1, v0\nv_lshlrev_b32 v{vpt}, 4, v1\nv_lshl_add_u32 v{vpt}, v{w0}, 3, v{vpt}\nv_and_b32 v{w0}, 2, v0\nv_lshl_add_u32 v{vpt}, v{w0}, 13, v{vpt}\nv_add_u32 v{vpt}, {2*SLOT}, v{vpt}')
    stamp(2)
    wait_full(('i',4),w0,vFA); stamp(3); gemv(vpt,512,0,16)
    a(f'v_mov_b32 v{w0}, 5\nds_write_b32 v{vRA}, v{w0}')
    bfr(w0,vD)
    k1=-2*0.7978845608028654*1.4426950408889634
    a(f'v_mul_f32 v{w1}, v{w0}, v{w0}\nv_mul_f32 v{w1}, {f2u(0.044715):#x}, v{w1}\nv_fma_f32 v{w1}, v{w1}, v{w0}, v{w0}\nv_mul_f32 v{w1}, {f2u(k1):#x}, v{w1}\nv_exp_f32 v{w1}, v{w1}\nv_add_f32 v{w1}, 1.0, v{w1}\nv_rcp_f32 v{w1}, v{w1}\nv_mul_f32 v{w1}, v{w0}, v{w1}')
    bfr(w1,w1)
    a(f'v_mov_b32_dpp v{w2}, v{w0} row_ror:8 row_mask:0xf bank_mask:0xf\nv_mul_f32 v{w1}, v{w1}, v{w2}'); bfr(w1,w1)
    a('s_waitcnt vmcnt(0)')
    acc=vK; un=vK+16
    for k in range(4): a(f'v_mov_b32 v{acc+4*k}, 0\nv_mov_b32 v{acc+4*k+1}, s{sT}\nv_mov_b32 v{acc+4*k+2}, 0\nv_mov_b32 v{acc+4*k+3}, s{sT}')
    for j in range(8):
        for k in range(4): a(f'v_lshlrev_b32 v{un+2*k}, 16, v{vWD+4*j+k}\nv_and_b32 v{un+2*k+1}, 0xffff0000, v{vWD+4*j+k}')
        for k in range(8): a(f'v_fmac_f32_dpp v{acc+2*k}, v{w1}, v{un+k} row_newbcast:{j} row_mask:0xf bank_mask:0xf')
    a(f's_lshl_b32 s{sTmp}, s{sF}, 12\ns_add_u32 s{sTmp}, s{sTmp}, {W_B3:#x}')
    for k in range(4): a(f'buffer_store_dwordx4 v[{acc+4*k}:{acc+4*k+3}], v{vL16}, s[{dWS}:{dWS+3}], s{sTmp} offen offset:{1024*k} sc1')
    stamp(4)
    a('s_branch L_waitq')
    a(f'L_ffn_skip:\nv_mov_b32 v{w0}, 5\nds_write_b32 v{vRA}, v{w0}\ns_waitcnt vmcnt(0)\ns_branch L_waitq')
    a(f'L_idle:\ns_barrier\ns_waitcnt lgkmcnt(0)\ns_add_u32 s{sT}, s{sT}, 1')
    a('L_waitq:')
    a(f'ds_read_b32 v{w0}, v{vFA} offset:4'); timeout()
    a(f's_waitcnt lgkmcnt(0)\nv_readfirstlane_b32 s{sTmp}, v{w0}\ns_cmp_eq_u32 s{sTmp}, 1\ns_cbranch_scc0 L_waitq')
    a('L_qready:')
    a(f'v_lshlrev_b32 v{vT}, 8, v{vTm}\nv_lshl_add_u32 v{vT}, v2, 4, v{vT}\nv_add_u32 v{vT}, {L_Q}, v{vT}')
    for s in range(4): a(f'ds_read_b128 v[{vQ+4*s}:{vQ+4*s+3}], v{vT} offset:{64*s}')
    for i in range(32): a(f'v_mov_b32 v{vO+i}, 0')
    a(f'v_mov_b32 v{vM}, 0xff800000\nv_mov_b32 v{vMb}, 0\nv_mov_b32 v{vL}, 0')
    a(f's_lshl_b32 s{sSlot}, s{sG}, 13\ns_add_u32 s{sSlotV}, s{sSlot}, {3*SLOT}\ns_mov_b32 s{sCnt}, 16')
    stamp(6)
    a('L_step:')
    wait_full(('s',sG),vT,vFA)
    a(f'v_add_u32 v{vAd+4}, s{sSlot}, v{vKp}')
    for s in (1,2,3): a(f'v_xor_b32 v{vAd+4+s}, {64*s}, v{vAd+4}')
    for t in range(2):
        for s in range(4): a(f'ds_read_b128 v[{vK+16*t+4*s}:{vK+16*t+4*s+3}], v{vAd+4+s} offset:{4096*t}')
    a(f's_add_u32 s{sG}, s{sG}, 3\nv_mov_b32 v{vT}, s{sG}')
    for t in range(2):
        a(f's_waitcnt lgkmcnt({4-4*t})')
        if t==1: a(f'ds_write_b32 v{vRA}, v{vT}')
        for s in range(4):
            a(f'v_mfma_f32_16x16x32_bf16 v[{vS+4*t}:{vS+4*t+3}], v[{vK+16*t+4*s}:{vK+16*t+4*s+3}], v[{vQ+4*s}:{vQ+4*s+3}], '+('0' if s==0 else f'v[{vS+4*t}:{vS+4*t+3}]'))
    vVa=vK
    a(f'v_add_u32 v{vAd+1}, s{sSlotV}, v{vVp}')
    if rs>=2:
        for j in range(4): a(f'v_cvt_pk_bf16_f32 v{vP+j}, v{vS+2*j}, v{vS+2*j+1}')
        for j in range(4): a(f'v_lshlrev_b32 v{vA+2*j}, 16, v{vP+j}\nv_and_b32 v{vA+2*j+1}, 0xffff0000, v{vP+j}')
        for j in range(8): a(f'v_mul_f32 v{vA+j}, s{sScale}, v{vA+j}')
    else:
        for j in range(8): a(f'v_mul_f32 v{vA+j}, s{sScale}, v{vS+j}')
    if rs>=1:
        for j in range(4): a(f'v_cvt_pk_bf16_f32 v{vP+j}, v{vA+2*j}, v{vA+2*j+1}')
        for j in range(4): a(f'v_lshlrev_b32 v{vA+2*j}, 16, v{vP+j}\nv_and_b32 v{vA+2*j+1}, 0xffff0000, v{vP+j}')
    a(f'v_max3_f32 v{vT}, v{vA}, v{vA+1}, v{vA+2}\nv_max3_f32 v{vT+1}, v{vA+3}, v{vA+4}, v{vA+5}\nv_max3_f32 v{vT+2}, v{vA+6}, v{vA+7}, v{vM}\nv_max3_f32 v{vT}, v{vT}, v{vT+1}, v{vT+2}')
    allred('v_max_f32',[vT],[vT+1],lo=())
    for db in range(1,8): a(f'v_xor_b32 v{vVa+db}, {32*db}, v{vAd+1}')
    a(f'v_cmp_gt_f32 vcc, v{vT}, v{vM}\ns_cbranch_vccz L_norescale')
    a(f'v_sub_f32 v{vT+1}, v{vM}, v{vT}\nv_mul_f32 v{vT+1}, s{sL2e}, v{vT+1}\nv_exp_f32 v{vT+1}, v{vT+1}\nv_mov_b32 v{vM}, v{vT}\nv_mul_f32 v{vMb}, s{sL2e}, v{vT}\nv_mul_f32 v{vL}, v{vL}, v{vT+1}')
    for i in range(32): a(f'v_mul_f32 v{vO+i}, v{vO+i}, v{vT+1}')
    a('L_norescale:')
    for j in range(8): a(f'v_fma_f32 v{vA+j}, v{vA+j}, s{sL2e}, -v{vMb}')
    for j in range(8): a(f'v_exp_f32 v{vA+j}, v{vA+j}')
    for j in range(4): a(f'v_cvt_pk_bf16_f32 v{vP+j}, v{vA+2*j}, v{vA+2*j+1}')
    a(f'v_add_f32 v{vT}, v{vA}, v{vA+1}\nv_add_f32 v{vT+1}, v{vA+2}, v{vA+3}\nv_add_f32 v{vT+2}, v{vA+4}, v{vA+5}\nv_add_f32 v{vT+3}, v{vA+6}, v{vA+7}')
    a(f'v_add_f32 v{vT}, v{vT}, v{vT+1}\nv_add_f32 v{vT+2}, v{vT+2}, v{vT+3}\nv_add_f32 v{vT}, v{vT}, v{vT+2}\nv_add_f32 v{vL}, v{vL}, v{vT}')
    wait_full(('s',sG),vT,vFA)
    def rdv(db):
        ad=vAd+1 if db==0 else vVa+db
        a(f'ds_read_b64_tr_b16 v[{vV+4*db}:{vV+4*db+1}], v{ad}\nds_read_b64_tr_b16 v[{vV+4*db+2}:{vV+4*db+3}], v{ad} offset:4096')
    for db in range(6): rdv(db)
    a(f's_add_u32 s{sG}, s{sG}, 5\nv_mov_b32 v{vT}, s{sG}')
    for db in range(8):
        a(f's_waitcnt lgkmcnt({2*(min(db+5,7)-db)})')
        if db==7: a(f'ds_write_b32 v{vRA}, v{vT}')
        a(f'v_mfma_f32_16x16x32_bf16 v[{vO+4*db}:{vO+4*db+3}], v[{vV+4*db}:{vV+4*db+3}], v[{vP}:{vP+3}], v[{vO+4*db}:{vO+4*db+3}]')
        if db+6<8: rdv(db+6)
    for sl in (sSlot,sSlotV):
        a(f's_add_u32 s{sl}, s{sl}, {8*SLOT}\ns_sub_u32 s{sTmp}, s{sl}, {RING}\ns_cselect_b32 s{sl}, s{sl}, s{sTmp}')
    a(f's_sub_u32 s{sCnt}, s{sCnt}, 1\ns_cmp_lg_u32 s{sCnt}, 0\ns_cbranch_scc1 L_step')
    stamp(7)
    slotc=lambda c:((123+2*c)%R)*SLOT
    assert [slotc(c) for c in range(4)]==[slotc(0)+2*SLOT*c for c in range(4)]
    allred('v_add_f32',[vL],[vT],lo=())
    a(f's_lshl_b32 s{sTmp}, s{sCw}, 14\ns_add_u32 s{sTmp}, s{sTmp}, {slotc(0)}')
    a(f'v_lshlrev_b32 v{vT}, 9, v3\nv_lshl_add_u32 v{vT}, v2, 4, v{vT}\nv_add_u32 v{vT}, s{sTmp}, v{vT}')
    a(f'v_lshl_add_u32 v{vT+1}, v3, 3, s{sTmp}\nv_mov_b32 v{vMb}, v{vL}')
    a('s_mov_b32 exec_lo, 0x000f000f\ns_mov_b32 exec_hi, 0x000f000f')
    for db in range(8): a(f'ds_write_b128 v{vT}, v[{vO+4*db}:{vO+4*db+3}] offset:{64*db}')
    a(f'ds_write_b64 v{vT+1}, v[{vM}:{vM+1}] offset:2048\ns_mov_b64 exec, -1')
    wait_full(('i',129),vT,vFA)
    vWO=vK; vWf=vV; vB3=vQ
    a(f's_lshl_b32 s{sTmp}, s{sH}, 5\ns_add_u32 s{sTmp}, s{sTmp}, s{sC}\ns_lshl_b32 s{sTmp}, s{sTmp}, 14\ns_lshl_b32 s{sTmp2}, s{sCw}, 8\ns_add_u32 s{sTmp}, s{sTmp}, s{sTmp2}\nv_lshlrev_b32 v{vT}, 2, v0')
    for i in range(16):
        a(f'buffer_load_dword v{vWO+i}, v{vT}, s[{dWO}:{dWO+3}], s{sTmp} offen offset:{1024*(i&3)} {wpol}')
        if i&3==3 and i<15: a(f's_add_u32 s{sTmp}, s{sTmp}, 4096')
    a('s_waitcnt lgkmcnt(0)\ns_barrier')
    stamp(8)
    a(f's_lshl_b32 s{sTmp}, s{sCw}, 3\ns_add_u32 s{sTmp}, s{sTmp}, {slotc(0)+2048}\nv_mov_b32 v{vT}, s{sTmp}')
    a(f's_lshl_b32 s{sTmp}, s{sCw}, 9\ns_add_u32 s{sTmp}, s{sTmp}, {slotc(0)}\nv_lshl_add_u32 v{vT+1}, v0, 3, s{sTmp}')
    vml=vS; vo2=vA
    for w in range(4): a(f'ds_read_b64 v[{vml+2*w}:{vml+2*w+1}], v{vT} offset:{2*SLOT*w}')
    for w in range(4): a(f'ds_read_b64 v[{vo2+2*w}:{vo2+2*w+1}], v{vT+1} offset:{2*SLOT*w}')
    r=vO
    a(f'v_mov_b32 v{r+1}, s{sT}\nv_mov_b32 v{r+3}, s{sT}\nv_mov_b32 v{r+5}, s{sT}\nv_mov_b32 v{r+7}, s{sT}')
    a(f's_lshl_b32 s{sTmp}, s{sH}, 5\ns_add_u32 s{sTmp}, s{sTmp}, s{sC}\ns_lshl_b32 s{sTmp2}, s{sTmp}, 7\ns_lshl_b32 s{sTmp}, s{sTmp}, 12')
    a(f's_lshl_b32 s{sCnt}, s{sCw}, 10\ns_add_u32 s{sTmp}, s{sTmp}, s{sCnt}\ns_add_u32 s{sTmp}, s{sTmp}, {W_P2:#x}')
    a(f's_lshl_b32 s{sCnt}, s{sCw}, 4\ns_add_u32 s{sTmp2}, s{sTmp2}, s{sCnt}\ns_add_u32 s{sTmp2}, s{sTmp2}, {W_ML:#x}')
    a(f's_waitcnt lgkmcnt(4)\nv_max3_f32 v{r+4}, v{vml}, v{vml+2}, v{vml+4}\nv_max_f32 v{r+4}, v{r+4}, v{vml+6}')
    for w in range(4): a(f'v_sub_f32 v{vml+2*w}, v{vml+2*w}, v{r+4}')
    for w in range(4): a(f'v_mul_f32 v{vml+2*w}, s{sL2e}, v{vml+2*w}')
    for w in range(4): a(f'v_exp_f32 v{vml+2*w}, v{vml+2*w}')
    a(f's_waitcnt lgkmcnt(0)\nv_mul_f32 v{r}, v{vml}, v{vo2}\nv_mul_f32 v{r+2}, v{vml}, v{vo2+1}\nv_mul_f32 v{r+6}, v{vml}, v{vml+1}')
    for w in range(1,4): a(f'v_fmac_f32 v{r}, v{vml+2*w}, v{vo2+2*w}\nv_fmac_f32 v{r+2}, v{vml+2*w}, v{vo2+2*w+1}\nv_fmac_f32 v{r+6}, v{vml+2*w}, v{vml+2*w+1}')
    a(f'buffer_store_dwordx4 v[{r}:{r+3}], v{vL16}, s[{dWS}:{dWS+3}], s{sTmp} offen sc1')
    a(f's_mov_b64 exec, 1\nbuffer_store_dwordx4 v[{r+4}:{r+7}], off, s[{dWS}:{dWS+3}], s{sTmp2} sc1\ns_mov_b64 exec, -1')
    stamp(9)
    def unpack_wo():
        for i in range(16): a(f'v_lshlrev_b32 v{vWf+2*i}, 16, v{vWO+i}\nv_and_b32 v{vWf+2*i+1}, 0xffff0000, v{vWO+i}')
    a(f's_cmp_eq_u32 s{sCw}, 0\ns_cbranch_scc1 L_st2\ns_cmp_eq_u32 s{sCw}, 1\ns_cbranch_scc1 L_b3')
    a('s_waitcnt vmcnt(2)'); a('s_branch L_unp')
    a('L_b3:')
    vb=vO+8
    a(f's_and_b32 s{sTmp}, s{sU}, 3\ns_lshl_b32 s{sTmp}, s{sTmp}, 10\ns_lshr_b32 s{sTmp2}, s{sU}, 2\ns_lshl_b32 s{sTmp2}, s{sTmp2}, 4\ns_add_u32 s{sTmp}, s{sTmp}, s{sTmp2}\ns_add_u32 s{sKo}, s{sTmp}, {W_B3:#x}')
    a(f'v_lshlrev_b32 v{vT}, 12, v0\nv_mov_b32 v{vb+12}, 0\nv_mov_b32 v{vb+13}, s{sT}\nv_mov_b32 v{vb+14}, 0\nv_mov_b32 v{vb+15}, s{sT}')
    a('L_b3poll:')
    for i in range(4):
        a(f's_add_u32 s{sTmp}, s{sKo}, {0x40000*i:#x}')
        if i==3: a('s_mov_b32 exec_hi, 0')
        a(f'buffer_load_dwordx4 v[{vb+4*i}:{vb+4*i+3}], v{vT}, s[{dWS}:{dWS+3}], s{sTmp} offen sc1')
    a('s_mov_b64 exec, -1'); timeout()
    a('s_waitcnt vmcnt(0)')
    for i in range(8): a(TAGCHK(vT+1,vb+2*i+1,i==0))
    a(f'v_cmp_ne_u32 vcc, 0, v{vT+1}\ns_cbranch_vccnz L_b3poll')
    g0,g1=vM,vMb
    a(f'v_add_f32 v{g0}, v{vb}, v{vb+4}\nv_add_f32 v{g1}, v{vb+2}, v{vb+6}\nv_add_f32 v{vb+8}, v{vb+8}, v{vb+12}\nv_add_f32 v{vb+10}, v{vb+10}, v{vb+14}\nv_add_f32 v{g0}, v{g0}, v{vb+8}\nv_add_f32 v{g1}, v{g1}, v{vb+10}')
    allred('v_add_f32',[g0,g1],[vT+1,vT+2])
    for g,t in ((g0,vT+1),(g1,vT+2)):
        bfr(g,g)
        a(f'v_mul_f32 v{t}, s{sL2e}, v{g}\nv_exp_f32 v{t}, -v{t}\nv_add_f32 v{t}, 1.0, v{t}\nv_rcp_f32 v{t}, v{t}\nv_mul_f32 v{g}, v{g}, v{t}')
        bfr(g,g)
    stamp(10)
    a('s_branch L_unp')
    a('L_st2:')
    po=vO+8; pm=vS
    a(f'v_lshrrev_b32 v{vT}, 3, v0\nv_and_b32 v{vT+1}, 7, v0\nv_lshlrev_b32 v{vT+2}, 7, v{vT}\nv_lshlrev_b32 v{vT}, 12, v{vT}\nv_lshl_add_u32 v{vT}, v{vT+1}, 4, v{vT}')
    a(f's_lshl_b32 s{sKo}, s{sH}, 17\ns_lshl_b32 s{sTmp}, s{sC}, 7\ns_add_u32 s{sKo}, s{sKo}, s{sTmp}\ns_add_u32 s{sKo}, s{sKo}, {W_P2:#x}')
    a(f's_lshl_b32 s{sVo}, s{sH}, 12\ns_lshr_b32 s{sTmp}, s{sC}, 3\ns_lshl_b32 s{sTmp}, s{sTmp}, 4\ns_add_u32 s{sVo}, s{sVo}, s{sTmp}\ns_add_u32 s{sVo}, s{sVo}, {W_ML:#x}')
    a('s_waitcnt vmcnt(2)'); unpack_wo()
    a('L_s2poll:')
    for i in range(4):
        a(f's_add_u32 s{sTmp}, s{sKo}, {0x8000*i:#x}')
        a(f'buffer_load_dwordx4 v[{po+4*i}:{po+4*i+3}], v{vT}, s[{dWS}:{dWS+3}], s{sTmp} offen sc1')
        a(f'buffer_load_dwordx4 v[{pm+4*i}:{pm+4*i+3}], v{vT+2}, s[{dWS}:{dWS+3}], s{sVo} offen offset:{1024*i} sc1')
    timeout()
    a('s_waitcnt vmcnt(0)')
    for i in range(8): a(TAGCHK(vT+1,po+2*i+1,i==0))
    for i in range(8): a(TAGCHK(vT+1,pm+2*i+1,False))
    a(f'v_cmp_ne_u32 vcc, 0, v{vT+1}\ns_cbranch_vccnz L_s2poll')
    stamp(10)
    mx=vM
    a(f'v_max3_f32 v{mx}, v{pm}, v{pm+4}, v{pm+8}\nv_max_f32 v{mx}, v{mx}, v{pm+12}')
    allred('v_max_f32',[mx],[vT+1],lo=(8,))
    for i in range(4): a(f'v_sub_f32 v{pm+4*i}, v{pm+4*i}, v{mx}')
    for i in range(4): a(f'v_mul_f32 v{pm+4*i}, s{sL2e}, v{pm+4*i}')
    for i in range(4): a(f'v_exp_f32 v{pm+4*i}, v{pm+4*i}')
    o0,o1,ls=vO,vO+1,vO+2
    a(f'v_mul_f32 v{o0}, v{pm}, v{po}\nv_mul_f32 v{o1}, v{pm}, v{po+2}\nv_mul_f32 v{ls}, v{pm}, v{pm+2}')
    for i in range(1,4): a(f'v_fmac_f32 v{o0}, v{pm+4*i}, v{po+4*i}\nv_fmac_f32 v{o1}, v{pm+4*i}, v{po+4*i+2}\nv_fmac_f32 v{ls}, v{pm+4*i}, v{pm+4*i+2}')
    allred('v_add_f32',[o0,o1,ls],[vT+1,vT+2,vT+3],lo=(8,))
    a(f'v_rcp_f32 v{ls}, v{ls}\nv_and_b32 v{vT+1}, 7, v0\nv_lshlrev_b32 v{vT+1}, 3, v{vT+1}\nv_add_u32 v{vT+1}, {L_O16}, v{vT+1}\nv_mul_f32 v{o0}, v{o0}, v{ls}\nv_mul_f32 v{o1}, v{o1}, v{ls}')
    a(f'v_cvt_pk_bf16_f32 v{ls}, v{o0}, v{o1}\nv_lshlrev_b32 v{o0}, 16, v{ls}\nv_and_b32 v{o1}, 0xffff0000, v{ls}\nds_write_b64 v{vT+1}, v[{o0}:{o1}]')
    a('s_branch L_bar2')
    a('L_unp:'); unpack_wo()
    a('L_bar2:')
    a(f'v_lshlrev_b32 v{vT}, 2, v3\nv_add_u32 v{vT}, {L_O16}, v{vT}')
    a(f'v_mov_b32 v{r}, 0\nv_mov_b32 v{r+1}, s{sT}\nv_mov_b32 v{r+2}, 0\nv_mov_b32 v{r+3}, s{sT}')
    a(f's_lshl_b32 s{sTmp}, s{sB}, 12\ns_lshl_b32 s{sTmp2}, s{sCw}, 10\ns_add_u32 s{sTmp}, s{sTmp}, s{sTmp2}\ns_add_u32 s{sTmp}, s{sTmp}, {W_S3:#x}')
    a(f's_waitcnt lgkmcnt(0)\ns_barrier\nds_read_b32 v{vT+1}, v{vT}\ns_waitcnt lgkmcnt(0)')
    for i in range(16):
        a(f'v_fmac_f32_dpp v{r}, v{vT+1}, v{vWf+2*i} row_newbcast:{i} row_mask:0xf bank_mask:0xf\nv_fmac_f32_dpp v{r+2}, v{vT+1}, v{vWf+2*i+1} row_newbcast:{i} row_mask:0xf bank_mask:0xf')
    a(f'buffer_store_dwordx4 v[{r}:{r+3}], v{vL16}, s[{dWS}:{dWS+3}], s{sTmp} offen sc1')
    stamp(11)
    a(f's_cmp_eq_u32 s{sCw}, 1\ns_cbranch_scc0 L_fin')
    a(f's_lshl_b32 s{sKo}, s{sU}, 4\ns_add_u32 s{sKo}, s{sKo}, {W_S3:#x}\nv_lshlrev_b32 v{vT}, 12, v0')
    a('L_s3poll:')
    for i in range(4):
        a(f's_add_u32 s{sTmp}, s{sKo}, {0x40000*i:#x}')
        a(f'buffer_load_dwordx4 v[{vb+4*i}:{vb+4*i+3}], v{vT}, s[{dWS}:{dWS+3}], s{sTmp} offen sc1')
    timeout()
    a('s_waitcnt vmcnt(0)')
    for i in range(8): a(TAGCHK(vT+1,vb+2*i+1,i==0))
    a(f'v_cmp_ne_u32 vcc, 0, v{vT+1}\ns_cbranch_vccnz L_s3poll')
    stamp(12)
    s0,s1=vO,vO+1
    a(f'v_add_f32 v{s0}, v{vb}, v{vb+4}\nv_add_f32 v{s1}, v{vb+2}, v{vb+6}\nv_add_f32 v{vb+8}, v{vb+8}, v{vb+12}\nv_add_f32 v{vb+10}, v{vb+10}, v{vb+14}\nv_add_f32 v{s0}, v{s0}, v{vb+8}\nv_add_f32 v{s1}, v{s1}, v{vb+10}')
    allred('v_add_f32',[s0,s1],[vT+1,vT+2])
    a(f'v_cvt_pk_bf16_f32 v{vT}, v{s0}, v{s1}\nv_lshlrev_b32 v{s0}, 16, v{vT}\nv_and_b32 v{s1}, 0xffff0000, v{vT}\nv_mul_f32 v{s0}, v{s0}, v{g0}\nv_mul_f32 v{s1}, v{s1}, v{g1}')
    a(f'v_cvt_pk_bf16_f32 v{vT}, v{s0}, v{s1}\nv_lshlrev_b32 v{s0}, 16, v{vT}\nv_and_b32 v{s1}, 0xffff0000, v{vT}')
    a(f's_lshl_b32 s{sTmp}, s{sXf}, 16\ns_and_b32 s{sTmp2}, s{sXf}, 0xffff0000\nv_add_f32 v{s0}, s{sTmp}, v{s0}\nv_add_f32 v{s1}, s{sTmp2}, v{s1}\nv_cvt_pk_bf16_f32 v{vT}, v{s0}, v{s1}')
    a(f's_lshl_b32 s{sTmp}, s{sU}, 2\ns_mov_b64 exec, 1\nbuffer_store_dword v{vT}, off, s[{dOUT}:{dOUT+3}], s{sTmp}')
    a(f's_cmp_eq_u32 s{sU}, 0\ns_cbranch_scc0 L_fin\nv_mov_b32 v{vT+1}, s{sT}\nbuffer_store_dword v{vT+1}, off, s[{dWS}:{dWS+3}], 0')
    a('L_fin:')
    stamp(13)
    stamp_out(dWS)
    a('L_end:\ns_endpgm')
    n=a.fix()
    out=HDR+f'; @launch grid=(256,1,1) block=(320,1,1) lds=163840\n'
    out+=f'.amdgcn_target "amdgcn-amd-amdhsa--gfx950"\n.text\n.globl {NAME}\n.p2align 8\n.type {NAME},@function\n'
    out+=a.text()
    out+=f'''.section .rodata,"a"
.p2align 6
.amdhsa_kernel {NAME}
  .amdhsa_next_free_vgpr 160
  .amdhsa_next_free_sgpr 96
  .amdhsa_accum_offset 160
  .amdhsa_group_segment_fixed_size 0
  .amdhsa_kernarg_size 96
  .amdhsa_user_sgpr_count 2
  .amdhsa_user_sgpr_kernarg_segment_ptr 1
  .amdhsa_system_sgpr_workgroup_id_x 1
  .amdhsa_float_denorm_mode_32 3
.end_amdhsa_kernel
'''
    return out
if __name__=='__main__':
    kw=eval('dict(%s)'%(sys.argv[1] if len(sys.argv)>1 else ''))
    sys.stdout.write(gen(**kw))
```

```python
import sys, struct
from asmlib import Asm
NAME='recurrent_scan__gqa_block_cached__geglu_ffn__decode_kernel'
HDR=open('recurrent_scan__gqa_block_cached__geglu_ffn__decode.s.ref').read().split('; Override launch')[0]
def f2u(x): return struct.unpack('<I',struct.pack('<f',x))[0]
LOG2E=f2u(1.4426950408889634); SCALE=f2u(128**-0.5)
R=19; SLOT=8192; RING=R*SLOT
MISC=RING
L_FULL=MISC; L_QRDY=MISC+8; L_REL=MISC+16; L_TQ=MISC+64; L_X=MISC+1024; L_XN=MISC+2048; L_Q=MISC+4096
W_CNT=0x1000; W_QG=0x10000; W_QX=0x18000; W_F1=0x20000; W_ML=0x40000; W_P2=0x280000; W_S3=0x100000; W_B3=0x180000; W_ST=0x200000; WS_SZ=0x380000
NWAVE=6; INF=0x7fffffff; CST=0x180
def gen(mapping='hx', N=24, S=48, D=7, dyn=1, diag=0, pol='nt', wpol='nt', local=1, f1wait=12, b3wait=40, apol='sc0', rec128=1, fullrec=1, GS=32, jump=0, phases=None, prew=0):
    a=Asm()
    P=GS*(64-S) if dyn else 0; LG=GS.bit_length()-1
    phases=phases or [(S,N)]
    assert phases[-1][0]==S
    W=phases[0][1]-4
    assert W%4==0 and S>=8
    sB,sW=2,3
    pX,pK,pV,pWQ,pWO,pWG,pWU,pWD,pOUT,pWS=4,6,8,10,12,16,18,20,22,26
    sH,sC,sXi,sF,sT,sTO=48,49,50,51,52,53
    sFull,sG,sSlot,sSlotV,sMin,sKo,sVo,sTmp,sTmp2,sCnt,sGmR=54,55,56,57,58,59,60,61,62,63,64
    sScale,sL2e,sT1,sGend,sCw,sXj=65,66,67,68,69,74
    sSt=70
    sSt0=72
    sXf=76
    sLoc,sKb,sJ,sCg,sXcc,sTmp3=78,79,80,81,82,83
    vSt=159
    uid=[0]
    def lab(p): uid[0]+=1; return f'L_{p}_{uid[0]}'
    def srd(d,p,size):
        a(f's_mov_b32 s{d}, s{p}\ns_mov_b32 s{d+1}, s{p+1}\ns_mov_b32 s{d+2}, {size:#x}\ns_mov_b32 s{d+3}, 0x20000')
    def stamp(k):
        if diag: a(f's_memrealtime s[{sSt}:{sSt+1}]\ns_waitcnt lgkmcnt(0)\nv_writelane_b32 v{vSt}, s{sSt}, {k}')
    def stamp_out(srd_ws):
        if diag:
            a(f'v_writelane_b32 v{vSt}, s{sSt0}, 0')
            a(f's_mul_i32 s{sTmp}, s{sB}, {NWAVE}\ns_add_u32 s{sTmp}, s{sTmp}, s{sW}\ns_lshl_b32 s{sTmp}, s{sTmp}, 8\ns_add_u32 s{sTmp}, s{sTmp}, {W_ST:#x}')
            a(f's_mov_b64 exec, -1\nv_lshlrev_b32 v1, 2, v0\nbuffer_store_dword v{vSt}, v1, s[{srd_ws}:{srd_ws+3}], s{sTmp} offen sc1')
    def setexec(m):
        lo,hi=m&0xffffffff,m>>32
        if hi==0 and lo<0x80000000: a(f's_mov_b64 exec, {lo:#x}')
        else: a(f's_mov_b32 exec_lo, {lo:#x}\ns_mov_b32 exec_hi, {hi:#x}')
    def timeout():
        a(f's_sub_u32 s{sTO}, s{sTO}, 1\ns_cbranch_scc1 L_end')
    def poll_full(vtmp,vaddr):
        a(f'ds_read_b64 v[{vtmp}:{vtmp+1}], v{vaddr}')
        timeout()
        a(f's_waitcnt lgkmcnt(0)\nv_readfirstlane_b32 s{sFull}, v{vtmp}\nv_readfirstlane_b32 s{sGend}, v{vtmp+1}')
    def wait_full(x, vtmp, vaddr):
        assert vtmp%2==0
        ok=lab('fok'); p=lab('fp')
        a(f's_cmp_gt_i32 s{sFull}, {x}\ns_cbranch_scc1 {ok}\n{p}:')
        poll_full(vtmp,vaddr)
        a(f's_cmp_gt_i32 s{sFull}, {x}\ns_cbranch_scc0 {p}\n{ok}:')
    def bfr(dst,src):
        a(f'v_cvt_pk_bf16_f32 v{dst}, v{src}, v{src}\nv_and_b32 v{dst}, 0xffff0000, v{dst}')
    def allred(op, vs, ts, lo=(8,4,2,1), hi=(16,32)):
        for r in lo:
            for v in vs: a(f'{op}_dpp v{v}, v{v}, v{v} row_ror:{r} row_mask:0xf bank_mask:0xf')
        for sw in hi:
            for v,t in zip(vs,ts): a(f'v_mov_b32 v{t}, v{v}')
            for v,t in zip(vs,ts): a(f'v_permlane{sw}_swap_b32 v{v}, v{t}')
            for v,t in zip(vs,ts): a(f'{op} v{v}, v{v}, v{t}')
    vMask=157
    def tag4(v):
        for k in range(4): a(f'v_bfi_b32 v{v+k}, v{vMask}, s{sT if k%2==0 else sT1}, v{v+k}')
    def chk(acc,regs_mt,regs_full,acc2):
        first=True
        for v in regs_mt:
            for k in range(4):
                s=sT if k%2==0 else sT1
                a(f'v_xor_b32 v{acc}, s{s}, v{v+k}' if first else f'v_bitop3_b32 v{acc}, v{v+k}, s{s}, v{acc} bitop3:0xbe'); first=False
        if regs_full:
            first=True
            for v in regs_full:
                a(f'v_xor_b32 v{acc2}, s{sT}, v{v}' if first else f'v_bitop3_b32 v{acc2}, v{v}, s{sT}, v{acc2} bitop3:0xbe'); first=False
            a(f'v_and_or_b32 v{acc}, v{acc}, v{vMask}, v{acc2}')
        else: a(f'v_and_b32 v{acc}, v{vMask}, v{acc}')
        a(f'v_cmp_ne_u32 vcc, 0, v{acc}')

    a(f'{NAME}:')
    if diag: a(f's_memrealtime s[{sSt0}:{sSt0+1}]')
    a(f's_cmp_ge_u32 s{sB}, 256\ns_cbranch_scc1 L_end')
    a('s_load_dwordx16 s[4:19], s[0:1], 0\ns_load_dwordx8 s[20:27], s[0:1], 64')
    if diag: a(f'v_mov_b32 v{vSt}, 0')
    a(f'v_lshrrev_b32 v1, 6, v0\nv_and_b32 v0, 63, v0\nv_readfirstlane_b32 s{sW}, v1')
    a(f's_and_b32 s{sXj}, s{sB}, 7\ns_lshr_b32 s{sXi}, s{sB}, 3')
    a(f's_mul_i32 s{sF}, s{sXj}, 28\ns_add_u32 s{sF}, s{sF}, s{sXi}')
    a(f's_cmp_lt_u32 s{sXi}, 28\ns_cselect_b32 s{sF}, s{sF}, 0x100000')
    if mapping=='hx': a(f's_mov_b32 s{sH}, s{sXj}\ns_mov_b32 s{sC}, s{sXi}')
    else: a(f's_lshr_b32 s{sH}, s{sB}, 5\ns_and_b32 s{sC}, s{sB}, 31')
    a(f's_mov_b32 s{sTO}, 200000\ns_mov_b32 s{sFull}, -1\ns_mov_b32 s{sGend}, {INF:#x}')
    a(f'v_lshrrev_b32 v2, 4, v0\nv_and_b32 v3, 15, v0')
    a(f's_cmp_lg_u32 s{sW}, 0\ns_cbranch_scc1 L_cons')
    vK0,vV0,vWQ,vFF,vFA,vRA,vF,vX,vTQ=4,8,10,11,12,13,14,20,21
    a('s_setprio 3')
    a(f'v_lshlrev_b32 v{vX}, 4, v0')
    a(f'v_lshrrev_b32 v{vWQ}, 2, v0\nv_lshlrev_b32 v{vWQ}, 13, v{vWQ}\nv_lshlrev_b32 v1, 1, v2\nv_xor_b32 v1, v1, v0\nv_and_b32 v1, 3, v1\nv_lshl_add_u32 v{vWQ}, v1, 4, v{vWQ}')
    a(f's_and_b32 s{sTmp}, s{sC}, 7\ns_lshl_b32 s{sTmp}, s{sTmp}, 7\ns_bfe_u32 s{sTmp2}, s{sC}, 0x10003\ns_lshl_b32 s{sTmp2}, s{sTmp2}, 6\ns_add_u32 s{sTmp}, s{sTmp}, s{sTmp2}')
    a(f's_lshl_b32 s{sTmp2}, s{sH}, 10\ns_add_u32 s{sTmp}, s{sTmp}, s{sTmp2}\ns_lshr_b32 s{sTmp2}, s{sC}, 4\ns_lshl_b32 s{sTmp2}, s{sTmp2}, 21\ns_add_u32 s{sVo}, s{sTmp}, s{sTmp2}')
    a(f'v_xor_b32 v{vK0}, v2, v3\nv_lshlrev_b32 v{vK0}, 4, v{vK0}\nv_lshl_add_u32 v{vK0}, v2, 8, v{vK0}')
    for k in (1,2,3): a(f'v_xor_b32 v{vK0+k}, {64*k}, v{vK0}')
    a(f'v_lshlrev_b32 v{vV0}, 1, v2\nv_xor_b32 v{vV0}, v{vV0}, v3\nv_lshlrev_b32 v{vV0}, 4, v{vV0}\nv_lshl_add_u32 v{vV0}, v2, 8, v{vV0}\nv_xor_b32 v{vV0+1}, 128, v{vV0}')
    a(f'v_lshrrev_b32 v{vFF}, 3, v0\nv_mul_u32_u24 v{vFF}, 3584, v{vFF}\nv_lshlrev_b32 v1, 1, v2\nv_xor_b32 v1, v1, v0\nv_and_b32 v1, 7, v1\nv_lshl_add_u32 v{vFF}, v1, 4, v{vFF}')
    a(f's_and_b32 s{sTmp}, s{sF}, 7\ns_mul_i32 s{sTmp}, s{sTmp}, {64*3584}\ns_lshr_b32 s{sCnt}, s{sF}, 3\ns_lshl_b32 s{sCnt}, s{sCnt}, 7\ns_add_u32 s{sCnt}, s{sCnt}, s{sTmp}')
    a(f'v_mov_b32 v{vFA}, {L_FULL}\nv_mov_b32 v{vRA}, {L_REL}\nv_mov_b32 v{vF}, -1\nv_mov_b32 v{vF+1}, {INF:#x}\nds_write_b64 v{vFA}, v[{vF}:{vF+1}]')
    a(f's_lshl_b32 s{sKb}, s{sH}, 24\ns_lshl_b32 s{sTmp}, s{sC}, 19\ns_add_u32 s{sKo}, s{sKb}, s{sTmp}')
    a(f's_andn2_b32 s{sTmp}, s{sC}, {GS-1}\ns_lshl_b32 s{sTmp}, s{sTmp}, 19\ns_add_u32 s{sKb}, s{sKb}, s{sTmp}')
    a(f's_mov_b32 m0, {L_X:#x}')
    a('s_waitcnt lgkmcnt(0)')
    dK,dV,dWQ,dWG,dWU,dXl,dWSl=28,32,36,40,44,84,88
    srd(dXl,pX,1024)
    a(f'buffer_load_dwordx4 v{vX}, s[{dXl}:{dXl+3}], 0 offen lds')
    srd(dWQ,pWQ,512*4096*2)
    stamp(10)
    issued=[1]; pub=[-1]
    def pubv(v): a(f'v_mov_b32 v{vF}, {v}\nds_write_b32 v{vFA}, v{vF}')
    def pace():
        if issued[0]>W:
            a(f's_waitcnt vmcnt({W})')
            g=(issued[0]-W-1)//8
            if g>pub[0]:
                pub[0]=g; pubv(g); stamp(11+g)
    def sub(kind, g, sb):
        base=(g%R)*SLOT+4096*sb
        a(f's_mov_b32 m0, {base:#x}')
        for k in range(4):
            n=4*sb+k
            if kind=='K':
                if k==0: a(f's_add_u32 s{sTmp}, s{sKo}, {4096*sb}')
                a(f'buffer_load_dwordx4 v{vK0+k}, s[{dK}:{dK+3}], s{sTmp} offen offset:{1024*k} {pol} lds')
            elif kind in('WQ0','WQ1'):
                n+=8*(kind=='WQ1')
                a(f's_add_u32 s{sTmp}, s{sVo}, {16*8192*n-1024*k}')
                a(f'buffer_load_dwordx4 v{vWQ}, s[{dWQ}:{dWQ+3}], s{sTmp} offen offset:{1024*k} {wpol} lds')
            elif kind in('G','U'):
                d=dWG if kind=='G' else dWU
                a(f's_add_u32 s{sTmp}, s{sCnt}, {8*3584*n-1024*k}')
                a(f'buffer_load_dwordx4 v{vFF}, s[{d}:{d+3}], s{sTmp} offen offset:{1024*k} {wpol} lds')
        issued[0]+=4
    barrier_done=False
    for g,kind in enumerate(['WQ0','WQ1','G','K','U']):
        if kind=='G': srd(dWG,pWG,512*1792*2); srd(dK,pK,1<<27); srd(dWU,pWU,512*1792*2); srd(dV,pV,1<<27)
        for sb in range(2):
            if issued[0]>W and not barrier_done:
                a('s_barrier'); barrier_done=True
            pace(); sub(kind,g,sb)
    if not barrier_done: a('s_barrier')
    if pub[0]<0 or issued[0]<=W+8:
        for left,g in ((40,0),(32,1),(24,2)):
            if g>pub[0]: a(f's_waitcnt vmcnt({left})'); pubv(g); stamp(11+g); pub[0]=g
    if diag: srd(dWSl,pWS,WS_SZ)
    a(f's_mov_b32 s{sVo}, s{sKo}\ns_add_u32 s{sKo}, s{sKo}, 8192')
    a(f's_mov_b32 s{sG}, 5\ns_mov_b32 s{sSlot}, {5*SLOT}\ns_mov_b32 s{sMin}, 0\ns_mov_b32 s{sJ}, 1\ns_mov_b32 s{sFull}, {pub[0]}')
    def relcheck():
        ok=lab('rok'); p=lab('rp')
        a(f's_sub_i32 s{sGmR}, s{sG}, {R}\ns_cmp_gt_i32 s{sMin}, s{sGmR}\ns_cbranch_scc1 {ok}')
        a(f'{p}:\nds_read_b128 v[16:19], v{vRA}\nds_read_b32 v15, v{vRA} offset:16'); timeout()
        a(f's_waitcnt lgkmcnt(0)\nv_min3_i32 v16, v16, v17, v18\nv_min3_i32 v16, v16, v19, v15\nv_readfirstlane_b32 s{sMin}, v16\ns_cmp_gt_i32 s{sMin}, s{sGmR}\ns_cbranch_scc0 {p}\n{ok}:')
    def adv():
        a(f's_add_u32 s{sG}, s{sG}, 1\ns_add_u32 s{sSlot}, s{sSlot}, {SLOT}\ns_cmp_eq_u32 s{sSlot}, {RING}\ns_cselect_b32 s{sSlot}, 0, s{sSlot}')
    def batch(kind,sb):
        so=sKo if kind=='K' else sVo
        if sb==0: a(f's_mov_b32 m0, s{sSlot}')
        else: a(f's_add_u32 m0, s{sSlot}, 4096')
        a(f's_add_u32 s{sTmp}, s{so}, {4096*sb}')
        for k in range(4):
            if kind=='K': a(f'buffer_load_dwordx4 v{vK0+k}, s[{dK}:{dK+3}], s{sTmp} offen offset:{1024*k} {pol} lds')
            else: a(f'buffer_load_dwordx4 v{vV0+(k&1)}, s[{dV}:{dV+3}], s{sTmp} offen offset:{1024*k} {pol} lds')
    def pubrel(d):
        a((f's_sub_u32 s{sTmp}, s{sG}, {-d}' if d<0 else f's_add_u32 s{sTmp}, s{sG}, {d}')+f'\ns_max_i32 s{sFull}, s{sFull}, s{sTmp}\nv_mov_b32 v{vF}, s{sFull}\nds_write_b32 v{vFA}, v{vF}')
    def dyn_group(kind,W,mid=None):
        relcheck()
        for sb in range(2):
            a(f's_waitcnt vmcnt({W})')
            if (4*sb-W)%8==0: pubrel(-(W-4*sb)//8)
            batch(kind,sb)
        if mid: mid()
        adv()
    Wl=phases[-1][1]-4
    back=(Wl-4)//8 if Wl%8 else Wl//8
    assert D>=back+3 or not P
    def lstamp():
        if diag:
            l=lab('nost')
            a(f's_and_b32 s{sTmp}, s{sJ}, 7\ns_cmp_eq_u32 s{sTmp}, 0\ns_cbranch_scc0 {l}\ns_lshr_b32 s{sTmp}, s{sJ}, 3\ns_add_u32 s{sTmp}, s{sTmp}, 2\ns_min_u32 s{sTmp}, s{sTmp}, 9\ns_mov_b32 m0, s{sTmp}')
            a(f's_memrealtime s[{sSt}:{sSt+1}]\ns_waitcnt lgkmcnt(0)\nv_writelane_b32 v{vSt}, s{sSt}, m0\n{l}:')
    for pi,(jend,Np) in enumerate(phases):
        W=Np-4; assert W%4==0 and W<=59
        a(f'L_lloop{pi}:')
        dyn_group('K',W); dyn_group('V',W)
        lstamp()
        a(f's_mov_b32 s{sVo}, s{sKo}\ns_add_u32 s{sKo}, s{sKo}, 8192\ns_add_u32 s{sJ}, s{sJ}, 1')
        a(f's_cmp_lt_u32 s{sJ}, {jend}\ns_cbranch_scc1 L_lloop{pi}')
    if P:
        def tqread():
            a(f's_add_u32 s{sTmp}, s{sJ}, 1\ns_and_b32 s{sTmp}, s{sTmp}, 7\ns_lshl_b32 s{sTmp}, s{sTmp}, 2\ns_add_u32 s{sTmp}, s{sTmp}, {L_TQ}\nv_mov_b32 v{vTQ}, s{sTmp}\nds_read_b32 v{vTQ+1}, v{vTQ}')
        a(f'v_mov_b32 v{vTQ}, {L_TQ+4*(S&7)}')
        a(f's_mov_b32 s{sCg}, 0\nL_tq:\nds_read_b32 v{vTQ+1}, v{vTQ}'); timeout()
        if diag: a(f's_add_u32 s{sCg}, s{sCg}, 1')
        a(f'L_dloop:\ns_waitcnt lgkmcnt(0)\nv_readfirstlane_b32 s{sTmp}, v{vTQ+1}\ns_lshr_b32 s{sTmp2}, s{sTmp}, 16\ns_cmp_eq_u32 s{sTmp2}, s{sJ}\ns_cbranch_scc0 L_tq')
        a(f's_and_b32 s{sTmp}, s{sTmp}, 0xffff\ns_cmp_ge_u32 s{sTmp}, {P}\ns_cbranch_scc1 L_lend')
        a(f's_and_b32 s{sTmp2}, s{sTmp}, {GS-1}\ns_lshl_b32 s{sTmp2}, s{sTmp2}, 19\ns_lshr_b32 s{sTmp}, s{sTmp}, {LG}\ns_lshl_b32 s{sTmp}, s{sTmp}, 13\ns_add_u32 s{sKo}, s{sKb}, s{sTmp2}\ns_add_u32 s{sKo}, s{sKo}, s{sTmp}\ns_add_u32 s{sKo}, s{sKo}, {S*8192}')
        dyn_group('K',W); dyn_group('V',W,tqread)
        lstamp()
        a(f's_mov_b32 s{sVo}, s{sKo}\ns_add_u32 s{sJ}, s{sJ}, 1\ns_branch L_dloop')
    a('L_lend:')
    a(f'v_mov_b32 v{vF}, s{sG}\nds_write_b32 v{vFA}, v{vF} offset:4')
    adv(); relcheck()
    def landed(left_out, tot):
        n=tot-left_out
        if n>=8: return 1
        if n>=0: return 0
        return -1+(n//8)+ (0)
    last=None
    for sb in range(2):
        a(f's_waitcnt vmcnt({W})')
        if (4*sb-W)%8==0: last=landed(W,4*sb); pubrel(last)
        batch('V',sb)
    stamp(1)
    for left in range((W//8)*8,-1,-8):
        d=landed(left,8)
        if d==last: continue
        a(f's_waitcnt vmcnt({left})'); pubrel(d); last=d
    stamp(2)
    if diag: a(f'v_writelane_b32 v{vSt}, s{sJ}, 16\nv_writelane_b32 v{vSt}, s{sCg}, 17')
    stamp_out(dWSl)
    a('s_endpgm')
    a('L_cons:')
    vFA,vRA,vKp,vVp,vM,vMb,vL,vTm=4,5,6,7,8,9,10,11
    vQ=12; vO=28; vK=60; vV=92; vS=124; vA=132; vP=140; vT=144; vAd=148; vL16=156; vWf=160
    dWS,dWD,dWO,dOUT=28,36,40,44
    a(f's_sub_u32 s{sCw}, s{sW}, 1')
    a(f'v_mov_b32 v{vFA}, {L_FULL}\ns_lshl_b32 s{sTmp}, s{sCw}, 2\ns_add_u32 s{sTmp}, s{sTmp}, {L_REL}\nv_mov_b32 v{vRA}, s{sTmp}')
    a(f's_lshl_b32 s{sG}, s{sCw}, 1\ns_add_u32 s{sG}, s{sG}, 3')
    a(f's_cmp_eq_u32 s{sCw}, 0\ns_cselect_b32 s{sTmp}, 0, s{sG}\ns_cmp_eq_u32 s{sCw}, 4\ns_cselect_b32 s{sTmp}, 2, s{sTmp}\nv_mov_b32 v1, s{sTmp}\nds_write_b32 v{vRA}, v1')
    a(f'v_mov_b32 v1, 0\nds_write_b32 v{vFA}, v1 offset:8')
    a(f'v_and_b32 v{vTm}, 7, v0\nv_lshl_add_u32 v{vTm}, v{vTm}, 2, v{vFA}\nds_write_b32 v{vTm}, v1 offset:64')
    a(f's_mov_b32 s{sScale}, {SCALE:#x}\ns_mov_b32 s{sL2e}, {LOG2E:#x}\nv_mov_b32 v{vMask}, 0xff')
    a(f'v_xor_b32 v{vKp}, v2, v3\nv_lshlrev_b32 v{vKp}, 4, v{vKp}\nv_lshl_add_u32 v{vKp}, v3, 8, v{vKp}')
    a(f'v_lshrrev_b32 v1, 2, v3\nv_lshl_add_u32 v1, v2, 2, v1\nv_and_b32 v{vVp}, 7, v1\nv_lshlrev_b32 v{vVp}, 5, v{vVp}\nv_lshl_add_u32 v{vVp}, v1, 8, v{vVp}\nv_and_b32 v{vTm}, 3, v0\nv_lshl_add_u32 v{vVp}, v{vTm}, 3, v{vVp}')
    a(f'v_lshlrev_b32 v{vL16}, 4, v0')
    a(f's_lshl_b32 s{sCg}, s{sXj}, 4\ns_add_u32 s{sCg}, s{sCg}, s{sXi}')
    a('s_waitcnt lgkmcnt(0)')
    a(f's_load_dword s{sT}, s[{pWS}:{pWS+1}], 0')
    a(f's_and_b32 s{sTmp}, s{sCg}, 127\ns_lshl_b32 s{sTmp}, s{sTmp}, 3\ns_load_dwordx2 s[{sXf}:{sXf+1}], s[{pX}:{pX+1}], s{sTmp}')
    srd(dWS,pWS,WS_SZ); srd(dWD,pWD,1792*512*2); srd(dWO,pWO,4096*512*2); srd(dOUT,pOUT,1024)
    a('s_barrier')
    vWO=vK
    def wo_loads():
        a(f's_lshl_b32 s{sTmp}, s{sH}, 5\ns_add_u32 s{sTmp}, s{sTmp}, s{sC}\ns_lshl_b32 s{sTmp}, s{sTmp}, 14\ns_lshl_b32 s{sTmp2}, s{sCw}, 8\ns_add_u32 s{sTmp}, s{sTmp}, s{sTmp2}\nv_lshlrev_b32 v{vT}, 2, v0')
        for i in range(16):
            a(f'buffer_load_dword v{vWf+2*i}, v{vT}, s[{dWO}:{dWO+3}], s{sTmp} offen offset:{1024*(i&3)} {wpol}')
            if i&3==3 and i<15: a(f's_add_u32 s{sTmp}, s{sTmp}, 4096')
    def wo_unpack():
        for i in range(16): a(f'v_and_b32 v{vWf+2*i+1}, 0xffff0000, v{vWf+2*i}\nv_lshlrev_b32 v{vWf+2*i}, 16, v{vWf+2*i}')
    a(f's_and_b32 s{sTmp}, s{sCw}, 3\ns_cmp_eq_u32 s{sTmp}, 0\ns_cbranch_scc1 L_ln')
    wait_full(1,vT,vFA)
    wo_loads()
    a(f's_waitcnt vmcnt(0)'); wo_unpack()
    a(f's_add_u32 s{sT}, s{sT}, 1\ns_lshr_b32 s{sT1}, s{sT}, 8')
    w0,w1,w2,w3=vQ+8,vQ+9,vQ+10,vQ+11
    a('L_waitq:')
    a(f'ds_read_b32 v{w0}, v{vFA} offset:8'); timeout()
    a(f's_waitcnt lgkmcnt(0)\nv_readfirstlane_b32 s{sLoc}, v{w0}\ns_cmp_eq_u32 s{sLoc}, 0\ns_cbranch_scc1 L_waitq\ns_branch L_qready')
    a('L_ln:')
    vx=vK; vxf=vK+4; vWD=vO; vXf=vV
    wait_full(-1,vT,vFA)
    a(f'v_add_u32 v{vT}, {L_X}, v{vL16}\nds_read_b128 v[{vx}:{vx+3}], v{vT}')
    a(f's_add_u32 s{sT}, s{sT}, 1\ns_lshr_b32 s{sT1}, s{sT}, 8')
    stamp(1)
    a('s_waitcnt lgkmcnt(0)')
    for j in range(4): a(f'v_lshlrev_b32 v{vxf+2*j}, 16, v{vx+j}\nv_and_b32 v{vxf+2*j+1}, 0xffff0000, v{vx+j}')
    t0=vxf+8; t1=t0+1; t2=t0+2; vd=t0+4
    a(f'v_add_f32 v{t0}, v{vxf}, v{vxf+1}\nv_add_f32 v{t1}, v{vxf+2}, v{vxf+3}\nv_add_f32 v{t2}, v{vxf+4}, v{vxf+5}\nv_add_f32 v{t0}, v{t0}, v{t1}\nv_add_f32 v{t1}, v{vxf+6}, v{vxf+7}\nv_add_f32 v{t0}, v{t0}, v{t2}\nv_add_f32 v{t0}, v{t0}, v{t1}')
    allred('v_add_f32',[t0],[t1])
    a(f'v_mul_f32 v{t0}, {f2u(1/512.):#x}, v{t0}')
    for j in range(8): a(f'v_sub_f32 v{vd+j}, v{vxf+j}, v{t0}')
    a(f'v_mul_f32 v{t2}, v{vd}, v{vd}')
    for j in range(1,8): a(f'v_fmac_f32 v{t2}, v{vd+j}, v{vd+j}')
    allred('v_add_f32',[t2],[t1])
    a(f'v_mul_f32 v{t2}, {f2u(1/512.):#x}, v{t2}')
    bfr(t0,t0); bfr(t2,t2)
    a(f'v_add_f32 v{t2}, {f2u(1e-5):#x}, v{t2}'); bfr(t2,t2)
    a(f'v_sqrt_f32 v{t2}, v{t2}'); bfr(t2,t2)
    a(f'v_rcp_f32 v{t2}, v{t2}')
    for j in range(8): a(f'v_sub_f32 v{vd+j}, v{vxf+j}, v{t0}')
    for j in range(4): a(f'v_cvt_pk_bf16_f32 v{vx+j}, v{vd+2*j}, v{vd+2*j+1}')
    for j in range(4): a(f'v_lshlrev_b32 v{vd+2*j}, 16, v{vx+j}\nv_and_b32 v{vd+2*j+1}, 0xffff0000, v{vx+j}')
    for j in range(8): a(f'v_mul_f32 v{vd+j}, v{vd+j}, v{t2}')
    for j in range(4): a(f'v_cvt_pk_bf16_f32 v{vx+j}, v{vd+2*j}, v{vd+2*j+1}')
    a(f's_lshl_b32 s{sTmp}, s{sCw}, 8\ns_add_u32 s{sTmp}, s{sTmp}, {L_XN}\nv_add_u32 v{t0}, s{sTmp}, v{vL16}\nds_write_b128 v{t0}, v[{vx}:{vx+3}]')
    a(f's_cmp_eq_u32 s{sCw}, 0\ns_cbranch_scc0 L_help')
    a(f's_lshr_b32 s{sTmp2}, s{sC}, 4\ns_lshl_b32 s{sTmp2}, s{sTmp2}, 9\ns_add_u32 s{sTmp}, s{sTmp}, s{sTmp2}\nv_lshl_add_u32 v{t0}, v2, 3, s{sTmp}')
    for j in range(8): a(f'ds_read2_b64 v[{vXf+4*j}:{vXf+4*j+3}], v{t0} offset0:{8*j} offset1:{8*j+4}')
    vD=vQ; vpt=vT; vB=vK
    a(f'v_lshlrev_b32 v{vpt}, 6, v1\nv_lshl_add_u32 v{vpt}, v{vTm}, 3, v{vpt}\nv_and_b32 v{vpt+1}, 1, v2\nv_lshl_add_u32 v{vpt}, v{vpt+1}, 5, v{vpt}\nv_xor_b32 v{vpt+1}, 32, v{vpt}')
    a(f's_getreg_b32 s{sXcc}, hwreg(HW_REG_XCC_ID, 0, 4)\ns_waitcnt lgkmcnt(2)')
    stamp(2)
    def qgemv(s0,s1):
        seq=[(s,j) for s in range(s0,s1) for j in range(2)]
        def rd(i):
            s,j=seq[i]; b=vB+4*(i%8)
            a(f'ds_read_b64_tr_b16 v[{b}:{b+1}], v{vpt+j} offset:{2048*s}\nds_read_b64_tr_b16 v[{b+2}:{b+3}], v{vpt+j} offset:{2048*s+1024}')
        for i in range(5): rd(i)
        for i in range(len(seq)):
            if i+5<len(seq): rd(i+5)
            a(f's_waitcnt lgkmcnt({2*(min(i+5,len(seq)-1)-i)})')
            s,j=seq[i]; b=vB+4*(i%8)
            a(f'v_mfma_f32_16x16x32_bf16 v[{vD+4*j}:{vD+4*j+3}], v[{b}:{b+3}], v[{vXf+4*s}:{vXf+4*s+3}], '+('0' if s==0 else f'v[{vD+4*j}:{vD+4*j+3}]'))
    wait_full(0,vT+2,vFA); qgemv(0,4)
    wait_full(1,vT+2,vFA); stamp(3); qgemv(4,8)
    a(f'v_mov_b32 v{w0}, 3\nds_write_b32 v{vRA}, v{w0}')
    a(f's_and_b32 s{sTmp}, s{sC}, 7\ns_lshl_b32 s{sTmp}, s{sTmp}, 8\ns_bfe_u32 s{sTmp2}, s{sC}, 0x10003\ns_lshl_b32 s{sTmp2}, s{sTmp2}, 7\ns_add_u32 s{sTmp}, s{sTmp}, s{sTmp2}')
    a(f's_lshr_b32 s{sTmp2}, s{sC}, 4\ns_lshl_b32 s{sTmp2}, s{sTmp2}, 11\ns_add_u32 s{sTmp}, s{sTmp}, s{sTmp2}\ns_lshl_b32 s{sKo}, s{sH}, 12\ns_add_u32 s{sKo}, s{sKo}, {W_QG:#x}\ns_add_u32 s{sTmp}, s{sTmp}, s{sKo}')
    a(f'v_lshlrev_b32 v{vpt}, 4, v2\nv_lshl_add_u32 v{vpt}, v3, 6, v{vpt}\nv_add_u32 v{vpt}, s{sTmp}, v{vpt}')
    a(f's_lshl_b32 s{sVo}, s{sH}, 9\ns_add_u32 s{sVo}, s{sVo}, {W_QX:#x}\ns_lshl_b32 s{sTmp}, s{sC}, 4\ns_add_u32 s{sTmp}, s{sTmp}, s{sVo}')
    setexec(0x0002000200020002)
    for k in range(4): a(f'v_mov_b32 v{vD+k}, v{vD+4+k}')
    a('s_mov_b64 exec, -1'); tag4(vD)
    a(f's_mov_b64 exec, 4\nv_mov_b32 v{vD}, s{sXcc}\nv_mov_b32 v{vD+1}, s{sT}\nv_mov_b32 v{vD+2}, s{sXcc}\nv_mov_b32 v{vD+3}, s{sT}\nv_mov_b32 v{vpt}, s{sTmp}')
    setexec(0x0003000300030007)
    a(f'buffer_store_dwordx4 v[{vD}:{vD+3}], v{vpt}, s[{dWS}:{dWS+3}], 0 offen sc1\ns_mov_b64 exec, -1')
    stamp(4)
    wo_loads()
    a(f'v_and_b32 v{vpt}, 0x1f0, v{vL16}')
    a('L_qpoll:')
    for i in range(4): a(f'buffer_load_dwordx4 v[{vK+4*i}:{vK+4*i+3}], v{vL16}, s[{dWS}:{dWS+3}], s{sKo} offen offset:{1024*i} sc1')
    a(f'buffer_load_dwordx4 v[{vK+16}:{vK+19}], v{vpt}, s[{dWS}:{dWS+3}], s{sVo} offen sc1')
    timeout()
    a('s_waitcnt vmcnt(0)')
    chk(w0,[vK,vK+4,vK+8,vK+12],[vK+17,vK+19],w1)
    a('s_cbranch_vccnz L_qpoll')
    for k in range(8): a(f'v_add_f32 v{vK+k}, v{vK+k}, v{vK+8+k}')
    for k in range(4): a(f'v_cvt_pk_bf16_f32 v{vK+k}, v{vK+2*k}, v{vK+2*k+1}')
    a(f'v_lshlrev_b32 v{vpt}, 3, v0\nv_add_u32 v{vpt}, {L_Q}, v{vpt}\nds_write2st64_b64 v{vpt}, v[{vK}:{vK+1}], v[{vK+2}:{vK+3}] offset0:0 offset1:1')
    a(f'v_cmp_ne_u32 vcc, s{sXcc}, v{vK+16}\ns_mov_b32 s{sLoc}, 1')
    if local: a(f's_cmp_eq_u64 vcc, 0\ns_cselect_b32 s{sLoc}, 2, 1')
    a(f'v_mov_b32 v{w0}, s{sLoc}\nds_write_b32 v{vFA}, v{w0} offset:8')
    stamp(5)
    wo_unpack()
    a('L_qready:')
    a(f'v_lshlrev_b32 v{vT}, 8, v{vTm}\nv_lshl_add_u32 v{vT}, v2, 4, v{vT}\nv_add_u32 v{vT}, {L_Q}, v{vT}')
    for s in range(4): a(f'ds_read_b128 v[{vQ+4*s}:{vQ+4*s+3}], v{vT} offset:{64*s}')
    for i in range(32): a(f'v_mov_b32 v{vO+i}, 0')
    a(f'v_mov_b32 v{vM}, 0xff800000\nv_mov_b32 v{vMb}, 0\nv_mov_b32 v{vL}, 0')
    a(f's_lshl_b32 s{sSlot}, s{sG}, 13\ns_add_u32 s{sSlotV}, s{sSlot}, {3*SLOT}')
    stamp(6)
    a('L_step:')
    a(f's_cmp_ge_i32 s{sG}, s{sGend}\ns_cbranch_scc1 L_exit\ns_cmp_gt_i32 s{sFull}, s{sG}\ns_cbranch_scc1 L_go')
    poll_full(vT,vFA)
    a('s_branch L_step\nL_go:')
    a(f'v_add_u32 v{vAd+4}, s{sSlot}, v{vKp}')
    for s in (1,2,3): a(f'v_xor_b32 v{vAd+4+s}, {64*s}, v{vAd+4}')
    for t in range(2):
        for s in range(4): a(f'ds_read_b128 v[{vK+16*t+4*s}:{vK+16*t+4*s+3}], v{vAd+4+s} offset:{4096*t}')
    a(f's_add_u32 s{sG}, s{sG}, 3\nv_mov_b32 v{vT}, s{sG}')
    for t in range(2):
        a(f's_waitcnt lgkmcnt({4-4*t})')
        if t==1: a(f'ds_write_b32 v{vRA}, v{vT}')
        for s in range(4):
            a(f'v_mfma_f32_16x16x32_bf16 v[{vS+4*t}:{vS+4*t+3}], v[{vK+16*t+4*s}:{vK+16*t+4*s+3}], v[{vQ+4*s}:{vQ+4*s+3}], '+('0' if s==0 else f'v[{vS+4*t}:{vS+4*t+3}]'))
    vVa=vK
    a(f'v_add_u32 v{vAd+1}, s{sSlotV}, v{vVp}')
    for j in range(4): a(f'v_cvt_pk_bf16_f32 v{vP+j}, v{vS+2*j}, v{vS+2*j+1}')
    for j in range(4): a(f'v_lshlrev_b32 v{vA+2*j}, 16, v{vP+j}\nv_and_b32 v{vA+2*j+1}, 0xffff0000, v{vP+j}')
    for j in range(8): a(f'v_mul_f32 v{vA+j}, s{sScale}, v{vA+j}')
    for j in range(4): a(f'v_cvt_pk_bf16_f32 v{vP+j}, v{vA+2*j}, v{vA+2*j+1}')
    for j in range(4): a(f'v_lshlrev_b32 v{vA+2*j}, 16, v{vP+j}\nv_and_b32 v{vA+2*j+1}, 0xffff0000, v{vP+j}')
    a(f'v_max3_f32 v{vT}, v{vA}, v{vA+1}, v{vA+2}\nv_max3_f32 v{vT+1}, v{vA+3}, v{vA+4}, v{vA+5}\nv_max3_f32 v{vT+2}, v{vA+6}, v{vA+7}, v{vM}\nv_max3_f32 v{vT}, v{vT}, v{vT+1}, v{vT+2}')
    allred('v_max_f32',[vT],[vT+1],lo=())
    for db in range(1,8): a(f'v_xor_b32 v{vVa+db}, {32*db}, v{vAd+1}')
    a(f'v_cmp_gt_f32 vcc, v{vT}, v{vM}\ns_cbranch_vccz L_norescale')
    a(f'v_sub_f32 v{vT+1}, v{vM}, v{vT}\nv_mul_f32 v{vT+1}, s{sL2e}, v{vT+1}\nv_exp_f32 v{vT+1}, v{vT+1}\nv_mov_b32 v{vM}, v{vT}\nv_mul_f32 v{vMb}, s{sL2e}, v{vT}\nv_mul_f32 v{vL}, v{vL}, v{vT+1}')
    for i in range(32): a(f'v_mul_f32 v{vO+i}, v{vO+i}, v{vT+1}')
    a('L_norescale:')
    for j in range(8): a(f'v_fma_f32 v{vA+j}, v{vA+j}, s{sL2e}, -v{vMb}')
    for j in range(8): a(f'v_exp_f32 v{vA+j}, v{vA+j}')
    for j in range(4): a(f'v_cvt_pk_bf16_f32 v{vP+j}, v{vA+2*j}, v{vA+2*j+1}')
    a(f'v_add_f32 v{vT}, v{vA}, v{vA+1}\nv_add_f32 v{vT+1}, v{vA+2}, v{vA+3}\nv_add_f32 v{vT+2}, v{vA+4}, v{vA+5}\nv_add_f32 v{vT+3}, v{vA+6}, v{vA+7}')
    a(f'v_add_f32 v{vT}, v{vT}, v{vT+1}\nv_add_f32 v{vT+2}, v{vT+2}, v{vT+3}\nv_add_f32 v{vT}, v{vT}, v{vT+2}\nv_add_f32 v{vL}, v{vL}, v{vT}')
    wait_full(f's{sG}',vT,vFA)
    def rdv(db):
        ad=vAd+1 if db==0 else vVa+db
        a(f'ds_read_b64_tr_b16 v[{vV+4*db}:{vV+4*db+1}], v{ad}\nds_read_b64_tr_b16 v[{vV+4*db+2}:{vV+4*db+3}], v{ad} offset:4096')
    for db in range(6): rdv(db)
    a(f's_add_u32 s{sG}, s{sG}, 5\nv_mov_b32 v{vT}, s{sG}')
    for db in range(8):
        a(f's_waitcnt lgkmcnt({2*(min(db+5,7)-db)})')
        if db==7: a(f'ds_write_b32 v{vRA}, v{vT}')
        a(f'v_mfma_f32_16x16x32_bf16 v[{vO+4*db}:{vO+4*db+3}], v[{vV+4*db}:{vV+4*db+3}], v[{vP}:{vP+3}], v[{vO+4*db}:{vO+4*db+3}]')
        if db+6<8: rdv(db+6)
    a(f's_mov_b32 s{sKo}, s{sSlot}')
    for sl in (sSlot,sSlotV):
        a(f's_add_u32 s{sl}, s{sl}, {8*SLOT}\ns_sub_u32 s{sTmp}, s{sl}, {RING}\ns_cselect_b32 s{sl}, s{sl}, s{sTmp}')
    a('s_branch L_step')
    a('L_exit:')
    stamp(7)
    allred('v_add_f32',[vL],[vT],lo=())
    a(f'v_lshlrev_b32 v{vT}, 9, v3\nv_lshl_add_u32 v{vT}, v2, 4, v{vT}\nv_add_u32 v{vT}, s{sKo}, v{vT}')
    a(f'v_lshl_add_u32 v{vT+1}, v3, 3, s{sKo}\nv_mov_b32 v{vMb}, v{vL}')
    setexec(0x000f000f000f000f)
    for db in range(8): a(f'ds_write_b128 v{vT}, v[{vO+4*db}:{vO+4*db+3}] offset:{64*db}')
    a(f'ds_write_b64 v{vT+1}, v[{vM}:{vM+1}] offset:2048\ns_mov_b64 exec, -1')
    a(f's_sub_u32 s{sTmp}, s{sG}, s{sGend}\ns_lshl_b32 s{sTmp}, s{sTmp}, 13\ns_sub_u32 s{sKo}, s{sKo}, s{sTmp}\ns_cselect_b32 s{sTmp}, {RING}, 0\ns_add_u32 s{sKo}, s{sKo}, s{sTmp}')
    if rec128: a(f'v_lshrrev_b32 v{vT+3}, 3, v0\nv_lshlrev_b32 v{vT+2}, 6, v{vT+3}\nv_lshl_add_u32 v{vT+2}, v{vTm}, 4, v{vT+2}')
    else: a(f'v_and_b32 v{vT+2}, 0x1f0, v{vL16}')
    a(f's_lshl_b32 s{sTmp}, s{sCw}, 9\nv_add_u32 v{vT+2}, s{sTmp}, v{vT+2}\ns_lshl_b32 s{sTmp3}, s{sCw}, 3\ns_add_u32 s{sTmp3}, s{sTmp3}, 2048')
    va=vAd
    for w in range(4):
        a(f'v_add_u32 v{va+w}, s{sKo}, v{vT+2}\ns_add_u32 s{sTmp}, s{sKo}, s{sTmp3}\nv_mov_b32 v{va+4+w}, s{sTmp}')
        if w<3: a(f's_add_u32 s{sKo}, s{sKo}, {2*SLOT}\ns_sub_u32 s{sTmp}, s{sKo}, {RING}\ns_cselect_b32 s{sKo}, s{sKo}, s{sTmp}')
    vpa=vP; vga=vP+1; vgm=vP+2
    if rec128:
        a(f's_lshl_b32 s{sTmp}, s{sH}, 17\ns_add_u32 s{sTmp}, s{sTmp}, {W_P2:#x}\ns_lshl_b32 s{sTmp2}, s{sC}, 12\ns_add_u32 s{sKo}, s{sTmp}, s{sTmp2}')
        a(f's_lshl_b32 s{sTmp2}, s{sCw}, 15\ns_add_u32 s{sTmp}, s{sTmp}, s{sTmp2}\ns_lshl_b32 s{sTmp2}, s{sC}, 7\ns_add_u32 s{sTmp}, s{sTmp}, s{sTmp2}')
        a(f'v_and_b32 v{vpa}, 0x70, v{vL16}\nv_lshl_add_u32 v{vpa}, v{vT+3}, 12, v{vpa}\nv_add_u32 v{vpa}, s{sTmp}, v{vpa}')
        a(f'v_lshrrev_b32 v{vgm}, 2, v0\nv_lshlrev_b32 v{vgm}, 7, v{vgm}\nv_lshl_add_u32 v{vga}, v{vTm}, 4, v{vgm}')
    else:
        a(f's_lshl_b32 s{sTmp}, s{sH}, 16\ns_add_u32 s{sTmp}, s{sTmp}, {W_P2:#x}\ns_lshl_b32 s{sTmp2}, s{sC}, 11\ns_add_u32 s{sKo}, s{sTmp}, s{sTmp2}')
        a(f's_lshl_b32 s{sTmp2}, s{sCw}, 14\ns_add_u32 s{sTmp}, s{sTmp}, s{sTmp2}\ns_lshl_b32 s{sTmp2}, s{sC}, 6\ns_add_u32 s{sTmp}, s{sTmp}, s{sTmp2}')
        a(f'v_lshrrev_b32 v{vgm}, 2, v0\nv_lshlrev_b32 v{vpa}, 11, v{vgm}\nv_lshl_add_u32 v{vpa}, v{vTm}, 4, v{vpa}\nv_add_u32 v{vpa}, s{sTmp}, v{vpa}\nv_lshlrev_b32 v{vgm}, 4, v{vgm}')
        a(f's_lshl_b32 s{sTmp}, s{sH}, 11\ns_add_u32 s{sTmp}, s{sTmp}, {W_ML:#x}\ns_lshr_b32 s{sTmp2}, s{sC}, 3\ns_lshl_b32 s{sTmp2}, s{sTmp2}, 9\ns_add_u32 s{sVo}, s{sTmp}, s{sTmp2}')
        a(f's_lshl_b32 s{sTmp2}, s{sCw}, 9\ns_add_u32 s{sTmp}, s{sTmp}, s{sTmp2}\ns_lshl_b32 s{sTmp2}, s{sC}, 4\ns_add_u32 s{sTmp}, s{sTmp}, s{sTmp2}\nv_writelane_b32 v{vpa}, s{sTmp}, 32')
    a('s_waitcnt lgkmcnt(0)\ns_barrier')
    stamp(8)
    vml=vS; vo4=vK; r=vO
    for w in range(4): a(f'ds_read_b64 v[{vml+2*w}:{vml+2*w+1}], v{va+4+w}')
    for w in range(4): a(f'ds_read_b128 v[{vo4+4*w}:{vo4+4*w+3}], v{va+w}')
    a(f's_waitcnt lgkmcnt(4)\nv_max3_f32 v{r+4}, v{vml}, v{vml+2}, v{vml+4}\nv_max_f32 v{r+4}, v{r+4}, v{vml+6}')
    for w in range(4): a(f'v_sub_f32 v{vml+2*w}, v{vml+2*w}, v{r+4}')
    for w in range(4): a(f'v_mul_f32 v{vml+2*w}, s{sL2e}, v{vml+2*w}')
    for w in range(4): a(f'v_exp_f32 v{vml+2*w}, v{vml+2*w}')
    a(f'v_mul_f32 v{r+5}, v{vml}, v{vml+1}')
    for w in range(1,4): a(f'v_fmac_f32 v{r+5}, v{vml+2*w}, v{vml+2*w+1}')
    a('s_waitcnt lgkmcnt(0)')
    for k in range(4): a(f'v_mul_f32 v{r+k}, v{vml}, v{vo4+k}')
    for w in range(1,4):
        for k in range(4): a(f'v_fmac_f32 v{r+k}, v{vml+2*w}, v{vo4+4*w+k}')
    tag4(r)
    setexec((0xf0f0f0f0f0f0f0f0 if fullrec else 0x1010101010101010) if rec128 else 1<<32)
    a(f'v_mov_b32 v{r}, v{r+4}\nv_mov_b32 v{r+1}, s{sT}\nv_mov_b32 v{r+2}, v{r+5}\nv_mov_b32 v{r+3}, s{sT}')
    if rec128 and fullrec: a('s_mov_b64 exec, -1')
    else: setexec(0x1f1f1f1f1f1f1f1f if rec128 else 0x1ffffffff)
    a(f's_cmp_eq_u32 s{sLoc}, 2\ns_cbranch_scc1 L_p2loc')
    a(f'buffer_store_dwordx4 v[{r}:{r+3}], v{vpa}, s[{dWS}:{dWS+3}], 0 offen sc1\ns_branch L_p2done')
    a(f'L_p2loc:\nbuffer_store_dwordx4 v[{r}:{r+3}], v{vpa}, s[{dWS}:{dWS+3}], 0 offen\nL_p2done:\ns_mov_b64 exec, -1')
    stamp(9)
    po=vK; pm=vK+8
    a('L_s2poll:')
    for i in range(2):
        if rec128:
            a(f'buffer_load_dwordx4 v[{po+4*i}:{po+4*i+3}], v{vga}, s[{dWS}:{dWS+3}], s{sKo} offen offset:{2048*i} sc1')
            a(f'buffer_load_dwordx4 v[{pm+4*i}:{pm+4*i+3}], v{vgm}, s[{dWS}:{dWS+3}], s{sKo} offen offset:{2048*i+64} sc1')
        else:
            a(f'buffer_load_dwordx4 v[{po+4*i}:{po+4*i+3}], v{vL16}, s[{dWS}:{dWS+3}], s{sKo} offen offset:{1024*i} sc1')
            a(f'buffer_load_dwordx4 v[{pm+4*i}:{pm+4*i+3}], v{vgm}, s[{dWS}:{dWS+3}], s{sVo} offen offset:{256*i} sc1')
    timeout()
    a('s_waitcnt vmcnt(0)')
    chk(vT,[po,po+4],[pm+1,pm+3,pm+5,pm+7],vT+1)
    a('s_cbranch_vccnz L_s2poll')
    stamp(10)
    mx=vM
    a(f'v_max_f32 v{mx}, v{pm}, v{pm+4}')
    allred('v_max_f32',[mx],[vT+1],lo=(4,8))
    for i in range(2): a(f'v_sub_f32 v{pm+4*i}, v{pm+4*i}, v{mx}')
    for i in range(2): a(f'v_mul_f32 v{pm+4*i}, s{sL2e}, v{pm+4*i}')
    for i in range(2): a(f'v_exp_f32 v{pm+4*i}, v{pm+4*i}')
    o=vS; ls=vS+4
    for k in range(4): a(f'v_mul_f32 v{o+k}, v{pm}, v{po+k}')
    a(f'v_mul_f32 v{ls}, v{pm}, v{pm+2}')
    for k in range(4): a(f'v_fmac_f32 v{o+k}, v{pm+4}, v{po+4+k}')
    a(f'v_fmac_f32 v{ls}, v{pm+4}, v{pm+6}')
    allred('v_add_f32',[ls,o,o+1,o+2,o+3],[vA,vA+1,vA+2,vA+3,vA+4],lo=(4,8))
    a(f'v_rcp_f32 v{ls}, v{ls}')
    a(f'v_mov_b32 v{r}, 0\nv_mov_b32 v{r+1}, 0')
    for k in range(4): a(f'v_mul_f32 v{o+k}, v{o+k}, v{ls}')
    a(f'v_cvt_pk_bf16_f32 v{vA}, v{o}, v{o+1}\nv_cvt_pk_bf16_f32 v{vA+1}, v{o+2}, v{o+3}')
    a(f'v_lshlrev_b32 v{o}, 16, v{vA}\nv_and_b32 v{o+1}, 0xffff0000, v{vA}\nv_lshlrev_b32 v{o+2}, 16, v{vA+1}\nv_and_b32 v{o+3}, 0xffff0000, v{vA+1}')
    a(f's_lshl_b32 s{sTmp}, s{sCw}, 17\ns_lshl_b32 s{sTmp2}, s{sB}, 7\ns_add_u32 s{sTmp}, s{sTmp}, s{sTmp2}\ns_add_u32 s{sTmp}, s{sTmp}, {W_S3:#x}\nv_lshlrev_b32 v{vT}, 15, v2\nv_lshl_add_u32 v{vT}, v3, 3, v{vT}')
    for i in range(16):
        j,k=i>>2,i&3
        a(f'v_fmac_f32_dpp v{r}, v{o+k}, v{vWf+2*i} quad_perm:[{j},{j},{j},{j}] row_mask:0xf bank_mask:0xf\nv_fmac_f32_dpp v{r+1}, v{o+k}, v{vWf+2*i+1} quad_perm:[{j},{j},{j},{j}] row_mask:0xf bank_mask:0xf')
    a(f'v_mov_b32_dpp v{r+2}, v{r} quad_perm:[1,1,3,3] row_mask:0xf bank_mask:0xf\nv_mov_b32_dpp v{r+3}, v{r+1} quad_perm:[1,1,3,3] row_mask:0xf bank_mask:0xf')
    tag4(r)
    setexec(0x5555555555555555)
    a(f'buffer_store_dwordx4 v[{r}:{r+3}], v{vT}, s[{dWS}:{dWS+3}], s{sTmp} offen sc1')
    stamp(11)
    stamp_out(dWS)
    a('s_endpgm')
    a('L_help:')
    if P:
        a(f's_lshl_b32 s{sKb}, s{sH}, 5\ns_add_u32 s{sKb}, s{sKb}, s{sC}\ns_lshr_b32 s{sKb}, s{sKb}, {LG}\ns_mul_i32 s{sKb}, s{sKb}, {CST}\ns_add_u32 s{sKb}, s{sKb}, {W_CNT:#x}\ns_and_b32 s{sTmp}, s{sC}, {GS-1}\ns_cmp_eq_u32 s{sTmp}, 0\ns_cbranch_scc0 L_nocnt')
        a(f'v_mov_b32 v{vT}, 0\nv_mov_b32 v{vT+1}, s{sT}\ns_mov_b64 exec, 1\nbuffer_store_dwordx2 v[{vT}:{vT+1}], off, s[{dWS}:{dWS+3}], s{sKb} sc1\ns_mov_b64 exec, -1\nL_nocnt:')
    a(f's_cmp_lt_u32 s{sF}, 224\ns_cbranch_scc0 L_noffn')
    a(f's_and_b32 s{sTmp2}, s{sF}, 7\ns_lshl_b32 s{sTmp2}, s{sTmp2}, 7\ns_add_u32 s{sTmp}, s{sTmp2}, {L_XN+1024}\nv_lshl_add_u32 v{t0}, v2, 3, s{sTmp}')
    for j in range(2): a(f'ds_read2_b64 v[{vXf+4*j}:{vXf+4*j+3}], v{t0} offset0:{8*j} offset1:{8*j+4}')
    a(f'v_lshlrev_b32 v{vAd}, 7, v1\nv_lshl_add_u32 v{vAd}, v{vTm}, 3, v{vAd}\nv_bfe_u32 v{vAd+1}, v1, 1, 2\nv_lshl_add_u32 v{vAd}, v{vAd+1}, 5, v{vAd}')
    for j in (1,2,3): a(f'v_xor_b32 v{vAd+j}, {32*j}, v{vAd}')
    stamp(2)
    wait_full(1,vT,vFA)
    a(f's_lshl_b32 s{sTmp}, s{sF}, 13\ns_add_u32 s{sTmp2}, s{sTmp}, 4096')
    for j in range(8): a(f'buffer_load_dwordx4 v[{vWD+4*j}:{vWD+4*j+3}], v{vL16}, s[{dWD}:{dWD+3}], s{sTmp if j<4 else sTmp2} offen offset:{1024*(j&3)} {wpol}')
    vAc=vWf
    def fgemv(mat):
        seq=[(s,j) for s in range(2) for j in range(4)]
        base=(2+2*mat)*SLOT
        def rd(i):
            s,j=seq[i]; b=vB+4*i
            a(f'ds_read_b64_tr_b16 v[{b}:{b+1}], v{vAd+j} offset:{base+4096*s}\nds_read_b64_tr_b16 v[{b+2}:{b+3}], v{vAd+j} offset:{base+4096*s+2048}')
        for i in range(5): rd(i)
        for i in range(8):
            if i+5<8: rd(i+5)
            a(f's_waitcnt lgkmcnt({2*(min(i+5,7)-i)})')
            s,j=seq[i]; b=vB+4*i; d=vAc+16*mat+4*j
            a(f'v_mfma_f32_16x16x32_bf16 v[{d}:{d+3}], v[{b}:{b+3}], v[{vXf+4*s}:{vXf+4*s+3}], '+('0' if s==0 else f'v[{d}:{d+3}]'))
    wait_full(2,vT,vFA); fgemv(0)
    wait_full(4,vT,vFA); stamp(3); fgemv(1)
    a(f'v_mov_b32 v{w0}, {INF:#x}\nds_write_b32 v{vRA}, v{w0}')
    for n in range(1,8):
        setexec(0x0001000100010001<<n)
        for k in range(4): a(f'v_mov_b32 v{vAc+k}, v{vAc+4*n+k}')
    a('s_mov_b64 exec, -1'); tag4(vAc)
    a(f's_lshl_b32 s{sTmp}, s{sF}, 9\ns_add_u32 s{sTmp}, s{sTmp}, {W_F1:#x}\nv_lshlrev_b32 v{vT}, 4, v2\nv_lshl_add_u32 v{vT}, v3, 6, v{vT}')
    setexec(0x00ff00ff00ff00ff)
    a(f'buffer_store_dwordx4 v[{vAc}:{vAc+3}], v{vT}, s[{dWS}:{dWS+3}], s{sTmp} offen sc1\ns_mov_b64 exec, -1')
    stamp(4)
    a(f's_and_b32 s{sTmp}, s{sF}, 0xf8\ns_lshl_b32 s{sTmp}, s{sTmp}, 9\ns_and_b32 s{sTmp2}, s{sF}, 7\ns_lshl_b32 s{sTmp2}, s{sTmp2}, 5\ns_add_u32 s{sTmp}, s{sTmp}, s{sTmp2}\ns_add_u32 s{sKo}, s{sTmp}, {W_F1:#x}')
    a(f'v_bfe_u32 v{vT+2}, v0, 1, 4\nv_lshlrev_b32 v{vT+2}, 8, v{vT+2}\nv_and_b32 v{vT+3}, 1, v0\nv_lshl_add_u32 v{vT+2}, v{vT+3}, 4, v{vT+2}')
    if f1wait: wait_full(f1wait,vT,vFA)
    gu=vK
    a('L_f1poll:')
    a(f'buffer_load_dwordx4 v[{gu}:{gu+3}], v{vT+2}, s[{dWS}:{dWS+3}], s{sKo} offen sc1')
    timeout()
    a('s_waitcnt vmcnt(0)')
    chk(vT,[gu],[],None)
    a('s_cbranch_vccnz L_f1poll')
    allred('v_add_f32',[gu,gu+1,gu+2,gu+3],[vA,vA+1,vA+2,vA+3],lo=(4,8),hi=(16,))
    for k in range(4): bfr(gu+k,gu+k)
    k1=-2*0.7978845608028654*1.4426950408889634
    hh=gu+4; up=gu+8
    for k in range(4): a(f'v_mov_b32_dpp v{up+k}, v{gu+k} quad_perm:[2,3,2,3] row_mask:0xf bank_mask:0xf')
    for k in range(4): a(f'v_mul_f32 v{hh+k}, v{gu+k}, v{gu+k}')
    for k in range(4): a(f'v_mul_f32 v{hh+k}, {f2u(0.044715):#x}, v{hh+k}')
    for k in range(4): a(f'v_fma_f32 v{hh+k}, v{hh+k}, v{gu+k}, v{gu+k}')
    for k in range(4): a(f'v_mul_f32 v{hh+k}, {f2u(k1):#x}, v{hh+k}')
    for k in range(4): a(f'v_exp_f32 v{hh+k}, v{hh+k}')
    for k in range(4): a(f'v_add_f32 v{hh+k}, 1.0, v{hh+k}')
    for k in range(4): a(f'v_rcp_f32 v{hh+k}, v{hh+k}')
    for k in range(4): a(f'v_mul_f32 v{hh+k}, v{gu+k}, v{hh+k}')
    for k in range(4): bfr(hh+k,hh+k)
    for k in range(4): a(f'v_mul_f32 v{hh+k}, v{hh+k}, v{up+k}')
    for k in range(4): bfr(hh+k,hh+k)
    acc=vV; un=vV+8
    for k in range(8): a(f'v_mov_b32 v{acc+k}, 0')
    for j in range(8):
        for k in range(4): a(f'v_lshlrev_b32 v{un+2*k}, 16, v{vWD+4*j+k}\nv_and_b32 v{un+2*k+1}, 0xffff0000, v{vWD+4*j+k}')
        for k in range(8): a(f'v_fmac_f32_dpp v{acc+k}, v{hh+(j&3)}, v{un+k} quad_perm:[{j>>2},{j>>2},{j>>2},{j>>2}] row_mask:0xf bank_mask:0xf')
    tag4(acc); tag4(acc+4)
    a(f's_lshl_b32 s{sTmp}, s{sF}, 7\ns_add_u32 s{sTmp}, s{sTmp}, {W_B3:#x}\ns_add_u32 s{sTmp2}, s{sTmp}, {8*28672}')
    a(f'v_lshrrev_b32 v{vT}, 3, v0\nv_mul_u32_u24 v{vT}, 28672, v{vT}\nv_and_b32 v{vT+1}, 7, v0\nv_lshl_add_u32 v{vT}, v{vT+1}, 4, v{vT}')
    a(f'buffer_store_dwordx4 v[{acc}:{acc+3}], v{vT}, s[{dWS}:{dWS+3}], s{sTmp} offen sc1\nbuffer_store_dwordx4 v[{acc+4}:{acc+7}], v{vT}, s[{dWS}:{dWS+3}], s{sTmp2} offen sc1')
    stamp(5)
    a('s_branch L_ffndone')
    a(f'L_noffn:\nv_mov_b32 v{w0}, {INF:#x}\nds_write_b32 v{vRA}, v{w0}\nL_ffndone:')
    vb=vK; gg=vQ; v128=vAd
    a(f'v_lshlrev_b32 v{v128}, 7, v0')
    a(f's_cmp_lt_u32 s{sXi}, 16\ns_cbranch_scc0 L_nob3')
    wait_full(min(b3wait,2*S-D-1),vT,vFA)
    a(f's_and_b32 s{sTmp}, s{sCg}, 1\ns_lshl_b32 s{sTmp}, s{sTmp}, 3\ns_lshr_b32 s{sTmp2}, s{sCg}, 4\ns_add_u32 s{sTmp}, s{sTmp}, s{sTmp2}\ns_mul_i32 s{sTmp}, s{sTmp}, 28672')
    a(f's_bfe_u32 s{sTmp2}, s{sCg}, 0x30001\ns_lshl_b32 s{sTmp2}, s{sTmp2}, 4\ns_add_u32 s{sTmp}, s{sTmp}, s{sTmp2}\ns_add_u32 s{sKo}, s{sTmp}, {W_B3:#x}')
    for k in range(4): a(f'v_mov_b32 v{vb+12+k}, 0')
    tag4(vb+12)
    def gather4(l,last32):
        a(f'{l}:')
        for i in range(4):
            a(f's_add_u32 s{sTmp}, s{sKo}, {8192*i}')
            if i==3 and last32: a('s_mov_b32 exec_hi, 0')
            a(f'buffer_load_dwordx4 v[{vb+4*i}:{vb+4*i+3}], v{v128}, s[{dWS}:{dWS+3}], s{sTmp} offen sc1')
        if last32: a('s_mov_b64 exec, -1')
        timeout()
        a('s_waitcnt vmcnt(0)')
        chk(vT,[vb,vb+4,vb+8,vb+12],[],None)
        a(f's_cbranch_vccnz {l}')
    def sum4(dst):
        for k in range(4): a(f'v_add_f32 v{dst+k}, v{vb+k}, v{vb+4+k}\nv_add_f32 v{vb+8+k}, v{vb+8+k}, v{vb+12+k}')
        for k in range(4): a(f'v_add_f32 v{dst+k}, v{dst+k}, v{vb+8+k}')
        allred('v_add_f32',[dst,dst+1,dst+2,dst+3],[vA,vA+1,vA+2,vA+3])
    gather4('L_b3poll',True)
    sum4(gg)
    for k in range(4): bfr(gg+k,gg+k)
    for k in range(4): a(f'v_mul_f32 v{vA+k}, s{sL2e}, v{gg+k}')
    for k in range(4): a(f'v_exp_f32 v{vA+k}, -v{vA+k}')
    for k in range(4): a(f'v_add_f32 v{vA+k}, 1.0, v{vA+k}')
    for k in range(4): a(f'v_rcp_f32 v{vA+k}, v{vA+k}')
    for k in range(4): a(f'v_mul_f32 v{gg+k}, v{gg+k}, v{vA+k}')
    for k in range(4): bfr(gg+k,gg+k)
    stamp(6)
    a('L_nob3:')
    if P:
        tk=vO
        wait_full(2*S-D-1,vT,vFA)
        a('s_mov_b64 exec, 1')
        a(f'L_cnt:\nbuffer_load_dwordx2 v[{vT}:{vT+1}], off, s[{dWS}:{dWS+3}], s{sKb} sc1'); timeout()
        a(f's_waitcnt vmcnt(0)\nv_readfirstlane_b32 s{sTmp}, v{vT+1}\ns_cmp_eq_u32 s{sTmp}, s{sT}\ns_cbranch_scc0 L_cnt')
        stamp(7)
        def tick(i,pubi):
            a(f's_lshl_b32 s{sTmp3}, s{sJ}, 1\ns_sub_u32 s{sTmp3}, s{sTmp3}, {D}')
            wait_full(f's{sTmp3}',vT,vFA)
            a(f'v_mov_b32 v{tk+i}, 1\nbuffer_atomic_add v{tk+i}, off, s[{dWS}:{dWS+3}], s{sKb} {apol}')
            if pubi is not None:
                a(f's_sub_u32 s{sTmp2}, s{sJ}, 2\ns_and_b32 s{sTmp3}, s{sTmp2}, 7\ns_lshl_b32 s{sTmp3}, s{sTmp3}, 2\ns_add_u32 s{sTmp3}, s{sTmp3}, {L_TQ}\nv_mov_b32 v{vT+2}, s{sTmp3}\ns_lshl_b32 s{sTmp2}, s{sTmp2}, 16')
                a(f's_waitcnt vmcnt(2)\nv_or_b32 v{vT+3}, s{sTmp2}, v{tk+pubi}\nv_readfirstlane_b32 s{sTmp}, v{tk+pubi}\nds_write_b32 v{vT+2}, v{vT+3}\ns_cmp_ge_u32 s{sTmp}, {P}\ns_cbranch_scc1 L_tdone')
            a(f's_add_u32 s{sJ}, s{sJ}, 1')
        a(f's_mov_b32 s{sJ}, {S}')
        tick(0,None); tick(1,None)
        a('L_tloop:'); tick(2,0); tick(0,1); tick(1,2); a('s_branch L_tloop\nL_tdone:\ns_mov_b64 exec, -1')
    stamp(8)
    a(f's_lshr_b32 s{sTmp}, s{sCg}, 3\ns_lshl_b32 s{sTmp}, s{sTmp}, 15\ns_and_b32 s{sTmp2}, s{sCg}, 7\ns_lshl_b32 s{sTmp2}, s{sTmp2}, 4\ns_add_u32 s{sTmp}, s{sTmp}, s{sTmp2}\ns_add_u32 s{sKo}, s{sTmp}, {W_S3:#x}')
    a(f's_barrier\ns_cmp_lt_u32 s{sXi}, 16\ns_cbranch_scc0 L_hfin')
    gather4('L_s3poll',False)
    stamp(12)
    ss=vS
    sum4(ss)
    def rnd4(v):
        a(f'v_cvt_pk_bf16_f32 v{vA}, v{v}, v{v+1}\nv_cvt_pk_bf16_f32 v{vA+1}, v{v+2}, v{v+3}')
    def exp4(v):
        a(f'v_lshlrev_b32 v{v}, 16, v{vA}\nv_and_b32 v{v+1}, 0xffff0000, v{vA}\nv_lshlrev_b32 v{v+2}, 16, v{vA+1}\nv_and_b32 v{v+3}, 0xffff0000, v{vA+1}')
    rnd4(ss); exp4(ss)
    for k in range(4): a(f'v_mul_f32 v{ss+k}, v{ss+k}, v{gg+k}')
    rnd4(ss); exp4(ss)
    for k in range(4):
        a((f's_lshl_b32 s{sTmp}, s{sXf+k//2}, 16' if k%2==0 else f's_and_b32 s{sTmp}, s{sXf+k//2}, 0xffff0000')+f'\nv_add_f32 v{ss+k}, s{sTmp}, v{ss+k}')
    rnd4(ss)
    a(f's_lshl_b32 s{sTmp}, s{sCg}, 3\ns_mov_b64 exec, 1\nbuffer_store_dwordx2 v[{vA}:{vA+1}], off, s[{dOUT}:{dOUT+3}], s{sTmp}')
    a(f's_cmp_eq_u32 s{sCg}, 0\ns_cbranch_scc0 L_hfin\nv_mov_b32 v{vT+1}, s{sT}\nbuffer_store_dword v{vT+1}, off, s[{dWS}:{dWS+3}], 0')
    a('L_hfin:')
    stamp(13)
    stamp_out(dWS)
    a('L_end:\ns_endpgm')
    n=a.fix()
    out=HDR+f'; @launch grid=(256,1,1) block=({64*NWAVE},1,1) lds=163840\n'
    out+=f'.amdgcn_target "amdgcn-amd-amdhsa--gfx950"\n.text\n.globl {NAME}\n.p2align 8\n.type {NAME},@function\n'
    out+=a.text()
    out+=f'''.section .rodata,"a"
.p2align 6
.amdhsa_kernel {NAME}
  .amdhsa_next_free_vgpr 192
  .amdhsa_next_free_sgpr 96
  .amdhsa_accum_offset 192
  .amdhsa_group_segment_fixed_size 0
  .amdhsa_kernarg_size 96
  .amdhsa_user_sgpr_count 2
  .amdhsa_user_sgpr_kernarg_segment_ptr 1
  .amdhsa_system_sgpr_workgroup_id_x 1
  .amdhsa_float_denorm_mode_32 3
.end_amdhsa_kernel
'''
    return out
if __name__=='__main__':
    kw=eval('dict(%s)'%(sys.argv[1] if len(sys.argv)>1 else ''))
    sys.stdout.write(gen(**kw))
```

```python
import sys, struct
from asmlib import Asm
NAME='recurrent_scan__gqa_block_cached__geglu_ffn__decode_kernel'
HDR=open('recurrent_scan__gqa_block_cached__geglu_ffn__decode.s.ref').read().split('; Override launch')[0]
def f2u(x): return struct.unpack('<I',struct.pack('<f',x))[0]
LOG2E=f2u(1.4426950408889634); SCALE=f2u(128**-0.5)
R=18; SLOT=8192; RING=R*SLOT
MISC=RING
L_FULL=MISC; L_QRDY=MISC+8; L_MODE=MISC+12; L_REL=MISC+16; L_SM=MISC+128; L_X=MISC+1024; L_XN=MISC+2048; L_Q=MISC+4096; L_SC=MISC+8192
W_CNT=0x1000; W_QG=0x10000; W_QX=0x18000; W_F1=0x20000; W_ML=0x40000; W_P2=0x280000; W_S3=0x100000; W_B3=0x180000; W_ST=0x200000; WS_SZ=0x380000
NWAVE=6; INF=0x7fffffff; CST=0x180
def gen(mapping='hx', N=20, S=64, diag=0, pol='nt', wpol='nt', local=1, f1wait=12, N0=None, fb=1, dN=4, m0=20, mk=6, mlast=124, tlo=10, thi=21, b3idx=6, prew=0, s3db=0):
    a=Asm()
    N0=N0 or N
    W=N0-4
    modes=[N,N-dN,N+dN] if fb else [N]
    assert W%4==0 and S>=8
    sB,sW=2,3
    pX,pK,pV,pWQ,pWO,pWG,pWU,pWD,pOUT,pWS=4,6,8,10,12,16,18,20,22,26
    sH,sC,sXi,sF,sT,sTO=48,49,50,51,52,53
    sFull,sG,sSlot,sSlotV,sMin,sKo,sVo,sTmp,sTmp2,sCnt,sGmR=54,55,56,57,58,59,60,61,62,63,64
    sScale,sL2e,sT1,sGend,sCw,sXj=65,66,67,68,69,74
    sSt=70
    sSt0=72
    sXf=76
    sLoc,sKb,sJ,sCg,sXcc,sTmp3=78,79,80,81,82,83
    vSt=159
    uid=[0]
    def lab(p): uid[0]+=1; return f'L_{p}_{uid[0]}'
    def srd(d,p,size):
        a(f's_mov_b32 s{d}, s{p}\ns_mov_b32 s{d+1}, s{p+1}\ns_mov_b32 s{d+2}, {size:#x}\ns_mov_b32 s{d+3}, 0x20000')
    def stamp(k):
        if diag: a(f's_memrealtime s[{sSt}:{sSt+1}]\ns_waitcnt lgkmcnt(0)\nv_writelane_b32 v{vSt}, s{sSt}, {k}')
    def stamp_out(srd_ws):
        if diag:
            a(f'v_writelane_b32 v{vSt}, s{sSt0}, 0')
            a(f's_mul_i32 s{sTmp}, s{sB}, {NWAVE}\ns_add_u32 s{sTmp}, s{sTmp}, s{sW}\ns_lshl_b32 s{sTmp}, s{sTmp}, 8\ns_add_u32 s{sTmp}, s{sTmp}, {W_ST:#x}')
            a(f's_mov_b64 exec, -1\nv_lshlrev_b32 v1, 2, v0\nbuffer_store_dword v{vSt}, v1, s[{srd_ws}:{srd_ws+3}], s{sTmp} offen sc1')
    def setexec(m):
        lo,hi=m&0xffffffff,m>>32
        if hi==0 and lo<0x80000000: a(f's_mov_b64 exec, {lo:#x}')
        else: a(f's_mov_b32 exec_lo, {lo:#x}\ns_mov_b32 exec_hi, {hi:#x}')
    def timeout():
        a(f's_sub_u32 s{sTO}, s{sTO}, 1\ns_cbranch_scc1 L_end')
    def poll_full(vtmp,vaddr):
        a(f'ds_read_b64 v[{vtmp}:{vtmp+1}], v{vaddr}')
        timeout()
        a(f's_waitcnt lgkmcnt(0)\nv_readfirstlane_b32 s{sFull}, v{vtmp}\nv_readfirstlane_b32 s{sGend}, v{vtmp+1}')
    def wait_full(x, vtmp, vaddr):
        assert vtmp%2==0
        ok=lab('fok'); p=lab('fp')
        a(f's_cmp_gt_i32 s{sFull}, {x}\ns_cbranch_scc1 {ok}\n{p}:')
        poll_full(vtmp,vaddr)
        a(f's_cmp_gt_i32 s{sFull}, {x}\ns_cbranch_scc0 {p}\n{ok}:')
    def bfr(dst,src):
        a(f'v_cvt_pk_bf16_f32 v{dst}, v{src}, v{src}\nv_and_b32 v{dst}, 0xffff0000, v{dst}')
    def allred(op, vs, ts, lo=(8,4,2,1), hi=(16,32)):
        for r in lo:
            for v in vs: a(f'{op}_dpp v{v}, v{v}, v{v} row_ror:{r} row_mask:0xf bank_mask:0xf')
        for sw in hi:
            for v,t in zip(vs,ts): a(f'v_mov_b32 v{t}, v{v}')
            for v,t in zip(vs,ts): a(f'v_permlane{sw}_swap_b32 v{v}, v{t}')
            for v,t in zip(vs,ts): a(f'{op} v{v}, v{v}, v{t}')
    vMask=157
    def tag4(v):
        for k in range(4): a(f'v_bfi_b32 v{v+k}, v{vMask}, s{sT if k%2==0 else sT1}, v{v+k}')
    def chk(acc,regs_mt,regs_full,acc2):
        first=True
        for v in regs_mt:
            for k in range(4):
                s=sT if k%2==0 else sT1
                a(f'v_xor_b32 v{acc}, s{s}, v{v+k}' if first else f'v_bitop3_b32 v{acc}, v{v+k}, s{s}, v{acc} bitop3:0xbe'); first=False
        if regs_full:
            first=True
            for v in regs_full:
                a(f'v_xor_b32 v{acc2}, s{sT}, v{v}' if first else f'v_bitop3_b32 v{acc2}, v{v}, s{sT}, v{acc2} bitop3:0xbe'); first=False
            a(f'v_and_or_b32 v{acc}, v{acc}, v{vMask}, v{acc2}')
        else: a(f'v_and_b32 v{acc}, v{vMask}, v{acc}')
        a(f'v_cmp_ne_u32 vcc, 0, v{acc}')

    a(f'{NAME}:')
    if diag: a(f's_memrealtime s[{sSt0}:{sSt0+1}]')
    a(f's_cmp_ge_u32 s{sB}, 256\ns_cbranch_scc1 L_end')
    a('s_load_dwordx16 s[4:19], s[0:1], 0\ns_load_dwordx8 s[20:27], s[0:1], 64')
    if diag: a(f'v_mov_b32 v{vSt}, 0')
    a(f'v_lshrrev_b32 v1, 6, v0\nv_and_b32 v0, 63, v0\nv_readfirstlane_b32 s{sW}, v1')
    a(f's_and_b32 s{sXj}, s{sB}, 7\ns_lshr_b32 s{sXi}, s{sB}, 3')
    a(f's_mul_i32 s{sF}, s{sXj}, 28\ns_add_u32 s{sF}, s{sF}, s{sXi}')
    a(f's_cmp_lt_u32 s{sXi}, 28\ns_cselect_b32 s{sF}, s{sF}, 0x100000')
    if mapping=='hx': a(f's_mov_b32 s{sH}, s{sXj}\ns_mov_b32 s{sC}, s{sXi}')
    else: a(f's_lshr_b32 s{sH}, s{sB}, 5\ns_and_b32 s{sC}, s{sB}, 31')
    a(f's_mov_b32 s{sTO}, 200000\ns_mov_b32 s{sFull}, -1\ns_mov_b32 s{sGend}, {INF:#x}')
    a(f'v_lshrrev_b32 v2, 4, v0\nv_and_b32 v3, 15, v0')
    a(f's_cmp_lg_u32 s{sW}, 0\ns_cbranch_scc1 L_cons')
    vK0,vV0,vWQ,vFF,vFA,vRA,vF,vX,vTQ=4,8,10,11,12,13,14,20,21
    a('s_setprio 3')
    a(f'v_lshlrev_b32 v{vX}, 4, v0')
    a(f'v_lshrrev_b32 v{vWQ}, 2, v0\nv_lshlrev_b32 v{vWQ}, 13, v{vWQ}\nv_lshlrev_b32 v1, 1, v2\nv_xor_b32 v1, v1, v0\nv_and_b32 v1, 3, v1\nv_lshl_add_u32 v{vWQ}, v1, 4, v{vWQ}')
    a(f's_and_b32 s{sTmp}, s{sC}, 7\ns_lshl_b32 s{sTmp}, s{sTmp}, 7\ns_bfe_u32 s{sTmp2}, s{sC}, 0x10003\ns_lshl_b32 s{sTmp2}, s{sTmp2}, 6\ns_add_u32 s{sTmp}, s{sTmp}, s{sTmp2}')
    a(f's_lshl_b32 s{sTmp2}, s{sH}, 10\ns_add_u32 s{sTmp}, s{sTmp}, s{sTmp2}\ns_lshr_b32 s{sTmp2}, s{sC}, 4\ns_lshl_b32 s{sTmp2}, s{sTmp2}, 21\ns_add_u32 s{sVo}, s{sTmp}, s{sTmp2}')
    a(f'v_xor_b32 v{vK0}, v2, v3\nv_lshlrev_b32 v{vK0}, 4, v{vK0}\nv_lshl_add_u32 v{vK0}, v2, 8, v{vK0}')
    for k in (1,2,3): a(f'v_xor_b32 v{vK0+k}, {64*k}, v{vK0}')
    a(f'v_lshlrev_b32 v{vV0}, 1, v2\nv_xor_b32 v{vV0}, v{vV0}, v3\nv_lshlrev_b32 v{vV0}, 4, v{vV0}\nv_lshl_add_u32 v{vV0}, v2, 8, v{vV0}\nv_xor_b32 v{vV0+1}, 128, v{vV0}')
    a(f'v_lshrrev_b32 v{vFF}, 3, v0\nv_mul_u32_u24 v{vFF}, 3584, v{vFF}\nv_lshlrev_b32 v1, 1, v2\nv_xor_b32 v1, v1, v0\nv_and_b32 v1, 7, v1\nv_lshl_add_u32 v{vFF}, v1, 4, v{vFF}')
    a(f's_and_b32 s{sTmp}, s{sF}, 7\ns_mul_i32 s{sTmp}, s{sTmp}, {64*3584}\ns_lshr_b32 s{sCnt}, s{sF}, 3\ns_lshl_b32 s{sCnt}, s{sCnt}, 7\ns_add_u32 s{sCnt}, s{sCnt}, s{sTmp}')
    a(f'v_mov_b32 v{vFA}, {L_FULL}\nv_mov_b32 v{vRA}, {L_REL}\nv_mov_b32 v{vF}, -1\nv_mov_b32 v{vF+1}, {INF:#x}\nds_write_b64 v{vFA}, v[{vF}:{vF+1}]')
    a(f's_lshl_b32 s{sKb}, s{sH}, 24\ns_lshl_b32 s{sTmp}, s{sC}, 19\ns_add_u32 s{sKo}, s{sKb}, s{sTmp}')
    a(f's_mov_b32 m0, {L_X:#x}')
    a('s_waitcnt lgkmcnt(0)')
    dK,dV,dWQ,dWG,dWU,dXl,dWSl=28,32,36,40,44,84,88
    srd(dXl,pX,1024)
    a(f'buffer_load_dwordx4 v{vX}, s[{dXl}:{dXl+3}], 0 offen lds')
    srd(dWQ,pWQ,512*4096*2)
    stamp(10)
    issued=[1]; pub=[-1]
    def pubv(v): a(f'v_mov_b32 v{vF}, {v}\nds_write_b32 v{vFA}, v{vF}')
    def pace():
        if issued[0]>W:
            a(f's_waitcnt vmcnt({W})')
            g=(issued[0]-W-1)//8
            if g>pub[0]:
                pub[0]=g; pubv(g); stamp(11+g)
    def sub(kind, g, sb):
        base=(g%R)*SLOT+4096*sb
        a(f's_mov_b32 m0, {base:#x}')
        for k in range(4):
            n=4*sb+k
            if kind=='K':
                if k==0: a(f's_add_u32 s{sTmp}, s{sKo}, {4096*sb}')
                a(f'buffer_load_dwordx4 v{vK0+k}, s[{dK}:{dK+3}], s{sTmp} offen offset:{1024*k} {pol} lds')
            elif kind in('WQ0','WQ1'):
                n+=8*(kind=='WQ1')
                a(f's_add_u32 s{sTmp}, s{sVo}, {16*8192*n-1024*k}')
                a(f'buffer_load_dwordx4 v{vWQ}, s[{dWQ}:{dWQ+3}], s{sTmp} offen offset:{1024*k} {wpol} lds')
            elif kind in('G','U'):
                d=dWG if kind=='G' else dWU
                a(f's_add_u32 s{sTmp}, s{sCnt}, {8*3584*n-1024*k}')
                a(f'buffer_load_dwordx4 v{vFF}, s[{d}:{d+3}], s{sTmp} offen offset:{1024*k} {wpol} lds')
        issued[0]+=4
    barrier_done=False
    for g,kind in enumerate(['WQ0','WQ1','G','K','U']):
        if kind=='G': srd(dWG,pWG,512*1792*2); srd(dK,pK,1<<27); srd(dWU,pWU,512*1792*2); srd(dV,pV,1<<27)
        for sb in range(2):
            if issued[0]>W and not barrier_done:
                a('s_barrier'); barrier_done=True
            pace(); sub(kind,g,sb)
    if not barrier_done: a('s_barrier')
    if pub[0]<0 or issued[0]<=W+8:
        for left,g in ((40,0),(32,1),(24,2)):
            if g>pub[0]: a(f's_waitcnt vmcnt({left})'); pubv(g); stamp(11+g); pub[0]=g
    if diag: srd(dWSl,pWS,WS_SZ)
    a(f's_mov_b32 s{sVo}, s{sKo}\ns_add_u32 s{sKo}, s{sKo}, 8192')
    a(f's_mov_b32 s{sG}, 5\ns_mov_b32 s{sSlot}, {5*SLOT}\ns_mov_b32 s{sMin}, 0\ns_mov_b32 s{sJ}, 1\ns_mov_b32 s{sFull}, {pub[0]}\ns_mov_b32 s{sCg}, 0')
    def relcheck():
        ok=lab('rok'); p=lab('rp')
        a(f's_sub_i32 s{sGmR}, s{sG}, {R}\ns_cmp_gt_i32 s{sMin}, s{sGmR}\ns_cbranch_scc1 {ok}')
        a(f'{p}:\nds_read_b128 v[16:19], v{vRA}\nds_read_b32 v15, v{vRA} offset:16'); timeout()
        a(f's_waitcnt lgkmcnt(0)\nv_min3_i32 v16, v16, v17, v18\nv_min3_i32 v16, v16, v19, v15\nv_readfirstlane_b32 s{sMin}, v16\ns_cmp_gt_i32 s{sMin}, s{sGmR}\ns_cbranch_scc0 {p}\n{ok}:')
    def adv():
        a(f's_add_u32 s{sG}, s{sG}, 1\ns_add_u32 s{sSlot}, s{sSlot}, {SLOT}\ns_cmp_eq_u32 s{sSlot}, {RING}\ns_cselect_b32 s{sSlot}, 0, s{sSlot}')
    def batch(kind,sb):
        so=sKo if kind=='K' else sVo
        if sb==0: a(f's_mov_b32 m0, s{sSlot}')
        else: a(f's_add_u32 m0, s{sSlot}, 4096')
        a(f's_add_u32 s{sTmp}, s{so}, {4096*sb}')
        for k in range(4):
            if kind=='K': a(f'buffer_load_dwordx4 v{vK0+k}, s[{dK}:{dK+3}], s{sTmp} offen offset:{1024*k} {pol} lds')
            else: a(f'buffer_load_dwordx4 v{vV0+(k&1)}, s[{dV}:{dV+3}], s{sTmp} offen offset:{1024*k} {pol} lds')
    def pubrel(d):
        a((f's_sub_u32 s{sTmp}, s{sG}, {-d}' if d<0 else f's_add_u32 s{sTmp}, s{sG}, {d}')+f'\ns_max_i32 s{sFull}, s{sFull}, s{sTmp}\nv_mov_b32 v{vF}, s{sFull}\nds_write_b32 v{vFA}, v{vF}')
    def dyn_group(kind,W,mid=None):
        relcheck()
        for sb in range(2):
            a(f's_waitcnt vmcnt({W})')
            if (4*sb-W)%8==0: pubrel(-(W-4*sb)//8)
            batch(kind,sb)
        if mid: mid()
        adv()
    def lstamp():
        if diag:
            l=lab('nost')
            a(f's_and_b32 s{sTmp}, s{sJ}, 7\ns_cmp_eq_u32 s{sTmp}, 0\ns_cbranch_scc0 {l}\ns_lshr_b32 s{sTmp}, s{sJ}, 3\ns_add_u32 s{sTmp}, s{sTmp}, 2\ns_min_u32 s{sTmp}, s{sTmp}, 9\ns_mov_b32 m0, s{sTmp}')
            a(f's_memrealtime s[{sSt}:{sSt+1}]\ns_waitcnt lgkmcnt(0)\nv_writelane_b32 v{vSt}, s{sSt}, m0\n{l}:')
    def moderead(): a(f'ds_read_b32 v{vTQ}, v{vFA} offset:12')
    if fb: moderead()
    a('L_ltop:')
    if fb:
        a(f's_waitcnt lgkmcnt(0)\nv_readfirstlane_b32 s{sTmp}, v{vTQ}')
        for mi in range(1,len(modes)): a(f's_cmp_eq_u32 s{sTmp}, {mi}\ns_cbranch_scc1 L_lloop{mi}')
    for mi,Np in enumerate(modes):
        W=Np-4; assert W%4==0 and W<=59
        a(f'L_lloop{mi}:')
        if diag: a(f's_add_u32 s{sCg}, s{sCg}, {1<<(8*mi)}')
        dyn_group('K',W); dyn_group('V',W,moderead if fb else None)
        lstamp()
        a(f's_mov_b32 s{sVo}, s{sKo}\ns_add_u32 s{sKo}, s{sKo}, 8192\ns_add_u32 s{sJ}, s{sJ}, 1')
        a(f's_cmp_lt_u32 s{sJ}, {S}\ns_cbranch_scc1 L_ltop')
        if mi<len(modes)-1: a('s_branch L_lend')
    W=max(modes)-4
    a('L_lend:')
    a(f'v_mov_b32 v{vF}, s{sG}\nds_write_b32 v{vFA}, v{vF} offset:4')
    adv(); relcheck()
    def landed(left_out, tot):
        n=tot-left_out
        if n>=8: return 1
        if n>=0: return 0
        return -1+(n//8)+ (0)
    last=None
    for sb in range(2):
        a(f's_waitcnt vmcnt({W})')
        if (4*sb-W)%8==0: last=landed(W,4*sb); pubrel(last)
        batch('V',sb)
    stamp(1)
    for left in range((W//8)*8,-1,-8):
        d=landed(left,8)
        if d==last: continue
        a(f's_waitcnt vmcnt({left})'); pubrel(d); last=d
    stamp(2)
    if diag: a(f'v_writelane_b32 v{vSt}, s{sJ}, 16\nv_writelane_b32 v{vSt}, s{sCg}, 17')
    stamp_out(dWSl)
    a('s_endpgm')
    a('L_cons:')
    vFA,vRA,vKp,vVp,vM,vMb,vL,vTm=4,5,6,7,8,9,10,11
    vQ=12; vO=28; vK=60; vV=92; vS=124; vA=132; vP=140; vT=144; vAd=148; vL16=156; vWf=160
    dWS,dWD,dWO,dOUT=28,36,40,44
    a(f's_sub_u32 s{sCw}, s{sW}, 1')
    a(f'v_mov_b32 v{vFA}, {L_FULL}\ns_lshl_b32 s{sTmp}, s{sCw}, 2\ns_add_u32 s{sTmp}, s{sTmp}, {L_REL}\nv_mov_b32 v{vRA}, s{sTmp}')
    a(f's_lshl_b32 s{sG}, s{sCw}, 1\ns_add_u32 s{sG}, s{sG}, 3')
    a(f's_cmp_eq_u32 s{sCw}, 0\ns_cselect_b32 s{sTmp}, 0, s{sG}\ns_cmp_eq_u32 s{sCw}, 4\ns_cselect_b32 s{sTmp}, 2, s{sTmp}\nv_mov_b32 v1, s{sTmp}\nds_write_b32 v{vRA}, v1')
    a(f'v_mov_b32 v1, 0\nds_write_b32 v{vFA}, v1 offset:8\nds_write_b32 v{vFA}, v1 offset:12')
    a(f's_mov_b32 s{sScale}, {SCALE:#x}\ns_mov_b32 s{sL2e}, {LOG2E:#x}\nv_mov_b32 v{vMask}, 0xff')
    a(f'v_xor_b32 v{vKp}, v2, v3\nv_lshlrev_b32 v{vKp}, 4, v{vKp}\nv_lshl_add_u32 v{vKp}, v3, 8, v{vKp}')
    a(f'v_lshrrev_b32 v1, 2, v3\nv_lshl_add_u32 v1, v2, 2, v1\nv_and_b32 v{vVp}, 7, v1\nv_lshlrev_b32 v{vVp}, 5, v{vVp}\nv_lshl_add_u32 v{vVp}, v1, 8, v{vVp}\nv_and_b32 v{vTm}, 3, v0\nv_lshl_add_u32 v{vVp}, v{vTm}, 3, v{vVp}')
    a(f'v_lshlrev_b32 v{vL16}, 4, v0')
    a(f's_lshl_b32 s{sCg}, s{sXj}, 4\ns_add_u32 s{sCg}, s{sCg}, s{sXi}')
    a('s_waitcnt lgkmcnt(0)')
    a(f's_load_dword s{sT}, s[{pWS}:{pWS+1}], 0')
    a(f's_and_b32 s{sTmp}, s{sCg}, 127\ns_lshl_b32 s{sTmp}, s{sTmp}, 3\ns_load_dwordx2 s[{sXf}:{sXf+1}], s[{pX}:{pX+1}], s{sTmp}')
    srd(dWS,pWS,WS_SZ); srd(dWD,pWD,1792*512*2); srd(dWO,pWO,4096*512*2); srd(dOUT,pOUT,1024)
    a('s_barrier')
    vWO=vK
    def wo_loads():
        a(f's_lshl_b32 s{sTmp}, s{sH}, 5\ns_add_u32 s{sTmp}, s{sTmp}, s{sC}\ns_lshl_b32 s{sTmp}, s{sTmp}, 14\ns_lshl_b32 s{sTmp2}, s{sCw}, 8\ns_add_u32 s{sTmp}, s{sTmp}, s{sTmp2}\nv_lshlrev_b32 v{vT}, 2, v0')
        for i in range(16):
            a(f'buffer_load_dword v{vWf+2*i}, v{vT}, s[{dWO}:{dWO+3}], s{sTmp} offen offset:{1024*(i&3)} {wpol}')
            if i&3==3 and i<15: a(f's_add_u32 s{sTmp}, s{sTmp}, 4096')
    def wo_unpack():
        for i in range(16): a(f'v_and_b32 v{vWf+2*i+1}, 0xffff0000, v{vWf+2*i}\nv_lshlrev_b32 v{vWf+2*i}, 16, v{vWf+2*i}')
    a(f's_and_b32 s{sTmp}, s{sCw}, 3\ns_cmp_eq_u32 s{sTmp}, 0\ns_cbranch_scc1 L_ln')
    wait_full(1,vT,vFA)
    wo_loads()
    a(f's_waitcnt vmcnt(0)'); wo_unpack()
    a(f's_add_u32 s{sT}, s{sT}, 1\ns_lshr_b32 s{sT1}, s{sT}, 8')
    w0,w1,w2,w3=vQ+8,vQ+9,vQ+10,vQ+11
    a('L_waitq:')
    a(f'ds_read_b32 v{w0}, v{vFA} offset:8'); timeout()
    a(f's_waitcnt lgkmcnt(0)\nv_readfirstlane_b32 s{sLoc}, v{w0}\ns_cmp_eq_u32 s{sLoc}, 0\ns_cbranch_scc1 L_waitq\ns_branch L_qready')
    a('L_ln:')
    vx=vK; vxf=vK+4; vWD=vO; vXf=vV
    wait_full(-1,vT,vFA)
    a(f'v_add_u32 v{vT}, {L_X}, v{vL16}\nds_read_b128 v[{vx}:{vx+3}], v{vT}')
    a(f's_add_u32 s{sT}, s{sT}, 1\ns_lshr_b32 s{sT1}, s{sT}, 8')
    stamp(1)
    a('s_waitcnt lgkmcnt(0)')
    for j in range(4): a(f'v_lshlrev_b32 v{vxf+2*j}, 16, v{vx+j}\nv_and_b32 v{vxf+2*j+1}, 0xffff0000, v{vx+j}')
    t0=vxf+8; t1=t0+1; t2=t0+2; vd=t0+4
    a(f'v_add_f32 v{t0}, v{vxf}, v{vxf+1}\nv_add_f32 v{t1}, v{vxf+2}, v{vxf+3}\nv_add_f32 v{t2}, v{vxf+4}, v{vxf+5}\nv_add_f32 v{t0}, v{t0}, v{t1}\nv_add_f32 v{t1}, v{vxf+6}, v{vxf+7}\nv_add_f32 v{t0}, v{t0}, v{t2}\nv_add_f32 v{t0}, v{t0}, v{t1}')
    allred('v_add_f32',[t0],[t1])
    a(f'v_mul_f32 v{t0}, {f2u(1/512.):#x}, v{t0}')
    for j in range(8): a(f'v_sub_f32 v{vd+j}, v{vxf+j}, v{t0}')
    a(f'v_mul_f32 v{t2}, v{vd}, v{vd}')
    for j in range(1,8): a(f'v_fmac_f32 v{t2}, v{vd+j}, v{vd+j}')
    allred('v_add_f32',[t2],[t1])
    a(f'v_mul_f32 v{t2}, {f2u(1/512.):#x}, v{t2}')
    bfr(t0,t0); bfr(t2,t2)
    a(f'v_add_f32 v{t2}, {f2u(1e-5):#x}, v{t2}'); bfr(t2,t2)
    a(f'v_sqrt_f32 v{t2}, v{t2}'); bfr(t2,t2)
    a(f'v_rcp_f32 v{t2}, v{t2}')
    for j in range(8): a(f'v_sub_f32 v{vd+j}, v{vxf+j}, v{t0}')
    for j in range(4): a(f'v_cvt_pk_bf16_f32 v{vx+j}, v{vd+2*j}, v{vd+2*j+1}')
    for j in range(4): a(f'v_lshlrev_b32 v{vd+2*j}, 16, v{vx+j}\nv_and_b32 v{vd+2*j+1}, 0xffff0000, v{vx+j}')
    for j in range(8): a(f'v_mul_f32 v{vd+j}, v{vd+j}, v{t2}')
    for j in range(4): a(f'v_cvt_pk_bf16_f32 v{vx+j}, v{vd+2*j}, v{vd+2*j+1}')
    a(f's_lshl_b32 s{sTmp}, s{sCw}, 8\ns_add_u32 s{sTmp}, s{sTmp}, {L_XN}\nv_add_u32 v{t0}, s{sTmp}, v{vL16}\nds_write_b128 v{t0}, v[{vx}:{vx+3}]')
    a(f's_cmp_eq_u32 s{sCw}, 0\ns_cbranch_scc0 L_help')
    a(f's_lshr_b32 s{sTmp2}, s{sC}, 4\ns_lshl_b32 s{sTmp2}, s{sTmp2}, 9\ns_add_u32 s{sTmp}, s{sTmp}, s{sTmp2}\nv_lshl_add_u32 v{t0}, v2, 3, s{sTmp}')
    for j in range(8): a(f'ds_read2_b64 v[{vXf+4*j}:{vXf+4*j+3}], v{t0} offset0:{8*j} offset1:{8*j+4}')
    vD=vQ; vpt=vT; vB=vK
    a(f'v_lshlrev_b32 v{vpt}, 6, v1\nv_lshl_add_u32 v{vpt}, v{vTm}, 3, v{vpt}\nv_and_b32 v{vpt+1}, 1, v2\nv_lshl_add_u32 v{vpt}, v{vpt+1}, 5, v{vpt}\nv_xor_b32 v{vpt+1}, 32, v{vpt}')
    a(f's_getreg_b32 s{sXcc}, hwreg(HW_REG_XCC_ID, 0, 4)\ns_waitcnt lgkmcnt(2)')
    stamp(2)
    def qgemv(s0,s1):
        seq=[(s,j) for s in range(s0,s1) for j in range(2)]
        def rd(i):
            s,j=seq[i]; b=vB+4*(i%8)
            a(f'ds_read_b64_tr_b16 v[{b}:{b+1}], v{vpt+j} offset:{2048*s}\nds_read_b64_tr_b16 v[{b+2}:{b+3}], v{vpt+j} offset:{2048*s+1024}')
        for i in range(5): rd(i)
        for i in range(len(seq)):
            if i+5<len(seq): rd(i+5)
            a(f's_waitcnt lgkmcnt({2*(min(i+5,len(seq)-1)-i)})')
            s,j=seq[i]; b=vB+4*(i%8)
            a(f'v_mfma_f32_16x16x32_bf16 v[{vD+4*j}:{vD+4*j+3}], v[{b}:{b+3}], v[{vXf+4*s}:{vXf+4*s+3}], '+('0' if s==0 else f'v[{vD+4*j}:{vD+4*j+3}]'))
    wait_full(0,vT+2,vFA); qgemv(0,4)
    wait_full(1,vT+2,vFA); stamp(3); qgemv(4,8)
    a(f'v_mov_b32 v{w0}, 3\nds_write_b32 v{vRA}, v{w0}')
    a(f's_and_b32 s{sTmp}, s{sC}, 7\ns_lshl_b32 s{sTmp}, s{sTmp}, 8\ns_bfe_u32 s{sTmp2}, s{sC}, 0x10003\ns_lshl_b32 s{sTmp2}, s{sTmp2}, 7\ns_add_u32 s{sTmp}, s{sTmp}, s{sTmp2}')
    a(f's_lshr_b32 s{sTmp2}, s{sC}, 4\ns_lshl_b32 s{sTmp2}, s{sTmp2}, 11\ns_add_u32 s{sTmp}, s{sTmp}, s{sTmp2}\ns_lshl_b32 s{sKo}, s{sH}, 12\ns_add_u32 s{sKo}, s{sKo}, {W_QG:#x}\ns_add_u32 s{sTmp}, s{sTmp}, s{sKo}')
    a(f'v_lshlrev_b32 v{vpt}, 4, v2\nv_lshl_add_u32 v{vpt}, v3, 6, v{vpt}\nv_add_u32 v{vpt}, s{sTmp}, v{vpt}')
    a(f's_lshl_b32 s{sVo}, s{sH}, 9\ns_add_u32 s{sVo}, s{sVo}, {W_QX:#x}\ns_lshl_b32 s{sTmp}, s{sC}, 4\ns_add_u32 s{sTmp}, s{sTmp}, s{sVo}')
    setexec(0x0002000200020002)
    for k in range(4): a(f'v_mov_b32 v{vD+k}, v{vD+4+k}')
    a('s_mov_b64 exec, -1'); tag4(vD)
    a(f's_mov_b64 exec, 4\nv_mov_b32 v{vD}, s{sXcc}\nv_mov_b32 v{vD+1}, s{sT}\nv_mov_b32 v{vD+2}, s{sXcc}\nv_mov_b32 v{vD+3}, s{sT}\nv_mov_b32 v{vpt}, s{sTmp}')
    setexec(0x0003000300030007)
    a(f'buffer_store_dwordx4 v[{vD}:{vD+3}], v{vpt}, s[{dWS}:{dWS+3}], 0 offen sc1\ns_mov_b64 exec, -1')
    stamp(4)
    wo_loads()
    a(f'v_and_b32 v{vpt}, 0x1f0, v{vL16}')
    a('L_qpoll:')
    for i in range(4): a(f'buffer_load_dwordx4 v[{vK+4*i}:{vK+4*i+3}], v{vL16}, s[{dWS}:{dWS+3}], s{sKo} offen offset:{1024*i} sc1')
    a(f'buffer_load_dwordx4 v[{vK+16}:{vK+19}], v{vpt}, s[{dWS}:{dWS+3}], s{sVo} offen sc1')
    timeout()
    a('s_waitcnt vmcnt(0)')
    chk(w0,[vK,vK+4,vK+8,vK+12],[vK+17,vK+19],w1)
    a('s_cbranch_vccnz L_qpoll')
    for k in range(8): a(f'v_add_f32 v{vK+k}, v{vK+k}, v{vK+8+k}')
    for k in range(4): a(f'v_cvt_pk_bf16_f32 v{vK+k}, v{vK+2*k}, v{vK+2*k+1}')
    a(f'v_lshlrev_b32 v{vpt}, 3, v0\nv_add_u32 v{vpt}, {L_Q}, v{vpt}\nds_write2st64_b64 v{vpt}, v[{vK}:{vK+1}], v[{vK+2}:{vK+3}] offset0:0 offset1:1')
    a(f'v_cmp_ne_u32 vcc, s{sXcc}, v{vK+16}\ns_mov_b32 s{sLoc}, 1')
    if local: a(f's_cmp_eq_u64 vcc, 0\ns_cselect_b32 s{sLoc}, 2, 1')
    a(f'v_mov_b32 v{w0}, s{sLoc}\nds_write_b32 v{vFA}, v{w0} offset:8')
    stamp(5)
    wo_unpack()
    a('L_qready:')
    a(f'v_lshlrev_b32 v{vT}, 8, v{vTm}\nv_lshl_add_u32 v{vT}, v2, 4, v{vT}\nv_add_u32 v{vT}, {L_Q}, v{vT}')
    for s in range(4): a(f'ds_read_b128 v[{vQ+4*s}:{vQ+4*s+3}], v{vT} offset:{64*s}')
    for i in range(32): a(f'v_mov_b32 v{vO+i}, 0')
    a(f'v_mov_b32 v{vM}, 0xff800000\nv_mov_b32 v{vMb}, 0\nv_mov_b32 v{vL}, 0\ns_mov_b32 s{sCnt}, 0')
    a(f's_lshl_b32 s{sSlot}, s{sG}, 13\ns_add_u32 s{sSlotV}, s{sSlot}, {3*SLOT}')
    vWa,vWm,vRo,vRm,vpa,vga,vgm,vS3,vLr=192,193,194,195,196,197,198,199,158
    a(f's_lshl_b32 s{sTmp}, s{sCw}, 11\ns_add_u32 s{sTmp}, s{sTmp}, {L_SC}\nv_lshlrev_b32 v{vWa}, 9, v3\nv_lshl_add_u32 v{vWa}, v2, 4, v{vWa}\nv_add_u32 v{vWa}, s{sTmp}, v{vWa}')
    a(f's_lshl_b32 s{sTmp}, s{sCw}, 5\ns_add_u32 s{sTmp}, s{sTmp}, {L_SM}\nv_lshl_add_u32 v{vWm}, v3, 3, s{sTmp}')
    a(f's_lshl_b32 s{sTmp}, s{sCw}, 9\ns_add_u32 s{sTmp}, s{sTmp}, {L_SC}\nv_lshrrev_b32 v{vT+3}, 3, v0\nv_lshlrev_b32 v{vRo}, 6, v{vT+3}\nv_lshl_add_u32 v{vRo}, v{vTm}, 4, v{vRo}\nv_add_u32 v{vRo}, s{sTmp}, v{vRo}')
    a(f's_lshl_b32 s{sTmp}, s{sCw}, 3\ns_add_u32 s{sTmp}, s{sTmp}, {L_SM}\nv_mov_b32 v{vRm}, s{sTmp}')
    a(f's_lshl_b32 s{sTmp}, s{sH}, 17\ns_add_u32 s{sTmp}, s{sTmp}, {W_P2:#x}\ns_lshl_b32 s{sTmp2}, s{sC}, 12\ns_add_u32 s{sKo}, s{sTmp}, s{sTmp2}')
    a(f's_lshl_b32 s{sTmp2}, s{sCw}, 15\ns_add_u32 s{sTmp}, s{sTmp}, s{sTmp2}\ns_lshl_b32 s{sTmp2}, s{sC}, 7\ns_add_u32 s{sTmp}, s{sTmp}, s{sTmp2}')
    a(f'v_and_b32 v{vpa}, 0x70, v{vL16}\nv_lshl_add_u32 v{vpa}, v{vT+3}, 12, v{vpa}\nv_add_u32 v{vpa}, s{sTmp}, v{vpa}')
    a(f'v_lshrrev_b32 v{vgm}, 2, v0\nv_lshlrev_b32 v{vgm}, 7, v{vgm}\nv_lshl_add_u32 v{vga}, v{vTm}, 4, v{vgm}')
    a(f's_lshl_b32 s{sTmp}, s{sCw}, 17\ns_lshl_b32 s{sTmp2}, s{sB}, 7\ns_add_u32 s{sTmp}, s{sTmp}, s{sTmp2}\ns_add_u32 s{sVo}, s{sTmp}, {W_S3:#x}\nv_lshlrev_b32 v{vS3}, 15, v2\nv_lshl_add_u32 v{vS3}, v3, 3, v{vS3}')
    def prewrite():
        l=lab('npw')
        a(f's_cmp_eq_u32 s{sLoc}, 2\ns_cbranch_scc0 {l}\ns_not_b32 s{sTmp}, s{sT}')
        for k in range(4): a(f'v_mov_b32 v{200+k}, s{sTmp}')
        a(f'buffer_store_dwordx4 v[200:203], v{vpa}, s[{dWS}:{dWS+3}], 0 offen\n{l}:')
    if prew==1: prewrite()
    stamp(6)
    a('L_step:')
    a(f's_cmp_ge_i32 s{sG}, s{sGend}\ns_cbranch_scc1 L_exit\ns_cmp_gt_i32 s{sFull}, s{sG}\ns_cbranch_scc1 L_go')
    poll_full(vT,vFA)
    a('s_branch L_step\nL_go:')
    a(f'v_add_u32 v{vAd+4}, s{sSlot}, v{vKp}')
    for s in (1,2,3): a(f'v_xor_b32 v{vAd+4+s}, {64*s}, v{vAd+4}')
    for t in range(2):
        for s in range(4): a(f'ds_read_b128 v[{vK+16*t+4*s}:{vK+16*t+4*s+3}], v{vAd+4+s} offset:{4096*t}')
    a(f's_add_u32 s{sG}, s{sG}, 3\nv_mov_b32 v{vT}, s{sG}')
    for t in range(2):
        a(f's_waitcnt lgkmcnt({4-4*t})')
        if t==1: a(f'ds_write_b32 v{vRA}, v{vT}')
        for s in range(4):
            a(f'v_mfma_f32_16x16x32_bf16 v[{vS+4*t}:{vS+4*t+3}], v[{vK+16*t+4*s}:{vK+16*t+4*s+3}], v[{vQ+4*s}:{vQ+4*s+3}], '+('0' if s==0 else f'v[{vS+4*t}:{vS+4*t+3}]'))
    vVa=vK
    a(f'v_add_u32 v{vAd+1}, s{sSlotV}, v{vVp}')
    for j in range(4): a(f'v_cvt_pk_bf16_f32 v{vP+j}, v{vS+2*j}, v{vS+2*j+1}')
    for j in range(4): a(f'v_lshlrev_b32 v{vA+2*j}, 16, v{vP+j}\nv_and_b32 v{vA+2*j+1}, 0xffff0000, v{vP+j}')
    for j in range(8): a(f'v_mul_f32 v{vA+j}, s{sScale}, v{vA+j}')
    for j in range(4): a(f'v_cvt_pk_bf16_f32 v{vP+j}, v{vA+2*j}, v{vA+2*j+1}')
    for j in range(4): a(f'v_lshlrev_b32 v{vA+2*j}, 16, v{vP+j}\nv_and_b32 v{vA+2*j+1}, 0xffff0000, v{vP+j}')
    a(f'v_max3_f32 v{vT}, v{vA}, v{vA+1}, v{vA+2}\nv_max3_f32 v{vT+1}, v{vA+3}, v{vA+4}, v{vA+5}\nv_max3_f32 v{vT+2}, v{vA+6}, v{vA+7}, v{vM}\nv_max3_f32 v{vT}, v{vT}, v{vT+1}, v{vT+2}')
    allred('v_max_f32',[vT],[vT+1],lo=())
    for db in range(1,8): a(f'v_xor_b32 v{vVa+db}, {32*db}, v{vAd+1}')
    a(f'v_cmp_gt_f32 vcc, v{vT}, v{vM}\ns_cbranch_vccz L_norescale')
    a(f'v_sub_f32 v{vT+1}, v{vM}, v{vT}\nv_mul_f32 v{vT+1}, s{sL2e}, v{vT+1}\nv_exp_f32 v{vT+1}, v{vT+1}\nv_mov_b32 v{vM}, v{vT}\nv_mul_f32 v{vMb}, s{sL2e}, v{vT}\nv_mul_f32 v{vL}, v{vL}, v{vT+1}')
    for i in range(32): a(f'v_mul_f32 v{vO+i}, v{vO+i}, v{vT+1}')
    a('L_norescale:')
    for j in range(8): a(f'v_fma_f32 v{vA+j}, v{vA+j}, s{sL2e}, -v{vMb}')
    for j in range(8): a(f'v_exp_f32 v{vA+j}, v{vA+j}')
    for j in range(4): a(f'v_cvt_pk_bf16_f32 v{vP+j}, v{vA+2*j}, v{vA+2*j+1}')
    a(f'v_add_f32 v{vT}, v{vA}, v{vA+1}\nv_add_f32 v{vT+1}, v{vA+2}, v{vA+3}\nv_add_f32 v{vT+2}, v{vA+4}, v{vA+5}\nv_add_f32 v{vT+3}, v{vA+6}, v{vA+7}')
    a(f'v_add_f32 v{vT}, v{vT}, v{vT+1}\nv_add_f32 v{vT+2}, v{vT+2}, v{vT+3}\nv_add_f32 v{vT}, v{vT}, v{vT+2}\nv_add_f32 v{vL}, v{vL}, v{vT}')
    a(f'v_mov_b32 v{vLr}, v{vL}'); allred('v_add_f32',[vLr],[vT],lo=())
    if prew>1:
        a(f's_cmp_eq_u32 s{sCnt}, {prew}\ns_cbranch_scc0 L_nopw'); prewrite(); a(f'L_nopw:\ns_add_u32 s{sCnt}, s{sCnt}, 1')
    wait_full(f's{sG}',vT,vFA)
    def rdv(db):
        ad=vAd+1 if db==0 else vVa+db
        a(f'ds_read_b64_tr_b16 v[{vV+4*db}:{vV+4*db+1}], v{ad}\nds_read_b64_tr_b16 v[{vV+4*db+2}:{vV+4*db+3}], v{ad} offset:4096')
    for db in range(6): rdv(db)
    a(f's_add_u32 s{sG}, s{sG}, 5\nv_mov_b32 v{vT}, s{sG}')
    for db in range(8):
        a(f's_waitcnt lgkmcnt({2*(min(db+5,7)-db)})')
        if db==7: a(f'ds_write_b32 v{vRA}, v{vT}')
        a(f'v_mfma_f32_16x16x32_bf16 v[{vO+4*db}:{vO+4*db+3}], v[{vV+4*db}:{vV+4*db+3}], v[{vP}:{vP+3}], v[{vO+4*db}:{vO+4*db+3}]')
        if db+6<8: rdv(db+6)
    for sl in (sSlot,sSlotV):
        a(f's_add_u32 s{sl}, s{sl}, {8*SLOT}\ns_sub_u32 s{sTmp}, s{sl}, {RING}\ns_cselect_b32 s{sl}, s{sl}, s{sTmp}')
    a('s_branch L_step')
    a('L_exit:')
    stamp(7)
    a(f'v_mov_b32 v{vMb}, v{vLr}')
    setexec(0x000f000f000f000f)
    a(f'ds_write_b64 v{vWm}, v[{vM}:{vM+1}]')
    for db in range(8): a(f'ds_write_b128 v{vWa}, v[{vO+4*db}:{vO+4*db+3}] offset:{64*db}')
    a('s_mov_b64 exec, -1')
    a('s_waitcnt lgkmcnt(0)\ns_barrier')
    stamp(8)
    vml=vS; vo4=vK; r=vO
    for w in range(4): a(f'ds_read_b64 v[{vml+2*w}:{vml+2*w+1}], v{vRm} offset:{32*w}')
    for w in range(4): a(f'ds_read_b128 v[{vo4+4*w}:{vo4+4*w+3}], v{vRo} offset:{2048*w}')
    a(f's_waitcnt lgkmcnt(4)\nv_max3_f32 v{r+4}, v{vml}, v{vml+2}, v{vml+4}\nv_max_f32 v{r+4}, v{r+4}, v{vml+6}')
    for w in range(4): a(f'v_sub_f32 v{vml+2*w}, v{vml+2*w}, v{r+4}')
    for w in range(4): a(f'v_mul_f32 v{vml+2*w}, s{sL2e}, v{vml+2*w}')
    for w in range(4): a(f'v_exp_f32 v{vml+2*w}, v{vml+2*w}')
    a(f'v_mul_f32 v{r+5}, v{vml}, v{vml+1}')
    for w in range(1,4): a(f'v_fmac_f32 v{r+5}, v{vml+2*w}, v{vml+2*w+1}')
    a('s_waitcnt lgkmcnt(0)')
    for k in range(4): a(f'v_mul_f32 v{r+k}, v{vml}, v{vo4+k}')
    for w in range(1,4):
        for k in range(4): a(f'v_fmac_f32 v{r+k}, v{vml+2*w}, v{vo4+4*w+k}')
    tag4(r)
    setexec(0xf0f0f0f0f0f0f0f0)
    a(f'v_mov_b32 v{r}, v{r+4}\nv_mov_b32 v{r+1}, s{sT}\nv_mov_b32 v{r+2}, v{r+5}\nv_mov_b32 v{r+3}, s{sT}')
    a('s_mov_b64 exec, -1')
    a(f's_cmp_eq_u32 s{sLoc}, 2\ns_cbranch_scc1 L_p2loc')
    a(f'buffer_store_dwordx4 v[{r}:{r+3}], v{vpa}, s[{dWS}:{dWS+3}], 0 offen sc1\ns_branch L_p2done')
    a(f'L_p2loc:\nbuffer_store_dwordx4 v[{r}:{r+3}], v{vpa}, s[{dWS}:{dWS+3}], 0 offen\nL_p2done:')
    stamp(9)
    po=vK; pm=vK+8
    a('L_s2poll:')
    for i in range(2):
        a(f'buffer_load_dwordx4 v[{po+4*i}:{po+4*i+3}], v{vga}, s[{dWS}:{dWS+3}], s{sKo} offen offset:{2048*i} sc1')
        a(f'buffer_load_dwordx4 v[{pm+4*i}:{pm+4*i+3}], v{vgm}, s[{dWS}:{dWS+3}], s{sKo} offen offset:{2048*i+64} sc1')
    timeout()
    a('s_waitcnt vmcnt(0)')
    chk(vT,[po,po+4],[pm+1,pm+3,pm+5,pm+7],vT+1)
    a('s_cbranch_vccnz L_s2poll')
    stamp(10)
    mx=vM
    a(f'v_max_f32 v{mx}, v{pm}, v{pm+4}')
    allred('v_max_f32',[mx],[vT+1],lo=(4,8))
    for i in range(2): a(f'v_sub_f32 v{pm+4*i}, v{pm+4*i}, v{mx}')
    for i in range(2): a(f'v_mul_f32 v{pm+4*i}, s{sL2e}, v{pm+4*i}')
    for i in range(2): a(f'v_exp_f32 v{pm+4*i}, v{pm+4*i}')
    o=vS; ls=vS+4
    for k in range(4): a(f'v_mul_f32 v{o+k}, v{pm}, v{po+k}')
    a(f'v_mul_f32 v{ls}, v{pm}, v{pm+2}')
    for k in range(4): a(f'v_fmac_f32 v{o+k}, v{pm+4}, v{po+4+k}')
    a(f'v_fmac_f32 v{ls}, v{pm+4}, v{pm+6}')
    allred('v_add_f32',[ls,o,o+1,o+2,o+3],[vA,vA+1,vA+2,vA+3,vA+4],lo=(4,8))
    a(f'v_rcp_f32 v{ls}, v{ls}')
    for k in range(4): a(f'v_mul_f32 v{o+k}, v{o+k}, v{ls}')
    a(f'v_cvt_pk_bf16_f32 v{vA}, v{o}, v{o+1}\nv_cvt_pk_bf16_f32 v{vA+1}, v{o+2}, v{o+3}')
    a(f'v_lshlrev_b32 v{o}, 16, v{vA}\nv_and_b32 v{o+1}, 0xffff0000, v{vA}\nv_lshlrev_b32 v{o+2}, 16, v{vA+1}\nv_and_b32 v{o+3}, 0xffff0000, v{vA+1}')
    for i in range(16):
        j,k=i>>2,i&3; d=r+2*(i&1)
        op='v_mul_f32_dpp' if i<2 else 'v_fmac_f32_dpp'
        a(f'{op} v{d}, v{o+k}, v{vWf+2*i} quad_perm:[{j},{j},{j},{j}] row_mask:0xf bank_mask:0xf\n{op} v{d+1}, v{o+k}, v{vWf+2*i+1} quad_perm:[{j},{j},{j},{j}] row_mask:0xf bank_mask:0xf')
    a(f'v_add_f32 v{r}, v{r}, v{r+2}\nv_add_f32 v{r+1}, v{r+1}, v{r+3}')
    a(f'v_mov_b32_dpp v{r+2}, v{r} quad_perm:[1,1,3,3] row_mask:0xf bank_mask:0xf\nv_mov_b32_dpp v{r+3}, v{r+1} quad_perm:[1,1,3,3] row_mask:0xf bank_mask:0xf')
    tag4(r)
    setexec(0x5555555555555555)
    a(f'buffer_store_dwordx4 v[{r}:{r+3}], v{vS3}, s[{dWS}:{dWS+3}], s{sVo} offen sc1')
    stamp(11)
    stamp_out(dWS)
    a('s_endpgm')
    a('L_help:')
    if fb:
        a(f's_add_u32 s{sKb}, s{sXi}, s{sXj}\ns_and_b32 s{sKb}, s{sKb}, 7\ns_mul_i32 s{sKb}, s{sKb}, {CST}\ns_add_u32 s{sKb}, s{sKb}, {W_CNT:#x}\ns_and_b32 s{sTmp}, s{sB}, 0xc7\ns_cmp_eq_u32 s{sTmp}, 0\ns_cbranch_scc0 L_nocnt')
        a(f'v_mov_b32 v{vT}, 0\nv_mov_b32 v{vT+1}, s{sT}\ns_mov_b64 exec, 1\nbuffer_store_dwordx2 v[{vT}:{vT+1}], off, s[{dWS}:{dWS+3}], s{sKb} sc1\ns_mov_b64 exec, -1\nL_nocnt:')
    a(f's_cmp_lt_u32 s{sF}, 224\ns_cbranch_scc0 L_noffn')
    a(f's_and_b32 s{sTmp2}, s{sF}, 7\ns_lshl_b32 s{sTmp2}, s{sTmp2}, 7\ns_add_u32 s{sTmp}, s{sTmp2}, {L_XN+1024}\nv_lshl_add_u32 v{t0}, v2, 3, s{sTmp}')
    for j in range(2): a(f'ds_read2_b64 v[{vXf+4*j}:{vXf+4*j+3}], v{t0} offset0:{8*j} offset1:{8*j+4}')
    a(f'v_lshlrev_b32 v{vAd}, 7, v1\nv_lshl_add_u32 v{vAd}, v{vTm}, 3, v{vAd}\nv_bfe_u32 v{vAd+1}, v1, 1, 2\nv_lshl_add_u32 v{vAd}, v{vAd+1}, 5, v{vAd}')
    for j in (1,2,3): a(f'v_xor_b32 v{vAd+j}, {32*j}, v{vAd}')
    stamp(2)
    wait_full(1,vT,vFA)
    a(f's_lshl_b32 s{sTmp}, s{sF}, 13\ns_add_u32 s{sTmp2}, s{sTmp}, 4096')
    for j in range(8): a(f'buffer_load_dwordx4 v[{vWD+4*j}:{vWD+4*j+3}], v{vL16}, s[{dWD}:{dWD+3}], s{sTmp if j<4 else sTmp2} offen offset:{1024*(j&3)} {wpol}')
    vAc=vWf
    def fgemv(mat):
        seq=[(s,j) for s in range(2) for j in range(4)]
        base=(2+2*mat)*SLOT
        def rd(i):
            s,j=seq[i]; b=vB+4*i
            a(f'ds_read_b64_tr_b16 v[{b}:{b+1}], v{vAd+j} offset:{base+4096*s}\nds_read_b64_tr_b16 v[{b+2}:{b+3}], v{vAd+j} offset:{base+4096*s+2048}')
        for i in range(5): rd(i)
        for i in range(8):
            if i+5<8: rd(i+5)
            a(f's_waitcnt lgkmcnt({2*(min(i+5,7)-i)})')
            s,j=seq[i]; b=vB+4*i; d=vAc+16*mat+4*j
            a(f'v_mfma_f32_16x16x32_bf16 v[{d}:{d+3}], v[{b}:{b+3}], v[{vXf+4*s}:{vXf+4*s+3}], '+('0' if s==0 else f'v[{d}:{d+3}]'))
    wait_full(2,vT,vFA); fgemv(0)
    wait_full(4,vT,vFA); stamp(3); fgemv(1)
    a(f'v_mov_b32 v{w0}, {INF:#x}\nds_write_b32 v{vRA}, v{w0}')
    for n in range(1,8):
        setexec(0x0001000100010001<<n)
        for k in range(4): a(f'v_mov_b32 v{vAc+k}, v{vAc+4*n+k}')
    a('s_mov_b64 exec, -1'); tag4(vAc)
    a(f's_lshl_b32 s{sTmp}, s{sF}, 9\ns_add_u32 s{sTmp}, s{sTmp}, {W_F1:#x}\nv_lshlrev_b32 v{vT}, 4, v2\nv_lshl_add_u32 v{vT}, v3, 6, v{vT}')
    setexec(0x00ff00ff00ff00ff)
    a(f'buffer_store_dwordx4 v[{vAc}:{vAc+3}], v{vT}, s[{dWS}:{dWS+3}], s{sTmp} offen sc1\ns_mov_b64 exec, -1')
    stamp(4)
    a(f's_and_b32 s{sTmp}, s{sF}, 0xf8\ns_lshl_b32 s{sTmp}, s{sTmp}, 9\ns_and_b32 s{sTmp2}, s{sF}, 7\ns_lshl_b32 s{sTmp2}, s{sTmp2}, 5\ns_add_u32 s{sTmp}, s{sTmp}, s{sTmp2}\ns_add_u32 s{sKo}, s{sTmp}, {W_F1:#x}')
    a(f'v_bfe_u32 v{vT+2}, v0, 1, 4\nv_lshlrev_b32 v{vT+2}, 8, v{vT+2}\nv_and_b32 v{vT+3}, 1, v0\nv_lshl_add_u32 v{vT+2}, v{vT+3}, 4, v{vT+2}')
    if f1wait: wait_full(f1wait,vT,vFA)
    gu=vK
    a('L_f1poll:')
    a(f'buffer_load_dwordx4 v[{gu}:{gu+3}], v{vT+2}, s[{dWS}:{dWS+3}], s{sKo} offen sc1')
    timeout()
    a('s_waitcnt vmcnt(0)')
    chk(vT,[gu],[],None)
    a('s_cbranch_vccnz L_f1poll')
    allred('v_add_f32',[gu,gu+1,gu+2,gu+3],[vA,vA+1,vA+2,vA+3],lo=(4,8),hi=(16,))
    for k in range(4): bfr(gu+k,gu+k)
    k1=-2*0.7978845608028654*1.4426950408889634
    hh=gu+4; up=gu+8
    for k in range(4): a(f'v_mov_b32_dpp v{up+k}, v{gu+k} quad_perm:[2,3,2,3] row_mask:0xf bank_mask:0xf')
    for k in range(4): a(f'v_mul_f32 v{hh+k}, v{gu+k}, v{gu+k}')
    for k in range(4): a(f'v_mul_f32 v{hh+k}, {f2u(0.044715):#x}, v{hh+k}')
    for k in range(4): a(f'v_fma_f32 v{hh+k}, v{hh+k}, v{gu+k}, v{gu+k}')
    for k in range(4): a(f'v_mul_f32 v{hh+k}, {f2u(k1):#x}, v{hh+k}')
    for k in range(4): a(f'v_exp_f32 v{hh+k}, v{hh+k}')
    for k in range(4): a(f'v_add_f32 v{hh+k}, 1.0, v{hh+k}')
    for k in range(4): a(f'v_rcp_f32 v{hh+k}, v{hh+k}')
    for k in range(4): a(f'v_mul_f32 v{hh+k}, v{gu+k}, v{hh+k}')
    for k in range(4): bfr(hh+k,hh+k)
    for k in range(4): a(f'v_mul_f32 v{hh+k}, v{hh+k}, v{up+k}')
    for k in range(4): bfr(hh+k,hh+k)
    acc=vV; un=vV+8
    for k in range(8): a(f'v_mov_b32 v{acc+k}, 0')
    for j in range(8):
        for k in range(4): a(f'v_lshlrev_b32 v{un+2*k}, 16, v{vWD+4*j+k}\nv_and_b32 v{un+2*k+1}, 0xffff0000, v{vWD+4*j+k}')
        for k in range(8): a(f'v_fmac_f32_dpp v{acc+k}, v{hh+(j&3)}, v{un+k} quad_perm:[{j>>2},{j>>2},{j>>2},{j>>2}] row_mask:0xf bank_mask:0xf')
    tag4(acc); tag4(acc+4)
    a(f's_lshl_b32 s{sTmp}, s{sF}, 7\ns_add_u32 s{sTmp}, s{sTmp}, {W_B3:#x}\ns_add_u32 s{sTmp2}, s{sTmp}, {8*28672}')
    a(f'v_lshrrev_b32 v{vT}, 3, v0\nv_mul_u32_u24 v{vT}, 28672, v{vT}\nv_and_b32 v{vT+1}, 7, v0\nv_lshl_add_u32 v{vT}, v{vT+1}, 4, v{vT}')
    a(f'buffer_store_dwordx4 v[{acc}:{acc+3}], v{vT}, s[{dWS}:{dWS+3}], s{sTmp} offen sc1\nbuffer_store_dwordx4 v[{acc+4}:{acc+7}], v{vT}, s[{dWS}:{dWS+3}], s{sTmp2} offen sc1')
    stamp(5)
    a('s_branch L_ffndone')
    a(f'L_noffn:\nv_mov_b32 v{w0}, {INF:#x}\nds_write_b32 v{vRA}, v{w0}\nL_ffndone:')
    vb=vK; gg=vQ; v128=vAd
    a(f'v_lshlrev_b32 v{v128}, 7, v0')
    mlast=min(mlast,2*S)
    nms=(mlast-m0)//mk+1 if mlast>=m0 else 0
    tk=vO
    def control(l,idx_end):
        a(f'{l}:')
        wait_full(f's{sJ}',vT,vFA)
        a(f's_mov_b64 exec, 1\nv_mov_b32 v{tk}, 1\nbuffer_atomic_add v{tk}, off, s[{dWS}:{dWS+3}], s{sKb} sc0\ns_mov_b64 exec, -1\ns_add_u32 s{sJ}, s{sJ}, {mk}')
        a(f's_waitcnt vmcnt(0)\nv_readfirstlane_b32 s{sTmp}, v{tk}\ns_sub_i32 s{sTmp}, s{sTmp}, s{sMin}\ns_add_u32 s{sMin}, s{sMin}, 32')
        a(f's_cmp_lt_i32 s{sTmp}, {tlo}\ns_cselect_b32 s{sTmp2}, 1, 0\ns_cmp_gt_i32 s{sTmp}, {thi}\ns_cselect_b32 s{sTmp2}, 2, s{sTmp2}\nv_mov_b32 v{vT}, s{sTmp2}\nds_write_b32 v{vFA}, v{vT} offset:12')
        a(f's_cmp_lt_u32 s{sMin}, {32*idx_end}\ns_cbranch_scc1 {l}')
    if fb and nms:
        a(f's_mov_b32 s{sJ}, {m0}\ns_mov_b32 s{sMin}, 0\ns_mov_b64 exec, 1')
        a(f'L_cnt:\nbuffer_load_dwordx2 v[{vT}:{vT+1}], off, s[{dWS}:{dWS+3}], s{sKb} sc1'); timeout()
        a(f's_waitcnt vmcnt(0)\nv_readfirstlane_b32 s{sTmp}, v{vT+1}\ns_cmp_eq_u32 s{sTmp}, s{sT}\ns_cbranch_scc0 L_cnt\ns_mov_b64 exec, -1')
        stamp(7)
        control('L_ctl1',min(b3idx,nms))
    else: wait_full(min(40,2*S-4),vT,vFA)
    a(f's_cmp_lt_u32 s{sXi}, 16\ns_cbranch_scc0 L_nob3')
    a(f's_and_b32 s{sTmp}, s{sCg}, 1\ns_lshl_b32 s{sTmp}, s{sTmp}, 3\ns_lshr_b32 s{sTmp2}, s{sCg}, 4\ns_add_u32 s{sTmp}, s{sTmp}, s{sTmp2}\ns_mul_i32 s{sTmp}, s{sTmp}, 28672')
    a(f's_bfe_u32 s{sTmp2}, s{sCg}, 0x30001\ns_lshl_b32 s{sTmp2}, s{sTmp2}, 4\ns_add_u32 s{sTmp}, s{sTmp}, s{sTmp2}\ns_add_u32 s{sKo}, s{sTmp}, {W_B3:#x}')
    for k in range(4): a(f'v_mov_b32 v{vb+12+k}, 0')
    tag4(vb+12)
    def gather4(l,last32):
        a(f'{l}:')
        for i in range(4):
            a(f's_add_u32 s{sTmp}, s{sKo}, {8192*i}')
            if i==3 and last32: a('s_mov_b32 exec_hi, 0')
            a(f'buffer_load_dwordx4 v[{vb+4*i}:{vb+4*i+3}], v{v128}, s[{dWS}:{dWS+3}], s{sTmp} offen sc1')
        if last32: a('s_mov_b64 exec, -1')
        timeout()
        a('s_waitcnt vmcnt(0)')
        chk(vT,[vb,vb+4,vb+8,vb+12],[],None)
        a(f's_cbranch_vccnz {l}')
    def sum4(dst):
        for k in range(4): a(f'v_add_f32 v{dst+k}, v{vb+k}, v{vb+4+k}\nv_add_f32 v{vb+8+k}, v{vb+8+k}, v{vb+12+k}')
        for k in range(4): a(f'v_add_f32 v{dst+k}, v{dst+k}, v{vb+8+k}')
        allred('v_add_f32',[dst,dst+1,dst+2,dst+3],[vA,vA+1,vA+2,vA+3])
    gather4('L_b3poll',True)
    sum4(gg)
    for k in range(4): bfr(gg+k,gg+k)
    for k in range(4): a(f'v_mul_f32 v{vA+k}, s{sL2e}, v{gg+k}')
    for k in range(4): a(f'v_exp_f32 v{vA+k}, -v{vA+k}')
    for k in range(4): a(f'v_add_f32 v{vA+k}, 1.0, v{vA+k}')
    for k in range(4): a(f'v_rcp_f32 v{vA+k}, v{vA+k}')
    for k in range(4): a(f'v_mul_f32 v{gg+k}, v{gg+k}, v{vA+k}')
    for k in range(4): bfr(gg+k,gg+k)
    stamp(6)
    a('L_nob3:')
    if fb and nms>b3idx: control('L_ctl2',nms)
    stamp(8)
    a(f's_lshr_b32 s{sTmp}, s{sCg}, 3\ns_lshl_b32 s{sTmp}, s{sTmp}, 15\ns_and_b32 s{sTmp2}, s{sCg}, 7\ns_lshl_b32 s{sTmp2}, s{sTmp2}, 4\ns_add_u32 s{sTmp}, s{sTmp}, s{sTmp2}\ns_add_u32 s{sKo}, s{sTmp}, {W_S3:#x}')
    a(f's_barrier\ns_cmp_lt_u32 s{sXi}, 16\ns_cbranch_scc0 L_hfin')
    if s3db:
        vb2=vV
        def rnd(v):
            for i in range(4): a(f'buffer_load_dwordx4 v[{v+4*i}:{v+4*i+3}], v{v128}, s[{dWS}:{dWS+3}], s{sKo+0 if i==0 else sSlot+i-1} offen sc1')
        for i in range(1,4): a(f's_add_u32 s{sSlot+i-1}, s{sKo}, {8192*i}')
        rnd(vb)
        a('L_s3poll:'); rnd(vb2); timeout()
        a('s_waitcnt vmcnt(4)'); chk(vT,[vb,vb+4,vb+8,vb+12],[],None); a('s_cbranch_vccz L_s3ok')
        rnd(vb)
        a('s_waitcnt vmcnt(4)'); chk(vT,[vb2,vb2+4,vb2+8,vb2+12],[],None); a('s_cbranch_vccnz L_s3poll')
        a('s_waitcnt vmcnt(0)\nL_s3ok:')
    else: gather4('L_s3poll',False)
    stamp(12)
    ss=vS
    sum4(ss)
    def rnd4(v):
        a(f'v_cvt_pk_bf16_f32 v{vA}, v{v}, v{v+1}\nv_cvt_pk_bf16_f32 v{vA+1}, v{v+2}, v{v+3}')
    def exp4(v):
        a(f'v_lshlrev_b32 v{v}, 16, v{vA}\nv_and_b32 v{v+1}, 0xffff0000, v{vA}\nv_lshlrev_b32 v{v+2}, 16, v{vA+1}\nv_and_b32 v{v+3}, 0xffff0000, v{vA+1}')
    rnd4(ss); exp4(ss)
    for k in range(4): a(f'v_mul_f32 v{ss+k}, v{ss+k}, v{gg+k}')
    rnd4(ss); exp4(ss)
    for k in range(4):
        a((f's_lshl_b32 s{sTmp}, s{sXf+k//2}, 16' if k%2==0 else f's_and_b32 s{sTmp}, s{sXf+k//2}, 0xffff0000')+f'\nv_add_f32 v{ss+k}, s{sTmp}, v{ss+k}')
    rnd4(ss)
    a(f's_lshl_b32 s{sTmp}, s{sCg}, 3\ns_mov_b64 exec, 1\nbuffer_store_dwordx2 v[{vA}:{vA+1}], off, s[{dOUT}:{dOUT+3}], s{sTmp}')
    a(f's_cmp_eq_u32 s{sCg}, 0\ns_cbranch_scc0 L_hfin\nv_mov_b32 v{vT+1}, s{sT}\nbuffer_store_dword v{vT+1}, off, s[{dWS}:{dWS+3}], 0')
    a('L_hfin:')
    stamp(13)
    stamp_out(dWS)
    a('L_end:\ns_endpgm')
    n=a.fix()
    out=HDR+f'; @launch grid=(256,1,1) block=({64*NWAVE},1,1) lds=163840\n'
    out+=f'.amdgcn_target "amdgcn-amd-amdhsa--gfx950"\n.text\n.globl {NAME}\n.p2align 8\n.type {NAME},@function\n'
    out+=a.text()
    out+=f'''.section .rodata,"a"
.p2align 6
.amdhsa_kernel {NAME}
  .amdhsa_next_free_vgpr 204
  .amdhsa_next_free_sgpr 96
  .amdhsa_accum_offset 204
  .amdhsa_group_segment_fixed_size 0
  .amdhsa_kernarg_size 96
  .amdhsa_user_sgpr_count 2
  .amdhsa_user_sgpr_kernarg_segment_ptr 1
  .amdhsa_system_sgpr_workgroup_id_x 1
  .amdhsa_float_denorm_mode_32 3
.end_amdhsa_kernel
'''
    return out
if __name__=='__main__':
    kw=eval('dict(%s)'%(sys.argv[1] if len(sys.argv)>1 else ''))
    sys.stdout.write(gen(**kw))
```

```python
import sys, struct
from asmlib import Asm
NAME='recurrent_scan__gqa_block_cached__geglu_ffn__decode_kernel'
HDR=open('recurrent_scan__gqa_block_cached__geglu_ffn__decode.s.ref').read().split('; Override launch')[0]
def f2u(x): return struct.unpack('<I',struct.pack('<f',x))[0]
LOG2E=f2u(1.4426950408889634); SCALE=f2u(128**-0.5)
R=18; SLOT=8192; RING=R*SLOT
MISC=RING
L_FULL=MISC; L_QRDY=MISC+8; L_MODE=MISC+12; L_REL=MISC+16; L_SM=MISC+128; L_X=MISC+1024; L_XN=MISC+2048; L_Q=MISC+4096; L_SC=MISC+8192
W_CNT=0x1000; W_QG=0x10000; W_QX=0x18000; W_F1=0x20000; W_ML=0x40000; W_P2=0x280000; W_S3=0x100000; W_B3=0x180000; W_ST=0x200000; WS_SZ=0x380000
NWAVE=6; INF=0x7fffffff; CST=0x180
def gen(mapping='hx', N=20, S=64, diag=0, pol='nt', wpol='nt', local=1, f1wait=12, N0=None, fb=1, dN=4, m0=20, mk=6, mlast=124, tlo=10, thi=21, b3idx=6, prew=0, s3db=0, rot=None, vpol=None):
    a=Asm()
    N0=N0 or N
    if vpol is None: vpol=pol
    W=N0-4
    modes=[N,N-dN,N+dN] if fb else [N]
    assert W%4==0 and S>=8
    sB,sW=2,3
    pX,pK,pV,pWQ,pWO,pWG,pWU,pWD,pOUT,pWS=4,6,8,10,12,16,18,20,22,26
    sH,sC,sXi,sF,sT,sTO=48,49,50,51,52,53
    sFull,sG,sSlot,sSlotV,sMin,sKo,sVo,sTmp,sTmp2,sCnt,sGmR=54,55,56,57,58,59,60,61,62,63,64
    sScale,sL2e,sT1,sGend,sCw,sXj=65,66,67,68,69,74
    sSt=70
    sSt0=72
    sXf=76
    sLoc,sKb,sJ,sCg,sXcc,sTmp3=78,79,80,81,82,83
    vSt=159
    uid=[0]
    def lab(p): uid[0]+=1; return f'L_{p}_{uid[0]}'
    def srd(d,p,size):
        a(f's_mov_b32 s{d}, s{p}\ns_mov_b32 s{d+1}, s{p+1}\ns_mov_b32 s{d+2}, {size:#x}\ns_mov_b32 s{d+3}, 0x20000')
    def stamp(k):
        if diag: a(f's_memrealtime s[{sSt}:{sSt+1}]\ns_waitcnt lgkmcnt(0)\nv_writelane_b32 v{vSt}, s{sSt}, {k}')
    def dbg_out(items):
        a('s_mov_b32 s92, s24\ns_mov_b32 s93, s25\ns_mov_b32 s94, 256\ns_mov_b32 s95, 0x20000\ns_mov_b64 exec, 1')
        for wd,op,ln,inv in items:
            a(f'v_readlane_b32 s{sTmp}, v{vSt}, {ln}')
            if inv: a(f's_not_b32 s{sTmp}, s{sTmp}')
            a(f'v_mov_b32 v1, s{sTmp}\nbuffer_atomic_{op} v1, off, s[92:95], 0 offset:{4*wd}\ns_nop 1')
    def stamp_out(srd_ws,items=None):
        if diag==2:
            a(f'v_writelane_b32 v{vSt}, s{sSt0}, 0'); dbg_out(items)
        elif diag:
            a(f'v_writelane_b32 v{vSt}, s{sSt0}, 0')
            a(f's_mul_i32 s{sTmp}, s{sB}, {NWAVE}\ns_add_u32 s{sTmp}, s{sTmp}, s{sW}\ns_lshl_b32 s{sTmp}, s{sTmp}, 8\ns_add_u32 s{sTmp}, s{sTmp}, {W_ST:#x}')
            a(f's_mov_b64 exec, -1\nv_lshlrev_b32 v1, 2, v0\nbuffer_store_dword v{vSt}, v1, s[{srd_ws}:{srd_ws+3}], s{sTmp} offen sc1')
    def setexec(m):
        lo,hi=m&0xffffffff,m>>32
        if hi==0 and lo<0x80000000: a(f's_mov_b64 exec, {lo:#x}')
        else: a(f's_mov_b32 exec_lo, {lo:#x}\ns_mov_b32 exec_hi, {hi:#x}')
    def timeout():
        a(f's_sub_u32 s{sTO}, s{sTO}, 1\ns_cbranch_scc1 L_end')
    def poll_full(vtmp,vaddr):
        a(f'ds_read_b64 v[{vtmp}:{vtmp+1}], v{vaddr}')
        timeout()
        a(f's_waitcnt lgkmcnt(0)\nv_readfirstlane_b32 s{sFull}, v{vtmp}\nv_readfirstlane_b32 s{sGend}, v{vtmp+1}')
    def wait_full(x, vtmp, vaddr):
        assert vtmp%2==0
        ok=lab('fok'); p=lab('fp')
        a(f's_cmp_gt_i32 s{sFull}, {x}\ns_cbranch_scc1 {ok}\n{p}:')
        poll_full(vtmp,vaddr)
        a(f's_cmp_gt_i32 s{sFull}, {x}\ns_cbranch_scc0 {p}\n{ok}:')
    def bfr(dst,src):
        a(f'v_cvt_pk_bf16_f32 v{dst}, v{src}, v{src}\nv_and_b32 v{dst}, 0xffff0000, v{dst}')
    def allred(op, vs, ts, lo=(8,4,2,1), hi=(16,32)):
        for r in lo:
            for v in vs: a(f'{op}_dpp v{v}, v{v}, v{v} row_ror:{r} row_mask:0xf bank_mask:0xf')
        for sw in hi:
            for v,t in zip(vs,ts): a(f'v_mov_b32 v{t}, v{v}')
            for v,t in zip(vs,ts): a(f'v_permlane{sw}_swap_b32 v{v}, v{t}')
            for v,t in zip(vs,ts): a(f'{op} v{v}, v{v}, v{t}')
    vMask=157
    def tag4(v):
        for k in range(4): a(f'v_bfi_b32 v{v+k}, v{vMask}, s{sT if k%2==0 else sT1}, v{v+k}')
    def chk(acc,regs_mt,regs_full,acc2):
        first=True
        for v in regs_mt:
            for k in range(4):
                s=sT if k%2==0 else sT1
                a(f'v_xor_b32 v{acc}, s{s}, v{v+k}' if first else f'v_bitop3_b32 v{acc}, v{v+k}, s{s}, v{acc} bitop3:0xbe'); first=False
        if regs_full:
            first=True
            for v in regs_full:
                a(f'v_xor_b32 v{acc2}, s{sT}, v{v}' if first else f'v_bitop3_b32 v{acc2}, v{v}, s{sT}, v{acc2} bitop3:0xbe'); first=False
            a(f'v_and_or_b32 v{acc}, v{acc}, v{vMask}, v{acc2}')
        else: a(f'v_and_b32 v{acc}, v{vMask}, v{acc}')
        a(f'v_cmp_ne_u32 vcc, 0, v{acc}')

    a(f'{NAME}:')
    if diag: a(f's_memrealtime s[{sSt0}:{sSt0+1}]')
    a(f's_cmp_ge_u32 s{sB}, 256\ns_cbranch_scc1 L_end')
    a('s_load_dwordx16 s[4:19], s[0:1], 0\ns_load_dwordx8 s[20:27], s[0:1], 64')
    if diag: a(f'v_mov_b32 v{vSt}, 0')
    a(f'v_lshrrev_b32 v1, 6, v0\nv_and_b32 v0, 63, v0\nv_readfirstlane_b32 s{sW}, v1')
    a(f's_and_b32 s{sXj}, s{sB}, 7\ns_lshr_b32 s{sXi}, s{sB}, 3')
    a(f's_mul_i32 s{sF}, s{sXj}, 28\ns_add_u32 s{sF}, s{sF}, s{sXi}')
    a(f's_cmp_lt_u32 s{sXi}, 28\ns_cselect_b32 s{sF}, s{sF}, 0x100000')
    if mapping=='hx': a(f's_mov_b32 s{sH}, s{sXj}\ns_mov_b32 s{sC}, s{sXi}')
    else: a(f's_lshr_b32 s{sH}, s{sB}, 5\ns_and_b32 s{sC}, s{sB}, 31')
    a(f's_mov_b32 s{sTO}, 200000\ns_mov_b32 s{sFull}, -1\ns_mov_b32 s{sGend}, {INF:#x}')
    a(f'v_lshrrev_b32 v2, 4, v0\nv_and_b32 v3, 15, v0')
    a(f's_cmp_lg_u32 s{sW}, 0\ns_cbranch_scc1 L_cons')
    vK0,vV0,vWQ,vFF,vFA,vRA,vF,vX,vTQ=4,8,10,11,12,13,14,20,21
    a('s_setprio 3')
    a(f'v_lshlrev_b32 v{vX}, 4, v0')
    a(f'v_lshrrev_b32 v{vWQ}, 2, v0\nv_lshlrev_b32 v{vWQ}, 13, v{vWQ}\nv_lshlrev_b32 v1, 1, v2\nv_xor_b32 v1, v1, v0\nv_and_b32 v1, 3, v1\nv_lshl_add_u32 v{vWQ}, v1, 4, v{vWQ}')
    a(f's_and_b32 s{sTmp}, s{sC}, 7\ns_lshl_b32 s{sTmp}, s{sTmp}, 7\ns_bfe_u32 s{sTmp2}, s{sC}, 0x10003\ns_lshl_b32 s{sTmp2}, s{sTmp2}, 6\ns_add_u32 s{sTmp}, s{sTmp}, s{sTmp2}')
    a(f's_lshl_b32 s{sTmp2}, s{sH}, 10\ns_add_u32 s{sTmp}, s{sTmp}, s{sTmp2}\ns_lshr_b32 s{sTmp2}, s{sC}, 4\ns_lshl_b32 s{sTmp2}, s{sTmp2}, 21\ns_add_u32 s{sVo}, s{sTmp}, s{sTmp2}')
    a(f'v_xor_b32 v{vK0}, v2, v3\nv_lshlrev_b32 v{vK0}, 4, v{vK0}\nv_lshl_add_u32 v{vK0}, v2, 8, v{vK0}')
    for k in (1,2,3): a(f'v_xor_b32 v{vK0+k}, {64*k}, v{vK0}')
    a(f'v_lshlrev_b32 v{vV0}, 1, v2\nv_xor_b32 v{vV0}, v{vV0}, v3\nv_lshlrev_b32 v{vV0}, 4, v{vV0}\nv_lshl_add_u32 v{vV0}, v2, 8, v{vV0}\nv_xor_b32 v{vV0+1}, 128, v{vV0}')
    a(f'v_lshrrev_b32 v{vFF}, 3, v0\nv_mul_u32_u24 v{vFF}, 3584, v{vFF}\nv_lshlrev_b32 v1, 1, v2\nv_xor_b32 v1, v1, v0\nv_and_b32 v1, 7, v1\nv_lshl_add_u32 v{vFF}, v1, 4, v{vFF}')
    a(f's_and_b32 s{sTmp}, s{sF}, 7\ns_mul_i32 s{sTmp}, s{sTmp}, {64*3584}\ns_lshr_b32 s{sCnt}, s{sF}, 3\ns_lshl_b32 s{sCnt}, s{sCnt}, 7\ns_add_u32 s{sCnt}, s{sCnt}, s{sTmp}')
    a(f'v_mov_b32 v{vFA}, {L_FULL}\nv_mov_b32 v{vRA}, {L_REL}\nv_mov_b32 v{vF}, -1\nv_mov_b32 v{vF+1}, {INF:#x}\nds_write_b64 v{vFA}, v[{vF}:{vF+1}]')
    a(f's_lshl_b32 s{sKb}, s{sH}, 24\ns_lshl_b32 s{sTmp}, s{sC}, 19\ns_add_u32 s{sKo}, s{sKb}, s{sTmp}')
    if rot:
        a(f's_mov_b32 s{sKb}, s{sKo}\ns_mul_i32 s{sTmp}, s{sC}, {rot[0]}\ns_mul_i32 s{sTmp2}, s{sH}, {rot[1]}\ns_add_u32 s{sTmp}, s{sTmp}, s{sTmp2}\ns_and_b32 s{sTmp}, s{sTmp}, 63\ns_lshl_b32 s{sTmp}, s{sTmp}, 13\ns_add_u32 s{sKo}, s{sKo}, s{sTmp}')
    def advk():
        a(f's_mov_b32 s{sVo}, s{sKo}\ns_add_u32 s{sKo}, s{sKo}, 8192')
        if rot: a(f's_and_b32 s{sKo}, s{sKo}, 0x7ffff\ns_or_b32 s{sKo}, s{sKo}, s{sKb}')
    a(f's_mov_b32 m0, {L_X:#x}')
    a('s_waitcnt lgkmcnt(0)')
    dK,dV,dWQ,dWG,dWU,dXl,dWSl=28,32,36,40,44,84,88
    srd(dXl,pX,1024)
    a(f'buffer_load_dwordx4 v{vX}, s[{dXl}:{dXl+3}], 0 offen lds')
    srd(dWQ,pWQ,512*4096*2)
    stamp(10)
    issued=[1]; pub=[-1]
    def pubv(v): a(f'v_mov_b32 v{vF}, {v}\nds_write_b32 v{vFA}, v{vF}')
    def pace():
        if issued[0]>W:
            a(f's_waitcnt vmcnt({W})')
            g=(issued[0]-W-1)//8
            if g>pub[0]:
                pub[0]=g; pubv(g); stamp(11+g)
    def sub(kind, g, sb):
        base=(g%R)*SLOT+4096*sb
        a(f's_mov_b32 m0, {base:#x}')
        for k in range(4):
            n=4*sb+k
            if kind=='K':
                if k==0: a(f's_add_u32 s{sTmp}, s{sKo}, {4096*sb}')
                a(f'buffer_load_dwordx4 v{vK0+k}, s[{dK}:{dK+3}], s{sTmp} offen offset:{1024*k} {pol} lds')
            elif kind in('WQ0','WQ1'):
                n+=8*(kind=='WQ1')
                a(f's_add_u32 s{sTmp}, s{sVo}, {16*8192*n-1024*k}')
                a(f'buffer_load_dwordx4 v{vWQ}, s[{dWQ}:{dWQ+3}], s{sTmp} offen offset:{1024*k} {wpol} lds')
            elif kind in('G','U'):
                d=dWG if kind=='G' else dWU
                a(f's_add_u32 s{sTmp}, s{sCnt}, {8*3584*n-1024*k}')
                a(f'buffer_load_dwordx4 v{vFF}, s[{d}:{d+3}], s{sTmp} offen offset:{1024*k} {wpol} lds')
        issued[0]+=4
    barrier_done=False
    for g,kind in enumerate(['WQ0','WQ1','G','K','U']):
        if kind=='G': srd(dWG,pWG,512*1792*2); srd(dK,pK,1<<27); srd(dWU,pWU,512*1792*2); srd(dV,pV,1<<27)
        for sb in range(2):
            if issued[0]>W and not barrier_done:
                a('s_barrier'); barrier_done=True
            pace(); sub(kind,g,sb)
    if not barrier_done: a('s_barrier')
    if pub[0]<0 or issued[0]<=W+8:
        for left,g in ((40,0),(32,1),(24,2)):
            if g>pub[0]: a(f's_waitcnt vmcnt({left})'); pubv(g); stamp(11+g); pub[0]=g
    if diag: srd(dWSl,pWS,WS_SZ)
    advk()
    a(f's_mov_b32 s{sG}, 5\ns_mov_b32 s{sSlot}, {5*SLOT}\ns_mov_b32 s{sMin}, 0\ns_mov_b32 s{sJ}, 1\ns_mov_b32 s{sFull}, {pub[0]}\ns_mov_b32 s{sCg}, 0')
    def relcheck():
        ok=lab('rok'); p=lab('rp')
        a(f's_sub_i32 s{sGmR}, s{sG}, {R}\ns_cmp_gt_i32 s{sMin}, s{sGmR}\ns_cbranch_scc1 {ok}')
        a(f'{p}:\nds_read_b128 v[16:19], v{vRA}\nds_read_b32 v15, v{vRA} offset:16'); timeout()
        a(f's_waitcnt lgkmcnt(0)\nv_min3_i32 v16, v16, v17, v18\nv_min3_i32 v16, v16, v19, v15\nv_readfirstlane_b32 s{sMin}, v16\ns_cmp_gt_i32 s{sMin}, s{sGmR}\ns_cbranch_scc0 {p}\n{ok}:')
    def adv():
        a(f's_add_u32 s{sG}, s{sG}, 1\ns_add_u32 s{sSlot}, s{sSlot}, {SLOT}\ns_cmp_eq_u32 s{sSlot}, {RING}\ns_cselect_b32 s{sSlot}, 0, s{sSlot}')
    def batch(kind,sb):
        so=sKo if kind=='K' else sVo
        if sb==0: a(f's_mov_b32 m0, s{sSlot}')
        else: a(f's_add_u32 m0, s{sSlot}, 4096')
        a(f's_add_u32 s{sTmp}, s{so}, {4096*sb}')
        for k in range(4):
            if kind=='K': a(f'buffer_load_dwordx4 v{vK0+k}, s[{dK}:{dK+3}], s{sTmp} offen offset:{1024*k} {pol} lds')
            else: a(f'buffer_load_dwordx4 v{vV0+(k&1)}, s[{dV}:{dV+3}], s{sTmp} offen offset:{1024*k} {vpol} lds')
    def pubrel(d):
        a((f's_sub_u32 s{sTmp}, s{sG}, {-d}' if d<0 else f's_add_u32 s{sTmp}, s{sG}, {d}')+f'\ns_max_i32 s{sFull}, s{sFull}, s{sTmp}\nv_mov_b32 v{vF}, s{sFull}\nds_write_b32 v{vFA}, v{vF}')
    def dyn_group(kind,W,mid=None):
        relcheck()
        for sb in range(2):
            a(f's_waitcnt vmcnt({W})')
            if (4*sb-W)%8==0: pubrel(-(W-4*sb)//8)
            batch(kind,sb)
        if mid: mid()
        adv()
    def lstamp():
        if diag:
            l=lab('nost')
            a(f's_and_b32 s{sTmp}, s{sJ}, 7\ns_cmp_eq_u32 s{sTmp}, 0\ns_cbranch_scc0 {l}\ns_lshr_b32 s{sTmp}, s{sJ}, 3\ns_add_u32 s{sTmp}, s{sTmp}, 2\ns_min_u32 s{sTmp}, s{sTmp}, 9\ns_mov_b32 m0, s{sTmp}')
            a(f's_memrealtime s[{sSt}:{sSt+1}]\ns_waitcnt lgkmcnt(0)\nv_writelane_b32 v{vSt}, s{sSt}, m0\n{l}:')
    def moderead(): a(f'ds_read_b32 v{vTQ}, v{vFA} offset:12')
    if fb: moderead()
    a('L_ltop:')
    if fb:
        a(f's_waitcnt lgkmcnt(0)\nv_readfirstlane_b32 s{sTmp}, v{vTQ}')
        for mi in range(1,len(modes)): a(f's_cmp_eq_u32 s{sTmp}, {mi}\ns_cbranch_scc1 L_lloop{mi}')
    for mi,Np in enumerate(modes):
        W=Np-4; assert W%4==0 and W<=59
        a(f'L_lloop{mi}:')
        if diag: a(f's_add_u32 s{sCg}, s{sCg}, {1<<(8*mi)}')
        dyn_group('K',W); dyn_group('V',W,moderead if fb else None)
        lstamp()
        advk(); a(f's_add_u32 s{sJ}, s{sJ}, 1')
        a(f's_cmp_lt_u32 s{sJ}, {S}\ns_cbranch_scc1 L_ltop')
        if mi<len(modes)-1: a('s_branch L_lend')
    W=max(modes)-4
    a('L_lend:')
    a(f'v_mov_b32 v{vF}, s{sG}\nds_write_b32 v{vFA}, v{vF} offset:4')
    adv(); relcheck()
    def landed(left_out, tot):
        n=tot-left_out
        if n>=8: return 1
        if n>=0: return 0
        return -1+(n//8)+ (0)
    last=None
    for sb in range(2):
        a(f's_waitcnt vmcnt({W})')
        if (4*sb-W)%8==0: last=landed(W,4*sb); pubrel(last)
        batch('V',sb)
    stamp(1)
    for left in range((W//8)*8,-1,-8):
        d=landed(left,8)
        if d==last: continue
        a(f's_waitcnt vmcnt({left})'); pubrel(d); last=d
    stamp(2)
    if diag: a(f'v_writelane_b32 v{vSt}, s{sJ}, 16\nv_writelane_b32 v{vSt}, s{sCg}, 17')
    stamp_out(dWSl,[(0,'umax',0,1),(1,'umax',0,0),(2,'umax',11,0),(3,'add',13,0),(4,'umax',13,0),(7,'add',3,0),(8,'add',6,0),(9,'umax',2,1),(10,'add',2,0),(11,'umax',2,0)])
    a('s_endpgm')
    a('L_cons:')
    vFA,vRA,vKp,vVp,vM,vMb,vL,vTm=4,5,6,7,8,9,10,11
    vQ=12; vO=28; vK=60; vV=92; vS=124; vA=132; vP=140; vT=144; vAd=148; vL16=156; vWf=160
    dWS,dWD,dWO,dOUT=28,36,40,44
    a(f's_sub_u32 s{sCw}, s{sW}, 1')
    a(f'v_mov_b32 v{vFA}, {L_FULL}\ns_lshl_b32 s{sTmp}, s{sCw}, 2\ns_add_u32 s{sTmp}, s{sTmp}, {L_REL}\nv_mov_b32 v{vRA}, s{sTmp}')
    a(f's_lshl_b32 s{sG}, s{sCw}, 1\ns_add_u32 s{sG}, s{sG}, 3')
    a(f's_cmp_eq_u32 s{sCw}, 0\ns_cselect_b32 s{sTmp}, 0, s{sG}\ns_cmp_eq_u32 s{sCw}, 4\ns_cselect_b32 s{sTmp}, 2, s{sTmp}\nv_mov_b32 v1, s{sTmp}\nds_write_b32 v{vRA}, v1')
    a(f'v_mov_b32 v1, 0\nds_write_b32 v{vFA}, v1 offset:8\nds_write_b32 v{vFA}, v1 offset:12')
    a(f's_mov_b32 s{sScale}, {SCALE:#x}\ns_mov_b32 s{sL2e}, {LOG2E:#x}\nv_mov_b32 v{vMask}, 0xff')
    a(f'v_xor_b32 v{vKp}, v2, v3\nv_lshlrev_b32 v{vKp}, 4, v{vKp}\nv_lshl_add_u32 v{vKp}, v3, 8, v{vKp}')
    a(f'v_lshrrev_b32 v1, 2, v3\nv_lshl_add_u32 v1, v2, 2, v1\nv_and_b32 v{vVp}, 7, v1\nv_lshlrev_b32 v{vVp}, 5, v{vVp}\nv_lshl_add_u32 v{vVp}, v1, 8, v{vVp}\nv_and_b32 v{vTm}, 3, v0\nv_lshl_add_u32 v{vVp}, v{vTm}, 3, v{vVp}')
    a(f'v_lshlrev_b32 v{vL16}, 4, v0')
    a(f's_lshl_b32 s{sCg}, s{sXj}, 4\ns_add_u32 s{sCg}, s{sCg}, s{sXi}')
    a('s_waitcnt lgkmcnt(0)')
    a(f's_load_dword s{sT}, s[{pWS}:{pWS+1}], 0')
    a(f's_and_b32 s{sTmp}, s{sCg}, 127\ns_lshl_b32 s{sTmp}, s{sTmp}, 3\ns_load_dwordx2 s[{sXf}:{sXf+1}], s[{pX}:{pX+1}], s{sTmp}')
    srd(dWS,pWS,WS_SZ); srd(dWD,pWD,1792*512*2); srd(dWO,pWO,4096*512*2); srd(dOUT,pOUT,1024)
    a('s_barrier')
    vWO=vK
    def wo_loads():
        a(f's_lshl_b32 s{sTmp}, s{sH}, 5\ns_add_u32 s{sTmp}, s{sTmp}, s{sC}\ns_lshl_b32 s{sTmp}, s{sTmp}, 14\ns_lshl_b32 s{sTmp2}, s{sCw}, 8\ns_add_u32 s{sTmp}, s{sTmp}, s{sTmp2}\nv_lshlrev_b32 v{vT}, 2, v0')
        for i in range(16):
            a(f'buffer_load_dword v{vWf+2*i}, v{vT}, s[{dWO}:{dWO+3}], s{sTmp} offen offset:{1024*(i&3)} {wpol}')
            if i&3==3 and i<15: a(f's_add_u32 s{sTmp}, s{sTmp}, 4096')
    def wo_unpack():
        for i in range(16): a(f'v_and_b32 v{vWf+2*i+1}, 0xffff0000, v{vWf+2*i}\nv_lshlrev_b32 v{vWf+2*i}, 16, v{vWf+2*i}')
    a(f's_and_b32 s{sTmp}, s{sCw}, 3\ns_cmp_eq_u32 s{sTmp}, 0\ns_cbranch_scc1 L_ln')
    wait_full(1,vT,vFA)
    wo_loads()
    a(f's_waitcnt vmcnt(0)'); wo_unpack()
    a(f's_add_u32 s{sT}, s{sT}, 1\ns_lshr_b32 s{sT1}, s{sT}, 8')
    w0,w1,w2,w3=vQ+8,vQ+9,vQ+10,vQ+11
    a('L_waitq:')
    a(f'ds_read_b32 v{w0}, v{vFA} offset:8'); timeout()
    a(f's_waitcnt lgkmcnt(0)\nv_readfirstlane_b32 s{sLoc}, v{w0}\ns_cmp_eq_u32 s{sLoc}, 0\ns_cbranch_scc1 L_waitq\ns_branch L_qready')
    a('L_ln:')
    vx=vK; vxf=vK+4; vWD=vO; vXf=vV
    wait_full(-1,vT,vFA)
    a(f'v_add_u32 v{vT}, {L_X}, v{vL16}\nds_read_b128 v[{vx}:{vx+3}], v{vT}')
    a(f's_add_u32 s{sT}, s{sT}, 1\ns_lshr_b32 s{sT1}, s{sT}, 8')
    stamp(1)
    a('s_waitcnt lgkmcnt(0)')
    for j in range(4): a(f'v_lshlrev_b32 v{vxf+2*j}, 16, v{vx+j}\nv_and_b32 v{vxf+2*j+1}, 0xffff0000, v{vx+j}')
    t0=vxf+8; t1=t0+1; t2=t0+2; vd=t0+4
    a(f'v_add_f32 v{t0}, v{vxf}, v{vxf+1}\nv_add_f32 v{t1}, v{vxf+2}, v{vxf+3}\nv_add_f32 v{t2}, v{vxf+4}, v{vxf+5}\nv_add_f32 v{t0}, v{t0}, v{t1}\nv_add_f32 v{t1}, v{vxf+6}, v{vxf+7}\nv_add_f32 v{t0}, v{t0}, v{t2}\nv_add_f32 v{t0}, v{t0}, v{t1}')
    allred('v_add_f32',[t0],[t1])
    a(f'v_mul_f32 v{t0}, {f2u(1/512.):#x}, v{t0}')
    for j in range(8): a(f'v_sub_f32 v{vd+j}, v{vxf+j}, v{t0}')
    a(f'v_mul_f32 v{t2}, v{vd}, v{vd}')
    for j in range(1,8): a(f'v_fmac_f32 v{t2}, v{vd+j}, v{vd+j}')
    allred('v_add_f32',[t2],[t1])
    a(f'v_mul_f32 v{t2}, {f2u(1/512.):#x}, v{t2}')
    bfr(t0,t0); bfr(t2,t2)
    a(f'v_add_f32 v{t2}, {f2u(1e-5):#x}, v{t2}'); bfr(t2,t2)
    a(f'v_sqrt_f32 v{t2}, v{t2}'); bfr(t2,t2)
    a(f'v_rcp_f32 v{t2}, v{t2}')
    for j in range(8): a(f'v_sub_f32 v{vd+j}, v{vxf+j}, v{t0}')
    for j in range(4): a(f'v_cvt_pk_bf16_f32 v{vx+j}, v{vd+2*j}, v{vd+2*j+1}')
    for j in range(4): a(f'v_lshlrev_b32 v{vd+2*j}, 16, v{vx+j}\nv_and_b32 v{vd+2*j+1}, 0xffff0000, v{vx+j}')
    for j in range(8): a(f'v_mul_f32 v{vd+j}, v{vd+j}, v{t2}')
    for j in range(4): a(f'v_cvt_pk_bf16_f32 v{vx+j}, v{vd+2*j}, v{vd+2*j+1}')
    a(f's_lshl_b32 s{sTmp}, s{sCw}, 8\ns_add_u32 s{sTmp}, s{sTmp}, {L_XN}\nv_add_u32 v{t0}, s{sTmp}, v{vL16}\nds_write_b128 v{t0}, v[{vx}:{vx+3}]')
    a(f's_cmp_eq_u32 s{sCw}, 0\ns_cbranch_scc0 L_help')
    a(f's_lshr_b32 s{sTmp2}, s{sC}, 4\ns_lshl_b32 s{sTmp2}, s{sTmp2}, 9\ns_add_u32 s{sTmp}, s{sTmp}, s{sTmp2}\nv_lshl_add_u32 v{t0}, v2, 3, s{sTmp}')
    for j in range(8): a(f'ds_read2_b64 v[{vXf+4*j}:{vXf+4*j+3}], v{t0} offset0:{8*j} offset1:{8*j+4}')
    vD=vQ; vpt=vT; vB=vK
    a(f'v_lshlrev_b32 v{vpt}, 6, v1\nv_lshl_add_u32 v{vpt}, v{vTm}, 3, v{vpt}\nv_and_b32 v{vpt+1}, 1, v2\nv_lshl_add_u32 v{vpt}, v{vpt+1}, 5, v{vpt}\nv_xor_b32 v{vpt+1}, 32, v{vpt}')
    a(f's_getreg_b32 s{sXcc}, hwreg(HW_REG_XCC_ID, 0, 4)\ns_waitcnt lgkmcnt(2)')
    stamp(2)
    def qgemv(s0,s1):
        seq=[(s,j) for s in range(s0,s1) for j in range(2)]
        def rd(i):
            s,j=seq[i]; b=vB+4*(i%8)
            a(f'ds_read_b64_tr_b16 v[{b}:{b+1}], v{vpt+j} offset:{2048*s}\nds_read_b64_tr_b16 v[{b+2}:{b+3}], v{vpt+j} offset:{2048*s+1024}')
        for i in range(5): rd(i)
        for i in range(len(seq)):
            if i+5<len(seq): rd(i+5)
            a(f's_waitcnt lgkmcnt({2*(min(i+5,len(seq)-1)-i)})')
            s,j=seq[i]; b=vB+4*(i%8)
            a(f'v_mfma_f32_16x16x32_bf16 v[{vD+4*j}:{vD+4*j+3}], v[{b}:{b+3}], v[{vXf+4*s}:{vXf+4*s+3}], '+('0' if s==0 else f'v[{vD+4*j}:{vD+4*j+3}]'))
    wait_full(0,vT+2,vFA); qgemv(0,4)
    wait_full(1,vT+2,vFA); stamp(3); qgemv(4,8)
    a(f'v_mov_b32 v{w0}, 3\nds_write_b32 v{vRA}, v{w0}')
    a(f's_and_b32 s{sTmp}, s{sC}, 7\ns_lshl_b32 s{sTmp}, s{sTmp}, 8\ns_bfe_u32 s{sTmp2}, s{sC}, 0x10003\ns_lshl_b32 s{sTmp2}, s{sTmp2}, 7\ns_add_u32 s{sTmp}, s{sTmp}, s{sTmp2}')
    a(f's_lshr_b32 s{sTmp2}, s{sC}, 4\ns_lshl_b32 s{sTmp2}, s{sTmp2}, 11\ns_add_u32 s{sTmp}, s{sTmp}, s{sTmp2}\ns_lshl_b32 s{sKo}, s{sH}, 12\ns_add_u32 s{sKo}, s{sKo}, {W_QG:#x}\ns_add_u32 s{sTmp}, s{sTmp}, s{sKo}')
    a(f'v_lshlrev_b32 v{vpt}, 4, v2\nv_lshl_add_u32 v{vpt}, v3, 6, v{vpt}\nv_add_u32 v{vpt}, s{sTmp}, v{vpt}')
    a(f's_lshl_b32 s{sVo}, s{sH}, 9\ns_add_u32 s{sVo}, s{sVo}, {W_QX:#x}\ns_lshl_b32 s{sTmp}, s{sC}, 4\ns_add_u32 s{sTmp}, s{sTmp}, s{sVo}')
    setexec(0x0002000200020002)
    for k in range(4): a(f'v_mov_b32 v{vD+k}, v{vD+4+k}')
    a('s_mov_b64 exec, -1'); tag4(vD)
    a(f's_mov_b64 exec, 4\nv_mov_b32 v{vD}, s{sXcc}\nv_mov_b32 v{vD+1}, s{sT}\nv_mov_b32 v{vD+2}, s{sXcc}\nv_mov_b32 v{vD+3}, s{sT}\nv_mov_b32 v{vpt}, s{sTmp}')
    setexec(0x0003000300030007)
    a(f'buffer_store_dwordx4 v[{vD}:{vD+3}], v{vpt}, s[{dWS}:{dWS+3}], 0 offen sc1\ns_mov_b64 exec, -1')
    stamp(4)
    wo_loads()
    a(f'v_and_b32 v{vpt}, 0x1f0, v{vL16}')
    a('L_qpoll:')
    for i in range(4): a(f'buffer_load_dwordx4 v[{vK+4*i}:{vK+4*i+3}], v{vL16}, s[{dWS}:{dWS+3}], s{sKo} offen offset:{1024*i} sc1')
    a(f'buffer_load_dwordx4 v[{vK+16}:{vK+19}], v{vpt}, s[{dWS}:{dWS+3}], s{sVo} offen sc1')
    timeout()
    a('s_waitcnt vmcnt(0)')
    chk(w0,[vK,vK+4,vK+8,vK+12],[vK+17,vK+19],w1)
    a('s_cbranch_vccnz L_qpoll')
    for k in range(8): a(f'v_add_f32 v{vK+k}, v{vK+k}, v{vK+8+k}')
    for k in range(4): a(f'v_cvt_pk_bf16_f32 v{vK+k}, v{vK+2*k}, v{vK+2*k+1}')
    a(f'v_lshlrev_b32 v{vpt}, 3, v0\nv_add_u32 v{vpt}, {L_Q}, v{vpt}\nds_write2st64_b64 v{vpt}, v[{vK}:{vK+1}], v[{vK+2}:{vK+3}] offset0:0 offset1:1')
    a(f'v_cmp_ne_u32 vcc, s{sXcc}, v{vK+16}\ns_mov_b32 s{sLoc}, 1')
    if local: a(f's_cmp_eq_u64 vcc, 0\ns_cselect_b32 s{sLoc}, 2, 1')
    a(f'v_mov_b32 v{w0}, s{sLoc}\nds_write_b32 v{vFA}, v{w0} offset:8')
    stamp(5)
    wo_unpack()
    a('L_qready:')
    a(f'v_lshlrev_b32 v{vT}, 8, v{vTm}\nv_lshl_add_u32 v{vT}, v2, 4, v{vT}\nv_add_u32 v{vT}, {L_Q}, v{vT}')
    for s in range(4): a(f'ds_read_b128 v[{vQ+4*s}:{vQ+4*s+3}], v{vT} offset:{64*s}')
    for i in range(32): a(f'v_mov_b32 v{vO+i}, 0')
    a(f'v_mov_b32 v{vM}, 0xff800000\nv_mov_b32 v{vMb}, 0\nv_mov_b32 v{vL}, 0\ns_mov_b32 s{sCnt}, 0')
    a(f's_lshl_b32 s{sSlot}, s{sG}, 13\ns_add_u32 s{sSlotV}, s{sSlot}, {3*SLOT}')
    vWa,vWm,vRo,vRm,vpa,vga,vgm,vS3,vLr=192,193,194,195,196,197,198,199,158
    a(f's_lshl_b32 s{sTmp}, s{sCw}, 11\ns_add_u32 s{sTmp}, s{sTmp}, {L_SC}\nv_lshlrev_b32 v{vWa}, 9, v3\nv_lshl_add_u32 v{vWa}, v2, 4, v{vWa}\nv_add_u32 v{vWa}, s{sTmp}, v{vWa}')
    a(f's_lshl_b32 s{sTmp}, s{sCw}, 5\ns_add_u32 s{sTmp}, s{sTmp}, {L_SM}\nv_lshl_add_u32 v{vWm}, v3, 3, s{sTmp}')
    a(f's_lshl_b32 s{sTmp}, s{sCw}, 9\ns_add_u32 s{sTmp}, s{sTmp}, {L_SC}\nv_lshrrev_b32 v{vT+3}, 3, v0\nv_lshlrev_b32 v{vRo}, 6, v{vT+3}\nv_lshl_add_u32 v{vRo}, v{vTm}, 4, v{vRo}\nv_add_u32 v{vRo}, s{sTmp}, v{vRo}')
    a(f's_lshl_b32 s{sTmp}, s{sCw}, 3\ns_add_u32 s{sTmp}, s{sTmp}, {L_SM}\nv_mov_b32 v{vRm}, s{sTmp}')
    a(f's_lshl_b32 s{sTmp}, s{sH}, 17\ns_add_u32 s{sTmp}, s{sTmp}, {W_P2:#x}\ns_lshl_b32 s{sTmp2}, s{sC}, 12\ns_add_u32 s{sKo}, s{sTmp}, s{sTmp2}')
    a(f's_lshl_b32 s{sTmp2}, s{sCw}, 15\ns_add_u32 s{sTmp}, s{sTmp}, s{sTmp2}\ns_lshl_b32 s{sTmp2}, s{sC}, 7\ns_add_u32 s{sTmp}, s{sTmp}, s{sTmp2}')
    a(f'v_and_b32 v{vpa}, 0x70, v{vL16}\nv_lshl_add_u32 v{vpa}, v{vT+3}, 12, v{vpa}\nv_add_u32 v{vpa}, s{sTmp}, v{vpa}')
    a(f'v_lshrrev_b32 v{vgm}, 2, v0\nv_lshlrev_b32 v{vgm}, 7, v{vgm}\nv_lshl_add_u32 v{vga}, v{vTm}, 4, v{vgm}')
    a(f's_lshl_b32 s{sTmp}, s{sCw}, 17\ns_lshl_b32 s{sTmp2}, s{sB}, 7\ns_add_u32 s{sTmp}, s{sTmp}, s{sTmp2}\ns_add_u32 s{sVo}, s{sTmp}, {W_S3:#x}\nv_lshlrev_b32 v{vS3}, 15, v2\nv_lshl_add_u32 v{vS3}, v3, 3, v{vS3}')
    def prewrite():
        l=lab('npw')
        a(f's_cmp_eq_u32 s{sLoc}, 2\ns_cbranch_scc0 {l}\ns_not_b32 s{sTmp}, s{sT}')
        for k in range(4): a(f'v_mov_b32 v{200+k}, s{sTmp}')
        a(f'buffer_store_dwordx4 v[200:203], v{vpa}, s[{dWS}:{dWS+3}], 0 offen\n{l}:')
    if prew==1: prewrite()
    stamp(6)
    a('L_step:')
    a(f's_cmp_ge_i32 s{sG}, s{sGend}\ns_cbranch_scc1 L_exit\ns_cmp_gt_i32 s{sFull}, s{sG}\ns_cbranch_scc1 L_go')
    poll_full(vT,vFA)
    a('s_branch L_step\nL_go:')
    a(f'v_add_u32 v{vAd+4}, s{sSlot}, v{vKp}')
    for s in (1,2,3): a(f'v_xor_b32 v{vAd+4+s}, {64*s}, v{vAd+4}')
    for t in range(2):
        for s in range(4): a(f'ds_read_b128 v[{vK+16*t+4*s}:{vK+16*t+4*s+3}], v{vAd+4+s} offset:{4096*t}')
    a(f's_add_u32 s{sG}, s{sG}, 3\nv_mov_b32 v{vT}, s{sG}')
    for t in range(2):
        a(f's_waitcnt lgkmcnt({4-4*t})')
        if t==1: a(f'ds_write_b32 v{vRA}, v{vT}')
        for s in range(4):
            a(f'v_mfma_f32_16x16x32_bf16 v[{vS+4*t}:{vS+4*t+3}], v[{vK+16*t+4*s}:{vK+16*t+4*s+3}], v[{vQ+4*s}:{vQ+4*s+3}], '+('0' if s==0 else f'v[{vS+4*t}:{vS+4*t+3}]'))
    vVa=vK
    a(f'v_add_u32 v{vAd+1}, s{sSlotV}, v{vVp}')
    for j in range(4): a(f'v_cvt_pk_bf16_f32 v{vP+j}, v{vS+2*j}, v{vS+2*j+1}')
    for j in range(4): a(f'v_lshlrev_b32 v{vA+2*j}, 16, v{vP+j}\nv_and_b32 v{vA+2*j+1}, 0xffff0000, v{vP+j}')
    for j in range(8): a(f'v_mul_f32 v{vA+j}, s{sScale}, v{vA+j}')
    for j in range(4): a(f'v_cvt_pk_bf16_f32 v{vP+j}, v{vA+2*j}, v{vA+2*j+1}')
    for j in range(4): a(f'v_lshlrev_b32 v{vA+2*j}, 16, v{vP+j}\nv_and_b32 v{vA+2*j+1}, 0xffff0000, v{vP+j}')
    a(f'v_max3_f32 v{vT}, v{vA}, v{vA+1}, v{vA+2}\nv_max3_f32 v{vT+1}, v{vA+3}, v{vA+4}, v{vA+5}\nv_max3_f32 v{vT+2}, v{vA+6}, v{vA+7}, v{vM}\nv_max3_f32 v{vT}, v{vT}, v{vT+1}, v{vT+2}')
    allred('v_max_f32',[vT],[vT+1],lo=())
    for db in range(1,8): a(f'v_xor_b32 v{vVa+db}, {32*db}, v{vAd+1}')
    a(f'v_cmp_gt_f32 vcc, v{vT}, v{vM}\ns_cbranch_vccz L_norescale')
    a(f'v_sub_f32 v{vT+1}, v{vM}, v{vT}\nv_mul_f32 v{vT+1}, s{sL2e}, v{vT+1}\nv_exp_f32 v{vT+1}, v{vT+1}\nv_mov_b32 v{vM}, v{vT}\nv_mul_f32 v{vMb}, s{sL2e}, v{vT}\nv_mul_f32 v{vL}, v{vL}, v{vT+1}')
    for i in range(32): a(f'v_mul_f32 v{vO+i}, v{vO+i}, v{vT+1}')
    a('L_norescale:')
    for j in range(8): a(f'v_fma_f32 v{vA+j}, v{vA+j}, s{sL2e}, -v{vMb}')
    for j in range(8): a(f'v_exp_f32 v{vA+j}, v{vA+j}')
    for j in range(4): a(f'v_cvt_pk_bf16_f32 v{vP+j}, v{vA+2*j}, v{vA+2*j+1}')
    a(f'v_add_f32 v{vT}, v{vA}, v{vA+1}\nv_add_f32 v{vT+1}, v{vA+2}, v{vA+3}\nv_add_f32 v{vT+2}, v{vA+4}, v{vA+5}\nv_add_f32 v{vT+3}, v{vA+6}, v{vA+7}')
    a(f'v_add_f32 v{vT}, v{vT}, v{vT+1}\nv_add_f32 v{vT+2}, v{vT+2}, v{vT+3}\nv_add_f32 v{vT}, v{vT}, v{vT+2}\nv_add_f32 v{vL}, v{vL}, v{vT}')
    a(f'v_mov_b32 v{vLr}, v{vL}'); allred('v_add_f32',[vLr],[vT],lo=())
    if prew>1:
        a(f's_cmp_eq_u32 s{sCnt}, {prew}\ns_cbranch_scc0 L_nopw'); prewrite(); a(f'L_nopw:\ns_add_u32 s{sCnt}, s{sCnt}, 1')
    wait_full(f's{sG}',vT,vFA)
    def rdv(db):
        ad=vAd+1 if db==0 else vVa+db
        a(f'ds_read_b64_tr_b16 v[{vV+4*db}:{vV+4*db+1}], v{ad}\nds_read_b64_tr_b16 v[{vV+4*db+2}:{vV+4*db+3}], v{ad} offset:4096')
    for db in range(6): rdv(db)
    a(f's_add_u32 s{sG}, s{sG}, 5\nv_mov_b32 v{vT}, s{sG}')
    for db in range(8):
        a(f's_waitcnt lgkmcnt({2*(min(db+5,7)-db)})')
        if db==7: a(f'ds_write_b32 v{vRA}, v{vT}')
        a(f'v_mfma_f32_16x16x32_bf16 v[{vO+4*db}:{vO+4*db+3}], v[{vV+4*db}:{vV+4*db+3}], v[{vP}:{vP+3}], v[{vO+4*db}:{vO+4*db+3}]')
        if db+6<8: rdv(db+6)
    for sl in (sSlot,sSlotV):
        a(f's_add_u32 s{sl}, s{sl}, {8*SLOT}\ns_sub_u32 s{sTmp}, s{sl}, {RING}\ns_cselect_b32 s{sl}, s{sl}, s{sTmp}')
    a('s_branch L_step')
    a('L_exit:')
    stamp(7)
    a(f'v_mov_b32 v{vMb}, v{vLr}')
    setexec(0x000f000f000f000f)
    a(f'ds_write_b64 v{vWm}, v[{vM}:{vM+1}]')
    for db in range(8): a(f'ds_write_b128 v{vWa}, v[{vO+4*db}:{vO+4*db+3}] offset:{64*db}')
    a('s_mov_b64 exec, -1')
    a('s_waitcnt lgkmcnt(0)\ns_barrier')
    stamp(8)
    vml=vS; vo4=vK; r=vO
    for w in range(4): a(f'ds_read_b64 v[{vml+2*w}:{vml+2*w+1}], v{vRm} offset:{32*w}')
    for w in range(4): a(f'ds_read_b128 v[{vo4+4*w}:{vo4+4*w+3}], v{vRo} offset:{2048*w}')
    a(f's_waitcnt lgkmcnt(4)\nv_max3_f32 v{r+4}, v{vml}, v{vml+2}, v{vml+4}\nv_max_f32 v{r+4}, v{r+4}, v{vml+6}')
    for w in range(4): a(f'v_sub_f32 v{vml+2*w}, v{vml+2*w}, v{r+4}')
    for w in range(4): a(f'v_mul_f32 v{vml+2*w}, s{sL2e}, v{vml+2*w}')
    for w in range(4): a(f'v_exp_f32 v{vml+2*w}, v{vml+2*w}')
    a(f'v_mul_f32 v{r+5}, v{vml}, v{vml+1}')
    for w in range(1,4): a(f'v_fmac_f32 v{r+5}, v{vml+2*w}, v{vml+2*w+1}')
    a('s_waitcnt lgkmcnt(0)')
    for k in range(4): a(f'v_mul_f32 v{r+k}, v{vml}, v{vo4+k}')
    for w in range(1,4):
        for k in range(4): a(f'v_fmac_f32 v{r+k}, v{vml+2*w}, v{vo4+4*w+k}')
    tag4(r)
    setexec(0xf0f0f0f0f0f0f0f0)
    a(f'v_mov_b32 v{r}, v{r+4}\nv_mov_b32 v{r+1}, s{sT}\nv_mov_b32 v{r+2}, v{r+5}\nv_mov_b32 v{r+3}, s{sT}')
    a('s_mov_b64 exec, -1')
    a(f's_cmp_eq_u32 s{sLoc}, 2\ns_cbranch_scc1 L_p2loc')
    a(f'buffer_store_dwordx4 v[{r}:{r+3}], v{vpa}, s[{dWS}:{dWS+3}], 0 offen sc1\ns_branch L_p2done')
    a(f'L_p2loc:\nbuffer_store_dwordx4 v[{r}:{r+3}], v{vpa}, s[{dWS}:{dWS+3}], 0 offen\nL_p2done:')
    stamp(9)
    po=vK; pm=vK+8
    a('L_s2poll:')
    for i in range(2):
        a(f'buffer_load_dwordx4 v[{po+4*i}:{po+4*i+3}], v{vga}, s[{dWS}:{dWS+3}], s{sKo} offen offset:{2048*i} sc1')
        a(f'buffer_load_dwordx4 v[{pm+4*i}:{pm+4*i+3}], v{vgm}, s[{dWS}:{dWS+3}], s{sKo} offen offset:{2048*i+64} sc1')
    timeout()
    a('s_waitcnt vmcnt(0)')
    chk(vT,[po,po+4],[pm+1,pm+3,pm+5,pm+7],vT+1)
    a('s_cbranch_vccnz L_s2poll')
    stamp(10)
    mx=vM
    a(f'v_max_f32 v{mx}, v{pm}, v{pm+4}')
    allred('v_max_f32',[mx],[vT+1],lo=(4,8))
    for i in range(2): a(f'v_sub_f32 v{pm+4*i}, v{pm+4*i}, v{mx}')
    for i in range(2): a(f'v_mul_f32 v{pm+4*i}, s{sL2e}, v{pm+4*i}')
    for i in range(2): a(f'v_exp_f32 v{pm+4*i}, v{pm+4*i}')
    o=vS; ls=vS+4
    for k in range(4): a(f'v_mul_f32 v{o+k}, v{pm}, v{po+k}')
    a(f'v_mul_f32 v{ls}, v{pm}, v{pm+2}')
    for k in range(4): a(f'v_fmac_f32 v{o+k}, v{pm+4}, v{po+4+k}')
    a(f'v_fmac_f32 v{ls}, v{pm+4}, v{pm+6}')
    allred('v_add_f32',[ls,o,o+1,o+2,o+3],[vA,vA+1,vA+2,vA+3,vA+4],lo=(4,8))
    a(f'v_rcp_f32 v{ls}, v{ls}')
    for k in range(4): a(f'v_mul_f32 v{o+k}, v{o+k}, v{ls}')
    a(f'v_cvt_pk_bf16_f32 v{vA}, v{o}, v{o+1}\nv_cvt_pk_bf16_f32 v{vA+1}, v{o+2}, v{o+3}')
    a(f'v_lshlrev_b32 v{o}, 16, v{vA}\nv_and_b32 v{o+1}, 0xffff0000, v{vA}\nv_lshlrev_b32 v{o+2}, 16, v{vA+1}\nv_and_b32 v{o+3}, 0xffff0000, v{vA+1}')
    for i in range(16):
        j,k=i>>2,i&3; d=r+2*(i&1)
        op='v_mul_f32_dpp' if i<2 else 'v_fmac_f32_dpp'
        a(f'{op} v{d}, v{o+k}, v{vWf+2*i} quad_perm:[{j},{j},{j},{j}] row_mask:0xf bank_mask:0xf\n{op} v{d+1}, v{o+k}, v{vWf+2*i+1} quad_perm:[{j},{j},{j},{j}] row_mask:0xf bank_mask:0xf')
    a(f'v_add_f32 v{r}, v{r}, v{r+2}\nv_add_f32 v{r+1}, v{r+1}, v{r+3}')
    a(f'v_mov_b32_dpp v{r+2}, v{r} quad_perm:[1,1,3,3] row_mask:0xf bank_mask:0xf\nv_mov_b32_dpp v{r+3}, v{r+1} quad_perm:[1,1,3,3] row_mask:0xf bank_mask:0xf')
    tag4(r)
    setexec(0x5555555555555555)
    a(f'buffer_store_dwordx4 v[{r}:{r+3}], v{vS3}, s[{dWS}:{dWS+3}], s{sVo} offen sc1')
    stamp(11)
    stamp_out(dWS,[(5,'add',6,0),(6,'umax',6,0),(12,'umax',9,0),(13,'umax',10,0),(14,'umax',11,0)])
    a('s_endpgm')
    a('L_help:')
    if fb:
        a(f's_add_u32 s{sKb}, s{sXi}, s{sXj}\ns_and_b32 s{sKb}, s{sKb}, 7\ns_mul_i32 s{sKb}, s{sKb}, {CST}\ns_add_u32 s{sKb}, s{sKb}, {W_CNT:#x}\ns_and_b32 s{sTmp}, s{sB}, 0xc7\ns_cmp_eq_u32 s{sTmp}, 0\ns_cbranch_scc0 L_nocnt')
        a(f'v_mov_b32 v{vT}, 0\nv_mov_b32 v{vT+1}, s{sT}\ns_mov_b64 exec, 1\nbuffer_store_dwordx2 v[{vT}:{vT+1}], off, s[{dWS}:{dWS+3}], s{sKb} sc1\ns_mov_b64 exec, -1\nL_nocnt:')
    a(f's_cmp_lt_u32 s{sF}, 224\ns_cbranch_scc0 L_noffn')
    a(f's_and_b32 s{sTmp2}, s{sF}, 7\ns_lshl_b32 s{sTmp2}, s{sTmp2}, 7\ns_add_u32 s{sTmp}, s{sTmp2}, {L_XN+1024}\nv_lshl_add_u32 v{t0}, v2, 3, s{sTmp}')
    for j in range(2): a(f'ds_read2_b64 v[{vXf+4*j}:{vXf+4*j+3}], v{t0} offset0:{8*j} offset1:{8*j+4}')
    a(f'v_lshlrev_b32 v{vAd}, 7, v1\nv_lshl_add_u32 v{vAd}, v{vTm}, 3, v{vAd}\nv_bfe_u32 v{vAd+1}, v1, 1, 2\nv_lshl_add_u32 v{vAd}, v{vAd+1}, 5, v{vAd}')
    for j in (1,2,3): a(f'v_xor_b32 v{vAd+j}, {32*j}, v{vAd}')
    stamp(2)
    wait_full(1,vT,vFA)
    a(f's_lshl_b32 s{sTmp}, s{sF}, 13\ns_add_u32 s{sTmp2}, s{sTmp}, 4096')
    for j in range(8): a(f'buffer_load_dwordx4 v[{vWD+4*j}:{vWD+4*j+3}], v{vL16}, s[{dWD}:{dWD+3}], s{sTmp if j<4 else sTmp2} offen offset:{1024*(j&3)} {wpol}')
    vAc=vWf
    def fgemv(mat):
        seq=[(s,j) for s in range(2) for j in range(4)]
        base=(2+2*mat)*SLOT
        def rd(i):
            s,j=seq[i]; b=vB+4*i
            a(f'ds_read_b64_tr_b16 v[{b}:{b+1}], v{vAd+j} offset:{base+4096*s}\nds_read_b64_tr_b16 v[{b+2}:{b+3}], v{vAd+j} offset:{base+4096*s+2048}')
        for i in range(5): rd(i)
        for i in range(8):
            if i+5<8: rd(i+5)
            a(f's_waitcnt lgkmcnt({2*(min(i+5,7)-i)})')
            s,j=seq[i]; b=vB+4*i; d=vAc+16*mat+4*j
            a(f'v_mfma_f32_16x16x32_bf16 v[{d}:{d+3}], v[{b}:{b+3}], v[{vXf+4*s}:{vXf+4*s+3}], '+('0' if s==0 else f'v[{d}:{d+3}]'))
    wait_full(2,vT,vFA); fgemv(0)
    wait_full(4,vT,vFA); stamp(3); fgemv(1)
    a(f'v_mov_b32 v{w0}, {INF:#x}\nds_write_b32 v{vRA}, v{w0}')
    for n in range(1,8):
        setexec(0x0001000100010001<<n)
        for k in range(4): a(f'v_mov_b32 v{vAc+k}, v{vAc+4*n+k}')
    a('s_mov_b64 exec, -1'); tag4(vAc)
    a(f's_lshl_b32 s{sTmp}, s{sF}, 9\ns_add_u32 s{sTmp}, s{sTmp}, {W_F1:#x}\nv_lshlrev_b32 v{vT}, 4, v2\nv_lshl_add_u32 v{vT}, v3, 6, v{vT}')
    setexec(0x00ff00ff00ff00ff)
    a(f'buffer_store_dwordx4 v[{vAc}:{vAc+3}], v{vT}, s[{dWS}:{dWS+3}], s{sTmp} offen sc1\ns_mov_b64 exec, -1')
    stamp(4)
    a(f's_and_b32 s{sTmp}, s{sF}, 0xf8\ns_lshl_b32 s{sTmp}, s{sTmp}, 9\ns_and_b32 s{sTmp2}, s{sF}, 7\ns_lshl_b32 s{sTmp2}, s{sTmp2}, 5\ns_add_u32 s{sTmp}, s{sTmp}, s{sTmp2}\ns_add_u32 s{sKo}, s{sTmp}, {W_F1:#x}')
    a(f'v_bfe_u32 v{vT+2}, v0, 1, 4\nv_lshlrev_b32 v{vT+2}, 8, v{vT+2}\nv_and_b32 v{vT+3}, 1, v0\nv_lshl_add_u32 v{vT+2}, v{vT+3}, 4, v{vT+2}')
    if f1wait: wait_full(f1wait,vT,vFA)
    gu=vK
    a('L_f1poll:')
    a(f'buffer_load_dwordx4 v[{gu}:{gu+3}], v{vT+2}, s[{dWS}:{dWS+3}], s{sKo} offen sc1')
    timeout()
    a('s_waitcnt vmcnt(0)')
    chk(vT,[gu],[],None)
    a('s_cbranch_vccnz L_f1poll')
    allred('v_add_f32',[gu,gu+1,gu+2,gu+3],[vA,vA+1,vA+2,vA+3],lo=(4,8),hi=(16,))
    for k in range(4): bfr(gu+k,gu+k)
    k1=-2*0.7978845608028654*1.4426950408889634
    hh=gu+4; up=gu+8
    for k in range(4): a(f'v_mov_b32_dpp v{up+k}, v{gu+k} quad_perm:[2,3,2,3] row_mask:0xf bank_mask:0xf')
    for k in range(4): a(f'v_mul_f32 v{hh+k}, v{gu+k}, v{gu+k}')
    for k in range(4): a(f'v_mul_f32 v{hh+k}, {f2u(0.044715):#x}, v{hh+k}')
    for k in range(4): a(f'v_fma_f32 v{hh+k}, v{hh+k}, v{gu+k}, v{gu+k}')
    for k in range(4): a(f'v_mul_f32 v{hh+k}, {f2u(k1):#x}, v{hh+k}')
    for k in range(4): a(f'v_exp_f32 v{hh+k}, v{hh+k}')
    for k in range(4): a(f'v_add_f32 v{hh+k}, 1.0, v{hh+k}')
    for k in range(4): a(f'v_rcp_f32 v{hh+k}, v{hh+k}')
    for k in range(4): a(f'v_mul_f32 v{hh+k}, v{gu+k}, v{hh+k}')
    for k in range(4): bfr(hh+k,hh+k)
    for k in range(4): a(f'v_mul_f32 v{hh+k}, v{hh+k}, v{up+k}')
    for k in range(4): bfr(hh+k,hh+k)
    acc=vV; un=vV+8
    for k in range(8): a(f'v_mov_b32 v{acc+k}, 0')
    for j in range(8):
        for k in range(4): a(f'v_lshlrev_b32 v{un+2*k}, 16, v{vWD+4*j+k}\nv_and_b32 v{un+2*k+1}, 0xffff0000, v{vWD+4*j+k}')
        for k in range(8): a(f'v_fmac_f32_dpp v{acc+k}, v{hh+(j&3)}, v{un+k} quad_perm:[{j>>2},{j>>2},{j>>2},{j>>2}] row_mask:0xf bank_mask:0xf')
    tag4(acc); tag4(acc+4)
    a(f's_lshl_b32 s{sTmp}, s{sF}, 7\ns_add_u32 s{sTmp}, s{sTmp}, {W_B3:#x}\ns_add_u32 s{sTmp2}, s{sTmp}, {8*28672}')
    a(f'v_lshrrev_b32 v{vT}, 3, v0\nv_mul_u32_u24 v{vT}, 28672, v{vT}\nv_and_b32 v{vT+1}, 7, v0\nv_lshl_add_u32 v{vT}, v{vT+1}, 4, v{vT}')
    a(f'buffer_store_dwordx4 v[{acc}:{acc+3}], v{vT}, s[{dWS}:{dWS+3}], s{sTmp} offen sc1\nbuffer_store_dwordx4 v[{acc+4}:{acc+7}], v{vT}, s[{dWS}:{dWS+3}], s{sTmp2} offen sc1')
    stamp(5)
    a('s_branch L_ffndone')
    a(f'L_noffn:\nv_mov_b32 v{w0}, {INF:#x}\nds_write_b32 v{vRA}, v{w0}\nL_ffndone:')
    vb=vK; gg=vQ; v128=vAd
    a(f'v_lshlrev_b32 v{v128}, 7, v0')
    mlast=min(mlast,2*S)
    nms=(mlast-m0)//mk+1 if mlast>=m0 else 0
    tk=vO
    def control(l,idx_end):
        a(f'{l}:')
        wait_full(f's{sJ}',vT,vFA)
        a(f's_mov_b64 exec, 1\nv_mov_b32 v{tk}, 1\nbuffer_atomic_add v{tk}, off, s[{dWS}:{dWS+3}], s{sKb} sc0\ns_mov_b64 exec, -1\ns_add_u32 s{sJ}, s{sJ}, {mk}')
        a(f's_waitcnt vmcnt(0)\nv_readfirstlane_b32 s{sTmp}, v{tk}\ns_sub_i32 s{sTmp}, s{sTmp}, s{sMin}\ns_add_u32 s{sMin}, s{sMin}, 32')
        a(f's_cmp_lt_i32 s{sTmp}, {tlo}\ns_cselect_b32 s{sTmp2}, 1, 0\ns_cmp_gt_i32 s{sTmp}, {thi}\ns_cselect_b32 s{sTmp2}, 2, s{sTmp2}\nv_mov_b32 v{vT}, s{sTmp2}\nds_write_b32 v{vFA}, v{vT} offset:12')
        a(f's_cmp_lt_u32 s{sMin}, {32*idx_end}\ns_cbranch_scc1 {l}')
    if fb and nms:
        a(f's_mov_b32 s{sJ}, {m0}\ns_mov_b32 s{sMin}, 0\ns_mov_b64 exec, 1')
        a(f'L_cnt:\nbuffer_load_dwordx2 v[{vT}:{vT+1}], off, s[{dWS}:{dWS+3}], s{sKb} sc1'); timeout()
        a(f's_waitcnt vmcnt(0)\nv_readfirstlane_b32 s{sTmp}, v{vT+1}\ns_cmp_eq_u32 s{sTmp}, s{sT}\ns_cbranch_scc0 L_cnt\ns_mov_b64 exec, -1')
        stamp(7)
        control('L_ctl1',min(b3idx,nms))
    else: wait_full(min(40,2*S-4),vT,vFA)
    a(f's_cmp_lt_u32 s{sXi}, 16\ns_cbranch_scc0 L_nob3')
    a(f's_and_b32 s{sTmp}, s{sCg}, 1\ns_lshl_b32 s{sTmp}, s{sTmp}, 3\ns_lshr_b32 s{sTmp2}, s{sCg}, 4\ns_add_u32 s{sTmp}, s{sTmp}, s{sTmp2}\ns_mul_i32 s{sTmp}, s{sTmp}, 28672')
    a(f's_bfe_u32 s{sTmp2}, s{sCg}, 0x30001\ns_lshl_b32 s{sTmp2}, s{sTmp2}, 4\ns_add_u32 s{sTmp}, s{sTmp}, s{sTmp2}\ns_add_u32 s{sKo}, s{sTmp}, {W_B3:#x}')
    for k in range(4): a(f'v_mov_b32 v{vb+12+k}, 0')
    tag4(vb+12)
    def gather4(l,last32):
        a(f'{l}:')
        for i in range(4):
            a(f's_add_u32 s{sTmp}, s{sKo}, {8192*i}')
            if i==3 and last32: a('s_mov_b32 exec_hi, 0')
            a(f'buffer_load_dwordx4 v[{vb+4*i}:{vb+4*i+3}], v{v128}, s[{dWS}:{dWS+3}], s{sTmp} offen sc1')
        if last32: a('s_mov_b64 exec, -1')
        timeout()
        a('s_waitcnt vmcnt(0)')
        chk(vT,[vb,vb+4,vb+8,vb+12],[],None)
        a(f's_cbranch_vccnz {l}')
    def sum4(dst):
        for k in range(4): a(f'v_add_f32 v{dst+k}, v{vb+k}, v{vb+4+k}\nv_add_f32 v{vb+8+k}, v{vb+8+k}, v{vb+12+k}')
        for k in range(4): a(f'v_add_f32 v{dst+k}, v{dst+k}, v{vb+8+k}')
        allred('v_add_f32',[dst,dst+1,dst+2,dst+3],[vA,vA+1,vA+2,vA+3])
    gather4('L_b3poll',True)
    sum4(gg)
    for k in range(4): bfr(gg+k,gg+k)
    for k in range(4): a(f'v_mul_f32 v{vA+k}, s{sL2e}, v{gg+k}')
    for k in range(4): a(f'v_exp_f32 v{vA+k}, -v{vA+k}')
    for k in range(4): a(f'v_add_f32 v{vA+k}, 1.0, v{vA+k}')
    for k in range(4): a(f'v_rcp_f32 v{vA+k}, v{vA+k}')
    for k in range(4): a(f'v_mul_f32 v{gg+k}, v{gg+k}, v{vA+k}')
    for k in range(4): bfr(gg+k,gg+k)
    stamp(6)
    a('L_nob3:')
    if fb and nms>b3idx: control('L_ctl2',nms)
    stamp(8)
    a(f's_lshr_b32 s{sTmp}, s{sCg}, 3\ns_lshl_b32 s{sTmp}, s{sTmp}, 15\ns_and_b32 s{sTmp2}, s{sCg}, 7\ns_lshl_b32 s{sTmp2}, s{sTmp2}, 4\ns_add_u32 s{sTmp}, s{sTmp}, s{sTmp2}\ns_add_u32 s{sKo}, s{sTmp}, {W_S3:#x}')
    a(f's_barrier\ns_cmp_lt_u32 s{sXi}, 16\ns_cbranch_scc0 L_hfin')
    if s3db:
        vb2=vV
        def rnd(v):
            for i in range(4): a(f'buffer_load_dwordx4 v[{v+4*i}:{v+4*i+3}], v{v128}, s[{dWS}:{dWS+3}], s{sKo+0 if i==0 else sSlot+i-1} offen sc1')
        for i in range(1,4): a(f's_add_u32 s{sSlot+i-1}, s{sKo}, {8192*i}')
        rnd(vb)
        a('L_s3poll:'); rnd(vb2); timeout()
        a('s_waitcnt vmcnt(4)'); chk(vT,[vb,vb+4,vb+8,vb+12],[],None); a('s_cbranch_vccz L_s3ok')
        rnd(vb)
        a('s_waitcnt vmcnt(4)'); chk(vT,[vb2,vb2+4,vb2+8,vb2+12],[],None); a('s_cbranch_vccnz L_s3poll')
        a('s_waitcnt vmcnt(0)\nL_s3ok:')
    else: gather4('L_s3poll',False)
    stamp(12)
    ss=vS
    sum4(ss)
    def rnd4(v):
        a(f'v_cvt_pk_bf16_f32 v{vA}, v{v}, v{v+1}\nv_cvt_pk_bf16_f32 v{vA+1}, v{v+2}, v{v+3}')
    def exp4(v):
        a(f'v_lshlrev_b32 v{v}, 16, v{vA}\nv_and_b32 v{v+1}, 0xffff0000, v{vA}\nv_lshlrev_b32 v{v+2}, 16, v{vA+1}\nv_and_b32 v{v+3}, 0xffff0000, v{vA+1}')
    rnd4(ss); exp4(ss)
    for k in range(4): a(f'v_mul_f32 v{ss+k}, v{ss+k}, v{gg+k}')
    rnd4(ss); exp4(ss)
    for k in range(4):
        a((f's_lshl_b32 s{sTmp}, s{sXf+k//2}, 16' if k%2==0 else f's_and_b32 s{sTmp}, s{sXf+k//2}, 0xffff0000')+f'\nv_add_f32 v{ss+k}, s{sTmp}, v{ss+k}')
    rnd4(ss)
    a(f's_lshl_b32 s{sTmp}, s{sCg}, 3\ns_mov_b64 exec, 1\nbuffer_store_dwordx2 v[{vA}:{vA+1}], off, s[{dOUT}:{dOUT+3}], s{sTmp}')
    a(f's_cmp_eq_u32 s{sCg}, 0\ns_cbranch_scc0 L_hfin\nv_mov_b32 v{vT+1}, s{sT}\nbuffer_store_dword v{vT+1}, off, s[{dWS}:{dWS+3}], 0')
    a('L_hfin:')
    stamp(13)
    stamp_out(dWS,[(15,'umax',13,0)])
    a('L_end:\ns_endpgm')
    n=a.fix()
    out=HDR+f'; @launch grid=(256,1,1) block=({64*NWAVE},1,1) lds=163840\n'
    out+=f'.amdgcn_target "amdgcn-amd-amdhsa--gfx950"\n.text\n.globl {NAME}\n.p2align 8\n.type {NAME},@function\n'
    out+=a.text()
    out+=f'''.section .rodata,"a"
.p2align 6
.amdhsa_kernel {NAME}
  .amdhsa_next_free_vgpr 204
  .amdhsa_next_free_sgpr 96
  .amdhsa_accum_offset 204
  .amdhsa_group_segment_fixed_size 0
  .amdhsa_kernarg_size 96
  .amdhsa_user_sgpr_count 2
  .amdhsa_user_sgpr_kernarg_segment_ptr 1
  .amdhsa_system_sgpr_workgroup_id_x 1
  .amdhsa_float_denorm_mode_32 3
.end_amdhsa_kernel
'''
    return out
if __name__=='__main__':
    kw=eval('dict(%s)'%(sys.argv[1] if len(sys.argv)>1 else ''))
    sys.stdout.write(gen(**kw))
```

```python
import sys, struct
from asmlib import Asm
NAME='recurrent_scan__gqa_block_cached__geglu_ffn__decode_kernel'
HDR=open('recurrent_scan__gqa_block_cached__geglu_ffn__decode.s.ref').read().split('; Override launch')[0]
def f2u(x): return struct.unpack('<I',struct.pack('<f',x))[0]
LOG2E=f2u(1.4426950408889634); SCALE=f2u(128**-0.5)
R=18; SLOT=8192; RING=R*SLOT
MISC=RING
L_FULL=MISC; L_QRDY=MISC+8; L_MODE=MISC+12; L_REL=MISC+16; L_SM=MISC+128; L_X=MISC+1024; L_XN=MISC+2048; L_Q=MISC+4096; L_SC=MISC+8192
W_CNT=0x1000; W_QG=0x10000; W_QX=0x18000; W_F1=0x20000; W_ML=0x40000; W_P2=0x280000; W_S3=0x100000; W_B3=0x180000; W_ST=0x200000; WS_SZ=0x380000
NWAVE=6; INF=0x7fffffff; CST=0x180; CST2=0x1100
def gen(mapping='hx', N=20, S=64, diag=0, pol='nt', wpol='nt', local=1, f1wait=12, N0=None, fb=1, dN=4, m0=20, mk=6, mlast=124, tlo=10, thi=21, b3idx=6, prew=0, s3db=0, rot=None, vpol=None, pad=0, th=1.5, tau=0., stp='sc1', xld='sc1', xfull=0, xev=1, qst='sc1', skip='', xrd='all', xwo=None, xc=5., xg=1, keep=(13,)):
    a=Asm()
    N0=N0 or N
    if vpol is None: vpol=pol
    W=N0-4
    modes=[N,N-dN,N+dN] if fb else [N]
    assert W%4==0 and S>=8
    sB,sW=2,3
    pX,pK,pV,pWQ,pWO,pWG,pWU,pWD,pOUT,pWS=4,6,8,10,12,16,18,20,22,26
    sH,sC,sXi,sF,sT,sTO=48,49,50,51,52,53
    sFull,sG,sSlot,sSlotV,sMin,sKo,sVo,sTmp,sTmp2,sCnt,sGmR=54,55,56,57,58,59,60,61,62,63,64
    sScale,sL2e,sT1,sGend,sCw,sXj=65,66,67,68,69,74
    sSt=70
    sSt0=72
    sXf=76
    sLoc,sKb,sJ,sCg,sXcc,sTmp3=78,79,80,81,82,83
    vSt=159
    uid=[0]
    def lab(p): uid[0]+=1; return f'L_{p}_{uid[0]}'
    def srd(d,p,size):
        a(f's_mov_b32 s{d}, s{p}\ns_mov_b32 s{d+1}, s{p+1}\ns_mov_b32 s{d+2}, {size:#x}\ns_mov_b32 s{d+3}, 0x20000')
    role=['L']
    def stamp(k):
        if diag==3 and not (role[0]=='L' or k in keep): return
        if diag: a(f's_memrealtime s[{sSt}:{sSt+1}]\ns_waitcnt lgkmcnt(0)\nv_writelane_b32 v{vSt}, s{sSt}, {k}')
    def dbg_out(items):
        a('s_mov_b32 s92, s24\ns_mov_b32 s93, s25\ns_mov_b32 s94, 256\ns_mov_b32 s95, 0x20000\ns_mov_b64 exec, 1')
        for wd,op,ln,inv in items:
            a(f'v_readlane_b32 s{sTmp}, v{vSt}, {ln}')
            if inv: a(f's_not_b32 s{sTmp}, s{sTmp}')
            a(f'v_mov_b32 v1, s{sTmp}\nbuffer_atomic_{op} v1, off, s[92:95], 0 offset:{4*wd}\ns_nop 1')
    def stamp_out(srd_ws,items=None):
        if diag==2:
            a(f'v_writelane_b32 v{vSt}, s{sSt0}, 0'); dbg_out(items)
        elif diag:
            a(f'v_writelane_b32 v{vSt}, s{sSt0}, 0')
            a(f's_mul_i32 s{sTmp}, s{sB}, {NWAVE}\ns_add_u32 s{sTmp}, s{sTmp}, s{sW}\ns_lshl_b32 s{sTmp}, s{sTmp}, 8\ns_add_u32 s{sTmp}, s{sTmp}, {W_ST:#x}')
            a(f's_mov_b64 exec, -1\nv_lshlrev_b32 v1, 2, v0\nbuffer_store_dword v{vSt}, v1, s[{srd_ws}:{srd_ws+3}], s{sTmp} offen sc1')
    def setexec(m):
        lo,hi=m&0xffffffff,m>>32
        if hi==0 and lo<0x80000000: a(f's_mov_b64 exec, {lo:#x}')
        else: a(f's_mov_b32 exec_lo, {lo:#x}\ns_mov_b32 exec_hi, {hi:#x}')
    def timeout():
        a(f's_sub_u32 s{sTO}, s{sTO}, 1\ns_cbranch_scc1 L_end')
    def poll_full(vtmp,vaddr):
        a(f'ds_read_b64 v[{vtmp}:{vtmp+1}], v{vaddr}')
        timeout()
        a(f's_waitcnt lgkmcnt(0)\nv_readfirstlane_b32 s{sFull}, v{vtmp}\nv_readfirstlane_b32 s{sGend}, v{vtmp+1}')
    def wait_full(x, vtmp, vaddr):
        assert vtmp%2==0
        ok=lab('fok'); p=lab('fp')
        a(f's_cmp_gt_i32 s{sFull}, {x}\ns_cbranch_scc1 {ok}\n{p}:')
        poll_full(vtmp,vaddr)
        a(f's_cmp_gt_i32 s{sFull}, {x}\ns_cbranch_scc0 {p}\n{ok}:')
    def bfr(dst,src):
        a(f'v_cvt_pk_bf16_f32 v{dst}, v{src}, v{src}\nv_and_b32 v{dst}, 0xffff0000, v{dst}')
    def allred(op, vs, ts, lo=(8,4,2,1), hi=(16,32)):
        for r in lo:
            for v in vs: a(f'{op}_dpp v{v}, v{v}, v{v} row_ror:{r} row_mask:0xf bank_mask:0xf')
        for sw in hi:
            for v,t in zip(vs,ts): a(f'v_mov_b32 v{t}, v{v}')
            for v,t in zip(vs,ts): a(f'v_permlane{sw}_swap_b32 v{v}, v{t}')
            for v,t in zip(vs,ts): a(f'{op} v{v}, v{v}, v{t}')
    vMask=157
    def tag4(v):
        for k in range(4): a(f'v_bfi_b32 v{v+k}, v{vMask}, s{sT if k%2==0 else sT1}, v{v+k}')
    def chk(acc,regs_mt,regs_full,acc2):
        first=True
        for v in regs_mt:
            for k in range(4):
                s=sT if k%2==0 else sT1
                a(f'v_xor_b32 v{acc}, s{s}, v{v+k}' if first else f'v_bitop3_b32 v{acc}, v{v+k}, s{s}, v{acc} bitop3:0xbe'); first=False
        if regs_full:
            first=True
            for v in regs_full:
                a(f'v_xor_b32 v{acc2}, s{sT}, v{v}' if first else f'v_bitop3_b32 v{acc2}, v{v}, s{sT}, v{acc2} bitop3:0xbe'); first=False
            a(f'v_and_or_b32 v{acc}, v{acc}, v{vMask}, v{acc2}')
        else: a(f'v_and_b32 v{acc}, v{vMask}, v{acc}')
        a(f'v_cmp_ne_u32 vcc, 0, v{acc}')

    a(f'{NAME}:')
    if diag or pad: a(f's_memrealtime s[{sSt0}:{sSt0+1}]')
    a(f's_cmp_ge_u32 s{sB}, 256\ns_cbranch_scc1 L_end')
    a('s_load_dwordx16 s[4:19], s[0:1], 0\ns_load_dwordx8 s[20:27], s[0:1], 64')
    if diag: a(f'v_mov_b32 v{vSt}, 0')
    a(f'v_lshrrev_b32 v1, 6, v0\nv_and_b32 v0, 63, v0\nv_readfirstlane_b32 s{sW}, v1')
    a(f's_and_b32 s{sXj}, s{sB}, 7\ns_lshr_b32 s{sXi}, s{sB}, 3')
    a(f's_mul_i32 s{sF}, s{sXj}, 28\ns_add_u32 s{sF}, s{sF}, s{sXi}')
    a(f's_cmp_lt_u32 s{sXi}, 28\ns_cselect_b32 s{sF}, s{sF}, 0x100000')
    if mapping=='hx': a(f's_mov_b32 s{sH}, s{sXj}\ns_mov_b32 s{sC}, s{sXi}')
    else: a(f's_lshr_b32 s{sH}, s{sB}, 5\ns_and_b32 s{sC}, s{sB}, 31')
    a(f's_mov_b32 s{sTO}, 200000\ns_mov_b32 s{sFull}, -1\ns_mov_b32 s{sGend}, {INF:#x}')
    a(f'v_lshrrev_b32 v2, 4, v0\nv_and_b32 v3, 15, v0')
    a(f's_cmp_lg_u32 s{sW}, 0\ns_cbranch_scc1 L_cons')
    vK0,vV0,vWQ,vFF,vFA,vRA,vF,vX,vTQ=4,8,10,11,12,13,14,20,21
    a('s_setprio 3')
    a(f'v_lshlrev_b32 v{vX}, 4, v0')
    a(f'v_lshrrev_b32 v{vWQ}, 2, v0\nv_lshlrev_b32 v{vWQ}, 13, v{vWQ}\nv_lshlrev_b32 v1, 1, v2\nv_xor_b32 v1, v1, v0\nv_and_b32 v1, 3, v1\nv_lshl_add_u32 v{vWQ}, v1, 4, v{vWQ}')
    a(f's_and_b32 s{sTmp}, s{sC}, 7\ns_lshl_b32 s{sTmp}, s{sTmp}, 7\ns_bfe_u32 s{sTmp2}, s{sC}, 0x10003\ns_lshl_b32 s{sTmp2}, s{sTmp2}, 6\ns_add_u32 s{sTmp}, s{sTmp}, s{sTmp2}')
    a(f's_lshl_b32 s{sTmp2}, s{sH}, 10\ns_add_u32 s{sTmp}, s{sTmp}, s{sTmp2}\ns_lshr_b32 s{sTmp2}, s{sC}, 4\ns_lshl_b32 s{sTmp2}, s{sTmp2}, 21\ns_add_u32 s{sVo}, s{sTmp}, s{sTmp2}')
    a(f'v_xor_b32 v{vK0}, v2, v3\nv_lshlrev_b32 v{vK0}, 4, v{vK0}\nv_lshl_add_u32 v{vK0}, v2, 8, v{vK0}')
    for k in (1,2,3): a(f'v_xor_b32 v{vK0+k}, {64*k}, v{vK0}')
    a(f'v_lshlrev_b32 v{vV0}, 1, v2\nv_xor_b32 v{vV0}, v{vV0}, v3\nv_lshlrev_b32 v{vV0}, 4, v{vV0}\nv_lshl_add_u32 v{vV0}, v2, 8, v{vV0}\nv_xor_b32 v{vV0+1}, 128, v{vV0}')
    a(f'v_lshrrev_b32 v{vFF}, 3, v0\nv_mul_u32_u24 v{vFF}, 3584, v{vFF}\nv_lshlrev_b32 v1, 1, v2\nv_xor_b32 v1, v1, v0\nv_and_b32 v1, 7, v1\nv_lshl_add_u32 v{vFF}, v1, 4, v{vFF}')
    a(f's_and_b32 s{sTmp}, s{sF}, 7\ns_mul_i32 s{sTmp}, s{sTmp}, {64*3584}\ns_lshr_b32 s{sCnt}, s{sF}, 3\ns_lshl_b32 s{sCnt}, s{sCnt}, 7\ns_add_u32 s{sCnt}, s{sCnt}, s{sTmp}')
    a(f'v_mov_b32 v{vFA}, {L_FULL}\nv_mov_b32 v{vRA}, {L_REL}\nv_mov_b32 v{vF}, -1\nv_mov_b32 v{vF+1}, {INF:#x}\nds_write_b64 v{vFA}, v[{vF}:{vF+1}]')
    a(f's_lshl_b32 s{sKb}, s{sH}, 24\ns_lshl_b32 s{sTmp}, s{sC}, 19\ns_add_u32 s{sKo}, s{sKb}, s{sTmp}')
    if rot:
        a(f's_mov_b32 s{sKb}, s{sKo}\ns_mul_i32 s{sTmp}, s{sC}, {rot[0]}\ns_mul_i32 s{sTmp2}, s{sH}, {rot[1]}\ns_add_u32 s{sTmp}, s{sTmp}, s{sTmp2}\ns_and_b32 s{sTmp}, s{sTmp}, 63\ns_lshl_b32 s{sTmp}, s{sTmp}, 13\ns_add_u32 s{sKo}, s{sKo}, s{sTmp}')
    def advk():
        a(f's_mov_b32 s{sVo}, s{sKo}\ns_add_u32 s{sKo}, s{sKo}, 8192')
        if rot: a(f's_and_b32 s{sKo}, s{sKo}, 0x7ffff\ns_or_b32 s{sKo}, s{sKo}, s{sKb}')
    a(f's_mov_b32 m0, {L_X:#x}')
    a('s_waitcnt lgkmcnt(0)')
    dK,dV,dWQ,dWG,dWU,dXl,dWSl=28,32,36,40,44,84,88
    srd(dXl,pX,1024)
    a(f'buffer_load_dwordx4 v{vX}, s[{dXl}:{dXl+3}], 0 offen lds')
    srd(dWQ,pWQ,512*4096*2)
    stamp(10)
    issued=[1]; pub=[-1]
    def pubv(v): a(f'v_mov_b32 v{vF}, {v}\nds_write_b32 v{vFA}, v{vF}')
    def pace():
        if issued[0]>W:
            a(f's_waitcnt vmcnt({W})')
            g=(issued[0]-W-1)//8
            if g>pub[0]:
                pub[0]=g; pubv(g); stamp(11+g)
    def sub(kind, g, sb):
        base=(g%R)*SLOT+4096*sb
        a(f's_mov_b32 m0, {base:#x}')
        for k in range(4):
            n=4*sb+k
            if kind=='K':
                if k==0: a(f's_add_u32 s{sTmp}, s{sKo}, {4096*sb}')
                a(f'buffer_load_dwordx4 v{vK0+k}, s[{dK}:{dK+3}], s{sTmp} offen offset:{1024*k} {pol} lds')
            elif kind in('WQ0','WQ1'):
                n+=8*(kind=='WQ1')
                a(f's_add_u32 s{sTmp}, s{sVo}, {16*8192*n-1024*k}')
                a(f'buffer_load_dwordx4 v{vWQ}, s[{dWQ}:{dWQ+3}], s{sTmp} offen offset:{1024*k} {wpol} lds')
            elif kind in('G','U'):
                d=dWG if kind=='G' else dWU
                a(f's_add_u32 s{sTmp}, s{sCnt}, {8*3584*n-1024*k}')
                a(f'buffer_load_dwordx4 v{vFF}, s[{d}:{d+3}], s{sTmp} offen offset:{1024*k} {wpol} lds')
        issued[0]+=4
    barrier_done=False
    for g,kind in enumerate(['WQ0','WQ1','G','K','U']):
        if kind=='G': srd(dWG,pWG,512*1792*2); srd(dK,pK,1<<27); srd(dWU,pWU,512*1792*2); srd(dV,pV,1<<27)
        for sb in range(2):
            if issued[0]>W and not barrier_done:
                a('s_barrier'); barrier_done=True
            pace(); sub(kind,g,sb)
    if not barrier_done: a('s_barrier')
    if pub[0]<0 or issued[0]<=W+8:
        for left,g in ((40,0),(32,1),(24,2)):
            if g>pub[0]: a(f's_waitcnt vmcnt({left})'); pubv(g); stamp(11+g); pub[0]=g
    if diag: srd(dWSl,pWS,WS_SZ)
    advk()
    a(f's_mov_b32 s{sG}, 5\ns_mov_b32 s{sSlot}, {5*SLOT}\ns_mov_b32 s{sMin}, 0\ns_mov_b32 s{sJ}, 1\ns_mov_b32 s{sFull}, {pub[0]}\ns_mov_b32 s{sCg}, 0')
    def relcheck():
        ok=lab('rok'); p=lab('rp')
        a(f's_sub_i32 s{sGmR}, s{sG}, {R}\ns_cmp_gt_i32 s{sMin}, s{sGmR}\ns_cbranch_scc1 {ok}')
        a(f'{p}:\nds_read_b128 v[16:19], v{vRA}\nds_read_b32 v15, v{vRA} offset:16'); timeout()
        a(f's_waitcnt lgkmcnt(0)\nv_min3_i32 v16, v16, v17, v18\nv_min3_i32 v16, v16, v19, v15\nv_readfirstlane_b32 s{sMin}, v16\ns_cmp_gt_i32 s{sMin}, s{sGmR}\ns_cbranch_scc0 {p}\n{ok}:')
    def adv():
        a(f's_add_u32 s{sG}, s{sG}, 1\ns_add_u32 s{sSlot}, s{sSlot}, {SLOT}\ns_cmp_eq_u32 s{sSlot}, {RING}\ns_cselect_b32 s{sSlot}, 0, s{sSlot}')
    def batch(kind,sb):
        so=sKo if kind=='K' else sVo
        if sb==0: a(f's_mov_b32 m0, s{sSlot}')
        else: a(f's_add_u32 m0, s{sSlot}, 4096')
        a(f's_add_u32 s{sTmp}, s{so}, {4096*sb}')
        for k in range(4):
            if kind=='K': a(f'buffer_load_dwordx4 v{vK0+k}, s[{dK}:{dK+3}], s{sTmp} offen offset:{1024*k} {pol} lds')
            else: a(f'buffer_load_dwordx4 v{vV0+(k&1)}, s[{dV}:{dV+3}], s{sTmp} offen offset:{1024*k} {vpol} lds')
    def pubrel(d):
        a((f's_sub_u32 s{sTmp}, s{sG}, {-d}' if d<0 else f's_add_u32 s{sTmp}, s{sG}, {d}')+f'\ns_max_i32 s{sFull}, s{sFull}, s{sTmp}\nv_mov_b32 v{vF}, s{sFull}\nds_write_b32 v{vFA}, v{vF}')
    def dyn_group(kind,W,mid=None):
        relcheck()
        for sb in range(2):
            a(f's_waitcnt vmcnt({W})')
            if (4*sb-W)%8==0: pubrel(-(W-4*sb)//8)
            batch(kind,sb)
        if mid: mid()
        adv()
    def lstamp():
        if diag:
            l=lab('nost')
            a(f's_and_b32 s{sTmp}, s{sJ}, 7\ns_cmp_eq_u32 s{sTmp}, 0\ns_cbranch_scc0 {l}\ns_lshr_b32 s{sTmp}, s{sJ}, 3\ns_add_u32 s{sTmp}, s{sTmp}, 2\ns_min_u32 s{sTmp}, s{sTmp}, 9\ns_mov_b32 m0, s{sTmp}')
            a(f's_memrealtime s[{sSt}:{sSt+1}]\ns_waitcnt lgkmcnt(0)\nv_writelane_b32 v{vSt}, s{sSt}, m0\n{l}:')
    def moderead(): a(f'ds_read_b32 v{vTQ}, v{vFA} offset:12')
    if fb: moderead()
    a('L_ltop:')
    if fb:
        a(f's_waitcnt lgkmcnt(0)\nv_readfirstlane_b32 s{sTmp}, v{vTQ}')
        for mi in range(1,len(modes)): a(f's_cmp_eq_u32 s{sTmp}, {mi}\ns_cbranch_scc1 L_lloop{mi}')
    for mi,Np in enumerate(modes):
        W=Np-4; assert W%4==0 and W<=59
        a(f'L_lloop{mi}:')
        if diag: a(f's_add_u32 s{sCg}, s{sCg}, {1<<(8*mi)}')
        dyn_group('K',W); dyn_group('V',W,moderead if fb else None)
        lstamp()
        advk(); a(f's_add_u32 s{sJ}, s{sJ}, 1')
        a(f's_cmp_lt_u32 s{sJ}, {S}\ns_cbranch_scc1 L_ltop')
        if mi<len(modes)-1: a('s_branch L_lend')
    W=max(modes)-4
    a('L_lend:')
    a(f'v_mov_b32 v{vF}, s{sG}\nds_write_b32 v{vFA}, v{vF} offset:4')
    adv(); relcheck()
    def landed(left_out, tot):
        n=tot-left_out
        if n>=8: return 1
        if n>=0: return 0
        return -1+(n//8)+ (0)
    last=None
    for sb in range(2):
        a(f's_waitcnt vmcnt({W})')
        if (4*sb-W)%8==0: last=landed(W,4*sb); pubrel(last)
        batch('V',sb)
    stamp(1)
    for left in range((W//8)*8,-1,-8):
        d=landed(left,8)
        if d==last: continue
        a(f's_waitcnt vmcnt({left})'); pubrel(d); last=d
    stamp(2)
    if diag: a(f'v_writelane_b32 v{vSt}, s{sJ}, 16\nv_writelane_b32 v{vSt}, s{sCg}, 17')
    stamp_out(dWSl,[(0,'umax',0,1),(1,'umax',0,0),(2,'umax',11,0),(3,'add',13,0),(4,'umax',13,0),(7,'add',3,0),(8,'add',6,0),(9,'umax',2,1),(10,'add',2,0),(11,'umax',2,0)])
    a('s_endpgm')
    a('L_cons:'); role[0]='C'
    vFA,vRA,vKp,vVp,vM,vMb,vL,vTm=4,5,6,7,8,9,10,11
    vQ=12; vO=28; vK=60; vV=92; vS=124; vA=132; vP=140; vT=144; vAd=148; vL16=156; vWf=160
    dWS,dWD,dWO,dOUT=28,36,40,44
    a(f's_sub_u32 s{sCw}, s{sW}, 1')
    a(f'v_mov_b32 v{vFA}, {L_FULL}\ns_lshl_b32 s{sTmp}, s{sCw}, 2\ns_add_u32 s{sTmp}, s{sTmp}, {L_REL}\nv_mov_b32 v{vRA}, s{sTmp}')
    a(f's_lshl_b32 s{sG}, s{sCw}, 1\ns_add_u32 s{sG}, s{sG}, 3')
    a(f's_cmp_eq_u32 s{sCw}, 0\ns_cselect_b32 s{sTmp}, 0, s{sG}\ns_cmp_eq_u32 s{sCw}, 4\ns_cselect_b32 s{sTmp}, 2, s{sTmp}\nv_mov_b32 v1, s{sTmp}\nds_write_b32 v{vRA}, v1')
    a(f'v_mov_b32 v1, 0\nds_write_b32 v{vFA}, v1 offset:8\nds_write_b32 v{vFA}, v1 offset:12')
    a(f's_mov_b32 s{sScale}, {SCALE:#x}\ns_mov_b32 s{sL2e}, {LOG2E:#x}\nv_mov_b32 v{vMask}, 0xff')
    a(f'v_xor_b32 v{vKp}, v2, v3\nv_lshlrev_b32 v{vKp}, 4, v{vKp}\nv_lshl_add_u32 v{vKp}, v3, 8, v{vKp}')
    a(f'v_lshrrev_b32 v1, 2, v3\nv_lshl_add_u32 v1, v2, 2, v1\nv_and_b32 v{vVp}, 7, v1\nv_lshlrev_b32 v{vVp}, 5, v{vVp}\nv_lshl_add_u32 v{vVp}, v1, 8, v{vVp}\nv_and_b32 v{vTm}, 3, v0\nv_lshl_add_u32 v{vVp}, v{vTm}, 3, v{vVp}')
    a(f'v_lshlrev_b32 v{vL16}, 4, v0')
    a(f's_lshl_b32 s{sCg}, s{sXj}, 4\ns_add_u32 s{sCg}, s{sCg}, s{sXi}')
    a('s_waitcnt lgkmcnt(0)')
    a(f's_load_dword s{sT}, s[{pWS}:{pWS+1}], 0')
    a(f's_and_b32 s{sTmp}, s{sCg}, 127\ns_lshl_b32 s{sTmp}, s{sTmp}, 3\ns_load_dwordx2 s[{sXf}:{sXf+1}], s[{pX}:{pX+1}], s{sTmp}')
    srd(dWS,pWS,WS_SZ); srd(dWD,pWD,1792*512*2); srd(dWO,pWO,4096*512*2); srd(dOUT,pOUT,1024)
    a('s_barrier')
    vWO=vK
    def wo_loads():
        a(f's_lshl_b32 s{sTmp}, s{sH}, 5\ns_add_u32 s{sTmp}, s{sTmp}, s{sC}\ns_lshl_b32 s{sTmp}, s{sTmp}, 14\ns_lshl_b32 s{sTmp2}, s{sCw}, 8\ns_add_u32 s{sTmp}, s{sTmp}, s{sTmp2}\nv_lshlrev_b32 v{vT}, 2, v0')
        for i in range(16):
            a(f'buffer_load_dword v{vWf+2*i}, v{vT}, s[{dWO}:{dWO+3}], s{sTmp} offen offset:{1024*(i&3)} {wpol}')
            if i&3==3 and i<15: a(f's_add_u32 s{sTmp}, s{sTmp}, 4096')
    def wo_unpack():
        for i in range(16): a(f'v_and_b32 v{vWf+2*i+1}, 0xffff0000, v{vWf+2*i}\nv_lshlrev_b32 v{vWf+2*i}, 16, v{vWf+2*i}')
    a(f's_and_b32 s{sTmp}, s{sCw}, 3\ns_cmp_eq_u32 s{sTmp}, 0\ns_cbranch_scc1 L_ln')
    wait_full(1,vT,vFA)
    wo_loads()
    a(f's_waitcnt vmcnt(0)'); wo_unpack()
    a(f's_add_u32 s{sT}, s{sT}, 1\ns_lshr_b32 s{sT1}, s{sT}, 8')
    w0,w1,w2,w3=vQ+8,vQ+9,vQ+10,vQ+11
    a('L_waitq:')
    a(f'ds_read_b32 v{w0}, v{vFA} offset:8'); timeout()
    a(f's_waitcnt lgkmcnt(0)\nv_readfirstlane_b32 s{sLoc}, v{w0}\ns_cmp_eq_u32 s{sLoc}, 0\ns_cbranch_scc1 L_waitq\ns_branch L_qready')
    a('L_ln:')
    vx=vK; vxf=vK+4; vWD=vO; vXf=vV
    wait_full(-1,vT,vFA)
    a(f'v_add_u32 v{vT}, {L_X}, v{vL16}\nds_read_b128 v[{vx}:{vx+3}], v{vT}')
    a(f's_add_u32 s{sT}, s{sT}, 1\ns_lshr_b32 s{sT1}, s{sT}, 8')
    stamp(1)
    a('s_waitcnt lgkmcnt(0)')
    for j in range(4): a(f'v_lshlrev_b32 v{vxf+2*j}, 16, v{vx+j}\nv_and_b32 v{vxf+2*j+1}, 0xffff0000, v{vx+j}')
    t0=vxf+8; t1=t0+1; t2=t0+2; vd=t0+4
    a(f'v_add_f32 v{t0}, v{vxf}, v{vxf+1}\nv_add_f32 v{t1}, v{vxf+2}, v{vxf+3}\nv_add_f32 v{t2}, v{vxf+4}, v{vxf+5}\nv_add_f32 v{t0}, v{t0}, v{t1}\nv_add_f32 v{t1}, v{vxf+6}, v{vxf+7}\nv_add_f32 v{t0}, v{t0}, v{t2}\nv_add_f32 v{t0}, v{t0}, v{t1}')
    allred('v_add_f32',[t0],[t1])
    a(f'v_mul_f32 v{t0}, {f2u(1/512.):#x}, v{t0}')
    for j in range(8): a(f'v_sub_f32 v{vd+j}, v{vxf+j}, v{t0}')
    a(f'v_mul_f32 v{t2}, v{vd}, v{vd}')
    for j in range(1,8): a(f'v_fmac_f32 v{t2}, v{vd+j}, v{vd+j}')
    allred('v_add_f32',[t2],[t1])
    a(f'v_mul_f32 v{t2}, {f2u(1/512.):#x}, v{t2}')
    bfr(t0,t0); bfr(t2,t2)
    a(f'v_add_f32 v{t2}, {f2u(1e-5):#x}, v{t2}'); bfr(t2,t2)
    a(f'v_sqrt_f32 v{t2}, v{t2}'); bfr(t2,t2)
    a(f'v_rcp_f32 v{t2}, v{t2}')
    for j in range(8): a(f'v_sub_f32 v{vd+j}, v{vxf+j}, v{t0}')
    for j in range(4): a(f'v_cvt_pk_bf16_f32 v{vx+j}, v{vd+2*j}, v{vd+2*j+1}')
    for j in range(4): a(f'v_lshlrev_b32 v{vd+2*j}, 16, v{vx+j}\nv_and_b32 v{vd+2*j+1}, 0xffff0000, v{vx+j}')
    for j in range(8): a(f'v_mul_f32 v{vd+j}, v{vd+j}, v{t2}')
    for j in range(4): a(f'v_cvt_pk_bf16_f32 v{vx+j}, v{vd+2*j}, v{vd+2*j+1}')
    a(f's_lshl_b32 s{sTmp}, s{sCw}, 8\ns_add_u32 s{sTmp}, s{sTmp}, {L_XN}\nv_add_u32 v{t0}, s{sTmp}, v{vL16}\nds_write_b128 v{t0}, v[{vx}:{vx+3}]')
    a(f's_cmp_eq_u32 s{sCw}, 0\ns_cbranch_scc0 L_help')
    a(f's_lshr_b32 s{sTmp2}, s{sC}, 4\ns_lshl_b32 s{sTmp2}, s{sTmp2}, 9\ns_add_u32 s{sTmp}, s{sTmp}, s{sTmp2}\nv_lshl_add_u32 v{t0}, v2, 3, s{sTmp}')
    for j in range(8): a(f'ds_read2_b64 v[{vXf+4*j}:{vXf+4*j+3}], v{t0} offset0:{8*j} offset1:{8*j+4}')
    vD=vQ; vpt=vT; vB=vK
    a(f'v_lshlrev_b32 v{vpt}, 6, v1\nv_lshl_add_u32 v{vpt}, v{vTm}, 3, v{vpt}\nv_and_b32 v{vpt+1}, 1, v2\nv_lshl_add_u32 v{vpt}, v{vpt+1}, 5, v{vpt}\nv_xor_b32 v{vpt+1}, 32, v{vpt}')
    a(f's_getreg_b32 s{sXcc}, hwreg(HW_REG_XCC_ID, 0, 4)\ns_waitcnt lgkmcnt(2)')
    stamp(2)
    def qgemv(s0,s1):
        seq=[(s,j) for s in range(s0,s1) for j in range(2)]
        def rd(i):
            s,j=seq[i]; b=vB+4*(i%8)
            a(f'ds_read_b64_tr_b16 v[{b}:{b+1}], v{vpt+j} offset:{2048*s}\nds_read_b64_tr_b16 v[{b+2}:{b+3}], v{vpt+j} offset:{2048*s+1024}')
        for i in range(5): rd(i)
        for i in range(len(seq)):
            if i+5<len(seq): rd(i+5)
            a(f's_waitcnt lgkmcnt({2*(min(i+5,len(seq)-1)-i)})')
            s,j=seq[i]; b=vB+4*(i%8)
            a(f'v_mfma_f32_16x16x32_bf16 v[{vD+4*j}:{vD+4*j+3}], v[{b}:{b+3}], v[{vXf+4*s}:{vXf+4*s+3}], '+('0' if s==0 else f'v[{vD+4*j}:{vD+4*j+3}]'))
    wait_full(0,vT+2,vFA); qgemv(0,4)
    wait_full(1,vT+2,vFA); stamp(3); qgemv(4,8)
    a(f'v_mov_b32 v{w0}, 3\nds_write_b32 v{vRA}, v{w0}')
    a(f's_and_b32 s{sTmp}, s{sC}, 7\ns_lshl_b32 s{sTmp}, s{sTmp}, 8\ns_bfe_u32 s{sTmp2}, s{sC}, 0x10003\ns_lshl_b32 s{sTmp2}, s{sTmp2}, 7\ns_add_u32 s{sTmp}, s{sTmp}, s{sTmp2}')
    a(f's_lshr_b32 s{sTmp2}, s{sC}, 4\ns_lshl_b32 s{sTmp2}, s{sTmp2}, 11\ns_add_u32 s{sTmp}, s{sTmp}, s{sTmp2}\ns_lshl_b32 s{sKo}, s{sH}, 12\ns_add_u32 s{sKo}, s{sKo}, {W_QG:#x}\ns_add_u32 s{sTmp}, s{sTmp}, s{sKo}')
    a(f'v_lshlrev_b32 v{vpt}, 4, v2\nv_lshl_add_u32 v{vpt}, v3, 6, v{vpt}\nv_add_u32 v{vpt}, s{sTmp}, v{vpt}')
    a(f's_lshl_b32 s{sVo}, s{sH}, 9\ns_add_u32 s{sVo}, s{sVo}, {W_QX:#x}\ns_lshl_b32 s{sTmp}, s{sC}, 4\ns_add_u32 s{sTmp}, s{sTmp}, s{sVo}')
    setexec(0x0002000200020002)
    for k in range(4): a(f'v_mov_b32 v{vD+k}, v{vD+4+k}')
    a('s_mov_b64 exec, -1'); tag4(vD)
    a(f's_mov_b64 exec, 4\nv_mov_b32 v{vD}, s{sXcc}\nv_mov_b32 v{vD+1}, s{sT}\nv_mov_b32 v{vD+2}, s{sXcc}\nv_mov_b32 v{vD+3}, s{sT}\nv_mov_b32 v{vpt}, s{sTmp}')
    setexec(0x0003000300030007)
    if 'q' not in skip: a(f'buffer_store_dwordx4 v[{vD}:{vD+3}], v{vpt}, s[{dWS}:{dWS+3}], 0 offen {qst}')
    a('s_mov_b64 exec, -1')
    stamp(4)
    wo_loads()
    a(f'v_and_b32 v{vpt}, 0x1f0, v{vL16}')
    a('L_qpoll:')
    if 'q' in skip: a(f's_waitcnt vmcnt(0)\nv_mov_b32 v{vK+16}, s{sXcc}\ns_branch L_qskip')
    for i in range(4): a(f'buffer_load_dwordx4 v[{vK+4*i}:{vK+4*i+3}], v{vL16}, s[{dWS}:{dWS+3}], s{sKo} offen offset:{1024*i} sc1')
    a(f'buffer_load_dwordx4 v[{vK+16}:{vK+19}], v{vpt}, s[{dWS}:{dWS+3}], s{sVo} offen sc1')
    timeout()
    a('s_waitcnt vmcnt(0)')
    chk(w0,[vK,vK+4,vK+8,vK+12],[vK+17,vK+19],w1)
    a('s_cbranch_vccnz L_qpoll\nL_qskip:')
    for k in range(8): a(f'v_add_f32 v{vK+k}, v{vK+k}, v{vK+8+k}')
    for k in range(4): a(f'v_cvt_pk_bf16_f32 v{vK+k}, v{vK+2*k}, v{vK+2*k+1}')
    a(f'v_lshlrev_b32 v{vpt}, 3, v0\nv_add_u32 v{vpt}, {L_Q}, v{vpt}\nds_write2st64_b64 v{vpt}, v[{vK}:{vK+1}], v[{vK+2}:{vK+3}] offset0:0 offset1:1')
    a(f'v_cmp_ne_u32 vcc, s{sXcc}, v{vK+16}\ns_mov_b32 s{sLoc}, 1')
    if local: a(f's_cmp_eq_u64 vcc, 0\ns_cselect_b32 s{sLoc}, 2, 1')
    a(f'v_mov_b32 v{w0}, s{sLoc}\nds_write_b32 v{vFA}, v{w0} offset:8')
    stamp(5)
    wo_unpack()
    a('L_qready:')
    a(f'v_lshlrev_b32 v{vT}, 8, v{vTm}\nv_lshl_add_u32 v{vT}, v2, 4, v{vT}\nv_add_u32 v{vT}, {L_Q}, v{vT}')
    for s in range(4): a(f'ds_read_b128 v[{vQ+4*s}:{vQ+4*s+3}], v{vT} offset:{64*s}')
    for i in range(32): a(f'v_mov_b32 v{vO+i}, 0')
    a(f'v_mov_b32 v{vM}, 0xff800000\nv_mov_b32 v{vMb}, 0\nv_mov_b32 v{vL}, 0\ns_mov_b32 s{sCnt}, 0')
    a(f's_lshl_b32 s{sSlot}, s{sG}, 13\ns_add_u32 s{sSlotV}, s{sSlot}, {3*SLOT}')
    vWa,vWm,vRo,vRm,vpa,vga,vgm,vS3,vLr=192,193,194,195,196,197,198,199,158
    a(f's_lshl_b32 s{sTmp}, s{sCw}, 11\ns_add_u32 s{sTmp}, s{sTmp}, {L_SC}\nv_lshlrev_b32 v{vWa}, 9, v3\nv_lshl_add_u32 v{vWa}, v2, 4, v{vWa}\nv_add_u32 v{vWa}, s{sTmp}, v{vWa}')
    a(f's_lshl_b32 s{sTmp}, s{sCw}, 5\ns_add_u32 s{sTmp}, s{sTmp}, {L_SM}\nv_lshl_add_u32 v{vWm}, v3, 3, s{sTmp}')
    a(f's_lshl_b32 s{sTmp}, s{sCw}, 9\ns_add_u32 s{sTmp}, s{sTmp}, {L_SC}\nv_lshrrev_b32 v{vT+3}, 3, v0\nv_lshlrev_b32 v{vRo}, 6, v{vT+3}\nv_lshl_add_u32 v{vRo}, v{vTm}, 4, v{vRo}\nv_add_u32 v{vRo}, s{sTmp}, v{vRo}')
    a(f's_lshl_b32 s{sTmp}, s{sCw}, 3\ns_add_u32 s{sTmp}, s{sTmp}, {L_SM}\nv_mov_b32 v{vRm}, s{sTmp}')
    a(f's_lshl_b32 s{sTmp}, s{sH}, 17\ns_add_u32 s{sTmp}, s{sTmp}, {W_P2:#x}\ns_lshl_b32 s{sTmp2}, s{sC}, 12\ns_add_u32 s{sKo}, s{sTmp}, s{sTmp2}')
    a(f's_lshl_b32 s{sTmp2}, s{sCw}, 15\ns_add_u32 s{sTmp}, s{sTmp}, s{sTmp2}\ns_lshl_b32 s{sTmp2}, s{sC}, 7\ns_add_u32 s{sTmp}, s{sTmp}, s{sTmp2}')
    a(f'v_and_b32 v{vpa}, 0x70, v{vL16}\nv_lshl_add_u32 v{vpa}, v{vT+3}, 12, v{vpa}\nv_add_u32 v{vpa}, s{sTmp}, v{vpa}')
    a(f'v_lshrrev_b32 v{vgm}, 2, v0\nv_lshlrev_b32 v{vgm}, 7, v{vgm}\nv_lshl_add_u32 v{vga}, v{vTm}, 4, v{vgm}')
    a(f's_lshl_b32 s{sTmp}, s{sCw}, 17\ns_lshl_b32 s{sTmp2}, s{sB}, 7\ns_add_u32 s{sTmp}, s{sTmp}, s{sTmp2}\ns_add_u32 s{sVo}, s{sTmp}, {W_S3:#x}\nv_lshlrev_b32 v{vS3}, 15, v2\nv_lshl_add_u32 v{vS3}, v3, 3, v{vS3}')
    def prewrite():
        l=lab('npw')
        a(f's_cmp_eq_u32 s{sLoc}, 2\ns_cbranch_scc0 {l}\ns_not_b32 s{sTmp}, s{sT}')
        for k in range(4): a(f'v_mov_b32 v{200+k}, s{sTmp}')
        a(f'buffer_store_dwordx4 v[200:203], v{vpa}, s[{dWS}:{dWS+3}], 0 offen\n{l}:')
    if prew==1: prewrite()
    stamp(6)
    a('L_step:')
    a(f's_cmp_ge_i32 s{sG}, s{sGend}\ns_cbranch_scc1 L_exit\ns_cmp_gt_i32 s{sFull}, s{sG}\ns_cbranch_scc1 L_go')
    poll_full(vT,vFA)
    a('s_branch L_step\nL_go:')
    a(f'v_add_u32 v{vAd+4}, s{sSlot}, v{vKp}')
    for s in (1,2,3): a(f'v_xor_b32 v{vAd+4+s}, {64*s}, v{vAd+4}')
    for t in range(2):
        for s in range(4): a(f'ds_read_b128 v[{vK+16*t+4*s}:{vK+16*t+4*s+3}], v{vAd+4+s} offset:{4096*t}')
    a(f's_add_u32 s{sG}, s{sG}, 3\nv_mov_b32 v{vT}, s{sG}')
    for t in range(2):
        a(f's_waitcnt lgkmcnt({4-4*t})')
        if t==1: a(f'ds_write_b32 v{vRA}, v{vT}')
        for s in range(4):
            a(f'v_mfma_f32_16x16x32_bf16 v[{vS+4*t}:{vS+4*t+3}], v[{vK+16*t+4*s}:{vK+16*t+4*s+3}], v[{vQ+4*s}:{vQ+4*s+3}], '+('0' if s==0 else f'v[{vS+4*t}:{vS+4*t+3}]'))
    vVa=vK
    a(f'v_add_u32 v{vAd+1}, s{sSlotV}, v{vVp}')
    for j in range(4): a(f'v_cvt_pk_bf16_f32 v{vP+j}, v{vS+2*j}, v{vS+2*j+1}')
    for j in range(4): a(f'v_lshlrev_b32 v{vA+2*j}, 16, v{vP+j}\nv_and_b32 v{vA+2*j+1}, 0xffff0000, v{vP+j}')
    for j in range(8): a(f'v_mul_f32 v{vA+j}, s{sScale}, v{vA+j}')
    for j in range(4): a(f'v_cvt_pk_bf16_f32 v{vP+j}, v{vA+2*j}, v{vA+2*j+1}')
    for j in range(4): a(f'v_lshlrev_b32 v{vA+2*j}, 16, v{vP+j}\nv_and_b32 v{vA+2*j+1}, 0xffff0000, v{vP+j}')
    a(f'v_max3_f32 v{vT}, v{vA}, v{vA+1}, v{vA+2}\nv_max3_f32 v{vT+1}, v{vA+3}, v{vA+4}, v{vA+5}\nv_max3_f32 v{vT+2}, v{vA+6}, v{vA+7}, v{vM}\nv_max3_f32 v{vT}, v{vT}, v{vT+1}, v{vT+2}')
    allred('v_max_f32',[vT],[vT+1],lo=())
    for db in range(1,8): a(f'v_xor_b32 v{vVa+db}, {32*db}, v{vAd+1}')
    a(f'v_cmp_gt_f32 vcc, v{vT}, v{vM}\ns_cbranch_vccz L_norescale')
    a(f'v_sub_f32 v{vT+1}, v{vM}, v{vT}\nv_mul_f32 v{vT+1}, s{sL2e}, v{vT+1}\nv_exp_f32 v{vT+1}, v{vT+1}\nv_mov_b32 v{vM}, v{vT}\nv_mul_f32 v{vMb}, s{sL2e}, v{vT}\nv_mul_f32 v{vL}, v{vL}, v{vT+1}')
    for i in range(32): a(f'v_mul_f32 v{vO+i}, v{vO+i}, v{vT+1}')
    a('L_norescale:')
    for j in range(8): a(f'v_fma_f32 v{vA+j}, v{vA+j}, s{sL2e}, -v{vMb}')
    for j in range(8): a(f'v_exp_f32 v{vA+j}, v{vA+j}')
    for j in range(4): a(f'v_cvt_pk_bf16_f32 v{vP+j}, v{vA+2*j}, v{vA+2*j+1}')
    a(f'v_add_f32 v{vT}, v{vA}, v{vA+1}\nv_add_f32 v{vT+1}, v{vA+2}, v{vA+3}\nv_add_f32 v{vT+2}, v{vA+4}, v{vA+5}\nv_add_f32 v{vT+3}, v{vA+6}, v{vA+7}')
    a(f'v_add_f32 v{vT}, v{vT}, v{vT+1}\nv_add_f32 v{vT+2}, v{vT+2}, v{vT+3}\nv_add_f32 v{vT}, v{vT}, v{vT+2}\nv_add_f32 v{vL}, v{vL}, v{vT}')
    a(f'v_mov_b32 v{vLr}, v{vL}'); allred('v_add_f32',[vLr],[vT],lo=())
    if prew>1:
        a(f's_cmp_eq_u32 s{sCnt}, {prew}\ns_cbranch_scc0 L_nopw'); prewrite(); a(f'L_nopw:\ns_add_u32 s{sCnt}, s{sCnt}, 1')
    wait_full(f's{sG}',vT,vFA)
    def rdv(db):
        ad=vAd+1 if db==0 else vVa+db
        a(f'ds_read_b64_tr_b16 v[{vV+4*db}:{vV+4*db+1}], v{ad}\nds_read_b64_tr_b16 v[{vV+4*db+2}:{vV+4*db+3}], v{ad} offset:4096')
    for db in range(6): rdv(db)
    a(f's_add_u32 s{sG}, s{sG}, 5\nv_mov_b32 v{vT}, s{sG}')
    for db in range(8):
        a(f's_waitcnt lgkmcnt({2*(min(db+5,7)-db)})')
        if db==7: a(f'ds_write_b32 v{vRA}, v{vT}')
        a(f'v_mfma_f32_16x16x32_bf16 v[{vO+4*db}:{vO+4*db+3}], v[{vV+4*db}:{vV+4*db+3}], v[{vP}:{vP+3}], v[{vO+4*db}:{vO+4*db+3}]')
        if db+6<8: rdv(db+6)
    for sl in (sSlot,sSlotV):
        a(f's_add_u32 s{sl}, s{sl}, {8*SLOT}\ns_sub_u32 s{sTmp}, s{sl}, {RING}\ns_cselect_b32 s{sl}, s{sl}, s{sTmp}')
    a('s_branch L_step')
    a('L_exit:')
    stamp(7)
    a(f'v_mov_b32 v{vMb}, v{vLr}')
    setexec(0x000f000f000f000f)
    a(f'ds_write_b64 v{vWm}, v[{vM}:{vM+1}]')
    for db in range(8): a(f'ds_write_b128 v{vWa}, v[{vO+4*db}:{vO+4*db+3}] offset:{64*db}')
    a('s_mov_b64 exec, -1')
    a('s_waitcnt lgkmcnt(0)\ns_barrier')
    stamp(8)
    vml=vS; vo4=vK; r=vO
    for w in range(4): a(f'ds_read_b64 v[{vml+2*w}:{vml+2*w+1}], v{vRm} offset:{32*w}')
    for w in range(4): a(f'ds_read_b128 v[{vo4+4*w}:{vo4+4*w+3}], v{vRo} offset:{2048*w}')
    a(f's_waitcnt lgkmcnt(4)\nv_max3_f32 v{r+4}, v{vml}, v{vml+2}, v{vml+4}\nv_max_f32 v{r+4}, v{r+4}, v{vml+6}')
    for w in range(4): a(f'v_sub_f32 v{vml+2*w}, v{vml+2*w}, v{r+4}')
    for w in range(4): a(f'v_mul_f32 v{vml+2*w}, s{sL2e}, v{vml+2*w}')
    for w in range(4): a(f'v_exp_f32 v{vml+2*w}, v{vml+2*w}')
    a(f'v_mul_f32 v{r+5}, v{vml}, v{vml+1}')
    for w in range(1,4): a(f'v_fmac_f32 v{r+5}, v{vml+2*w}, v{vml+2*w+1}')
    a('s_waitcnt lgkmcnt(0)')
    for k in range(4): a(f'v_mul_f32 v{r+k}, v{vml}, v{vo4+k}')
    for w in range(1,4):
        for k in range(4): a(f'v_fmac_f32 v{r+k}, v{vml+2*w}, v{vo4+4*w+k}')
    tag4(r)
    setexec(0xf0f0f0f0f0f0f0f0)
    a(f'v_mov_b32 v{r}, v{r+4}\nv_mov_b32 v{r+1}, s{sT}\nv_mov_b32 v{r+2}, v{r+5}\nv_mov_b32 v{r+3}, s{sT}')
    a('s_mov_b64 exec, -1')
    a(f's_cmp_eq_u32 s{sLoc}, 2\ns_cbranch_scc1 L_p2loc')
    a(f'buffer_store_dwordx4 v[{r}:{r+3}], v{vpa}, s[{dWS}:{dWS+3}], 0 offen sc1\ns_branch L_p2done')
    a(f'L_p2loc:\nbuffer_store_dwordx4 v[{r}:{r+3}], v{vpa}, s[{dWS}:{dWS+3}], 0 offen\nL_p2done:')
    stamp(9)
    po=vK; pm=vK+8
    a('L_s2poll:')
    for i in range(2):
        a(f'buffer_load_dwordx4 v[{po+4*i}:{po+4*i+3}], v{vga}, s[{dWS}:{dWS+3}], s{sKo} offen offset:{2048*i} sc1')
        a(f'buffer_load_dwordx4 v[{pm+4*i}:{pm+4*i+3}], v{vgm}, s[{dWS}:{dWS+3}], s{sKo} offen offset:{2048*i+64} sc1')
    timeout()
    a('s_waitcnt vmcnt(0)')
    chk(vT,[po,po+4],[pm+1,pm+3,pm+5,pm+7],vT+1)
    a('s_cbranch_vccnz L_s2poll')
    stamp(10)
    mx=vM
    a(f'v_max_f32 v{mx}, v{pm}, v{pm+4}')
    allred('v_max_f32',[mx],[vT+1],lo=(4,8))
    for i in range(2): a(f'v_sub_f32 v{pm+4*i}, v{pm+4*i}, v{mx}')
    for i in range(2): a(f'v_mul_f32 v{pm+4*i}, s{sL2e}, v{pm+4*i}')
    for i in range(2): a(f'v_exp_f32 v{pm+4*i}, v{pm+4*i}')
    o=vS; ls=vS+4
    for k in range(4): a(f'v_mul_f32 v{o+k}, v{pm}, v{po+k}')
    a(f'v_mul_f32 v{ls}, v{pm}, v{pm+2}')
    for k in range(4): a(f'v_fmac_f32 v{o+k}, v{pm+4}, v{po+4+k}')
    a(f'v_fmac_f32 v{ls}, v{pm+4}, v{pm+6}')
    allred('v_add_f32',[ls,o,o+1,o+2,o+3],[vA,vA+1,vA+2,vA+3,vA+4],lo=(4,8))
    a(f'v_rcp_f32 v{ls}, v{ls}')
    for k in range(4): a(f'v_mul_f32 v{o+k}, v{o+k}, v{ls}')
    a(f'v_cvt_pk_bf16_f32 v{vA}, v{o}, v{o+1}\nv_cvt_pk_bf16_f32 v{vA+1}, v{o+2}, v{o+3}')
    a(f'v_lshlrev_b32 v{o}, 16, v{vA}\nv_and_b32 v{o+1}, 0xffff0000, v{vA}\nv_lshlrev_b32 v{o+2}, 16, v{vA+1}\nv_and_b32 v{o+3}, 0xffff0000, v{vA+1}')
    for i in range(16):
        j,k=i>>2,i&3; d=r+2*(i&1)
        op='v_mul_f32_dpp' if i<2 else 'v_fmac_f32_dpp'
        a(f'{op} v{d}, v{o+k}, v{vWf+2*i} quad_perm:[{j},{j},{j},{j}] row_mask:0xf bank_mask:0xf\n{op} v{d+1}, v{o+k}, v{vWf+2*i+1} quad_perm:[{j},{j},{j},{j}] row_mask:0xf bank_mask:0xf')
    a(f'v_add_f32 v{r}, v{r}, v{r+2}\nv_add_f32 v{r+1}, v{r+1}, v{r+3}')
    a(f'v_mov_b32_dpp v{r+2}, v{r} quad_perm:[1,1,3,3] row_mask:0xf bank_mask:0xf\nv_mov_b32_dpp v{r+3}, v{r+1} quad_perm:[1,1,3,3] row_mask:0xf bank_mask:0xf')
    tag4(r)
    setexec(0x5555555555555555)
    a(f'buffer_store_dwordx4 v[{r}:{r+3}], v{vS3}, s[{dWS}:{dWS+3}], s{sVo} offen sc1')
    stamp(11)
    stamp_out(dWS,[(5,'add',6,0),(6,'umax',6,0),(12,'umax',9,0),(13,'umax',10,0),(14,'umax',11,0)])
    a('s_endpgm')
    a('L_help:')
    if fb>=2:
        a(f's_mul_i32 s{sKb}, s{sXj}, {CST2}\ns_lshl_b32 s{sTmp}, s{sXi}, 2\ns_add_u32 s{sKb}, s{sKb}, s{sTmp}\ns_add_u32 s{sKb}, s{sKb}, {W_CNT:#x}')
    if fb==1:
        a(f's_add_u32 s{sKb}, s{sXi}, s{sXj}\ns_and_b32 s{sKb}, s{sKb}, 7\ns_mul_i32 s{sKb}, s{sKb}, {CST}\ns_add_u32 s{sKb}, s{sKb}, {W_CNT:#x}\ns_and_b32 s{sTmp}, s{sB}, 0xc7\ns_cmp_eq_u32 s{sTmp}, 0\ns_cbranch_scc0 L_nocnt')
        a(f'v_mov_b32 v{vT}, 0\nv_mov_b32 v{vT+1}, s{sT}\ns_mov_b64 exec, 1\nbuffer_store_dwordx2 v[{vT}:{vT+1}], off, s[{dWS}:{dWS+3}], s{sKb} sc1\ns_mov_b64 exec, -1\nL_nocnt:')
    a(f's_cmp_lt_u32 s{sF}, 224\ns_cbranch_scc0 L_noffn')
    a(f's_and_b32 s{sTmp2}, s{sF}, 7\ns_lshl_b32 s{sTmp2}, s{sTmp2}, 7\ns_add_u32 s{sTmp}, s{sTmp2}, {L_XN+1024}\nv_lshl_add_u32 v{t0}, v2, 3, s{sTmp}')
    for j in range(2): a(f'ds_read2_b64 v[{vXf+4*j}:{vXf+4*j+3}], v{t0} offset0:{8*j} offset1:{8*j+4}')
    a(f'v_lshlrev_b32 v{vAd}, 7, v1\nv_lshl_add_u32 v{vAd}, v{vTm}, 3, v{vAd}\nv_bfe_u32 v{vAd+1}, v1, 1, 2\nv_lshl_add_u32 v{vAd}, v{vAd+1}, 5, v{vAd}')
    for j in (1,2,3): a(f'v_xor_b32 v{vAd+j}, {32*j}, v{vAd}')
    stamp(2)
    wait_full(1,vT,vFA)
    a(f's_lshl_b32 s{sTmp}, s{sF}, 13\ns_add_u32 s{sTmp2}, s{sTmp}, 4096')
    for j in range(8): a(f'buffer_load_dwordx4 v[{vWD+4*j}:{vWD+4*j+3}], v{vL16}, s[{dWD}:{dWD+3}], s{sTmp if j<4 else sTmp2} offen offset:{1024*(j&3)} {wpol}')
    vAc=vWf
    def fgemv(mat):
        seq=[(s,j) for s in range(2) for j in range(4)]
        base=(2+2*mat)*SLOT
        def rd(i):
            s,j=seq[i]; b=vB+4*i
            a(f'ds_read_b64_tr_b16 v[{b}:{b+1}], v{vAd+j} offset:{base+4096*s}\nds_read_b64_tr_b16 v[{b+2}:{b+3}], v{vAd+j} offset:{base+4096*s+2048}')
        for i in range(5): rd(i)
        for i in range(8):
            if i+5<8: rd(i+5)
            a(f's_waitcnt lgkmcnt({2*(min(i+5,7)-i)})')
            s,j=seq[i]; b=vB+4*i; d=vAc+16*mat+4*j
            a(f'v_mfma_f32_16x16x32_bf16 v[{d}:{d+3}], v[{b}:{b+3}], v[{vXf+4*s}:{vXf+4*s+3}], '+('0' if s==0 else f'v[{d}:{d+3}]'))
    wait_full(2,vT,vFA); fgemv(0)
    wait_full(4,vT,vFA); stamp(3); fgemv(1)
    a(f'v_mov_b32 v{w0}, {INF:#x}\nds_write_b32 v{vRA}, v{w0}')
    for n in range(1,8):
        setexec(0x0001000100010001<<n)
        for k in range(4): a(f'v_mov_b32 v{vAc+k}, v{vAc+4*n+k}')
    a('s_mov_b64 exec, -1'); tag4(vAc)
    a(f's_lshl_b32 s{sTmp}, s{sF}, 9\ns_add_u32 s{sTmp}, s{sTmp}, {W_F1:#x}\nv_lshlrev_b32 v{vT}, 4, v2\nv_lshl_add_u32 v{vT}, v3, 6, v{vT}')
    setexec(0x00ff00ff00ff00ff)
    if 'f' not in skip: a(f'buffer_store_dwordx4 v[{vAc}:{vAc+3}], v{vT}, s[{dWS}:{dWS+3}], s{sTmp} offen sc1')
    a('s_mov_b64 exec, -1')
    stamp(4)
    a(f's_and_b32 s{sTmp}, s{sF}, 0xf8\ns_lshl_b32 s{sTmp}, s{sTmp}, 9\ns_and_b32 s{sTmp2}, s{sF}, 7\ns_lshl_b32 s{sTmp2}, s{sTmp2}, 5\ns_add_u32 s{sTmp}, s{sTmp}, s{sTmp2}\ns_add_u32 s{sKo}, s{sTmp}, {W_F1:#x}')
    a(f'v_bfe_u32 v{vT+2}, v0, 1, 4\nv_lshlrev_b32 v{vT+2}, 8, v{vT+2}\nv_and_b32 v{vT+3}, 1, v0\nv_lshl_add_u32 v{vT+2}, v{vT+3}, 4, v{vT+2}')
    if f1wait: wait_full(f1wait,vT,vFA)
    gu=vK
    a('L_f1poll:')
    if 'f' in skip: a('s_waitcnt vmcnt(0)\ns_branch L_fskip')
    a(f'buffer_load_dwordx4 v[{gu}:{gu+3}], v{vT+2}, s[{dWS}:{dWS+3}], s{sKo} offen sc1')
    timeout()
    a('s_waitcnt vmcnt(0)')
    chk(vT,[gu],[],None)
    a('s_cbranch_vccnz L_f1poll\nL_fskip:')
    allred('v_add_f32',[gu,gu+1,gu+2,gu+3],[vA,vA+1,vA+2,vA+3],lo=(4,8),hi=(16,))
    for k in range(4): bfr(gu+k,gu+k)
    k1=-2*0.7978845608028654*1.4426950408889634
    hh=gu+4; up=gu+8
    for k in range(4): a(f'v_mov_b32_dpp v{up+k}, v{gu+k} quad_perm:[2,3,2,3] row_mask:0xf bank_mask:0xf')
    for k in range(4): a(f'v_mul_f32 v{hh+k}, v{gu+k}, v{gu+k}')
    for k in range(4): a(f'v_mul_f32 v{hh+k}, {f2u(0.044715):#x}, v{hh+k}')
    for k in range(4): a(f'v_fma_f32 v{hh+k}, v{hh+k}, v{gu+k}, v{gu+k}')
    for k in range(4): a(f'v_mul_f32 v{hh+k}, {f2u(k1):#x}, v{hh+k}')
    for k in range(4): a(f'v_exp_f32 v{hh+k}, v{hh+k}')
    for k in range(4): a(f'v_add_f32 v{hh+k}, 1.0, v{hh+k}')
    for k in range(4): a(f'v_rcp_f32 v{hh+k}, v{hh+k}')
    for k in range(4): a(f'v_mul_f32 v{hh+k}, v{gu+k}, v{hh+k}')
    for k in range(4): bfr(hh+k,hh+k)
    for k in range(4): a(f'v_mul_f32 v{hh+k}, v{hh+k}, v{up+k}')
    for k in range(4): bfr(hh+k,hh+k)
    acc=vV; un=vV+8
    for k in range(8): a(f'v_mov_b32 v{acc+k}, 0')
    for j in range(8):
        for k in range(4): a(f'v_lshlrev_b32 v{un+2*k}, 16, v{vWD+4*j+k}\nv_and_b32 v{un+2*k+1}, 0xffff0000, v{vWD+4*j+k}')
        for k in range(8): a(f'v_fmac_f32_dpp v{acc+k}, v{hh+(j&3)}, v{un+k} quad_perm:[{j>>2},{j>>2},{j>>2},{j>>2}] row_mask:0xf bank_mask:0xf')
    tag4(acc); tag4(acc+4)
    a(f's_lshl_b32 s{sTmp}, s{sF}, 7\ns_add_u32 s{sTmp}, s{sTmp}, {W_B3:#x}\ns_add_u32 s{sTmp2}, s{sTmp}, {8*28672}')
    a(f'v_lshrrev_b32 v{vT}, 3, v0\nv_mul_u32_u24 v{vT}, 28672, v{vT}\nv_and_b32 v{vT+1}, 7, v0\nv_lshl_add_u32 v{vT}, v{vT+1}, 4, v{vT}')
    if 'b' not in skip: a(f'buffer_store_dwordx4 v[{acc}:{acc+3}], v{vT}, s[{dWS}:{dWS+3}], s{sTmp} offen sc1\nbuffer_store_dwordx4 v[{acc+4}:{acc+7}], v{vT}, s[{dWS}:{dWS+3}], s{sTmp2} offen sc1')
    stamp(5)
    a('s_branch L_ffndone')
    a(f'L_noffn:\nv_mov_b32 v{w0}, {INF:#x}\nds_write_b32 v{vRA}, v{w0}\nL_ffndone:')
    vb=vK; gg=vQ; v128=vAd
    a(f'v_lshlrev_b32 v{v128}, 7, v0')
    mlast=min(mlast,2*S)
    nms=(mlast-m0)//mk+1 if mlast>=m0 else 0
    tk=vO
    def control(l,idx_end):
        a(f'{l}:')
        wait_full(f's{sJ}',vT,vFA)
        if fb==1:
            a(f's_mov_b64 exec, 1\nv_mov_b32 v{tk}, 1\nbuffer_atomic_add v{tk}, off, s[{dWS}:{dWS+3}], s{sKb} sc0\ns_mov_b64 exec, -1\ns_add_u32 s{sJ}, s{sJ}, {mk}')
            a(f's_waitcnt vmcnt(0)\nv_readfirstlane_b32 s{sTmp}, v{tk}\ns_sub_i32 s{sTmp}, s{sTmp}, s{sMin}\ns_add_u32 s{sMin}, s{sMin}, 32')
            a(f's_cmp_lt_i32 s{sTmp}, {tlo}\ns_cselect_b32 s{sTmp2}, 1, 0\ns_cmp_gt_i32 s{sTmp}, {thi}\ns_cselect_b32 s{sTmp2}, 2, s{sTmp2}\nv_mov_b32 v{vT}, s{sTmp2}\nds_write_b32 v{vFA}, v{vT} offset:12')
            a(f's_cmp_lt_u32 s{sMin}, {32*idx_end}\ns_cbranch_scc1 {l}')
        elif fb==5:
            l1,l2=lab('nr'),lab('np')
            a(f's_add_u32 s{sTmp}, s{sMin}, s{sJ}\nv_mov_b32 v{tk}, s{sTmp}\ns_mov_b64 exec, 1\nbuffer_store_dword v{tk}, off, s[{dWS}:{dWS+3}], s{sKb}')
            a(f's_and_b32 s{sTmp}, s{sCnt}, 3\ns_add_u32 s{sTmp}, s{sTmp}, 28\ns_cmp_eq_u32 s{sTmp}, s{sXi}\ns_cselect_b32 s{sSlot}, 1, 0\ns_add_u32 s{sCnt}, s{sCnt}, 1')
            a(f's_sub_u32 s{sGmR}, s{sGmR}, 1\ns_cselect_b32 s{sGmR}, {xev-1}, s{sGmR}\ns_cselect_b32 s{sSlotV}, s{sSlot}, 0')
            a(f's_mul_i32 s{sTmp}, s{sSlotV}, 0xff0000\ns_or_b32 exec_hi, s{sTmp}, 1\ns_mov_b32 exec_lo, -1')
            a(f'buffer_load_dword v{tk+4}, v{tk+1}, s[{dWS}:{dWS+3}], 0 offen sc1\ns_waitcnt vmcnt(0)')
            a(f'v_sub_u32 v{tk+4}, v{tk+4}, v{tk+3}\nv_cmp_lt_u32 vcc, v{tk+4}, v{tk+6}\nv_cndmask_b32 v{tk+4}, v{tk+2}, v{tk+4}, vcc\ns_mov_b64 exec, -1')
            allred('v_add_u32',[tk+4],[tk+5],hi=())
            a(f'v_readlane_b32 s{sTmp}, v{tk+4}, 0\nv_readlane_b32 s{sTmp2}, v{tk+4}, 16\nv_readlane_b32 s{sTmp3}, v{tk+4}, 32\ns_add_u32 s{sTmp}, s{sTmp}, s{sTmp2}')
            a(f's_cmp_eq_u32 s{sSlot}, 0\ns_cbranch_scc1 {l2}\ns_lshl_b32 s{sG}, s{sT}, 13\ns_add_u32 s{sTmp2}, s{sTmp}, s{sG}\nv_mov_b32 v{tk}, s{sTmp2}\ns_mov_b64 exec, 1')
            a(f'buffer_store_dword v{tk}, off, s[{dWS}:{dWS+3}], s{sVo} offset:{0x480} {stp}')
            a(f's_cmp_eq_u32 s{sSlotV}, 0\ns_cbranch_scc1 {l1}')
            a(f'v_readlane_b32 s{sTmp3}, v{tk+4}, 48\ns_lshl_b32 s{sTmp2}, s{sTmp}, 3\ns_sub_i32 s{sTmp3}, s{sTmp3}, s{sTmp2}\ns_add_i32 s{sTmp3}, s{sTmp3}, {int(256*xc)}')
            if xg!=1: a(f's_mul_i32 s{sTmp3}, s{sTmp3}, {int(16*xg)}\ns_ashr_i32 s{sTmp3}, s{sTmp3}, 4')
            a(f's_add_i32 s{sTmp3}, s{sTmp3}, 4096\ns_max_i32 s{sTmp3}, s{sTmp3}, 0\ns_min_i32 s{sTmp3}, s{sTmp3}, 8191\ns_add_u32 s{sTmp2}, s{sTmp3}, s{sG}\nv_mov_b32 v{tk}, s{sTmp2}')
            a(f'buffer_store_dword v{tk}, off, s[{dWS}:{dWS+3}], s{sVo} offset:{0x80}')
            a(f'{l1}:\ns_mov_b64 exec, -1\n{l2}:\nv_mov_b32 v{tk+4}, 0')
            d0=-256*(mk/2+tau)+4096
            a(f's_lshl_b32 s{sTmp}, s{sTmp}, 3\ns_add_u32 s{sTmp}, s{sTmp}, s{sTmp3}')
            if diag in(1,3): a(f's_sub_u32 m0, s{sJ}, {m0}\ns_lshr_b32 m0, m0, {mk.bit_length()-1}\ns_add_u32 m0, m0, 20\ns_min_u32 m0, m0, 63\ns_sub_u32 s{sTmp3}, s{sTmp3}, 4096\nv_writelane_b32 v{vSt}, s{sTmp3}, m0')
            a(f's_lshl_b32 s{sTmp2}, s{sJ}, 8\ns_sub_i32 s{sTmp}, s{sTmp}, s{sTmp2}\ns_add_u32 s{sJ}, s{sJ}, {mk}')
        elif fb>=3:
            a(f's_add_u32 s{sTmp}, s{sMin}, s{sJ}\nv_mov_b32 v{tk}, s{sTmp}\ns_mov_b64 exec, 1\nbuffer_store_dword v{tk}, off, s[{dWS}:{dWS+3}], s{sKb}')
            setexec(0xffffffff)
            a(f'buffer_load_dword v{tk+4}, v{tk+1}, s[{dWS}:{dWS+3}], 0 offen sc1')
            if fb==4:
                lr=lab('nr')
                if xrd=='lead': a(f's_cmp_eq_u32 s{sXi}, 0\ns_cbranch_scc0 {lr}')
                setexec(0xff00000000)
                if xwo is not None:
                    a(f's_add_i32 s{sTmp}, s{sJ}, {-xwo*mk}\ns_max_i32 s{sTmp}, s{sTmp}, 0\ns_lshl_b32 s{sTmp}, s{sTmp}, {7-(mk.bit_length()-1)}\ns_add_u32 s{sTmp}, s{sTmp}, {W_ML-W_CNT-0x480:#x}')
                if xrd!='none': a(f'buffer_load_dword v{tk+4}, v{tk+1}, s[{dWS}:{dWS+3}], {"0" if xwo is None else "s%d"%sTmp} offen {xld}')
                a(f'{lr}:')
                setexec(0xffffffffff)
            a('s_waitcnt vmcnt(0)')
            a(f'v_sub_u32 v{tk+4}, v{tk+4}, v{tk+3}\nv_cmp_lt_u32 vcc, v{tk+4}, v{tk+6}\nv_cndmask_b32 v{tk+4}, v{tk+2}, v{tk+4}, vcc\ns_mov_b64 exec, -1')
            allred('v_add_u32',[tk+4],[tk+5],hi=())
            a(f'v_readlane_b32 s{sTmp}, v{tk+4}, 0\nv_readlane_b32 s{sTmp2}, v{tk+4}, 16\ns_add_u32 s{sTmp}, s{sTmp}, s{sTmp2}')
            if fb==4:
                ll=lab('nl')
                a(f's_cmp_eq_u32 s{sXi}, 0\ns_cbranch_scc0 {ll}\ns_lshl_b32 s{sTmp2}, s{sT}, 13\ns_add_u32 s{sTmp}, s{sTmp}, s{sTmp2}\nv_mov_b32 v{tk}, s{sTmp}\ns_mov_b64 exec, 1')
                if xfull: a(f's_mov_b32 exec_lo, -1\nv_lshlrev_b32 v{tk+5}, 2, v0\nbuffer_store_dword v{tk}, v{tk+5}, s[{dWS}:{dWS+3}], s{sKb} offen offset:{0x480} {stp}\ns_mov_b64 exec, -1\n{ll}:')
                elif xwo is not None:
                    a(f's_lshl_b32 s{sTmp}, s{sJ}, {7-(mk.bit_length()-1)}\ns_add_u32 s{sTmp}, s{sTmp}, s{sKb}\ns_add_u32 s{sTmp}, s{sTmp}, {W_ML-W_CNT:#x}')
                    a(f'buffer_store_dword v{tk}, off, s[{dWS}:{dWS+3}], s{sTmp} {stp}\ns_mov_b64 exec, -1\n{ll}:')
                else: a(f'buffer_store_dword v{tk}, off, s[{dWS}:{dWS+3}], s{sKb} offset:{0x480} {stp}\ns_mov_b64 exec, -1\n{ll}:')
                a(f'v_readlane_b32 s{sTmp}, v{tk+4}, 32')
            else: a(f's_lshl_b32 s{sTmp}, s{sTmp}, 3')
            a(f'v_mov_b32 v{tk+4}, 0')
            d0=-256*((mk if fb==4 else mk/2)+tau)
            a(f's_lshl_b32 s{sTmp2}, s{sJ}, 8\ns_sub_i32 s{sTmp}, s{sTmp}, s{sTmp2}\ns_add_u32 s{sJ}, s{sJ}, {mk}')
        else:
            a(f's_add_u32 s{sTmp}, s{sMin}, s{sJ}\nv_mov_b32 v{tk}, s{sTmp}\ns_mov_b64 exec, 1\nbuffer_store_dword v{tk}, off, s[{dWS}:{dWS+3}], s{sKb} {stp}\ns_mov_b64 exec, -1')
            a(f'buffer_load_dwordx4 v[{tk+4}:{tk+7}], v{tk+1}, s[{dWS}:{dWS+3}], 0 offen sc1\ns_waitcnt vmcnt(0)')
            for k in range(4): a(f'v_subrev_u32 v{tk+4+k}, s{sMin}, v{tk+4+k}')
            for k in range(4): a(f'v_cmp_gt_u32 vcc, 0x100, v{tk+4+k}\nv_cndmask_b32 v{tk+4+k}, v{tk+2}, v{tk+4+k}, vcc')
            a(f'v_add3_u32 v{tk+4}, v{tk+4}, v{tk+5}, v{tk+6}\nv_add_u32 v{tk+4}, v{tk+4}, v{tk+7}')
            allred('v_add_u32',[tk+4],[tk+5])
            d0=-256*(mk/2+tau)
            a(f'v_readfirstlane_b32 s{sTmp}, v{tk+4}\ns_lshl_b32 s{sTmp2}, s{sJ}, 8\ns_sub_i32 s{sTmp}, s{sTmp}, s{sTmp2}\ns_add_u32 s{sJ}, s{sJ}, {mk}')
        if fb>=2:
            if diag in (1,3) and fb!=5: a(f's_sub_u32 m0, s{sJ}, {m0+mk}\ns_lshr_b32 m0, m0, {mk.bit_length()-1}\ns_add_u32 m0, m0, 20\ns_min_u32 m0, m0, 63\nv_writelane_b32 v{vSt}, s{sTmp}, m0')
            a(f's_cmp_lt_i32 s{sTmp}, {int(d0-256*th)}\ns_cselect_b32 s{sTmp2}, 1, 0\ns_cmp_gt_i32 s{sTmp}, {int(d0+256*th)}\ns_cselect_b32 s{sTmp2}, 2, s{sTmp2}\nv_mov_b32 v{vT}, s{sTmp2}\nds_write_b32 v{vFA}, v{vT} offset:12')
            a(f's_cmp_lt_u32 s{sJ}, {m0+mk*idx_end}\ns_cbranch_scc1 {l}')
    if fb==1 and nms:
        a(f's_mov_b32 s{sJ}, {m0}\ns_mov_b32 s{sMin}, 0\ns_mov_b64 exec, 1')
        a(f'L_cnt:\nbuffer_load_dwordx2 v[{vT}:{vT+1}], off, s[{dWS}:{dWS+3}], s{sKb} sc1'); timeout()
        a(f's_waitcnt vmcnt(0)\nv_readfirstlane_b32 s{sTmp}, v{vT+1}\ns_cmp_eq_u32 s{sTmp}, s{sT}\ns_cbranch_scc0 L_cnt\ns_mov_b64 exec, -1')
        stamp(7)
        control('L_ctl1',min(b3idx,nms))
    elif fb==2 and nms:
        a(f's_mov_b32 s{sJ}, {m0}\ns_lshl_b32 s{sMin}, s{sT}, 8\nv_mov_b32 v{tk+2}, {m0-mk}')
        a(f'v_lshrrev_b32 v{tk+1}, 3, v0\nv_mul_u32_u24 v{tk+1}, {CST2}, v{tk+1}\nv_and_b32 v{tk+3}, 7, v0\nv_lshl_add_u32 v{tk+1}, v{tk+3}, 4, v{tk+1}\nv_add_u32 v{tk+1}, {W_CNT:#x}, v{tk+1}')
        control('L_ctl1',min(b3idx,nms))
    elif fb==5 and nms:
        a(f's_mov_b32 s{sJ}, {m0}\ns_lshl_b32 s{sMin}, s{sT}, 8\nv_mov_b32 v{tk+2}, {m0-mk}\nv_mov_b32 v{tk+3}, s{sMin}\nv_mov_b32 v{tk+6}, 0x100\nv_mov_b32 v{tk+4}, 0')
        a(f's_mul_i32 s{sVo}, s{sXj}, {CST2}\ns_add_u32 s{sVo}, s{sVo}, {W_CNT:#x}\nv_lshl_add_u32 v{tk+1}, v0, 2, s{sVo}\ns_mov_b32 s{sCnt}, 0\ns_mov_b32 s{sGmR}, {xev-1}')
        a(f's_mov_b32 exec_lo, 0\ns_lshl_b32 s{sTmp}, s{sT}, 13\nv_mov_b32 v{tk+2}, 4096\nv_mov_b32 v{tk+3}, s{sTmp}\nv_mov_b32 v{tk+6}, 0x2000\ns_mov_b32 exec_hi, 0xffff0000\nv_mov_b32 v{tk+2}, {32*(m0-mk)}')
        a(f'v_and_b32 v{tk+1}, 7, v0\nv_mul_u32_u24 v{tk+1}, {CST2}, v{tk+1}\nv_add_u32 v{tk+1}, {W_CNT+0x480:#x}, v{tk+1}\ns_mov_b64 exec, -1')
        control('L_ctl1',min(b3idx,nms))
    elif fb>=3 and nms:
        a(f's_mov_b32 s{sJ}, {m0}\ns_lshl_b32 s{sMin}, s{sT}, 8\nv_mov_b32 v{tk+2}, {m0-mk}\nv_mov_b32 v{tk+3}, s{sMin}\nv_mov_b32 v{tk+6}, 0x100\nv_mov_b32 v{tk+4}, 0')
        a(f's_mul_i32 s{sTmp}, s{sXj}, {CST2}\ns_add_u32 s{sTmp}, s{sTmp}, {W_CNT:#x}\nv_lshl_add_u32 v{tk+1}, v0, 2, s{sTmp}')
        a(f's_mov_b32 exec_lo, 0\ns_lshl_b32 s{sTmp}, s{sT}, 13\nv_mov_b32 v{tk+2}, {32*(m0-mk)}\nv_mov_b32 v{tk+3}, s{sTmp}\nv_mov_b32 v{tk+6}, 0x2000')
        a(f'v_and_b32 v{tk+1}, 7, v0\nv_mul_u32_u24 v{tk+1}, {CST2}, v{tk+1}\nv_add_u32 v{tk+1}, {W_CNT+0x480:#x}, v{tk+1}\ns_mov_b64 exec, -1')
        control('L_ctl1',min(b3idx,nms))
    else: wait_full(min(40,2*S-4),vT,vFA)
    a(f's_cmp_lt_u32 s{sXi}, 16\ns_cbranch_scc0 L_nob3')
    a(f's_and_b32 s{sTmp}, s{sCg}, 1\ns_lshl_b32 s{sTmp}, s{sTmp}, 3\ns_lshr_b32 s{sTmp2}, s{sCg}, 4\ns_add_u32 s{sTmp}, s{sTmp}, s{sTmp2}\ns_mul_i32 s{sTmp}, s{sTmp}, 28672')
    a(f's_bfe_u32 s{sTmp2}, s{sCg}, 0x30001\ns_lshl_b32 s{sTmp2}, s{sTmp2}, 4\ns_add_u32 s{sTmp}, s{sTmp}, s{sTmp2}\ns_add_u32 s{sKo}, s{sTmp}, {W_B3:#x}')
    for k in range(4): a(f'v_mov_b32 v{vb+12+k}, 0')
    tag4(vb+12)
    def gather4(l,last32):
        a(f'{l}:')
        for i in range(4):
            a(f's_add_u32 s{sTmp}, s{sKo}, {8192*i}')
            if i==3 and last32: a('s_mov_b32 exec_hi, 0')
            a(f'buffer_load_dwordx4 v[{vb+4*i}:{vb+4*i+3}], v{v128}, s[{dWS}:{dWS+3}], s{sTmp} offen sc1')
        if last32: a('s_mov_b64 exec, -1')
        timeout()
        a('s_waitcnt vmcnt(0)')
        chk(vT,[vb,vb+4,vb+8,vb+12],[],None)
        a(f's_cbranch_vccnz {l}')
    def sum4(dst):
        for k in range(4): a(f'v_add_f32 v{dst+k}, v{vb+k}, v{vb+4+k}\nv_add_f32 v{vb+8+k}, v{vb+8+k}, v{vb+12+k}')
        for k in range(4): a(f'v_add_f32 v{dst+k}, v{dst+k}, v{vb+8+k}')
        allred('v_add_f32',[dst,dst+1,dst+2,dst+3],[vA,vA+1,vA+2,vA+3])
    if 'b' not in skip and 'g' not in skip: gather4('L_b3poll',True)
    sum4(gg)
    for k in range(4): bfr(gg+k,gg+k)
    for k in range(4): a(f'v_mul_f32 v{vA+k}, s{sL2e}, v{gg+k}')
    for k in range(4): a(f'v_exp_f32 v{vA+k}, -v{vA+k}')
    for k in range(4): a(f'v_add_f32 v{vA+k}, 1.0, v{vA+k}')
    for k in range(4): a(f'v_rcp_f32 v{vA+k}, v{vA+k}')
    for k in range(4): a(f'v_mul_f32 v{gg+k}, v{gg+k}, v{vA+k}')
    for k in range(4): bfr(gg+k,gg+k)
    stamp(6)
    a('L_nob3:')
    if fb and nms>b3idx: control('L_ctl2',nms)
    stamp(8)
    a(f's_lshr_b32 s{sTmp}, s{sCg}, 3\ns_lshl_b32 s{sTmp}, s{sTmp}, 15\ns_and_b32 s{sTmp2}, s{sCg}, 7\ns_lshl_b32 s{sTmp2}, s{sTmp2}, 4\ns_add_u32 s{sTmp}, s{sTmp}, s{sTmp2}\ns_add_u32 s{sKo}, s{sTmp}, {W_S3:#x}')
    a(f's_barrier\ns_cmp_lt_u32 s{sXi}, 16\ns_cbranch_scc0 L_hfin')
    if s3db:
        vb2=vV
        def rnd(v):
            for i in range(4): a(f'buffer_load_dwordx4 v[{v+4*i}:{v+4*i+3}], v{v128}, s[{dWS}:{dWS+3}], s{sKo+0 if i==0 else sSlot+i-1} offen sc1')
        for i in range(1,4): a(f's_add_u32 s{sSlot+i-1}, s{sKo}, {8192*i}')
        rnd(vb)
        a('L_s3poll:'); rnd(vb2); timeout()
        a('s_waitcnt vmcnt(4)'); chk(vT,[vb,vb+4,vb+8,vb+12],[],None); a('s_cbranch_vccz L_s3ok')
        rnd(vb)
        a('s_waitcnt vmcnt(4)'); chk(vT,[vb2,vb2+4,vb2+8,vb2+12],[],None); a('s_cbranch_vccnz L_s3poll')
        a('s_waitcnt vmcnt(0)\nL_s3ok:')
    else: gather4('L_s3poll',False)
    stamp(12)
    ss=vS
    sum4(ss)
    def rnd4(v):
        a(f'v_cvt_pk_bf16_f32 v{vA}, v{v}, v{v+1}\nv_cvt_pk_bf16_f32 v{vA+1}, v{v+2}, v{v+3}')
    def exp4(v):
        a(f'v_lshlrev_b32 v{v}, 16, v{vA}\nv_and_b32 v{v+1}, 0xffff0000, v{vA}\nv_lshlrev_b32 v{v+2}, 16, v{vA+1}\nv_and_b32 v{v+3}, 0xffff0000, v{vA+1}')
    rnd4(ss); exp4(ss)
    for k in range(4): a(f'v_mul_f32 v{ss+k}, v{ss+k}, v{gg+k}')
    rnd4(ss); exp4(ss)
    for k in range(4):
        a((f's_lshl_b32 s{sTmp}, s{sXf+k//2}, 16' if k%2==0 else f's_and_b32 s{sTmp}, s{sXf+k//2}, 0xffff0000')+f'\nv_add_f32 v{ss+k}, s{sTmp}, v{ss+k}')
    rnd4(ss)
    a(f's_lshl_b32 s{sTmp}, s{sCg}, 3\ns_mov_b64 exec, 1\nbuffer_store_dwordx2 v[{vA}:{vA+1}], off, s[{dOUT}:{dOUT+3}], s{sTmp}')
    a(f's_cmp_eq_u32 s{sCg}, 0\ns_cbranch_scc0 L_hfin\nv_mov_b32 v{vT+1}, s{sT}\nbuffer_store_dword v{vT+1}, off, s[{dWS}:{dWS+3}], 0')
    a('L_hfin:')
    if pad<0:
        pad=-pad
        a(f'ds_read_b32 v{vT}, v{vFA} offset:8\ns_waitcnt lgkmcnt(0)\nv_readfirstlane_b32 s{sLoc}, v{vT}\ns_cmp_eq_u32 s{sLoc}, 2\ns_cbranch_scc1 L_end')
    if pad: a(f'L_pad:\ns_memrealtime s[{sSt}:{sSt+1}]\ns_waitcnt lgkmcnt(0)\ns_sub_u32 s{sTmp}, s{sSt}, s{sSt0}\ns_cmp_lt_u32 s{sTmp}, {pad}\ns_cbranch_scc1 L_pad')
    stamp(13)
    stamp_out(dWS,[(15,'umax',13,0)])
    a('L_end:\ns_endpgm')
    n=a.fix()
    out=HDR+f'; @launch grid=(256,1,1) block=({64*NWAVE},1,1) lds=163840\n'
    out+=f'.amdgcn_target "amdgcn-amd-amdhsa--gfx950"\n.text\n.globl {NAME}\n.p2align 8\n.type {NAME},@function\n'
    out+=a.text()
    out+=f'''.section .rodata,"a"
.p2align 6
.amdhsa_kernel {NAME}
  .amdhsa_next_free_vgpr 204
  .amdhsa_next_free_sgpr 96
  .amdhsa_accum_offset 204
  .amdhsa_group_segment_fixed_size 0
  .amdhsa_kernarg_size 96
  .amdhsa_user_sgpr_count 2
  .amdhsa_user_sgpr_kernarg_segment_ptr 1
  .amdhsa_system_sgpr_workgroup_id_x 1
  .amdhsa_float_denorm_mode_32 3
.end_amdhsa_kernel
'''
    return out
if __name__=='__main__':
    kw=eval('dict(%s)'%(sys.argv[1] if len(sys.argv)>1 else ''))
    sys.stdout.write(gen(**kw))
```

```python
import re
TRANS=('v_exp_f32','v_log_f32','v_rcp_f32','v_rsq_f32','v_sqrt_f32','v_sin_f32','v_cos_f32','v_rcp_iflag_f32')
def regs(op):
    op=op.strip()
    if op.startswith('-'): op=op[1:]
    m=re.fullmatch(r'abs\((.*)\)',op)
    if m: op=m.group(1)
    m=re.fullmatch(r'\|(.*)\|',op)
    if m: op=m.group(1)
    m=re.fullmatch(r'([vsa])(\d+)',op)
    if m: return {(m.group(1),int(m.group(2)))}
    m=re.fullmatch(r'([vsa])\[(\d+):(\d+)\]',op)
    if m: return {(m.group(1),i) for i in range(int(m.group(2)),int(m.group(3))+1)}
    if op in('vcc','vcc_lo','vcc_hi'): return {('s','vcc')}
    if op in('exec','exec_lo','exec_hi'): return {('s','exec')}
    if op=='m0': return {('s','m0')}
    return set()
class I:
    def __init__(s,text):
        s.text=text; t=text.split(';')[0].strip()
        s.label=None; s.target=None; s.mn=''; s.ops=[]; s.mods=''
        s.w=set(); s.r=set(); s.cls='other'; s.ws=1; s.A=s.B=s.C=set(); s.dpp=False; s.sdata=set()
        if t.endswith(':'): s.label=t[:-1]; s.cls='label'; s.ws=0; return
        if t=='' or t.startswith('.'): s.cls='dir'; s.ws=0; return
        p=t.split(None,1); s.mn=p[0]; rest=p[1] if len(p)>1 else ''
        ops=[];cur='';d=0
        for ch in rest:
            if ch in '[(': d+=1
            if ch in '])': d-=1
            if ch==',' and d==0: ops.append(cur.strip()); cur=''
            else: cur+=ch
        if cur.strip():
            q=cur.strip().split(None,1); ops.append(q[0]); s.mods=q[1] if len(q)>1 else ''
        s.ops=ops; mn=s.mn
        R=lambda l:set().union(*[regs(o) for o in l]) if l else set()
        if mn=='s_nop': s.cls='nop'; s.ws=int(ops[0],0)+1
        elif mn.startswith('s_cbranch') or mn=='s_branch': s.cls='branch'; s.target=ops[0]
        elif mn in('s_waitcnt','s_barrier','s_setprio','s_sleep','s_endpgm'): s.cls='ctl'
        elif mn.startswith(('s_load','s_memtime','s_memrealtime','s_atomic','s_buffer_load')):
            s.cls='smem'; s.w=R(ops[:1]); s.r=R(ops[1:])
        elif mn.startswith('s_cmp') or mn.startswith('s_bitcmp'): s.cls='salu'; s.r=R(ops)
        elif mn.startswith('s_'):
            s.cls='salu'; s.w=R(ops[:1]); s.r=R(ops[1:])
            if 'saveexec' in mn: s.w|={('s','exec')}; s.r|={('s','exec')}
        elif mn.startswith('v_mfma'):
            s.cls='mfma'; s.w=R(ops[:1]); s.A=R(ops[1:2]); s.B=R(ops[2:3]); s.C=R(ops[3:4]); s.r=s.A|s.B|s.C
            s.passes=8 if '32x32' in mn else 4
        elif mn.startswith('v_'):
            s.cls='valu'; base=re.sub(r'_(e32|e64|dpp|sdwa)$','',mn)
            s.trans=base in TRANS
            s.dpp=mn.endswith('_dpp')
            if base.startswith('v_permlane'): s.w=R(ops[:2]); s.r=R(ops[:2])
            elif base in('v_add_co_u32','v_addc_co_u32','v_sub_co_u32','v_subb_co_u32'): s.w=R(ops[:2]); s.r=R(ops[2:])
            else:
                s.w=R(ops[:1]); s.r=R(ops[1:])
                if base.startswith(('v_fmac','v_dot2c','v_writelane','v_pk_fmac')) or s.dpp: s.r|=R(ops[:1])
        elif mn.startswith('ds_'):
            s.cls='ds'
            if mn.startswith(('ds_read','ds_bpermute','ds_permute','ds_swizzle')) or '_rtn' in mn: s.w=R(ops[:1]); s.r=R(ops[1:])
            else: s.r=R(ops)
        elif mn.startswith(('buffer_','global_')):
            s.cls='vmem'
            lds=(' lds' in ' '+s.mods) or '_lds_' in mn
            s.lds=lds
            if 'load' in mn and not lds: s.w=R(ops[:1]); s.r=R(ops[1:])
            elif 'atomic' in mn and 'sc0' in s.mods: s.w=R(ops[:1]); s.r=R(ops)
            else: s.r=R(ops)
            if lds: s.r|={('s','m0')}
            if 'store' in mn and ('x4' in mn or 'x3' in mn):
                s.sdata=R(ops[:1]) if mn.startswith('buffer') else R(ops[1:2])
def need(p,c):
    n=0
    V=lambda S:{x for x in S if x[0] in 'va'}
    Sg=lambda S:{x for x in S if x[0]=='s'}
    if p.cls=='valu':
        vw=V(p.w); sw=Sg(p.w)
        if c.cls=='mfma' and vw&c.r: n=max(n,2)
        if c.cls=='valu':
            if c.dpp and vw&c.r: n=max(n,2)
            if c.mn.startswith('v_permlane') and vw&c.r: n=max(n,2)
            if c.mn.startswith(('v_readlane','v_readfirstlane')) and vw&c.r: n=max(n,1)
            if p.trans and vw&c.r: n=max(n,1)
            if sw&c.r: n=max(n,4 if c.mn.startswith(('v_readlane','v_writelane')) else 2)
        if c.cls in('vmem','ds') and p.trans and vw&c.r: n=max(n,1)
        if c.cls=='vmem' and sw&c.r: n=max(n,5)
        if c.cls=='smem' and sw&c.r: n=max(n,5)
        if c.cls in('salu','branch') and sw&(c.r|({('s','vcc')} if 'vcc' in c.mn else set())): n=max(n,1)
    if p.mn.startswith('v_dot') and c.cls in('valu','vmem','ds','mfma') and p.w&(c.r|c.w):
        same=re.sub(r'_(e32|e64|dpp)$','',p.mn)==re.sub(r'_(e32|e64|dpp)$','',c.mn)
        srcab=set().union(*[regs(o) for o in c.ops[1:]]) if same else None
        if not same or p.w&srcab: n=max(n,3)
    if p.cls=='salu' and ('s','m0') in p.w:
        if c.cls=='vmem' and getattr(c,'lds',False): n=max(n,1)
        if c.cls=='valu' and ('s','m0') in c.r: n=max(n,1)
    if p.cls=='mfma':
        k={4:(8,6,3),8:(12,10,7)}[p.passes]
        if c.cls=='mfma':
            if p.w&(c.A|c.B): n=max(n,k[0])
            if p.w&c.C and p.w!=c.C: n=max(n,k[1])
            if p.w&c.w and not (p.w==c.C): n=max(n,k[1])
        elif c.cls in('valu','vmem','ds'):
            if p.w&(c.r|c.w): n=max(n,k[0])
            if c.cls=='valu' and p.C&c.w: n=max(n,k[2])
    if p.cls=='vmem' and p.sdata and c.cls in('valu','ds','vmem','mfma') and p.sdata&c.w: n=max(n,2)
    return n
class Asm:
    def __init__(s): s.l=[]
    def __call__(s,text):
        for t in text.split('\n'):
            t=t.strip()
            if t: s.l.append(I(t))
    def fix(s):
        nins=0
        while True:
            L=s.l; lab={x.label:i for i,x in enumerate(L) if x.label}
            src={}
            for i,x in enumerate(L):
                if x.target: src.setdefault(lab[x.target],[]).append(i)
            def preds(i):
                o=[]
                if i>0 and L[i-1].mn not in('s_branch','s_endpgm'): o.append(i-1)
                o+=src.get(i,[])
                return o
            fixed=False
            for i,c in enumerate(L):
                if c.cls in('label','dir','nop','ctl'): continue
                worst=0; seen={}
                st=[(j,0) for j in preds(i)]
                while st:
                    j,d=st.pop()
                    if d>=12 or seen.get(j,99)<=d: continue
                    seen[j]=d
                    worst=max(worst,need(L[j],c)-d)
                    for k in preds(j): st.append((k,d+L[j].ws))
                if worst>0:
                    L.insert(i,I(f's_nop {worst-1}')); nins+=1; fixed=True; break
            if not fixed: break
        return nins
    def text(s):
        return '\n'.join((x.text if x.cls in('label','dir') else '    '+x.text) for x in s.l)+'\n'
```

```python
import sys, struct
from asmlib import Asm
NAME='recurrent_scan__gqa_block_cached__geglu_ffn__decode_kernel'
HDR=open('recurrent_scan__gqa_block_cached__geglu_ffn__decode.s.ref').read().split('; Override launch')[0]
def f2u(x): return struct.unpack('<I',struct.pack('<f',x))[0]
LOG2E=f2u(1.4426950408889634); SCALE=f2u(128**-0.5)
R=18; SLOT=8192; RING=R*SLOT
MISC=RING
L_FULL=MISC; L_QRDY=MISC+8; L_MODE=MISC+12; L_REL=MISC+16; L_PF=MISC+64; L_SM=MISC+128; L_X=MISC+1024; L_XN=MISC+2048; L_Q=MISC+4096; L_SC=MISC+8192
W_B4=0x40000; W_CNT=0x1000; W_QG=0x10000; W_QX=0x18000; W_F1=0x20000; W_P2=0x280000; W_S3=0x100000; W_B3=0x180000; W_ST=0x200000; WS_SZ=0x380000
PC=576; NWAVE=6; INF=0x7fffffff; CST=0x180; CST2=0x1100
def gen(mapping='hx', N=20, S=64, diag=0, pol='nt', wpol='nt', local=1, f1wait=12, N0=None, fb=3, dN=4, m0=20, mk=4, mlast=124, th=1.5, tau=0.,
        xev=3, xc=5., keep=(13,), qfall=24, jb1=44, jb2=76, jpre=108, s3pipe=0, s3pre=1):
    a=Asm()
    N0=N0 or N
    vpol=pol
    W=N0-4
    modes=[N,N-dN,N+dN] if fb else [N]
    assert W%4==0 and S>=8 and mapping=='hx'
    sB,sW=2,3
    pX,pK,pV,pWQ,pWO,pWG,pWU,pWD,pOUT,pWS=4,6,8,10,12,16,18,20,22,26
    sH,sC,sXi,sF,sT,sTO=48,49,50,51,52,53
    sFull,sG,sSlot,sSlotV,sMin,sKo,sVo,sTmp,sTmp2,sCnt,sGmR=54,55,56,57,58,59,60,61,62,63,64
    sScale,sL2e,sT1,sGend,sCw,sXj=65,66,67,68,69,74
    sSt=70
    sSt0=72
    sXf=76
    sLoc,sKb,sJ,sCg,sXcc,sTmp3=78,79,80,81,82,83
    vSt=159
    uid=[0]
    def lab(p): uid[0]+=1; return f'L_{p}_{uid[0]}'
    def srd(d,p,size):
        a(f's_mov_b32 s{d}, s{p}\ns_mov_b32 s{d+1}, s{p+1}\ns_mov_b32 s{d+2}, {size:#x}\ns_mov_b32 s{d+3}, 0x20000')
    role=['L']
    def stamp(k):
        if diag==3 and not (role[0]=='L' or k in keep): return
        if diag: a(f's_memrealtime s[{sSt}:{sSt+1}]\ns_waitcnt lgkmcnt(0)\nv_writelane_b32 v{vSt}, s{sSt}, {k}')
    def stamp_out(srd_ws):
        if diag:
            a(f'v_writelane_b32 v{vSt}, s{sSt0}, 0')
            a(f's_mul_i32 s{sTmp}, s{sB}, {NWAVE}\ns_add_u32 s{sTmp}, s{sTmp}, s{sW}\ns_lshl_b32 s{sTmp}, s{sTmp}, 8\ns_add_u32 s{sTmp}, s{sTmp}, {W_ST:#x}')
            a(f's_mov_b64 exec, -1\nv_lshlrev_b32 v1, 2, v0\nbuffer_store_dword v{vSt}, v1, s[{srd_ws}:{srd_ws+3}], s{sTmp} offen sc1')
    def setexec(m):
        lo,hi=m&0xffffffff,m>>32
        if hi==0 and lo<0x80000000: a(f's_mov_b64 exec, {lo:#x}')
        else: a(f's_mov_b32 exec_lo, {lo:#x}\ns_mov_b32 exec_hi, {hi:#x}')
    def timeout():
        a(f's_sub_u32 s{sTO}, s{sTO}, 1\ns_cbranch_scc1 L_end')
    def poll_full(vtmp,vaddr):
        a(f'ds_read_b64 v[{vtmp}:{vtmp+1}], v{vaddr}')
        timeout()
        a(f's_waitcnt lgkmcnt(0)\nv_readfirstlane_b32 s{sFull}, v{vtmp}\nv_readfirstlane_b32 s{sGend}, v{vtmp+1}')
    def wait_full(x, vtmp, vaddr):
        assert vtmp%2==0
        ok=lab('fok'); p=lab('fp')
        a(f's_cmp_gt_i32 s{sFull}, {x}\ns_cbranch_scc1 {ok}\n{p}:')
        poll_full(vtmp,vaddr)
        a(f's_cmp_gt_i32 s{sFull}, {x}\ns_cbranch_scc0 {p}\n{ok}:')
    def bfr(dst,src):
        a(f'v_cvt_pk_bf16_f32 v{dst}, v{src}, v{src}\nv_and_b32 v{dst}, 0xffff0000, v{dst}')
    def allred(op, vs, ts, lo=(8,4,2,1), hi=(16,32)):
        for r in lo:
            for v in vs: a(f'{op}_dpp v{v}, v{v}, v{v} row_ror:{r} row_mask:0xf bank_mask:0xf')
        for sw in hi:
            for v,t in zip(vs,ts): a(f'v_mov_b32 v{t}, v{v}')
            for v,t in zip(vs,ts): a(f'v_permlane{sw}_swap_b32 v{v}, v{t}')
            for v,t in zip(vs,ts): a(f'{op} v{v}, v{v}, v{t}')
    vMask=157
    def tag4(v):
        for k in range(4): a(f'v_bfi_b32 v{v+k}, v{vMask}, s{sT if k%2==0 else sT1}, v{v+k}')
    def chk(acc,regs_mt,regs_full,acc2):
        first=True
        for v in regs_mt:
            for k in range(4):
                s=sT if k%2==0 else sT1
                a(f'v_xor_b32 v{acc}, s{s}, v{v+k}' if first else f'v_bitop3_b32 v{acc}, v{v+k}, s{s}, v{acc} bitop3:0xbe'); first=False
        if regs_full:
            first=True
            for v in regs_full:
                a(f'v_xor_b32 v{acc2}, s{sT}, v{v}' if first else f'v_bitop3_b32 v{acc2}, v{v}, s{sT}, v{acc2} bitop3:0xbe'); first=False
            a(f'v_and_or_b32 v{acc}, v{acc}, v{vMask}, v{acc2}')
        else: a(f'v_and_b32 v{acc}, v{vMask}, v{acc}')
        a(f'v_cmp_ne_u32 vcc, 0, v{acc}')

    a(f'{NAME}:')
    if diag: a(f's_memrealtime s[{sSt0}:{sSt0+1}]')
    a(f's_cmp_ge_u32 s{sB}, 256\ns_cbranch_scc1 L_end')
    a('s_load_dwordx16 s[4:19], s[0:1], 0\ns_load_dwordx8 s[20:27], s[0:1], 64')
    if diag: a(f'v_mov_b32 v{vSt}, 0')
    a(f'v_lshrrev_b32 v1, 6, v0\nv_and_b32 v0, 63, v0\nv_readfirstlane_b32 s{sW}, v1')
    a(f's_and_b32 s{sXj}, s{sB}, 7\ns_lshr_b32 s{sXi}, s{sB}, 3')
    a(f's_mul_i32 s{sF}, s{sXj}, 28\ns_add_u32 s{sF}, s{sF}, s{sXi}')
    a(f's_cmp_lt_u32 s{sXi}, 28\ns_cselect_b32 s{sF}, s{sF}, 0x100000')
    if mapping=='hx': a(f's_mov_b32 s{sH}, s{sXj}\ns_mov_b32 s{sC}, s{sXi}')
    else: a(f's_lshr_b32 s{sH}, s{sB}, 5\ns_and_b32 s{sC}, s{sB}, 31')
    a(f's_mov_b32 s{sTO}, 200000\ns_mov_b32 s{sFull}, -1\ns_mov_b32 s{sGend}, {INF:#x}')
    a(f'v_lshrrev_b32 v2, 4, v0\nv_and_b32 v3, 15, v0')
    a(f's_cmp_lg_u32 s{sW}, 0\ns_cbranch_scc1 L_cons')
    vK0,vV0,vWQ,vFF,vFA,vRA,vF,vX,vTQ=4,8,10,11,12,13,14,20,21
    a('s_setprio 3')
    a(f'v_lshlrev_b32 v{vX}, 4, v0')
    a(f'v_lshrrev_b32 v{vWQ}, 2, v0\nv_lshlrev_b32 v{vWQ}, 13, v{vWQ}\nv_lshlrev_b32 v1, 1, v2\nv_xor_b32 v1, v1, v0\nv_and_b32 v1, 3, v1\nv_lshl_add_u32 v{vWQ}, v1, 4, v{vWQ}')
    a(f's_and_b32 s{sTmp}, s{sC}, 7\ns_lshl_b32 s{sTmp}, s{sTmp}, 7\ns_bfe_u32 s{sTmp2}, s{sC}, 0x10003\ns_lshl_b32 s{sTmp2}, s{sTmp2}, 6\ns_add_u32 s{sTmp}, s{sTmp}, s{sTmp2}')
    a(f's_lshl_b32 s{sTmp2}, s{sH}, 10\ns_add_u32 s{sTmp}, s{sTmp}, s{sTmp2}\ns_lshr_b32 s{sTmp2}, s{sC}, 4\ns_lshl_b32 s{sTmp2}, s{sTmp2}, 21\ns_add_u32 s{sVo}, s{sTmp}, s{sTmp2}')
    a(f'v_xor_b32 v{vK0}, v2, v3\nv_lshlrev_b32 v{vK0}, 4, v{vK0}\nv_lshl_add_u32 v{vK0}, v2, 8, v{vK0}')
    for k in (1,2,3): a(f'v_xor_b32 v{vK0+k}, {64*k}, v{vK0}')
    a(f'v_lshlrev_b32 v{vV0}, 1, v2\nv_xor_b32 v{vV0}, v{vV0}, v3\nv_lshlrev_b32 v{vV0}, 4, v{vV0}\nv_lshl_add_u32 v{vV0}, v2, 8, v{vV0}\nv_xor_b32 v{vV0+1}, 128, v{vV0}')
    a(f'v_lshrrev_b32 v{vFF}, 3, v0\nv_mul_u32_u24 v{vFF}, 3584, v{vFF}\nv_lshlrev_b32 v1, 1, v2\nv_xor_b32 v1, v1, v0\nv_and_b32 v1, 7, v1\nv_lshl_add_u32 v{vFF}, v1, 4, v{vFF}')
    a(f's_and_b32 s{sTmp}, s{sF}, 7\ns_mul_i32 s{sTmp}, s{sTmp}, {64*3584}\ns_lshr_b32 s{sCnt}, s{sF}, 3\ns_lshl_b32 s{sCnt}, s{sCnt}, 7\ns_add_u32 s{sCnt}, s{sCnt}, s{sTmp}')
    a(f'v_mov_b32 v{vFA}, {L_FULL}\nv_mov_b32 v{vRA}, {L_REL}\nv_mov_b32 v{vF}, -1\nv_mov_b32 v{vF+1}, {INF:#x}\nds_write_b64 v{vFA}, v[{vF}:{vF+1}]')
    a(f's_lshl_b32 s{sKb}, s{sH}, 24\ns_lshl_b32 s{sTmp}, s{sC}, 19\ns_add_u32 s{sKo}, s{sKb}, s{sTmp}')
    def advk():
        a(f's_mov_b32 s{sVo}, s{sKo}\ns_add_u32 s{sKo}, s{sKo}, 8192')
    a(f's_mov_b32 m0, {L_X:#x}')
    a('s_waitcnt lgkmcnt(0)')
    dK,dV,dWQ,dWG,dWU,dXl,dWSl=28,32,36,40,44,84,88
    srd(dXl,pX,1024)
    a(f'buffer_load_dwordx4 v{vX}, s[{dXl}:{dXl+3}], 0 offen lds')
    srd(dWQ,pWQ,512*4096*2)
    stamp(10)
    issued=[1]; pub=[-1]
    def pubv(v): a(f'v_mov_b32 v{vF}, {v}\nds_write_b32 v{vFA}, v{vF}')
    def pace():
        if issued[0]>W:
            a(f's_waitcnt vmcnt({W})')
            g=(issued[0]-W-1)//8
            if g>pub[0]:
                pub[0]=g; pubv(g); stamp(11+g)
    def sub(kind, g, sb):
        base=(g%R)*SLOT+4096*sb
        a(f's_mov_b32 m0, {base:#x}')
        for k in range(4):
            n=4*sb+k
            if kind=='K':
                if k==0: a(f's_add_u32 s{sTmp}, s{sKo}, {4096*sb}')
                a(f'buffer_load_dwordx4 v{vK0+k}, s[{dK}:{dK+3}], s{sTmp} offen offset:{1024*k} {pol} lds')
            elif kind in('WQ0','WQ1'):
                n+=8*(kind=='WQ1')
                a(f's_add_u32 s{sTmp}, s{sVo}, {16*8192*n-1024*k}')
                a(f'buffer_load_dwordx4 v{vWQ}, s[{dWQ}:{dWQ+3}], s{sTmp} offen offset:{1024*k} {wpol} lds')
            elif kind in('G','U'):
                d=dWG if kind=='G' else dWU
                a(f's_add_u32 s{sTmp}, s{sCnt}, {8*3584*n-1024*k}')
                a(f'buffer_load_dwordx4 v{vFF}, s[{d}:{d+3}], s{sTmp} offen offset:{1024*k} {wpol} lds')
        issued[0]+=4
    barrier_done=False
    for g,kind in enumerate(['WQ0','WQ1','G','K','U']):
        if kind=='G': srd(dWG,pWG,512*1792*2); srd(dK,pK,1<<27); srd(dWU,pWU,512*1792*2); srd(dV,pV,1<<27)
        for sb in range(2):
            if issued[0]>W and not barrier_done:
                a('s_barrier'); barrier_done=True
            pace(); sub(kind,g,sb)
    if not barrier_done: a('s_barrier')
    if pub[0]<0 or issued[0]<=W+8:
        for left,g in ((40,0),(32,1),(24,2)):
            if g>pub[0]: a(f's_waitcnt vmcnt({left})'); pubv(g); stamp(11+g); pub[0]=g
    if diag: srd(dWSl,pWS,WS_SZ)
    advk()
    a(f's_mov_b32 s{sG}, 5\ns_mov_b32 s{sSlot}, {5*SLOT}\ns_mov_b32 s{sMin}, 0\ns_mov_b32 s{sJ}, 1\ns_mov_b32 s{sFull}, {pub[0]}\ns_mov_b32 s{sCg}, 0')
    def relcheck():
        ok=lab('rok'); p=lab('rp')
        a(f's_sub_i32 s{sGmR}, s{sG}, {R}\ns_cmp_gt_i32 s{sMin}, s{sGmR}\ns_cbranch_scc1 {ok}')
        a(f'{p}:\nds_read_b128 v[16:19], v{vRA}\nds_read_b32 v15, v{vRA} offset:16'); timeout()
        a(f's_waitcnt lgkmcnt(0)\nv_min3_i32 v16, v16, v17, v18\nv_min3_i32 v16, v16, v19, v15\nv_readfirstlane_b32 s{sMin}, v16\ns_cmp_gt_i32 s{sMin}, s{sGmR}\ns_cbranch_scc0 {p}\n{ok}:')
    def adv():
        a(f's_add_u32 s{sG}, s{sG}, 1\ns_add_u32 s{sSlot}, s{sSlot}, {SLOT}\ns_cmp_eq_u32 s{sSlot}, {RING}\ns_cselect_b32 s{sSlot}, 0, s{sSlot}')
    def batch(kind,sb):
        so=sKo if kind=='K' else sVo
        if sb==0: a(f's_mov_b32 m0, s{sSlot}')
        else: a(f's_add_u32 m0, s{sSlot}, 4096')
        a(f's_add_u32 s{sTmp}, s{so}, {4096*sb}')
        for k in range(4):
            if kind=='K': a(f'buffer_load_dwordx4 v{vK0+k}, s[{dK}:{dK+3}], s{sTmp} offen offset:{1024*k} {pol} lds')
            else: a(f'buffer_load_dwordx4 v{vV0+(k&1)}, s[{dV}:{dV+3}], s{sTmp} offen offset:{1024*k} {vpol} lds')
    def pubrel(d):
        a((f's_sub_u32 s{sTmp}, s{sG}, {-d}' if d<0 else f's_add_u32 s{sTmp}, s{sG}, {d}')+f'\ns_max_i32 s{sFull}, s{sFull}, s{sTmp}\nv_mov_b32 v{vF}, s{sFull}\nds_write_b32 v{vFA}, v{vF}')
    def dyn_group(kind,W,mid=None):
        relcheck()
        for sb in range(2):
            a(f's_waitcnt vmcnt({W})')
            if (4*sb-W)%8==0: pubrel(-(W-4*sb)//8)
            batch(kind,sb)
        if mid: mid()
        adv()
    def lstamp():
        if diag:
            l=lab('nost')
            a(f's_and_b32 s{sTmp}, s{sJ}, 7\ns_cmp_eq_u32 s{sTmp}, 0\ns_cbranch_scc0 {l}\ns_lshr_b32 s{sTmp}, s{sJ}, 3\ns_add_u32 s{sTmp}, s{sTmp}, 2\ns_min_u32 s{sTmp}, s{sTmp}, 9\ns_mov_b32 m0, s{sTmp}')
            a(f's_memrealtime s[{sSt}:{sSt+1}]\ns_waitcnt lgkmcnt(0)\nv_writelane_b32 v{vSt}, s{sSt}, m0\n{l}:')
    def moderead(): a(f'ds_read_b32 v{vTQ}, v{vFA} offset:12')
    if fb: moderead()
    a('L_ltop:')
    if fb:
        a(f's_waitcnt lgkmcnt(0)\nv_readfirstlane_b32 s{sTmp}, v{vTQ}')
        for mi in range(1,len(modes)): a(f's_cmp_eq_u32 s{sTmp}, {mi}\ns_cbranch_scc1 L_lloop{mi}')
    for mi,Np in enumerate(modes):
        W=Np-4; assert W%4==0 and W<=59
        a(f'L_lloop{mi}:')
        if diag: a(f's_add_u32 s{sCg}, s{sCg}, {1<<(8*mi)}')
        dyn_group('K',W); dyn_group('V',W,moderead if fb else None)
        lstamp()
        advk(); a(f's_add_u32 s{sJ}, s{sJ}, 1')
        a(f's_cmp_lt_u32 s{sJ}, {S}\ns_cbranch_scc1 L_ltop')
        if mi<len(modes)-1: a('s_branch L_lend')
    W=max(modes)-4
    a('L_lend:')
    a(f'v_mov_b32 v{vF}, s{sG}\nds_write_b32 v{vFA}, v{vF} offset:4')
    adv(); relcheck()
    def landed(left_out, tot):
        n=tot-left_out
        if n>=8: return 1
        if n>=0: return 0
        return -1+(n//8)+ (0)
    last=None
    for sb in range(2):
        a(f's_waitcnt vmcnt({W})')
        if (4*sb-W)%8==0: last=landed(W,4*sb); pubrel(last)
        batch('V',sb)
    stamp(1)
    for left in range((W//8)*8,-1,-8):
        d=landed(left,8)
        if d==last: continue
        a(f's_waitcnt vmcnt({left})'); pubrel(d); last=d
    stamp(2)
    if diag: a(f'v_writelane_b32 v{vSt}, s{sJ}, 16\nv_writelane_b32 v{vSt}, s{sCg}, 17')
    stamp_out(dWSl)
    a('s_endpgm')
    a('L_cons:'); role[0]='C'
    vFA,vRA,vKp,vVp,vM,vMb,vL,vTm=4,5,6,7,8,9,10,11
    vQ=12; vO=28; vK=60; vV=92; vS=124; vA=132; vP=140; vT=144; vAd=148; vL16=156; vX1=160
    dWS,dWD,dWO,dOUT=28,36,40,44
    a(f's_sub_u32 s{sCw}, s{sW}, 1')
    a(f'v_mov_b32 v{vFA}, {L_FULL}\ns_lshl_b32 s{sTmp}, s{sCw}, 2\ns_add_u32 s{sTmp}, s{sTmp}, {L_REL}\nv_mov_b32 v{vRA}, s{sTmp}')
    a(f's_lshl_b32 s{sG}, s{sCw}, 1\ns_add_u32 s{sG}, s{sG}, 3')
    a(f's_cmp_eq_u32 s{sCw}, 0\ns_cselect_b32 s{sTmp}, 0, s{sG}\ns_cmp_eq_u32 s{sCw}, 4\ns_cselect_b32 s{sTmp}, 2, s{sTmp}\nv_mov_b32 v1, s{sTmp}\nds_write_b32 v{vRA}, v1')
    a(f'v_mov_b32 v1, 0\nds_write_b32 v{vFA}, v1 offset:8\nds_write_b32 v{vFA}, v1 offset:12\nds_write_b32 v{vRA}, v1 offset:{L_PF-L_REL}')
    a(f's_mov_b32 s{sScale}, {SCALE:#x}\ns_mov_b32 s{sL2e}, {LOG2E:#x}\nv_mov_b32 v{vMask}, 0xff')
    a(f'v_xor_b32 v{vKp}, v2, v3\nv_lshlrev_b32 v{vKp}, 4, v{vKp}\nv_lshl_add_u32 v{vKp}, v3, 8, v{vKp}')
    a(f'v_lshrrev_b32 v1, 2, v3\nv_lshl_add_u32 v1, v2, 2, v1\nv_and_b32 v{vVp}, 7, v1\nv_lshlrev_b32 v{vVp}, 5, v{vVp}\nv_lshl_add_u32 v{vVp}, v1, 8, v{vVp}\nv_and_b32 v{vTm}, 3, v0\nv_lshl_add_u32 v{vVp}, v{vTm}, 3, v{vVp}')
    a(f'v_lshlrev_b32 v{vL16}, 4, v0')
    a(f's_lshl_b32 s{sCg}, s{sXj}, 4\ns_add_u32 s{sCg}, s{sCg}, s{sXi}')
    a('s_waitcnt lgkmcnt(0)')
    a(f's_load_dword s{sT}, s[{pWS}:{pWS+1}], 0')
    a(f's_and_b32 s{sTmp}, s{sCg}, 127\ns_lshl_b32 s{sTmp}, s{sTmp}, 3\ns_load_dwordx2 s[{sXf}:{sXf+1}], s[{pX}:{pX+1}], s{sTmp}')
    srd(dWS,pWS,WS_SZ); srd(dWD,pWD,1792*512*2); srd(dWO,pWO,4096*512*2); srd(dOUT,pOUT,1024)
    a('s_barrier')
    w0,w1,w2,w3=vQ+8,vQ+9,vQ+10,vQ+11
    def wait_q(l,v):
        a(f'{l}:\nds_read_b32 v{v}, v{vFA} offset:8'); timeout()
        a(f's_waitcnt lgkmcnt(0)\nv_readfirstlane_b32 s{sLoc}, v{v}\ns_cmp_eq_u32 s{sLoc}, 0\ns_cbranch_scc1 {l}')
    def st2(loc,*st):
        l1,l2=lab('sl'),lab('sd')
        a(f's_cbranch_scc1 {l1}')
        for x in st: a(x+' sc1')
        a(f's_branch {l2}\n{l1}:')
        for x in st: a(x)
        a(f'{l2}:')
    a(f's_and_b32 s{sTmp}, s{sCw}, 3\ns_cmp_eq_u32 s{sTmp}, 0\ns_cbranch_scc1 L_ln')
    wait_q('L_waitq',w0)
    a(f's_add_u32 s{sT}, s{sT}, 1\ns_lshr_b32 s{sT1}, s{sT}, 8\ns_branch L_qready')
    a('L_ln:')
    vx=vK; vxf=vK+4; vWD=vO; vXf=vV
    wait_full(-1,vT,vFA)
    a(f'v_add_u32 v{vT}, {L_X}, v{vL16}\nds_read_b128 v[{vx}:{vx+3}], v{vT}')
    a(f's_add_u32 s{sT}, s{sT}, 1\ns_lshr_b32 s{sT1}, s{sT}, 8')
    stamp(1)
    a('s_waitcnt lgkmcnt(0)')
    for j in range(4): a(f'v_lshlrev_b32 v{vxf+2*j}, 16, v{vx+j}\nv_and_b32 v{vxf+2*j+1}, 0xffff0000, v{vx+j}')
    t0=vxf+8; t1=t0+1; t2=t0+2; vd=t0+4
    a(f'v_add_f32 v{t0}, v{vxf}, v{vxf+1}\nv_add_f32 v{t1}, v{vxf+2}, v{vxf+3}\nv_add_f32 v{t2}, v{vxf+4}, v{vxf+5}\nv_add_f32 v{t0}, v{t0}, v{t1}\nv_add_f32 v{t1}, v{vxf+6}, v{vxf+7}\nv_add_f32 v{t0}, v{t0}, v{t2}\nv_add_f32 v{t0}, v{t0}, v{t1}')
    allred('v_add_f32',[t0],[t1])
    a(f'v_mul_f32 v{t0}, {f2u(1/512.):#x}, v{t0}')
    for j in range(8): a(f'v_sub_f32 v{vd+j}, v{vxf+j}, v{t0}')
    a(f'v_mul_f32 v{t2}, v{vd}, v{vd}')
    for j in range(1,8): a(f'v_fmac_f32 v{t2}, v{vd+j}, v{vd+j}')
    allred('v_add_f32',[t2],[t1])
    a(f'v_mul_f32 v{t2}, {f2u(1/512.):#x}, v{t2}')
    bfr(t0,t0); bfr(t2,t2)
    a(f'v_add_f32 v{t2}, {f2u(1e-5):#x}, v{t2}'); bfr(t2,t2)
    a(f'v_sqrt_f32 v{t2}, v{t2}'); bfr(t2,t2)
    a(f'v_rcp_f32 v{t2}, v{t2}')
    for j in range(8): a(f'v_sub_f32 v{vd+j}, v{vxf+j}, v{t0}')
    for j in range(4): a(f'v_cvt_pk_bf16_f32 v{vx+j}, v{vd+2*j}, v{vd+2*j+1}')
    for j in range(4): a(f'v_lshlrev_b32 v{vd+2*j}, 16, v{vx+j}\nv_and_b32 v{vd+2*j+1}, 0xffff0000, v{vx+j}')
    for j in range(8): a(f'v_mul_f32 v{vd+j}, v{vd+j}, v{t2}')
    for j in range(4): a(f'v_cvt_pk_bf16_f32 v{vx+j}, v{vd+2*j}, v{vd+2*j+1}')
    a(f's_lshl_b32 s{sTmp}, s{sCw}, 8\ns_add_u32 s{sTmp}, s{sTmp}, {L_XN}\nv_add_u32 v{t0}, s{sTmp}, v{vL16}\nds_write_b128 v{t0}, v[{vx}:{vx+3}]')
    a(f's_cmp_eq_u32 s{sCw}, 0\ns_cbranch_scc0 L_help')
    a(f's_lshr_b32 s{sTmp2}, s{sC}, 4\ns_lshl_b32 s{sTmp2}, s{sTmp2}, 9\ns_add_u32 s{sTmp}, s{sTmp}, s{sTmp2}\nv_lshl_add_u32 v{t0}, v2, 3, s{sTmp}')
    for j in range(8): a(f'ds_read2_b64 v[{vXf+4*j}:{vXf+4*j+3}], v{t0} offset0:{8*j} offset1:{8*j+4}')
    vD=vQ; vpt=vT; vB=vK
    a(f'v_lshlrev_b32 v{vpt}, 6, v1\nv_lshl_add_u32 v{vpt}, v{vTm}, 3, v{vpt}\nv_and_b32 v{vpt+1}, 1, v2\nv_lshl_add_u32 v{vpt}, v{vpt+1}, 5, v{vpt}\nv_xor_b32 v{vpt+1}, 32, v{vpt}')
    a(f's_getreg_b32 s{sXcc}, hwreg(HW_REG_XCC_ID, 0, 4)\ns_waitcnt lgkmcnt(2)')
    stamp(2)
    def qgemv(s0,s1):
        seq=[(s,j) for s in range(s0,s1) for j in range(2)]
        def rd(i):
            s,j=seq[i]; b=vB+4*(i%8)
            a(f'ds_read_b64_tr_b16 v[{b}:{b+1}], v{vpt+j} offset:{2048*s}\nds_read_b64_tr_b16 v[{b+2}:{b+3}], v{vpt+j} offset:{2048*s+1024}')
        for i in range(5): rd(i)
        for i in range(len(seq)):
            if i+5<len(seq): rd(i+5)
            a(f's_waitcnt lgkmcnt({2*(min(i+5,len(seq)-1)-i)})')
            s,j=seq[i]; b=vB+4*(i%8)
            a(f'v_mfma_f32_16x16x32_bf16 v[{vD+4*j}:{vD+4*j+3}], v[{b}:{b+3}], v[{vXf+4*s}:{vXf+4*s+3}], '+('0' if s==0 else f'v[{vD+4*j}:{vD+4*j+3}]'))
    wait_full(0,vT+2,vFA); qgemv(0,4)
    wait_full(1,vT+2,vFA); stamp(3); qgemv(4,8)
    a(f'v_mov_b32 v{w0}, 3\nds_write_b32 v{vRA}, v{w0}')
    a(f's_and_b32 s{sTmp}, s{sC}, 7\ns_lshl_b32 s{sTmp}, s{sTmp}, 8\ns_bfe_u32 s{sTmp2}, s{sC}, 0x10003\ns_lshl_b32 s{sTmp2}, s{sTmp2}, 7\ns_add_u32 s{sTmp}, s{sTmp}, s{sTmp2}')
    a(f's_lshr_b32 s{sTmp2}, s{sC}, 4\ns_lshl_b32 s{sTmp2}, s{sTmp2}, 11\ns_add_u32 s{sTmp}, s{sTmp}, s{sTmp2}\ns_lshl_b32 s{sKo}, s{sH}, 12\ns_add_u32 s{sKo}, s{sKo}, {W_QG:#x}\ns_add_u32 s{sTmp}, s{sTmp}, s{sKo}')
    a(f'v_lshlrev_b32 v{vpt}, 4, v2\nv_lshl_add_u32 v{vpt}, v3, 6, v{vpt}\nv_add_u32 v{vpt}, s{sTmp}, v{vpt}')
    a(f's_lshl_b32 s{sVo}, s{sH}, 9\ns_add_u32 s{sVo}, s{sVo}, {W_QX:#x}\ns_lshl_b32 s{sTmp}, s{sC}, 4\ns_add_u32 s{sTmp}, s{sTmp}, s{sVo}')
    setexec(0x0002000200020002)
    for k in range(4): a(f'v_mov_b32 v{vD+k}, v{vD+4+k}')
    a('s_mov_b64 exec, -1'); tag4(vD)
    a(f's_mov_b64 exec, 4\nv_mov_b32 v{vD}, s{sXcc}\nv_mov_b32 v{vD+1}, s{sT}\nv_mov_b32 v{vD+2}, s{sXcc}\nv_mov_b32 v{vD+3}, s{sT}\nv_mov_b32 v{vpt}, s{sTmp}')
    def qpub(p):
        setexec(0x0003000300030007)
        a(f'buffer_store_dwordx4 v[{vD}:{vD+3}], v{vpt}, s[{dWS}:{dWS+3}], 0 offen {p}\ns_mov_b64 exec, -1')
    qpub('' if local else 'sc1')
    stamp(4)
    a(f'v_and_b32 v{vpt+1}, 0x1f0, v{vL16}\ns_mov_b32 s{sCnt}, {qfall}')
    a('L_qpoll:')
    for i in range(4): a(f'buffer_load_dwordx4 v[{vK+4*i}:{vK+4*i+3}], v{vL16}, s[{dWS}:{dWS+3}], s{sKo} offen offset:{1024*i} sc1')
    a(f'buffer_load_dwordx4 v[{vK+16}:{vK+19}], v{vpt+1}, s[{dWS}:{dWS+3}], s{sVo} offen sc1')
    timeout()
    a('s_waitcnt vmcnt(0)')
    chk(w0,[vK,vK+4,vK+8,vK+12],[vK+17,vK+19],w1)
    a(f's_cbranch_vccz L_qok\ns_sub_u32 s{sCnt}, s{sCnt}, 1\ns_cmp_eq_u32 s{sCnt}, 0\ns_cbranch_scc0 L_qpoll')
    qpub('sc1')
    a('s_branch L_qpoll\nL_qok:')
    for k in range(8): a(f'v_add_f32 v{vK+k}, v{vK+k}, v{vK+8+k}')
    for k in range(4): a(f'v_cvt_pk_bf16_f32 v{vK+k}, v{vK+2*k}, v{vK+2*k+1}')
    a(f'v_lshlrev_b32 v{vpt+1}, 3, v0\nv_add_u32 v{vpt+1}, {L_Q}, v{vpt+1}\nds_write2st64_b64 v{vpt+1}, v[{vK}:{vK+1}], v[{vK+2}:{vK+3}] offset0:0 offset1:1')
    a(f'v_cmp_ne_u32 vcc, s{sXcc}, v{vK+16}\ns_mov_b32 s{sLoc}, 1')
    if local: a(f's_cmp_eq_u64 vcc, 0\ns_cselect_b32 s{sLoc}, 2, 1')
    a(f'v_mov_b32 v{w0}, s{sLoc}\nds_write_b32 v{vFA}, v{w0} offset:8')
    a(f's_cmp_eq_u32 s{sLoc}, 2\ns_cbranch_scc1 L_qnorep'); qpub('sc1'); a('L_qnorep:')
    stamp(5)
    a('L_qready:')
    a(f'v_lshlrev_b32 v{vT}, 8, v{vTm}\nv_lshl_add_u32 v{vT}, v2, 4, v{vT}\nv_add_u32 v{vT}, {L_Q}, v{vT}')
    for s in range(4): a(f'ds_read_b128 v[{vQ+4*s}:{vQ+4*s+3}], v{vT} offset:{64*s}')
    for i in range(32): a(f'v_mov_b32 v{vO+i}, 0')
    a(f'v_mov_b32 v{vM}, 0xff800000\nv_mov_b32 v{vMb}, 0\nv_mov_b32 v{vL}, 0\ns_mov_b32 s{sCnt}, {S//4-1}')
    a(f's_lshl_b32 s{sSlot}, s{sG}, 13\ns_add_u32 s{sSlotV}, s{sSlot}, {3*SLOT}')
    vWa,vWm,vRo,vRm,vpa,vpm,vA2,vP2=176,177,178,179,180,181,vX1,vX1+8
    a(f'v_mul_u32_u24 v{vWa}, {PC}, v{vTm}\nv_lshl_add_u32 v{vWa}, v2, 4, v{vWa}\nv_lshlrev_b32 v{vWm}, 3, v{vTm}')
    a(f's_lshl_b32 s{sTmp}, s{sCw}, 2\ns_lshr_b32 s{sJ}, 0x1002, s{sTmp}\ns_and_b32 s{sJ}, s{sJ}, 15')
    a(f's_mul_i32 s{sTmp}, s{sJ}, {4*PC}\ns_add_u32 s{sTmp}, s{sTmp}, {L_SC}\nv_add_u32 v{vRo}, s{sTmp}, v{vWa}\ns_mul_i32 s{sTmp}, s{sCw}, {4*PC}\ns_add_u32 s{sTmp}, s{sTmp}, {L_SC}\nv_add_u32 v{vWa}, s{sTmp}, v{vWa}')
    a(f's_lshl_b32 s{sTmp}, s{sJ}, 5\ns_add_u32 s{sTmp}, s{sTmp}, {L_SM}\nv_add_u32 v{vRm}, s{sTmp}, v{vWm}\ns_lshl_b32 s{sTmp}, s{sCw}, 5\ns_add_u32 s{sTmp}, s{sTmp}, {L_SM}\nv_add_u32 v{vWm}, s{sTmp}, v{vWm}')
    a(f's_lshl_b32 s{sJ}, s{sJ}, 2\ns_add_u32 s{sJ}, s{sJ}, {L_PF}')
    a(f's_lshl_b32 s{sTmp}, s{sH}, 17\ns_lshl_b32 s{sTmp2}, s{sC}, 7\ns_add_u32 s{sTmp}, s{sTmp}, s{sTmp2}\ns_add_u32 s{sKo}, s{sTmp}, {W_P2:#x}')
    a(f'v_lshlrev_b32 v{vpa}, 15, v{vTm}\nv_bfe_u32 v{vpm}, v0, 2, 3\nv_lshl_add_u32 v{vpm}, v{vpm}, 12, v{vpa}\nv_lshl_add_u32 v{vpa}, v2, 4, v{vpa}')
    stamp(6)
    def qk(slot,rel):
        a(f'v_add_u32 v{vAd+4}, {slot}, v{vKp}')
        for s in (1,2,3): a(f'v_xor_b32 v{vAd+4+s}, {64*s}, v{vAd+4}')
        for t in range(2):
            for s in range(4): a(f'ds_read_b128 v[{vK+16*t+4*s}:{vK+16*t+4*s+3}], v{vAd+4+s} offset:{4096*t}')
        if rel: a(f's_add_u32 s{sG}, s{sG}, 3\nv_mov_b32 v{vT}, s{sG}')
        for t in range(2):
            a(f's_waitcnt lgkmcnt({4-4*t})')
            if t==1 and rel: a(f'ds_write_b32 v{vRA}, v{vT}')
            for s in range(4):
                a(f'v_mfma_f32_16x16x32_bf16 v[{vS+4*t}:{vS+4*t+3}], v[{vK+16*t+4*s}:{vK+16*t+4*s+3}], v[{vQ+4*s}:{vQ+4*s+3}], '+('0' if s==0 else f'v[{vS+4*t}:{vS+4*t+3}]'))
    def scores(A,m,mo):
        for j in range(4): a(f'v_cvt_pk_bf16_f32 v{vP+j}, v{vS+2*j}, v{vS+2*j+1}')
        for j in range(4): a(f'v_lshlrev_b32 v{A+2*j}, 16, v{vP+j}\nv_and_b32 v{A+2*j+1}, 0xffff0000, v{vP+j}')
        for j in range(8): a(f'v_mul_f32 v{A+j}, s{sScale}, v{A+j}')
        for j in range(4): a(f'v_cvt_pk_bf16_f32 v{vP+j}, v{A+2*j}, v{A+2*j+1}')
        for j in range(4): a(f'v_lshlrev_b32 v{A+2*j}, 16, v{vP+j}\nv_and_b32 v{A+2*j+1}, 0xffff0000, v{vP+j}')
        a(f'v_max3_f32 v{vT+3}, v{A}, v{A+1}, v{A+2}\nv_max3_f32 v{vT+1}, v{A+3}, v{A+4}, v{A+5}\nv_max3_f32 v{vT+2}, v{A+6}, v{A+7}, v{m}\nv_max3_f32 v{mo}, v{vT+3}, v{vT+1}, v{vT+2}')
    def probs(A,P):
        for j in range(8): a(f'v_fma_f32 v{A+j}, v{A+j}, s{sL2e}, -v{vMb}')
        for j in range(8): a(f'v_exp_f32 v{A+j}, v{A+j}')
        for j in range(4): a(f'v_cvt_pk_bf16_f32 v{P+j}, v{A+2*j}, v{A+2*j+1}')
        a(f'v_add_f32 v{vT}, v{A}, v{A+1}\nv_add_f32 v{vT+1}, v{A+2}, v{A+3}\nv_add_f32 v{vT+2}, v{A+4}, v{A+5}\nv_add_f32 v{vT+3}, v{A+6}, v{A+7}')
        a(f'v_add_f32 v{vT}, v{vT}, v{vT+1}\nv_add_f32 v{vT+2}, v{vT+2}, v{vT+3}\nv_add_f32 v{vT}, v{vT}, v{vT+2}\nv_add_f32 v{vL}, v{vL}, v{vT}')
    vVa=vK
    def vaddr(slot):
        a(f'v_add_u32 v{vVa}, {slot}, v{vVp}')
        for db in range(1,8): a(f'v_xor_b32 v{vVa+db}, {32*db}, v{vVa}')
    def pv(P,rel,after=None):
        def rdv(db): a(f'ds_read_b64_tr_b16 v[{vV+4*db}:{vV+4*db+1}], v{vVa+db}\nds_read_b64_tr_b16 v[{vV+4*db+2}:{vV+4*db+3}], v{vVa+db} offset:4096')
        for db in range(6): rdv(db)
        if rel: a(f's_add_u32 s{sG}, s{sG}, 5\nv_mov_b32 v{vT}, s{sG}')
        for db in range(8):
            a(f's_waitcnt lgkmcnt({2*(min(db+5,7)-db)})')
            if db==7 and rel: a(f'ds_write_b32 v{vRA}, v{vT}')
            a(f'v_mfma_f32_16x16x32_bf16 v[{vO+4*db}:{vO+4*db+3}], v[{vV+4*db}:{vV+4*db+3}], v[{P}:{P+3}], v[{vO+4*db}:{vO+4*db+3}]')
            if db+6<8: rdv(db+6)
            if after and db>=1: after(db-1)
        if after: after(7)
    a('L_step:')
    wait_full(f's{sG}',vT,vFA)
    qk(f's{sSlot}',True)
    scores(vA,vM,vT)
    allred('v_max_f32',[vT],[vT+1],lo=())
    vaddr(f's{sSlotV}')
    a(f'v_cmp_gt_f32 vcc, v{vT}, v{vM}\ns_cbranch_vccz L_norescale')
    a(f'v_sub_f32 v{vT+1}, v{vM}, v{vT}\nv_mul_f32 v{vT+1}, s{sL2e}, v{vT+1}\nv_exp_f32 v{vT+1}, v{vT+1}\nv_mov_b32 v{vM}, v{vT}\nv_mul_f32 v{vMb}, s{sL2e}, v{vT}\nv_mul_f32 v{vL}, v{vL}, v{vT+1}')
    for i in range(32): a(f'v_mul_f32 v{vO+i}, v{vO+i}, v{vT+1}')
    a('L_norescale:')
    probs(vA,vP)
    wait_full(f's{sG}',vT,vFA)
    pv(vP,True)
    for sl in (sSlot,sSlotV):
        a(f's_add_u32 s{sl}, s{sl}, {8*SLOT}\ns_sub_u32 s{sTmp}, s{sl}, {RING}\ns_cselect_b32 s{sl}, s{sl}, s{sTmp}')
    a(f's_sub_u32 s{sCnt}, s{sCnt}, 1\ns_cmp_lg_u32 s{sCnt}, 0\ns_cbranch_scc1 L_step')
    stamp(7)
    vmx=vAd; vpm2=vAd+2; fa=vAd+4; fb_=vAd+6
    def merge(tiles):
        allred('v_max_f32',[vmx],[vT+1],lo=())
        l=lab('pw')
        a(f'v_mov_b32 v{vT+2}, s{sJ}\n{l}:\nds_read_b32 v{vT}, v{vT+2}\nds_read_b64 v[{vpm2}:{vpm2+1}], v{vRm}'); timeout()
        a(f's_waitcnt lgkmcnt(0)\nv_cmp_eq_u32 vcc, 0, v{vT}\ns_cbranch_vccnz {l}')
        for db in range(8): a(f'ds_read_b128 v[{vV+4*db}:{vV+4*db+3}], v{vRo} offset:{64*db}')
        a(f'v_max_f32 v{vmx}, v{vmx}, v{vpm2}\nv_sub_f32 v{fa}, v{vM}, v{vmx}\nv_sub_f32 v{fb_}, v{vpm2}, v{vmx}\nv_mul_f32 v{fa}, s{sL2e}, v{fa}\nv_mul_f32 v{fb_}, s{sL2e}, v{fb_}')
        a(f'v_exp_f32 v{fa}, v{fa}\nv_exp_f32 v{fb_}, v{fb_}\nv_mov_b32 v{vM}, v{vmx}\nv_mul_f32 v{vMb}, s{sL2e}, v{vmx}\nv_mul_f32 v{vL}, v{vL}, v{fa}')
        for A,P in tiles: probs(A,P)
        allred('v_add_f32',[vL],[vT],lo=())
        a(f'v_fmac_f32 v{vL}, v{fb_}, v{vpm2+1}')
    def merge_o():
        for i in range(0,32,2): a(f'v_pk_mul_f32 v[{vO+i}:{vO+i+1}], v[{vO+i}:{vO+i+1}], v[{fa}:{fa+1}] op_sel_hi:[1,0]')
        a('s_waitcnt lgkmcnt(0)')
        for i in range(0,32,2): a(f'v_pk_fma_f32 v[{vO+i}:{vO+i+1}], v[{vV+i}:{vV+i+1}], v[{fb_}:{fb_+1}], v[{vO+i}:{vO+i+1}] op_sel_hi:[1,0,1]')
    a(f's_cmp_eq_u32 s{sCw}, 3\ns_cbranch_scc1 L_fin2\ns_cmp_eq_u32 s{sCw}, 2\ns_cbranch_scc0 L_fin1')
    allred('v_add_f32',[vL],[vT],lo=())
    a('s_branch L_part\nL_fin1:')
    wait_full(f's{sG}',vT,vFA)
    qk(f's{sSlot}',False)
    scores(vA,vM,vmx)
    merge([(vA,vP)]); merge_o()
    vaddr(f's{sSlotV}')
    a(f's_add_u32 s{sG}, s{sG}, 3')
    wait_full(f's{sG}',vT,vFA)
    pv(vP,False)
    a('L_part:')
    a(f'v_mov_b32 v{vMb}, v{vL}\nv_mov_b32 v{vT}, 1')
    setexec(0x000f000f000f000f)
    for db in range(8): a(f'ds_write_b128 v{vWa}, v[{vO+4*db}:{vO+4*db+3}] offset:{64*db}')
    a(f'ds_write_b64 v{vWm}, v[{vM}:{vM+1}]\nds_write_b32 v{vRA}, v{vT} offset:{L_PF-L_REL}')
    stamp(8)
    stamp_out(dWS)
    a('s_endpgm')
    a('L_fin2:')
    gK2,gK3=3+2*(S-2),3+2*(S-1)
    sl=lambda g: f'{(g%R)*SLOT:#x}'
    wait_full(gK2,vT,vFA)
    qk(sl(gK2),False); scores(vA2,vM,vmx)
    wait_full(gK3,vT,vFA)
    qk(sl(gK3),False); scores(vA,vmx,vmx)
    merge([(vA2,vP2),(vA,vP)])
    a(f'v_mov_b32 v{vS}, v{vM}\nv_mov_b32 v{vS+1}, s{sT}\nv_mov_b32 v{vS+2}, v{vL}\nv_mov_b32 v{vS+3}, s{sT}\ns_mov_b32 exec_hi, 0\ns_cmp_eq_u32 s{sLoc}, 2')
    st2(1,f'buffer_store_dwordx4 v[{vS}:{vS+3}], v{vpm}, s[{dWS}:{dWS+3}], s{sKo} offen offset:64')
    a('s_mov_b64 exec, -1')
    merge_o()
    stamp(8)
    vaddr(sl(gK2+3))
    wait_full(gK2+3,vT,vFA)
    pv(vP2,False)
    vaddr(sl(gK3+3))
    sEx=84
    a(f's_mov_b32 s{sEx}, 0x000f000f\ns_mov_b32 s{sEx+1}, 0x000f000f\ns_cmp_eq_u32 s{sLoc}, 2\ns_cbranch_scc0 L_fin2g')
    for p in ('','sc1'):
        if p: a('L_fin2g:')
        wait_full(gK3+3,vT,vFA)
        def out(db):
            tag4(vO+4*db)
            a(f's_mov_b64 exec, s[{sEx}:{sEx+1}]\nbuffer_store_dwordx4 v[{vO+4*db}:{vO+4*db+3}], v{vpa}, s[{dWS}:{dWS+3}], s{sKo} offen {p}\ns_mov_b64 exec, -1')
            if db<7: a(f's_add_u32 s{sKo}, s{sKo}, 4096')
        pv(vP,False,out)
        stamp(9)
        stamp_out(dWS)
        a('s_endpgm')
    a('L_help:')
    vWo=192
    def wo_loads():
        a(f's_lshl_b32 s{sTmp}, s{sH}, 5\ns_add_u32 s{sTmp}, s{sTmp}, s{sC}\ns_lshl_b32 s{sTmp}, s{sTmp}, 14')
        for i in range(16):
            a(f'buffer_load_dwordx4 v[{vWo+4*i}:{vWo+4*i+3}], v{vL16}, s[{dWO}:{dWO+3}], s{sTmp} offen offset:{1024*(i&3)} {wpol}')
            if i&3==3 and i<15: a(f's_add_u32 s{sTmp}, s{sTmp}, 4096')
    a(f's_cmp_lt_u32 s{sF}, 224\ns_cbranch_scc0 L_noffn')
    a(f's_and_b32 s{sTmp2}, s{sF}, 7\ns_lshl_b32 s{sTmp2}, s{sTmp2}, 7\ns_add_u32 s{sTmp}, s{sTmp2}, {L_XN+1024}\nv_lshl_add_u32 v{t0}, v2, 3, s{sTmp}')
    for j in range(2): a(f'ds_read2_b64 v[{vXf+4*j}:{vXf+4*j+3}], v{t0} offset0:{8*j} offset1:{8*j+4}')
    a(f'v_lshlrev_b32 v{vAd}, 7, v1\nv_lshl_add_u32 v{vAd}, v{vTm}, 3, v{vAd}\nv_bfe_u32 v{vAd+1}, v1, 1, 2\nv_lshl_add_u32 v{vAd}, v{vAd+1}, 5, v{vAd}')
    for j in (1,2,3): a(f'v_xor_b32 v{vAd+j}, {32*j}, v{vAd}')
    stamp(2)
    wait_full(1,vT,vFA)
    a(f's_lshl_b32 s{sTmp}, s{sF}, 13\ns_add_u32 s{sTmp2}, s{sTmp}, 4096')
    for j in range(8): a(f'buffer_load_dwordx4 v[{vWD+4*j}:{vWD+4*j+3}], v{vL16}, s[{dWD}:{dWD+3}], s{sTmp if j<4 else sTmp2} offen offset:{1024*(j&3)} {wpol}')
    vAc=vX1
    def fgemv(mat):
        seq=[(s,j) for s in range(2) for j in range(4)]
        base=(2+2*mat)*SLOT
        def rd(i):
            s,j=seq[i]; b=vB+4*i
            a(f'ds_read_b64_tr_b16 v[{b}:{b+1}], v{vAd+j} offset:{base+4096*s}\nds_read_b64_tr_b16 v[{b+2}:{b+3}], v{vAd+j} offset:{base+4096*s+2048}')
        for i in range(5): rd(i)
        for i in range(8):
            if i+5<8: rd(i+5)
            a(f's_waitcnt lgkmcnt({2*(min(i+5,7)-i)})')
            s,j=seq[i]; b=vB+4*i; d=vAc+16*mat+4*j
            a(f'v_mfma_f32_16x16x32_bf16 v[{d}:{d+3}], v[{b}:{b+3}], v[{vXf+4*s}:{vXf+4*s+3}], '+('0' if s==0 else f'v[{d}:{d+3}]'))
    wait_full(2,vT,vFA); fgemv(0)
    wait_full(4,vT,vFA); stamp(3); fgemv(1)
    a(f'v_mov_b32 v{w0}, {INF:#x}\nds_write_b32 v{vRA}, v{w0}')
    for n in range(1,8):
        setexec(0x0001000100010001<<n)
        for k in range(4): a(f'v_mov_b32 v{vAc+k}, v{vAc+4*n+k}')
    a('s_mov_b64 exec, -1'); tag4(vAc)
    wait_q('L_hq',w0)
    a(f's_lshr_b32 s{sTmp}, s{sF}, 3\ns_lshr_b32 s{sTmp}, {(1<<3)|(1<<10)|(1<<17)|(1<<24):#x}, s{sTmp}\ns_and_b32 s{sTmp}, s{sTmp}, 1\ns_sub_u32 s{sTmp2}, s{sLoc}, s{sTmp}')
    a(f's_lshl_b32 s{sTmp}, s{sF}, 9\ns_add_u32 s{sTmp}, s{sTmp}, {W_F1:#x}\nv_lshlrev_b32 v{vT}, 4, v2\nv_lshl_add_u32 v{vT}, v3, 6, v{vT}')
    setexec(0x00ff00ff00ff00ff)
    a(f's_cmp_eq_u32 s{sTmp2}, 2')
    st2(1,f'buffer_store_dwordx4 v[{vAc}:{vAc+3}], v{vT}, s[{dWS}:{dWS+3}], s{sTmp} offen')
    a('s_mov_b64 exec, -1')
    stamp(4)
    wo_loads()
    a(f's_and_b32 s{sTmp}, s{sF}, 0xf8\ns_lshl_b32 s{sTmp}, s{sTmp}, 9\ns_and_b32 s{sTmp2}, s{sF}, 7\ns_lshl_b32 s{sTmp2}, s{sTmp2}, 5\ns_add_u32 s{sTmp}, s{sTmp}, s{sTmp2}\ns_add_u32 s{sKo}, s{sTmp}, {W_F1:#x}')
    a(f'v_bfe_u32 v{vT+2}, v0, 1, 4\nv_lshlrev_b32 v{vT+2}, 8, v{vT+2}\nv_and_b32 v{vT+3}, 1, v0\nv_lshl_add_u32 v{vT+2}, v{vT+3}, 4, v{vT+2}')
    if f1wait: wait_full(f1wait,vT,vFA)
    gu=vK
    a('L_f1poll:')
    a(f'buffer_load_dwordx4 v[{gu}:{gu+3}], v{vT+2}, s[{dWS}:{dWS+3}], s{sKo} offen sc1')
    timeout()
    a('s_waitcnt vmcnt(0)')
    chk(vT,[gu],[],None)
    a('s_cbranch_vccnz L_f1poll')
    allred('v_add_f32',[gu,gu+1,gu+2,gu+3],[vA,vA+1,vA+2,vA+3],lo=(4,8),hi=(16,))
    for k in range(4): bfr(gu+k,gu+k)
    k1=-2*0.7978845608028654*1.4426950408889634
    hh=gu+4; up=gu+8
    for k in range(4): a(f'v_mov_b32_dpp v{up+k}, v{gu+k} quad_perm:[2,3,2,3] row_mask:0xf bank_mask:0xf')
    for k in range(4): a(f'v_mul_f32 v{hh+k}, v{gu+k}, v{gu+k}')
    for k in range(4): a(f'v_mul_f32 v{hh+k}, {f2u(0.044715):#x}, v{hh+k}')
    for k in range(4): a(f'v_fma_f32 v{hh+k}, v{hh+k}, v{gu+k}, v{gu+k}')
    for k in range(4): a(f'v_mul_f32 v{hh+k}, {f2u(k1):#x}, v{hh+k}')
    for k in range(4): a(f'v_exp_f32 v{hh+k}, v{hh+k}')
    for k in range(4): a(f'v_add_f32 v{hh+k}, 1.0, v{hh+k}')
    for k in range(4): a(f'v_rcp_f32 v{hh+k}, v{hh+k}')
    for k in range(4): a(f'v_mul_f32 v{hh+k}, v{gu+k}, v{hh+k}')
    for k in range(4): bfr(hh+k,hh+k)
    for k in range(4): a(f'v_mul_f32 v{hh+k}, v{hh+k}, v{up+k}')
    for k in range(4): bfr(hh+k,hh+k)
    acc=vV; un=vV+8
    for k in range(8): a(f'v_mov_b32 v{acc+k}, 0')
    for j in range(8):
        for k in range(4): a(f'v_lshlrev_b32 v{un+2*k}, 16, v{vWD+4*j+k}\nv_and_b32 v{un+2*k+1}, 0xffff0000, v{vWD+4*j+k}')
        for k in range(8): a(f'v_fmac_f32_dpp v{acc+k}, v{hh+(j&3)}, v{un+k} quad_perm:[{j>>2},{j>>2},{j>>2},{j>>2}] row_mask:0xf bank_mask:0xf')
    tag4(acc); tag4(acc+4)
    a(f's_lshl_b32 s{sTmp}, s{sF}, 7\ns_add_u32 s{sTmp}, s{sTmp}, {W_B3:#x}\ns_add_u32 s{sTmp2}, s{sTmp}, {8*28672}')
    a(f'v_lshrrev_b32 v{vT}, 3, v0\nv_mul_u32_u24 v{vT}, 28672, v{vT}\nv_and_b32 v{vT+1}, 7, v0\nv_lshl_add_u32 v{vT}, v{vT+1}, 4, v{vT}\ns_cmp_eq_u32 s{sLoc}, 2')
    st2(1,f'buffer_store_dwordx4 v[{acc}:{acc+3}], v{vT}, s[{dWS}:{dWS+3}], s{sTmp} offen',f'buffer_store_dwordx4 v[{acc+4}:{acc+7}], v{vT}, s[{dWS}:{dWS+3}], s{sTmp2} offen')
    stamp(5)
    a('s_branch L_ffndone')
    a(f'L_noffn:\nv_mov_b32 v{w0}, {INF:#x}\nds_write_b32 v{vRA}, v{w0}')
    wait_q('L_hq2',w0)
    wo_loads()
    a('s_waitcnt vmcnt(0)\nL_ffndone:')
    a(f's_mov_b32 s{sTmp}, 0x05040100\ns_mov_b32 s{sTmp2}, 0x07060302')
    for r_ in range(8):
        for k in range(4):
            x,y=vWo+8*r_+k,vWo+8*r_+4+k
            a(f'v_perm_b32 v{vT+(k&1)}, v{y}, v{x}, s{sTmp}\nv_perm_b32 v{y}, v{y}, v{x}, s{sTmp2}\nv_mov_b32 v{x}, v{vT+(k&1)}')
    vb=vK; gg=vQ; v128=vAd; vga=vAd+1; vgm=vAd+2; vS3=vAd+3
    sP2,sS3w,sS3r=sG,sSlot,sSlotV
    sDp,sDr=86,87
    a(f'v_lshlrev_b32 v{v128}, 7, v0\nv_lshrrev_b32 v{vgm}, 2, v0\nv_lshlrev_b32 v{vgm}, 7, v{vgm}\nv_lshl_add_u32 v{vga}, v{vTm}, 4, v{vgm}')
    a(f's_lshl_b32 s{sTmp}, s{sH}, 17\ns_lshl_b32 s{sTmp2}, s{sC}, 12\ns_add_u32 s{sTmp}, s{sTmp}, s{sTmp2}\ns_add_u32 s{sP2}, s{sTmp}, {W_P2:#x}')
    a(f'v_lshrrev_b32 v{vS3}, 3, v0\nv_lshlrev_b32 v{vS3}, 15, v{vS3}\nv_and_b32 v{vT}, 0x70, v{vL16}\nv_add_u32 v{vS3}, v{vS3}, v{vT}\ns_lshl_b32 s{sTmp}, s{sB}, 7\ns_add_u32 s{sS3w}, s{sTmp}, {W_S3:#x}')
    a(f's_and_b32 s{sTmp}, s{sCg}, 1\ns_lshl_b32 s{sTmp}, s{sTmp}, 3\ns_lshr_b32 s{sTmp2}, s{sCg}, 4\ns_add_u32 s{sTmp}, s{sTmp}, s{sTmp2}\ns_bfe_u32 s{sTmp2}, s{sCg}, 0x30001\ns_lshl_b32 s{sTmp2}, s{sTmp2}, 4')
    a(f's_lshl_b32 s{sS3r}, s{sTmp}, 15\ns_add_u32 s{sS3r}, s{sS3r}, s{sTmp2}\ns_add_u32 s{sS3r}, s{sS3r}, {W_S3:#x}')
    a(f's_lshl_b32 s{sKo}, s{sTmp}, 10\ns_add_u32 s{sKo}, s{sKo}, s{sTmp2}\ns_add_u32 s{sKo}, s{sKo}, {W_B4:#x}')
    tk=vO
    mlast=min(mlast,2*S)
    def control(jend):
        l=lab('ctl'); sk=lab('cs')
        a(f'{l}:')
        wait_full(f's{sJ}',vT,vFA)
        if fb:
            a(f's_cmp_eq_u32 s{sLoc}, 2\ns_cbranch_scc0 {sk}')
            a(f's_add_u32 s{sTmp}, s{sMin}, s{sJ}\nv_mov_b32 v{tk}, s{sTmp}\ns_mov_b64 exec, 1\nbuffer_store_dword v{tk}, off, s[{dWS}:{dWS+3}], s{sKb}')
        if fb==5:
            l1,l2=lab('nr'),lab('np')
            a(f's_and_b32 s{sTmp}, s{sCnt}, 3\ns_add_u32 s{sTmp}, s{sTmp}, 28\ns_cmp_eq_u32 s{sTmp}, s{sXi}\ns_cselect_b32 s{sDp}, 1, 0\ns_add_u32 s{sCnt}, s{sCnt}, 1')
            a(f's_sub_u32 s{sGmR}, s{sGmR}, 1\ns_cselect_b32 s{sGmR}, {xev-1}, s{sGmR}\ns_cselect_b32 s{sDr}, s{sDp}, 0')
            a(f's_mul_i32 s{sTmp}, s{sDr}, 0xff0000\ns_or_b32 exec_hi, s{sTmp}, 1\ns_mov_b32 exec_lo, -1')
        elif fb: setexec(0xffffffff)
        if fb:
            a(f'buffer_load_dword v{tk+4}, v{tk+1}, s[{dWS}:{dWS+3}], 0 offen sc1\ns_waitcnt vmcnt(0)')
            a(f'v_sub_u32 v{tk+4}, v{tk+4}, v{tk+3}\nv_cmp_lt_u32 vcc, v{tk+4}, v{tk+6}\nv_cndmask_b32 v{tk+4}, v{tk+2}, v{tk+4}, vcc\ns_mov_b64 exec, -1')
            allred('v_add_u32',[tk+4],[tk+5],hi=())
            a(f'v_readlane_b32 s{sTmp}, v{tk+4}, 0\nv_readlane_b32 s{sTmp2}, v{tk+4}, 16\nv_readlane_b32 s{sTmp3}, v{tk+4}, 32\ns_add_u32 s{sTmp}, s{sTmp}, s{sTmp2}')
            d0=-256*(mk/2+tau)
        if fb==5:
            a(f's_cmp_eq_u32 s{sDp}, 0\ns_cbranch_scc1 {l2}\ns_lshl_b32 s{sDp}, s{sT}, 13\ns_add_u32 s{sTmp2}, s{sTmp}, s{sDp}\nv_mov_b32 v{tk}, s{sTmp2}\ns_mov_b64 exec, 1')
            a(f'buffer_store_dword v{tk}, off, s[{dWS}:{dWS+3}], s{sVo} offset:{0x480} sc1')
            a(f's_cmp_eq_u32 s{sDr}, 0\ns_cbranch_scc1 {l1}')
            a(f'v_readlane_b32 s{sTmp3}, v{tk+4}, 48\ns_lshl_b32 s{sTmp2}, s{sTmp}, 3\ns_sub_i32 s{sTmp3}, s{sTmp3}, s{sTmp2}\ns_add_i32 s{sTmp3}, s{sTmp3}, {int(256*xc)+4096}')
            a(f's_max_i32 s{sTmp3}, s{sTmp3}, 0\ns_min_i32 s{sTmp3}, s{sTmp3}, 8191\ns_add_u32 s{sTmp2}, s{sTmp3}, s{sDp}\nv_mov_b32 v{tk}, s{sTmp2}')
            a(f'buffer_store_dword v{tk}, off, s[{dWS}:{dWS+3}], s{sVo} offset:{0x80}')
            a(f'{l1}:\ns_mov_b64 exec, -1\n{l2}:')
            d0+=4096
        if fb:
            a(f'v_mov_b32 v{tk+4}, 0\ns_lshl_b32 s{sTmp}, s{sTmp}, 3')
            if fb==5: a(f's_add_u32 s{sTmp}, s{sTmp}, s{sTmp3}')
            a(f's_lshl_b32 s{sTmp2}, s{sJ}, 8\ns_sub_i32 s{sTmp}, s{sTmp}, s{sTmp2}')
            a(f's_cmp_lt_i32 s{sTmp}, {int(d0-256*th)}\ns_cselect_b32 s{sTmp2}, 1, 0\ns_cmp_gt_i32 s{sTmp}, {int(d0+256*th)}\ns_cselect_b32 s{sTmp2}, 2, s{sTmp2}\nv_mov_b32 v{vT}, s{sTmp2}\nds_write_b32 v{vFA}, v{vT} offset:12')
            a(f'{sk}:')
        a(f's_add_u32 s{sJ}, s{sJ}, {mk}\ns_cmp_le_u32 s{sJ}, {jend}\ns_cbranch_scc1 {l}')
    a(f's_mov_b32 s{sJ}, {m0}')
    if fb:
        a(f's_lshl_b32 s{sMin}, s{sT}, 8\nv_mov_b32 v{tk+2}, {m0-mk}\nv_mov_b32 v{tk+3}, s{sMin}\nv_mov_b32 v{tk+6}, 0x100\nv_mov_b32 v{tk+4}, 0')
        a(f's_mul_i32 s{sVo}, s{sXj}, {CST2}\ns_add_u32 s{sVo}, s{sVo}, {W_CNT:#x}\nv_lshl_add_u32 v{tk+1}, v0, 2, s{sVo}\ns_lshl_b32 s{sKb}, s{sXi}, 2\ns_add_u32 s{sKb}, s{sKb}, s{sVo}')
    if fb==5:
        a(f's_mov_b32 s{sCnt}, 0\ns_mov_b32 s{sGmR}, {xev-1}')
        a(f's_mov_b32 exec_lo, 0\ns_lshl_b32 s{sTmp}, s{sT}, 13\nv_mov_b32 v{tk+2}, 4096\nv_mov_b32 v{tk+3}, s{sTmp}\nv_mov_b32 v{tk+6}, 0x2000\ns_mov_b32 exec_hi, 0xffff0000\nv_mov_b32 v{tk+2}, {32*(m0-mk)}')
        a(f'v_and_b32 v{tk+1}, 7, v0\nv_mul_u32_u24 v{tk+1}, {CST2}, v{tk+1}\nv_add_u32 v{tk+1}, {W_CNT+0x480:#x}, v{tk+1}\ns_mov_b64 exec, -1')
    control(jb1)
    a(f's_cmp_lt_u32 s{sXi}, 16\ns_cbranch_scc0 L_nob3')
    a(f's_mul_i32 s{sTmp2}, s{sXi}, 28672\ns_mul_i32 s{sTmp}, s{sXj}, 3584\ns_add_u32 s{sTmp2}, s{sTmp2}, s{sTmp}\ns_add_u32 s{sTmp2}, s{sTmp2}, {W_B3:#x}')
    for k in range(4): a(f'v_mov_b32 v{vb+12+k}, 0')
    tag4(vb+12)
    a('L_b3poll:')
    for i in range(4):
        if i==3: a('s_mov_b32 exec_hi, 0')
        a(f'buffer_load_dwordx4 v[{vb+4*i}:{vb+4*i+3}], v{vL16}, s[{dWS}:{dWS+3}], s{sTmp2} offen offset:{1024*i} sc1')
    a('s_mov_b64 exec, -1')
    timeout()
    a('s_waitcnt vmcnt(0)')
    chk(vT,[vb,vb+4,vb+8,vb+12],[],None)
    a('s_cbranch_vccnz L_b3poll')
    def sum4(dst,lo):
        for k in range(4): a(f'v_add_f32 v{dst+k}, v{vb+k}, v{vb+4+k}\nv_add_f32 v{vA+4+k}, v{vb+8+k}, v{vb+12+k}')
        for k in range(4): a(f'v_add_f32 v{dst+k}, v{dst+k}, v{vA+4+k}')
        allred('v_add_f32',[dst,dst+1,dst+2,dst+3],[vA,vA+1,vA+2,vA+3],lo=lo)
    sum4(gg,(8,)); tag4(gg)
    a(f's_lshl_b32 s{sTmp}, s{sXi}, 10\ns_lshl_b32 s{sTmp2}, s{sXj}, 7\ns_add_u32 s{sTmp}, s{sTmp}, s{sTmp2}\ns_add_u32 s{sTmp}, s{sTmp}, {W_B4:#x}\ns_mov_b64 exec, 0xff')
    a(f'buffer_store_dwordx4 v[{gg}:{gg+3}], v{vL16}, s[{dWS}:{dWS+3}], s{sTmp} offen sc1\ns_mov_b64 exec, -1')
    stamp(6)
    a('L_nob3:')
    control(jb2)
    a(f's_cmp_lt_u32 s{sXi}, 16\ns_cbranch_scc0 L_nob4\nv_and_b32 v{vT+2}, 0x380, v{v128}')
    a(f'L_b4poll:\nbuffer_load_dwordx4 v[{gg}:{gg+3}], v{vT+2}, s[{dWS}:{dWS+3}], s{sKo} offen sc1')
    timeout()
    a('s_waitcnt vmcnt(0)')
    chk(vT,[gg],[],None)
    a('s_cbranch_vccnz L_b4poll')
    allred('v_add_f32',[gg,gg+1,gg+2,gg+3],[],lo=(4,2,1),hi=())
    for k in range(4): bfr(gg+k,gg+k)
    for k in range(4): a(f'v_mul_f32 v{vA+k}, s{sL2e}, v{gg+k}')
    for k in range(4): a(f'v_exp_f32 v{vA+k}, -v{vA+k}')
    for k in range(4): a(f'v_add_f32 v{vA+k}, 1.0, v{vA+k}')
    for k in range(4): a(f'v_rcp_f32 v{vA+k}, v{vA+k}')
    for k in range(4): a(f'v_mul_f32 v{gg+k}, v{gg+k}, v{vA+k}')
    for k in range(4): bfr(gg+k,gg+k)
    stamp(7)
    a('L_nob4:')
    control(jpre)
    po=vV; pm=vV+8; sMk=84; sS3o=92
    for i in range(1,4): a(f's_add_u32 s{sS3o+i}, s{sS3r}, {8192*i}')
    s3o=lambda i: sS3r if i==0 else sS3o+i
    def ldm(i): a(f'buffer_load_dwordx4 v[{pm+4*i}:{pm+4*i+3}], v{vgm}, s[{dWS}:{dWS+3}], s{sP2} offen offset:{2048*i+64} sc1')
    def ldo(i): a(f'buffer_load_dwordx4 v[{po+4*i}:{po+4*i+3}], v{vga}, s[{dWS}:{dWS+3}], s{sP2} offen offset:{2048*i} sc1')
    def lds3(i): a(f'buffer_load_dwordx4 v[{vb+4*i}:{vb+4*i+3}], v{v128}, s[{dWS}:{dWS+3}], s{s3o(i)} offen sc1')
    ldm(0); ldm(1)
    if s3pre:
        a(f's_cmp_lt_u32 s{sXi}, 16\ns_cbranch_scc0 L_nopre')
        for i in range(4): lds3(i)
        a('L_nopre:')
    if mlast>jpre: control(mlast)
    stamp(8)
    def masked(n,ld):
        for i in range(n):
            l=lab('mz')
            a(f's_mov_b64 exec, s[{sMk+2*i}:{sMk+2*i+1}]\ns_cbranch_execz {l}'); ld(i); a(f'{l}:')
        a('s_mov_b64 exec, -1')
    def recheck(n,ck):
        for i in range(n):
            ck(i); a(f's_mov_b64 s[{sMk+2*i}:{sMk+2*i+1}], vcc')
        a(f's_or_b64 vcc, s[{sMk}:{sMk+1}], s[{sMk+2}:{sMk+3}]')
        if n==4: a(f's_or_b64 vcc, vcc, s[{sMk+4}:{sMk+5}]\ns_or_b64 vcc, vcc, s[{sMk+6}:{sMk+7}]')
    def allmask(n):
        for i in range(n): a(f's_mov_b64 s[{sMk+2*i}:{sMk+2*i+1}], -1')
    allmask(2)
    wait_full(2*S+2,vT,vFA)
    a('L_mlpoll:')
    masked(2,ldm); timeout()
    a('s_waitcnt vmcnt(0)')
    def ckm(i): a(f'v_xor_b32 v{vT}, s{sT}, v{pm+4*i+1}\nv_bitop3_b32 v{vT}, v{pm+4*i+3}, s{sT}, v{vT} bitop3:0xbe\nv_cmp_ne_u32 vcc, 0, v{vT}')
    recheck(2,ckm)
    a('s_cbranch_scc1 L_mlpoll')
    ldo(0); ldo(1)
    mx=vM; ls=vS+4; o=vS
    a(f'v_max_f32 v{mx}, v{pm}, v{pm+4}')
    allred('v_max_f32',[mx],[vT+1],lo=(4,8))
    for i in range(2): a(f'v_sub_f32 v{pm+4*i}, v{pm+4*i}, v{mx}')
    for i in range(2): a(f'v_mul_f32 v{pm+4*i}, s{sL2e}, v{pm+4*i}')
    for i in range(2): a(f'v_exp_f32 v{pm+4*i}, v{pm+4*i}')
    a(f'v_mul_f32 v{ls}, v{pm}, v{pm+2}\nv_fmac_f32 v{ls}, v{pm+4}, v{pm+6}')
    allred('v_add_f32',[ls],[vT+1],lo=(4,8))
    a(f'v_rcp_f32 v{ls}, v{ls}')
    for i in range(2): a(f'v_mul_f32 v{pm+4*i}, v{pm+4*i}, v{ls}')
    stamp(9)
    a('s_branch L_ochk\nL_opoll:')
    masked(2,ldo); timeout()
    a('L_ochk:\ns_waitcnt vmcnt(0)')
    recheck(2,lambda i: chk(vT,[po+4*i],[],None))
    a('s_cbranch_scc1 L_opoll')
    stamp(10)
    for k in range(4): a(f'v_mul_f32 v{o+k}, v{pm}, v{po+k}')
    for k in range(4): a(f'v_fmac_f32 v{o+k}, v{pm+4}, v{po+4+k}')
    allred('v_add_f32',[o,o+1,o+2,o+3],[vA,vA+1,vA+2,vA+3],lo=(4,8))
    r=vO+8
    for k in range(8): a(f'v_mov_b32 v{r+k}, 0')
    a(f'v_cvt_pk_bf16_f32 v{vA}, v{o}, v{o+1}\nv_cvt_pk_bf16_f32 v{vA+1}, v{o+2}, v{o+3}')
    for r_ in range(8):
        u=r_>>1
        for k in range(8): a(f'v_dot2c_f32_bf16_dpp v{r+k}, v{vA+(r_&1)}, v{vWo+8*r_+4*(k&1)+(k>>1)} quad_perm:[{u},{u},{u},{u}] row_mask:0xf bank_mask:0xf')
    tag4(r)
    a(f'buffer_store_dwordx4 v[{r}:{r+3}], v{vS3}, s[{dWS}:{dWS+3}], s{sS3w} offen sc1\ns_add_u32 s{sS3w}, s{sS3w}, {8*32768}')
    tag4(r+4)
    a(f'buffer_store_dwordx4 v[{r+4}:{r+7}], v{vS3}, s[{dWS}:{dWS+3}], s{sS3w} offen sc1')
    stamp(11)
    a(f's_cmp_lt_u32 s{sXi}, 16\ns_cbranch_scc0 L_hfin')
    allmask(4)
    cks=lambda i: chk(vT,[vb+4*i],[],None)
    if s3pipe:
        a('L_s3poll:')
        masked(4,lds3); timeout()
        a(f's_waitcnt vmcnt({s3pipe})')
        recheck(4,cks)
        a('s_cbranch_scc1 L_s3poll')
    else:
        a('L_s3poll:')
        masked(4,lds3); timeout()
        a('s_waitcnt vmcnt(0)')
        recheck(4,cks)
        a('s_cbranch_scc1 L_s3poll')
    stamp(12)
    ss=vS
    sum4(ss,(8,4,2,1))
    def rnd4(v):
        a(f'v_cvt_pk_bf16_f32 v{vA}, v{v}, v{v+1}\nv_cvt_pk_bf16_f32 v{vA+1}, v{v+2}, v{v+3}')
    def exp4(v):
        a(f'v_lshlrev_b32 v{v}, 16, v{vA}\nv_and_b32 v{v+1}, 0xffff0000, v{vA}\nv_lshlrev_b32 v{v+2}, 16, v{vA+1}\nv_and_b32 v{v+3}, 0xffff0000, v{vA+1}')
    rnd4(ss); exp4(ss)
    for k in range(4): a(f'v_mul_f32 v{ss+k}, v{ss+k}, v{gg+k}')
    rnd4(ss); exp4(ss)
    for k in range(4):
        a((f's_lshl_b32 s{sTmp}, s{sXf+k//2}, 16' if k%2==0 else f's_and_b32 s{sTmp}, s{sXf+k//2}, 0xffff0000')+f'\nv_add_f32 v{ss+k}, s{sTmp}, v{ss+k}')
    rnd4(ss)
    a(f's_lshl_b32 s{sTmp}, s{sCg}, 3\ns_mov_b64 exec, 1\nbuffer_store_dwordx2 v[{vA}:{vA+1}], off, s[{dOUT}:{dOUT+3}], s{sTmp}')
    a(f's_cmp_eq_u32 s{sCg}, 0\ns_cbranch_scc0 L_hfin\nv_mov_b32 v{vT+1}, s{sT}\nbuffer_store_dword v{vT+1}, off, s[{dWS}:{dWS+3}], 0')
    a('L_hfin:')
    stamp(13)
    stamp_out(dWS)
    a('L_end:\ns_endpgm')
    n=a.fix()
    out=HDR+f'; @launch grid=(256,1,1) block=({64*NWAVE},1,1) lds=163840\n'
    out+=f'.amdgcn_target "amdgcn-amd-amdhsa--gfx950"\n.text\n.globl {NAME}\n.p2align 8\n.type {NAME},@function\n'
    out+=a.text()
    out+=f'''.section .rodata,"a"
.p2align 6
.amdhsa_kernel {NAME}
  .amdhsa_next_free_vgpr 256
  .amdhsa_next_free_sgpr 96
  .amdhsa_accum_offset 256
  .amdhsa_group_segment_fixed_size 0
  .amdhsa_kernarg_size 96
  .amdhsa_user_sgpr_count 2
  .amdhsa_user_sgpr_kernarg_segment_ptr 1
  .amdhsa_system_sgpr_workgroup_id_x 1
  .amdhsa_float_denorm_mode_32 3
.end_amdhsa_kernel
'''
    return out
if __name__=='__main__':
    kw=eval('dict(%s)'%(sys.argv[1] if len(sys.argv)>1 else ''))
    sys.stdout.write(gen(**kw))
```

```python
import sys, struct
from asmlib import Asm
NAME='recurrent_scan__gqa_block_cached__geglu_ffn__decode_kernel'
HDR=open('recurrent_scan__gqa_block_cached__geglu_ffn__decode.s.ref').read().split('; Override launch')[0]
def f2u(x): return struct.unpack('<I',struct.pack('<f',x))[0]
LOG2E=f2u(1.4426950408889634); SCALE=f2u(128**-0.5)
R=18; SLOT=8192; RING=R*SLOT
MISC=RING
L_FULL=MISC; L_QRDY=MISC+8; L_MODE=MISC+12; L_REL=MISC+16; L_PF=MISC+64; L_SM=MISC+128; L_MT=MISC+512; L_X=MISC+1024; L_XN=MISC+2048; L_Q=MISC+4096; L_SC=MISC+1024; L_P=MISC+10240
W_B4=0x40000; W_CNT=0x1000; W_QG=0x10000; W_QX=0x18000; W_F1=0x20000; W_P2=0x280000; W_S3=0x100000; W_B3=0x180000; W_ST=0x200000; WS_SZ=0x380000
PC=2112; NWAVE=6; INF=0x7fffffff; CST=0x180; CST2=0x1100
def gen(mapping='hx', N=20, S=64, diag=0, pol='nt', wpol='nt', local=1, f1wait=12, N0=None, fb=3, dN=4, m0=20, mk=4, mlast=116, th=1.5, tau=0.,
        xev=3, xc=5., keep=(13,), qfall=24, jb1=44, jb2=76, jpre=108, s3pipe=0, s3pre=2, jopen=0, Nend=24, jwo=1, jml=129, s3ld='sc1', s3st='sc1', hxor=0, ptau=0., p2pre=1, fp=(4,32,4,32,4,40)):
    a=Asm()
    N0=N0 or N
    vpol=pol
    W=N0-4
    modes=[N,N-dN,N+dN] if fb else [N]
    assert W%4==0 and S>=8 and mapping=='hx'
    GT=2*S+4
    sB,sW=2,3
    pX,pK,pV,pWQ,pWO,pWG,pWU,pWD,pOUT,pWS=4,6,8,10,12,16,18,20,22,26
    sH,sC,sXi,sF,sT,sTO=48,49,50,51,52,53
    sFull,sG,sSlot,sSlotV,sMin,sKo,sVo,sTmp,sTmp2,sCnt,sGmR=54,55,56,57,58,59,60,61,62,63,64
    sScale,sL2e,sT1,sGend,sCw,sXj=65,66,67,68,69,74
    sSt=70
    sSt0=72
    sXf=76
    sLoc,sKb,sJ,sCg,sXcc,sTmp3=78,79,80,81,82,83
    vSt=159
    uid=[0]
    def lab(p): uid[0]+=1; return f'L_{p}_{uid[0]}'
    def srd(d,p,size):
        a(f's_mov_b32 s{d}, s{p}\ns_mov_b32 s{d+1}, s{p+1}\ns_mov_b32 s{d+2}, {size:#x}\ns_mov_b32 s{d+3}, 0x20000')
    role=['L']
    def stamp(k):
        if diag==3 and not (role[0]=='L' or k in keep): return
        if diag: a(f's_memrealtime s[{sSt}:{sSt+1}]\ns_waitcnt lgkmcnt(0)\nv_writelane_b32 v{vSt}, s{sSt}, {k}')
    def stamp_out(srd_ws):
        if diag:
            a(f'v_writelane_b32 v{vSt}, s{sSt0}, 0')
            a(f's_mul_i32 s{sTmp}, s{sB}, {NWAVE}\ns_add_u32 s{sTmp}, s{sTmp}, s{sW}\ns_lshl_b32 s{sTmp}, s{sTmp}, 8\ns_add_u32 s{sTmp}, s{sTmp}, {W_ST:#x}')
            a(f's_mov_b64 exec, -1\nv_lshlrev_b32 v1, 2, v0\nbuffer_store_dword v{vSt}, v1, s[{srd_ws}:{srd_ws+3}], s{sTmp} offen sc1')
    def setexec(m):
        lo,hi=m&0xffffffff,m>>32
        if hi==0 and lo<0x80000000: a(f's_mov_b64 exec, {lo:#x}')
        else: a(f's_mov_b32 exec_lo, {lo:#x}\ns_mov_b32 exec_hi, {hi:#x}')
    def timeout():
        a(f's_sub_u32 s{sTO}, s{sTO}, 1\ns_cbranch_scc1 L_end')
    def poll_full(vtmp,vaddr):
        a(f'ds_read_b64 v[{vtmp}:{vtmp+1}], v{vaddr}')
        timeout()
        a(f's_waitcnt lgkmcnt(0)\nv_readfirstlane_b32 s{sFull}, v{vtmp}\nv_readfirstlane_b32 s{sGend}, v{vtmp+1}')
    def wait_full(x, vtmp, vaddr):
        assert vtmp%2==0
        ok=lab('fok'); p=lab('fp')
        a(f's_cmp_gt_i32 s{sFull}, {x}\ns_cbranch_scc1 {ok}\n{p}:')
        poll_full(vtmp,vaddr)
        a(f's_cmp_gt_i32 s{sFull}, {x}\ns_cbranch_scc0 {p}\n{ok}:')
    def bfr(dst,src):
        a(f'v_cvt_pk_bf16_f32 v{dst}, v{src}, v{src}\nv_and_b32 v{dst}, 0xffff0000, v{dst}')
    def allred(op, vs, ts, lo=(8,4,2,1), hi=(16,32)):
        for r in lo:
            for v in vs: a(f'{op}_dpp v{v}, v{v}, v{v} row_ror:{r} row_mask:0xf bank_mask:0xf')
        for sw in hi:
            for v,t in zip(vs,ts): a(f'v_mov_b32 v{t}, v{v}')
            for v,t in zip(vs,ts): a(f'v_permlane{sw}_swap_b32 v{v}, v{t}')
            for v,t in zip(vs,ts): a(f'{op} v{v}, v{v}, v{t}')
    vMask=157
    def tag4(v):
        for k in range(4): a(f'v_bfi_b32 v{v+k}, v{vMask}, s{sT if k%2==0 else sT1}, v{v+k}')
    def chk(acc,regs_mt,regs_full,acc2):
        first=True
        for v in regs_mt:
            for k in range(4):
                s=sT if k%2==0 else sT1
                a(f'v_xor_b32 v{acc}, s{s}, v{v+k}' if first else f'v_bitop3_b32 v{acc}, v{v+k}, s{s}, v{acc} bitop3:0xbe'); first=False
        if regs_full:
            first=True
            for v in regs_full:
                a(f'v_xor_b32 v{acc2}, s{sT}, v{v}' if first else f'v_bitop3_b32 v{acc2}, v{v}, s{sT}, v{acc2} bitop3:0xbe'); first=False
            a(f'v_and_or_b32 v{acc}, v{acc}, v{vMask}, v{acc2}')
        else: a(f'v_and_b32 v{acc}, v{vMask}, v{acc}')
        a(f'v_cmp_ne_u32 vcc, 0, v{acc}')

    a(f'{NAME}:')
    if diag: a(f's_memrealtime s[{sSt0}:{sSt0+1}]')
    a(f's_cmp_ge_u32 s{sB}, 256\ns_cbranch_scc1 L_end')
    a('s_load_dwordx16 s[4:19], s[0:1], 0\ns_load_dwordx8 s[20:27], s[0:1], 64')
    if diag: a(f'v_mov_b32 v{vSt}, 0')
    a(f'v_lshrrev_b32 v1, 6, v0\nv_and_b32 v0, 63, v0\nv_readfirstlane_b32 s{sW}, v1')
    a(f's_and_b32 s{sXj}, s{sB}, 7\ns_lshr_b32 s{sXi}, s{sB}, 3')
    a(f's_mul_i32 s{sF}, s{sXj}, 28\ns_add_u32 s{sF}, s{sF}, s{sXi}')
    a(f's_cmp_lt_u32 s{sXi}, 28\ns_cselect_b32 s{sF}, s{sF}, 0x100000')
    if mapping=='hx': a(f's_xor_b32 s{sH}, s{sXj}, {hxor}\ns_mov_b32 s{sC}, s{sXi}')
    else: a(f's_lshr_b32 s{sH}, s{sB}, 5\ns_and_b32 s{sC}, s{sB}, 31')
    a(f's_mov_b32 s{sTO}, 200000\ns_mov_b32 s{sFull}, -1\ns_mov_b32 s{sGend}, {INF:#x}')
    a(f'v_lshrrev_b32 v2, 4, v0\nv_and_b32 v3, 15, v0')
    a(f's_cmp_lg_u32 s{sW}, 0\ns_cbranch_scc1 L_cons')
    vK0,vV0,vWQ,vFF,vFA,vRA,vF,vX,vTQ=4,8,10,11,12,13,14,20,21
    a('s_setprio 3')
    a(f'v_lshlrev_b32 v{vX}, 4, v0')
    a(f'v_lshrrev_b32 v{vWQ}, 2, v0\nv_lshlrev_b32 v{vWQ}, 13, v{vWQ}\nv_lshlrev_b32 v1, 1, v2\nv_xor_b32 v1, v1, v0\nv_and_b32 v1, 3, v1\nv_lshl_add_u32 v{vWQ}, v1, 4, v{vWQ}')
    a(f's_and_b32 s{sTmp}, s{sC}, 7\ns_lshl_b32 s{sTmp}, s{sTmp}, 7\ns_bfe_u32 s{sTmp2}, s{sC}, 0x10003\ns_lshl_b32 s{sTmp2}, s{sTmp2}, 6\ns_add_u32 s{sTmp}, s{sTmp}, s{sTmp2}')
    a(f's_lshl_b32 s{sTmp2}, s{sH}, 10\ns_add_u32 s{sTmp}, s{sTmp}, s{sTmp2}\ns_lshr_b32 s{sTmp2}, s{sC}, 4\ns_lshl_b32 s{sTmp2}, s{sTmp2}, 21\ns_add_u32 s{sVo}, s{sTmp}, s{sTmp2}')
    a(f'v_xor_b32 v{vK0}, v2, v3\nv_lshlrev_b32 v{vK0}, 4, v{vK0}\nv_lshl_add_u32 v{vK0}, v2, 8, v{vK0}')
    for k in (1,2,3): a(f'v_xor_b32 v{vK0+k}, {64*k}, v{vK0}')
    a(f'v_lshlrev_b32 v{vV0}, 1, v2\nv_xor_b32 v{vV0}, v{vV0}, v3\nv_lshlrev_b32 v{vV0}, 4, v{vV0}\nv_lshl_add_u32 v{vV0}, v2, 8, v{vV0}\nv_xor_b32 v{vV0+1}, 128, v{vV0}')
    a(f'v_lshrrev_b32 v{vFF}, 3, v0\nv_mul_u32_u24 v{vFF}, 3584, v{vFF}\nv_lshlrev_b32 v1, 1, v2\nv_xor_b32 v1, v1, v0\nv_and_b32 v1, 7, v1\nv_lshl_add_u32 v{vFF}, v1, 4, v{vFF}')
    a(f's_and_b32 s{sTmp}, s{sF}, 7\ns_mul_i32 s{sTmp}, s{sTmp}, {64*3584}\ns_lshr_b32 s{sCnt}, s{sF}, 3\ns_lshl_b32 s{sCnt}, s{sCnt}, 7\ns_add_u32 s{sCnt}, s{sCnt}, s{sTmp}')
    a(f'v_mov_b32 v{vFA}, {L_FULL}\nv_mov_b32 v{vRA}, {L_REL}\nv_mov_b32 v{vF}, -1\nv_mov_b32 v{vF+1}, {INF:#x}\nds_write_b64 v{vFA}, v[{vF}:{vF+1}]')
    a(f's_lshl_b32 s{sKb}, s{sH}, 24\ns_lshl_b32 s{sTmp}, s{sC}, 19\ns_add_u32 s{sKo}, s{sKb}, s{sTmp}')
    def advk():
        a(f's_mov_b32 s{sVo}, s{sKo}\ns_add_u32 s{sKo}, s{sKo}, 8192')
    a(f's_mov_b32 m0, {L_X:#x}')
    a('s_waitcnt lgkmcnt(0)')
    dK,dV,dWQ,dWG,dWU,dXl,dWSl=28,32,36,40,44,84,88
    srd(dXl,pX,1024)
    a(f'buffer_load_dwordx4 v{vX}, s[{dXl}:{dXl+3}], 0 offen lds')
    srd(dWQ,pWQ,512*4096*2)
    stamp(10)
    issued=[1]; pub=[-1]
    def pubv(v): a(f'v_mov_b32 v{vF}, {v}\nds_write_b32 v{vFA}, v{vF}')
    def pace():
        if issued[0]>W:
            a(f's_waitcnt vmcnt({W})')
            g=(issued[0]-W-1)//8
            if g>pub[0]:
                pub[0]=g; pubv(g); stamp(11+g)
    def sub(kind, g, sb):
        base=(g%R)*SLOT+4096*sb
        a(f's_mov_b32 m0, {base:#x}')
        for k in range(4):
            n=4*sb+k
            if kind=='K':
                if k==0: a(f's_add_u32 s{sTmp}, s{sKo}, {4096*sb}')
                a(f'buffer_load_dwordx4 v{vK0+k}, s[{dK}:{dK+3}], s{sTmp} offen offset:{1024*k} {pol} lds')
            elif kind in('WQ0','WQ1'):
                n+=8*(kind=='WQ1')
                a(f's_add_u32 s{sTmp}, s{sVo}, {16*8192*n-1024*k}')
                a(f'buffer_load_dwordx4 v{vWQ}, s[{dWQ}:{dWQ+3}], s{sTmp} offen offset:{1024*k} {wpol} lds')
            elif kind in('G','U'):
                d=dWG if kind=='G' else dWU
                a(f's_add_u32 s{sTmp}, s{sCnt}, {8*3584*n-1024*k}')
                a(f'buffer_load_dwordx4 v{vFF}, s[{d}:{d+3}], s{sTmp} offen offset:{1024*k} {wpol} lds')
        issued[0]+=4
    barrier_done=False
    for g,kind in enumerate(['WQ0','WQ1','G','K','U']):
        if kind=='G': srd(dWG,pWG,512*1792*2); srd(dK,pK,1<<27); srd(dWU,pWU,512*1792*2); srd(dV,pV,1<<27)
        for sb in range(2):
            if issued[0]>W and not barrier_done:
                a('s_barrier'); barrier_done=True
            pace(); sub(kind,g,sb)
    if not barrier_done: a('s_barrier')
    if pub[0]<0 or issued[0]<=W+8:
        for left,g in ((40,0),(32,1),(24,2)):
            if g>pub[0]: a(f's_waitcnt vmcnt({left})'); pubv(g); stamp(11+g); pub[0]=g
    if diag: srd(dWSl,pWS,WS_SZ)
    advk()
    a(f's_mov_b32 s{sG}, 5\ns_mov_b32 s{sSlot}, {5*SLOT}\ns_mov_b32 s{sMin}, 0\ns_mov_b32 s{sJ}, 1\ns_mov_b32 s{sFull}, {pub[0]}\ns_mov_b32 s{sCg}, 0')
    def relcheck():
        ok=lab('rok'); p=lab('rp')
        a(f's_sub_i32 s{sGmR}, s{sG}, {R}\ns_cmp_gt_i32 s{sMin}, s{sGmR}\ns_cbranch_scc1 {ok}')
        a(f'{p}:\nds_read_b128 v[16:19], v{vRA}\nds_read_b32 v15, v{vRA} offset:16'); timeout()
        a(f's_waitcnt lgkmcnt(0)\nv_min3_i32 v16, v16, v17, v18\nv_min3_i32 v16, v16, v19, v15\nv_readfirstlane_b32 s{sMin}, v16\ns_cmp_gt_i32 s{sMin}, s{sGmR}\ns_cbranch_scc0 {p}\n{ok}:')
    def adv():
        a(f's_add_u32 s{sG}, s{sG}, 1\ns_add_u32 s{sSlot}, s{sSlot}, {SLOT}\ns_cmp_eq_u32 s{sSlot}, {RING}\ns_cselect_b32 s{sSlot}, 0, s{sSlot}')
    def batch(kind,sb):
        so=sKo if kind=='K' else sVo
        if sb==0: a(f's_mov_b32 m0, s{sSlot}')
        else: a(f's_add_u32 m0, s{sSlot}, 4096')
        a(f's_add_u32 s{sTmp}, s{so}, {4096*sb}')
        for k in range(4):
            if kind=='K': a(f'buffer_load_dwordx4 v{vK0+k}, s[{dK}:{dK+3}], s{sTmp} offen offset:{1024*k} {pol} lds')
            else: a(f'buffer_load_dwordx4 v{vV0+(k&1)}, s[{dV}:{dV+3}], s{sTmp} offen offset:{1024*k} {vpol} lds')
    def pubrel(d):
        a((f's_sub_u32 s{sTmp}, s{sG}, {-d}' if d<0 else f's_add_u32 s{sTmp}, s{sG}, {d}')+f'\ns_max_i32 s{sFull}, s{sFull}, s{sTmp}\nv_mov_b32 v{vF}, s{sFull}\nds_write_b32 v{vFA}, v{vF}')
    def dyn_group(kind,W,mid=None):
        relcheck()
        for sb in range(2):
            a(f's_waitcnt vmcnt({W})')
            if (4*sb-W)%8==0: pubrel(-(W-4*sb)//8)
            batch(kind,sb)
        if mid: mid()
        adv()
    def lstamp():
        if diag:
            l=lab('nost')
            a(f's_and_b32 s{sTmp}, s{sJ}, 7\ns_cmp_eq_u32 s{sTmp}, 0\ns_cbranch_scc0 {l}\ns_lshr_b32 s{sTmp}, s{sJ}, 3\ns_add_u32 s{sTmp}, s{sTmp}, 2\ns_min_u32 s{sTmp}, s{sTmp}, 9\ns_mov_b32 m0, s{sTmp}')
            a(f's_memrealtime s[{sSt}:{sSt+1}]\ns_waitcnt lgkmcnt(0)\nv_writelane_b32 v{vSt}, s{sSt}, m0\n{l}:')
    def moderead(): a(f'ds_read_b32 v{vTQ}, v{vFA} offset:12')
    if fb: moderead()
    a('L_ltop:')
    if jopen: a(f's_cmp_ge_u32 s{sJ}, {jopen}\ns_cbranch_scc1 L_lloop{len(modes)}')
    if fb:
        a(f's_waitcnt lgkmcnt(0)\nv_readfirstlane_b32 s{sTmp}, v{vTQ}')
        for mi in range(1,len(modes)): a(f's_cmp_eq_u32 s{sTmp}, {mi}\ns_cbranch_scc1 L_lloop{mi}')
    if jopen: modes=modes+[Nend]
    for mi,Np in enumerate(modes):
        W=Np-4; assert W%4==0 and W<=59
        a(f'L_lloop{mi}:')
        if diag: a(f's_add_u32 s{sCg}, s{sCg}, {1<<(8*mi)}')
        dyn_group('K',W); dyn_group('V',W,moderead if fb else None)
        lstamp()
        advk(); a(f's_add_u32 s{sJ}, s{sJ}, 1')
        a(f's_cmp_lt_u32 s{sJ}, {S-3}\ns_cbranch_scc1 L_ltop')
        if mi<len(modes)-1: a('s_branch L_lend')
    W=Nend-4
    a('L_lend:')
    for kind in 'KKKVVVV':
        dyn_group(kind,W)
        so=sKo if kind=='K' else sVo
        a(f's_add_u32 s{so}, s{so}, 8192')
    a(f'v_mov_b32 v{vF+1}, 0\nds_write_b32 v{vFA}, v{vF+1} offset:4')
    stamp(1)
    for left in range(8*((W-1)//8),-1,-8):
        a(f'v_mov_b32 v{vF}, {GT-left//8}\ns_waitcnt vmcnt({left})\nds_write_b32 v{vFA}, v{vF}')
    stamp(2)
    if diag: a(f'v_writelane_b32 v{vSt}, s{sJ}, 16\nv_writelane_b32 v{vSt}, s{sCg}, 17')
    stamp_out(dWSl)
    a('s_endpgm')
    a('L_cons:'); role[0]='C'
    vFA,vRA,vKp,vVp,vM,vMb,vL,vTm=4,5,6,7,8,9,10,11
    vQ=12; vO=28; vK=60; vV=92; vS=124; vA=132; vP=140; vT=144; vAd=148; vL16=156; vX1=160
    dWS,dWD,dWO,dOUT=28,36,40,44
    a(f's_sub_u32 s{sCw}, s{sW}, 1')
    a(f'v_mov_b32 v{vFA}, {L_FULL}\ns_lshl_b32 s{sTmp}, s{sCw}, 2\ns_add_u32 s{sTmp}, s{sTmp}, {L_REL}\nv_mov_b32 v{vRA}, s{sTmp}')
    a(f's_lshl_b32 s{sG}, s{sCw}, 1\ns_add_u32 s{sG}, s{sG}, 3')
    a(f's_cmp_eq_u32 s{sCw}, 0\ns_cselect_b32 s{sTmp}, 0, s{sG}\ns_cmp_eq_u32 s{sCw}, 4\ns_cselect_b32 s{sTmp}, 2, s{sTmp}\nv_mov_b32 v1, s{sTmp}\nds_write_b32 v{vRA}, v1')
    a(f'v_mov_b32 v1, 0\nds_write_b32 v{vFA}, v1 offset:8\nds_write_b32 v{vFA}, v1 offset:12\nds_write_b32 v{vRA}, v1 offset:{L_PF-L_REL}')
    a(f's_mov_b32 s{sScale}, {SCALE:#x}\ns_mov_b32 s{sL2e}, {LOG2E:#x}\nv_mov_b32 v{vMask}, 0xff')
    a(f'v_xor_b32 v{vKp}, v2, v3\nv_lshlrev_b32 v{vKp}, 4, v{vKp}\nv_lshl_add_u32 v{vKp}, v3, 8, v{vKp}')
    a(f'v_lshrrev_b32 v1, 2, v3\nv_lshl_add_u32 v1, v2, 2, v1\nv_and_b32 v{vVp}, 7, v1\nv_lshlrev_b32 v{vVp}, 5, v{vVp}\nv_lshl_add_u32 v{vVp}, v1, 8, v{vVp}\nv_and_b32 v{vTm}, 3, v0\nv_lshl_add_u32 v{vVp}, v{vTm}, 3, v{vVp}')
    a(f'v_lshlrev_b32 v{vL16}, 4, v0')
    a(f's_lshl_b32 s{sCg}, s{sXj}, 4\ns_add_u32 s{sCg}, s{sCg}, s{sXi}')
    a('s_waitcnt lgkmcnt(0)')
    a(f's_load_dword s{sT}, s[{pWS}:{pWS+1}], 0')
    a(f's_and_b32 s{sTmp}, s{sCg}, 127\ns_lshl_b32 s{sTmp}, s{sTmp}, 3\ns_load_dwordx2 s[{sXf}:{sXf+1}], s[{pX}:{pX+1}], s{sTmp}')
    srd(dWS,pWS,WS_SZ); srd(dWD,pWD,1792*512*2); srd(dWO,pWO,4096*512*2); srd(dOUT,pOUT,1024)
    a('s_barrier')
    w0,w1,w2,w3=vQ+8,vQ+9,vQ+10,vQ+11
    def wait_q(l,v):
        a(f'{l}:\nds_read_b32 v{v}, v{vFA} offset:8'); timeout()
        a(f's_waitcnt lgkmcnt(0)\nv_readfirstlane_b32 s{sLoc}, v{v}\ns_cmp_eq_u32 s{sLoc}, 0\ns_cbranch_scc1 {l}')
    def st2(loc,*st):
        l1,l2=lab('sl'),lab('sd')
        a(f's_cbranch_scc1 {l1}')
        for x in st: a(x+' sc1')
        a(f's_branch {l2}\n{l1}:')
        for x in st: a(x)
        a(f'{l2}:')
    a(f's_and_b32 s{sTmp}, s{sCw}, 3\ns_cmp_eq_u32 s{sTmp}, 0\ns_cbranch_scc1 L_ln')
    wait_q('L_waitq',w0)
    a(f's_add_u32 s{sT}, s{sT}, 1\ns_lshr_b32 s{sT1}, s{sT}, 8\ns_branch L_qready')
    a('L_ln:')
    vx=vK; vxf=vK+4; vWD=vO; vXf=vV
    wait_full(-1,vT,vFA)
    a(f'v_add_u32 v{vT}, {L_X}, v{vL16}\nds_read_b128 v[{vx}:{vx+3}], v{vT}')
    a(f's_add_u32 s{sT}, s{sT}, 1\ns_lshr_b32 s{sT1}, s{sT}, 8')
    stamp(1)
    a('s_waitcnt lgkmcnt(0)')
    for j in range(4): a(f'v_lshlrev_b32 v{vxf+2*j}, 16, v{vx+j}\nv_and_b32 v{vxf+2*j+1}, 0xffff0000, v{vx+j}')
    t0=vxf+8; t1=t0+1; t2=t0+2; vd=t0+4
    a(f'v_add_f32 v{t0}, v{vxf}, v{vxf+1}\nv_add_f32 v{t1}, v{vxf+2}, v{vxf+3}\nv_add_f32 v{t2}, v{vxf+4}, v{vxf+5}\nv_add_f32 v{t0}, v{t0}, v{t1}\nv_add_f32 v{t1}, v{vxf+6}, v{vxf+7}\nv_add_f32 v{t0}, v{t0}, v{t2}\nv_add_f32 v{t0}, v{t0}, v{t1}')
    allred('v_add_f32',[t0],[t1])
    a(f'v_mul_f32 v{t0}, {f2u(1/512.):#x}, v{t0}')
    for j in range(8): a(f'v_sub_f32 v{vd+j}, v{vxf+j}, v{t0}')
    a(f'v_mul_f32 v{t2}, v{vd}, v{vd}')
    for j in range(1,8): a(f'v_fmac_f32 v{t2}, v{vd+j}, v{vd+j}')
    allred('v_add_f32',[t2],[t1])
    a(f'v_mul_f32 v{t2}, {f2u(1/512.):#x}, v{t2}')
    bfr(t0,t0); bfr(t2,t2)
    a(f'v_add_f32 v{t2}, {f2u(1e-5):#x}, v{t2}'); bfr(t2,t2)
    a(f'v_sqrt_f32 v{t2}, v{t2}'); bfr(t2,t2)
    a(f'v_rcp_f32 v{t2}, v{t2}')
    for j in range(8): a(f'v_sub_f32 v{vd+j}, v{vxf+j}, v{t0}')
    for j in range(4): a(f'v_cvt_pk_bf16_f32 v{vx+j}, v{vd+2*j}, v{vd+2*j+1}')
    for j in range(4): a(f'v_lshlrev_b32 v{vd+2*j}, 16, v{vx+j}\nv_and_b32 v{vd+2*j+1}, 0xffff0000, v{vx+j}')
    for j in range(8): a(f'v_mul_f32 v{vd+j}, v{vd+j}, v{t2}')
    for j in range(4): a(f'v_cvt_pk_bf16_f32 v{vx+j}, v{vd+2*j}, v{vd+2*j+1}')
    a(f's_lshl_b32 s{sTmp}, s{sCw}, 8\ns_add_u32 s{sTmp}, s{sTmp}, {L_XN}\nv_add_u32 v{t0}, s{sTmp}, v{vL16}\nds_write_b128 v{t0}, v[{vx}:{vx+3}]')
    a(f's_cmp_eq_u32 s{sCw}, 0\ns_cbranch_scc0 L_help')
    a(f's_lshr_b32 s{sTmp2}, s{sC}, 4\ns_lshl_b32 s{sTmp2}, s{sTmp2}, 9\ns_add_u32 s{sTmp}, s{sTmp}, s{sTmp2}\nv_lshl_add_u32 v{t0}, v2, 3, s{sTmp}')
    for j in range(8): a(f'ds_read2_b64 v[{vXf+4*j}:{vXf+4*j+3}], v{t0} offset0:{8*j} offset1:{8*j+4}')
    vD=vQ; vpt=vT; vB=vK
    a(f'v_lshlrev_b32 v{vpt}, 6, v1\nv_lshl_add_u32 v{vpt}, v{vTm}, 3, v{vpt}\nv_and_b32 v{vpt+1}, 1, v2\nv_lshl_add_u32 v{vpt}, v{vpt+1}, 5, v{vpt}\nv_xor_b32 v{vpt+1}, 32, v{vpt}')
    a(f's_getreg_b32 s{sXcc}, hwreg(HW_REG_XCC_ID, 0, 4)\ns_waitcnt lgkmcnt(2)')
    stamp(2)
    def qgemv(s0,s1):
        seq=[(s,j) for s in range(s0,s1) for j in range(2)]
        def rd(i):
            s,j=seq[i]; b=vB+4*(i%8)
            a(f'ds_read_b64_tr_b16 v[{b}:{b+1}], v{vpt+j} offset:{2048*s}\nds_read_b64_tr_b16 v[{b+2}:{b+3}], v{vpt+j} offset:{2048*s+1024}')
        for i in range(5): rd(i)
        for i in range(len(seq)):
            if i+5<len(seq): rd(i+5)
            a(f's_waitcnt lgkmcnt({2*(min(i+5,len(seq)-1)-i)})')
            s,j=seq[i]; b=vB+4*(i%8)
            a(f'v_mfma_f32_16x16x32_bf16 v[{vD+4*j}:{vD+4*j+3}], v[{b}:{b+3}], v[{vXf+4*s}:{vXf+4*s+3}], '+('0' if s==0 else f'v[{vD+4*j}:{vD+4*j+3}]'))
    wait_full(0,vT+2,vFA); qgemv(0,4)
    wait_full(1,vT+2,vFA); stamp(3); qgemv(4,8)
    a(f'v_mov_b32 v{w0}, 3\nds_write_b32 v{vRA}, v{w0}')
    a(f's_and_b32 s{sTmp}, s{sC}, 7\ns_lshl_b32 s{sTmp}, s{sTmp}, 8\ns_bfe_u32 s{sTmp2}, s{sC}, 0x10003\ns_lshl_b32 s{sTmp2}, s{sTmp2}, 7\ns_add_u32 s{sTmp}, s{sTmp}, s{sTmp2}')
    a(f's_lshr_b32 s{sTmp2}, s{sC}, 4\ns_lshl_b32 s{sTmp2}, s{sTmp2}, 11\ns_add_u32 s{sTmp}, s{sTmp}, s{sTmp2}\ns_lshl_b32 s{sKo}, s{sH}, 12\ns_add_u32 s{sKo}, s{sKo}, {W_QG:#x}\ns_add_u32 s{sTmp}, s{sTmp}, s{sKo}')
    a(f'v_lshlrev_b32 v{vpt}, 4, v2\nv_lshl_add_u32 v{vpt}, v3, 6, v{vpt}\nv_add_u32 v{vpt}, s{sTmp}, v{vpt}')
    a(f's_lshl_b32 s{sVo}, s{sH}, 9\ns_add_u32 s{sVo}, s{sVo}, {W_QX:#x}\ns_lshl_b32 s{sTmp}, s{sC}, 4\ns_add_u32 s{sTmp}, s{sTmp}, s{sVo}')
    setexec(0x0002000200020002)
    for k in range(4): a(f'v_mov_b32 v{vD+k}, v{vD+4+k}')
    a('s_mov_b64 exec, -1'); tag4(vD)
    a(f's_mov_b64 exec, 4\nv_mov_b32 v{vD}, s{sXcc}\nv_mov_b32 v{vD+1}, s{sT}\nv_mov_b32 v{vD+2}, s{sXcc}\nv_mov_b32 v{vD+3}, s{sT}\nv_mov_b32 v{vpt}, s{sTmp}')
    def qpub(p):
        setexec(0x0003000300030007)
        a(f'buffer_store_dwordx4 v[{vD}:{vD+3}], v{vpt}, s[{dWS}:{dWS+3}], 0 offen {p}\ns_mov_b64 exec, -1')
    qpub('' if local else 'sc1')
    stamp(4)
    a(f'v_and_b32 v{vpt+1}, 0x1f0, v{vL16}\ns_mov_b32 s{sCnt}, {qfall}')
    a('L_qpoll:')
    for i in range(4): a(f'buffer_load_dwordx4 v[{vK+4*i}:{vK+4*i+3}], v{vL16}, s[{dWS}:{dWS+3}], s{sKo} offen offset:{1024*i} sc1')
    a(f'buffer_load_dwordx4 v[{vK+16}:{vK+19}], v{vpt+1}, s[{dWS}:{dWS+3}], s{sVo} offen sc1')
    timeout()
    a('s_waitcnt vmcnt(0)')
    chk(w0,[vK,vK+4,vK+8,vK+12],[vK+17,vK+19],w1)
    a(f's_cbranch_vccz L_qok\ns_sub_u32 s{sCnt}, s{sCnt}, 1\ns_cmp_eq_u32 s{sCnt}, 0\ns_cbranch_scc0 L_qpoll')
    qpub('sc1')
    a('s_branch L_qpoll\nL_qok:')
    for k in range(8): a(f'v_add_f32 v{vK+k}, v{vK+k}, v{vK+8+k}')
    for k in range(4): a(f'v_cvt_pk_bf16_f32 v{vK+k}, v{vK+2*k}, v{vK+2*k+1}')
    a(f'v_lshlrev_b32 v{vpt+1}, 3, v0\nv_add_u32 v{vpt+1}, {L_Q}, v{vpt+1}\nds_write2st64_b64 v{vpt+1}, v[{vK}:{vK+1}], v[{vK+2}:{vK+3}] offset0:0 offset1:1')
    a(f'v_cmp_ne_u32 vcc, s{sXcc}, v{vK+16}\ns_mov_b32 s{sLoc}, 1')
    if local: a(f's_cmp_eq_u64 vcc, 0\ns_cselect_b32 s{sLoc}, 2, 1')
    a(f'v_mov_b32 v{w0}, s{sLoc}\nds_write_b32 v{vFA}, v{w0} offset:8')
    a(f's_cmp_eq_u32 s{sLoc}, 2\ns_cbranch_scc1 L_qnorep'); qpub('sc1'); a('L_qnorep:')
    stamp(5)
    a('L_qready:')
    a(f'v_lshlrev_b32 v{vT}, 8, v{vTm}\nv_lshl_add_u32 v{vT}, v2, 4, v{vT}\nv_add_u32 v{vT}, {L_Q}, v{vT}')
    for s in range(4): a(f'ds_read_b128 v[{vQ+4*s}:{vQ+4*s+3}], v{vT} offset:{64*s}')
    for i in range(32): a(f'v_mov_b32 v{vO+i}, 0')
    a(f'v_mov_b32 v{vM}, 0xff800000\nv_mov_b32 v{vMb}, 0\nv_mov_b32 v{vL}, 0\ns_mov_b32 s{sCnt}, {S//4-1}')
    a(f's_lshl_b32 s{sSlot}, s{sG}, 13\ns_add_u32 s{sSlotV}, s{sSlot}, {3*SLOT}')
    vE,vFl,vML,vMT=160,164,168,172
    vWa,vWm,vRo,vRm,vpa,vpm,vPw,vMw,vMr,vV0,vV1,vPr=range(176,188)
    sO1=sTmp3
    a(f'v_lshlrev_b32 v{vWm}, 4, v{vTm}\nv_lshl_add_u32 v{vWa}, v2, 6, v{vWm}\nv_lshrrev_b32 v{vT}, 2, v3\nv_mul_u32_u24 v{vRo}, {PC}, v{vT}\nv_add_u32 v{vRo}, v{vRo}, v{vWa}')
    a(f's_lshl_b32 s{sTmp}, s{sCw}, 9\ns_add_u32 s{sTmp}, s{sTmp}, {L_SC}\nv_add_u32 v{vRo}, s{sTmp}, v{vRo}\ns_mul_i32 s{sTmp}, s{sCw}, {PC}\ns_add_u32 s{sTmp}, s{sTmp}, {L_SC}\nv_add_u32 v{vWa}, s{sTmp}, v{vWa}')
    a(f'v_lshlrev_b32 v{vRm}, 4, v3\nv_add_u32 v{vRm}, {L_SM}, v{vRm}\nv_add_u32 v{vMr}, {L_MT}, v{vWm}\ns_lshl_b32 s{sTmp}, s{sCw}, 2\nv_add_u32 v{vMw}, s{sTmp}, v{vMr}')
    a(f's_lshl_b32 s{sTmp}, s{sCw}, 6\ns_add_u32 s{sTmp}, s{sTmp}, {L_SM}\nv_add_u32 v{vWm}, s{sTmp}, v{vWm}\ns_lshl_b32 s{sTmp}, s{sCw}, 6\nv_xor_b32 v{vV0}, s{sTmp}, v{vVp}\nv_xor_b32 v{vV1}, 32, v{vV0}')
    a(f'v_add_u32 v{vPr}, {L_P}, v{vL16}\ns_lshl_b32 s{sTmp}, s{sCw}, 10\nv_add_u32 v{vPw}, s{sTmp}, v{vPr}')
    a(f's_lshl_b32 s{sTmp}, s{sH}, 17\ns_lshl_b32 s{sTmp2}, s{sC}, 7\ns_add_u32 s{sTmp}, s{sTmp}, s{sTmp2}\ns_lshl_b32 s{sTmp2}, s{sCw}, 13\ns_add_u32 s{sTmp}, s{sTmp}, s{sTmp2}\ns_add_u32 s{sKo}, s{sTmp}, {W_P2:#x}\ns_add_u32 s{sO1}, s{sKo}, 4096')
    a(f'v_lshlrev_b32 v{vpa}, 15, v{vTm}\nv_bfe_u32 v{vpm}, v0, 2, 1\nv_lshl_add_u32 v{vpm}, v{vpm}, 12, v{vpa}\nv_lshl_add_u32 v{vpa}, v2, 4, v{vpa}')
    stamp(6)
    def qk(slot,rel):
        a(f'v_add_u32 v{vAd+4}, {slot}, v{vKp}')
        for s in (1,2,3): a(f'v_xor_b32 v{vAd+4+s}, {64*s}, v{vAd+4}')
        for t in range(2):
            for s in range(4): a(f'ds_read_b128 v[{vK+16*t+4*s}:{vK+16*t+4*s+3}], v{vAd+4+s} offset:{4096*t}')
        if rel: a(f's_add_u32 s{sG}, s{sG}, 3\nv_mov_b32 v{vT}, s{sG}')
        for t in range(2):
            a(f's_waitcnt lgkmcnt({4-4*t})')
            if t==1 and rel: a(f'ds_write_b32 v{vRA}, v{vT}')
            for s in range(4):
                a(f'v_mfma_f32_16x16x32_bf16 v[{vS+4*t}:{vS+4*t+3}], v[{vK+16*t+4*s}:{vK+16*t+4*s+3}], v[{vQ+4*s}:{vQ+4*s+3}], '+('0' if s==0 else f'v[{vS+4*t}:{vS+4*t+3}]'))
    def scores(A,m,mo):
        for j in range(4): a(f'v_cvt_pk_bf16_f32 v{vP+j}, v{vS+2*j}, v{vS+2*j+1}')
        for j in range(4): a(f'v_lshlrev_b32 v{A+2*j}, 16, v{vP+j}\nv_and_b32 v{A+2*j+1}, 0xffff0000, v{vP+j}')
        for j in range(8): a(f'v_mul_f32 v{A+j}, s{sScale}, v{A+j}')
        for j in range(4): a(f'v_cvt_pk_bf16_f32 v{vP+j}, v{A+2*j}, v{A+2*j+1}')
        for j in range(4): a(f'v_lshlrev_b32 v{A+2*j}, 16, v{vP+j}\nv_and_b32 v{A+2*j+1}, 0xffff0000, v{vP+j}')
        a(f'v_max3_f32 v{vT+3}, v{A}, v{A+1}, v{A+2}\nv_max3_f32 v{vT+1}, v{A+3}, v{A+4}, v{A+5}\nv_max3_f32 v{vT+2}, v{A+6}, v{A+7}, v{m}\nv_max3_f32 v{mo}, v{vT+3}, v{vT+1}, v{vT+2}')
    def probs(A,P):
        for j in range(8): a(f'v_fma_f32 v{A+j}, v{A+j}, s{sL2e}, -v{vMb}')
        for j in range(8): a(f'v_exp_f32 v{A+j}, v{A+j}')
        for j in range(4): a(f'v_cvt_pk_bf16_f32 v{P+j}, v{A+2*j}, v{A+2*j+1}')
        a(f'v_add_f32 v{vT}, v{A}, v{A+1}\nv_add_f32 v{vT+1}, v{A+2}, v{A+3}\nv_add_f32 v{vT+2}, v{A+4}, v{A+5}\nv_add_f32 v{vT+3}, v{A+6}, v{A+7}')
        a(f'v_add_f32 v{vT}, v{vT}, v{vT+1}\nv_add_f32 v{vT+2}, v{vT+2}, v{vT+3}\nv_add_f32 v{vT}, v{vT}, v{vT+2}\nv_add_f32 v{vL}, v{vL}, v{vT}')
    vVa=vK
    def vaddr(slot):
        a(f'v_add_u32 v{vVa}, {slot}, v{vVp}')
        for db in range(1,8): a(f'v_xor_b32 v{vVa+db}, {32*db}, v{vVa}')
    def pv(P,rel,after=None):
        def rdv(db): a(f'ds_read_b64_tr_b16 v[{vV+4*db}:{vV+4*db+1}], v{vVa+db}\nds_read_b64_tr_b16 v[{vV+4*db+2}:{vV+4*db+3}], v{vVa+db} offset:4096')
        for db in range(6): rdv(db)
        if rel: a(f's_add_u32 s{sG}, s{sG}, 5\nv_mov_b32 v{vT}, s{sG}')
        for db in range(8):
            a(f's_waitcnt lgkmcnt({2*(min(db+5,7)-db)})')
            if db==7 and rel: a(f'ds_write_b32 v{vRA}, v{vT}')
            a(f'v_mfma_f32_16x16x32_bf16 v[{vO+4*db}:{vO+4*db+3}], v[{vV+4*db}:{vV+4*db+3}], v[{P}:{P+3}], v[{vO+4*db}:{vO+4*db+3}]')
            if db+6<8: rdv(db+6)
            if after and db>=1: after(db-1)
        if after: after(7)
    a('L_step:')
    wait_full(f's{sG}',vT,vFA)
    qk(f's{sSlot}',True)
    scores(vA,vM,vT)
    allred('v_max_f32',[vT],[vT+1],lo=())
    vaddr(f's{sSlotV}')
    a(f'v_cmp_gt_f32 vcc, v{vT}, v{vM}\ns_cbranch_vccz L_norescale')
    a(f'v_sub_f32 v{vT+1}, v{vM}, v{vT}\nv_mul_f32 v{vT+1}, s{sL2e}, v{vT+1}\nv_exp_f32 v{vT+1}, v{vT+1}\nv_mov_b32 v{vM}, v{vT}\nv_mul_f32 v{vMb}, s{sL2e}, v{vT}\nv_mul_f32 v{vL}, v{vL}, v{vT+1}')
    for i in range(32): a(f'v_mul_f32 v{vO+i}, v{vO+i}, v{vT+1}')
    a('L_norescale:')
    probs(vA,vP)
    wait_full(f's{sG}',vT,vFA)
    pv(vP,True)
    for sl in (sSlot,sSlotV):
        a(f's_add_u32 s{sl}, s{sl}, {8*SLOT}\ns_sub_u32 s{sTmp}, s{sl}, {RING}\ns_cselect_b32 s{sl}, s{sl}, s{sTmp}')
    a(f's_sub_u32 s{sCnt}, s{sCnt}, 1\ns_cmp_lg_u32 s{sCnt}, 0\ns_cbranch_scc1 L_step')
    stamp(7)
    gK=[2*S-5]+[2*S-4+c for c in (1,2,3)]; gV=[2*S+t for t in range(4)]
    allred('v_add_f32',[vL],[vT],lo=())
    pk=lambda x: sum((v&255)<<(8*i) for i,v in enumerate(x))
    a(f's_lshl_b32 s{sTmp}, s{sCw}, 3\ns_lshr_b32 s{sG}, {pk(gK):#x}, s{sTmp}\ns_and_b32 s{sG}, s{sG}, 255\ns_lshr_b32 s{sSlot}, {pk([g%R for g in gK]):#x}, s{sTmp}\ns_and_b32 s{sSlot}, s{sSlot}, 255\ns_lshl_b32 s{sSlot}, s{sSlot}, 13')
    setexec(0x000f000f000f000f)
    for db in range(8): a(f'ds_write_b128 v{vWa}, v[{vO+4*db}:{vO+4*db+3}] offset:{256*db}')
    a(f's_mov_b64 exec, -1\nv_mov_b32 v{vE}, v{vM}\nv_mov_b32 v{vE+1}, v{vL}\nv_mov_b32 v{vL}, 0')
    wait_full(f's{sG}',vT,vFA)
    a('s_waitcnt lgkmcnt(6)')
    qk(f's{sSlot}',False)
    scores(vA,vA,vE+2)
    allred('v_max_f32',[vE+2],[vT+1],lo=())
    a(f'v_mul_f32 v{vMb}, s{sL2e}, v{vE+2}')
    probs(vA,vP)
    a(f'ds_write_b128 v{vPw}, v[{vP}:{vP+3}]')
    allred('v_add_f32',[vL],[vT],lo=())
    a(f'v_mov_b32 v{vE+3}, v{vL}\nv_mov_b32 v{vT}, 1\ns_mov_b64 exec, 15\nds_write_b128 v{vWm}, v[{vE}:{vE+3}]\nds_write_b32 v{vMw}, v{vE+2}\nds_write_b32 v{vRA}, v{vT} offset:{L_PF-L_REL}\ns_mov_b64 exec, -1')
    stamp(8)
    acc=vO; vD_=vO+8; vPt=vK
    a(f's_branch L_xrd\nL_xwait:'); timeout()
    a(f's_waitcnt lgkmcnt(0)\nL_xrd:\nds_read_b128 v[{vFl}:{vFl+3}], v{vFA} offset:{L_PF-L_FULL}\nds_read_b128 v[{vML}:{vML+3}], v{vRm}\nds_read_b128 v[{vMT}:{vMT+3}], v{vMr}')
    for j in range(2): a(f'ds_read_b128 v[{acc+4*j}:{acc+4*j+3}], v{vRo} offset:{256*j}')
    for t in range(4): a(f'ds_read_b128 v[{vPt+4*t}:{vPt+4*t+3}], v{vPr} offset:{1024*t}')
    a(f's_waitcnt lgkmcnt(8)\nv_min3_u32 v{vFl}, v{vFl}, v{vFl+1}, v{vFl+2}\nv_min_u32 v{vFl}, v{vFl}, v{vFl+3}\nv_cmp_eq_u32 vcc, 0, v{vFl}\ns_cbranch_vccnz L_xwait')
    a(f's_waitcnt lgkmcnt(6)\nv_max_f32 v{vS}, v{vML}, v{vML+2}')
    allred('v_max_f32',[vS],[],lo=(4,8),hi=())
    ex=[vML,vML+2,vMT,vMT+1,vMT+2,vMT+3]
    for v in ex: a(f'v_sub_f32 v{v}, v{v}, v{vS}')
    for v in ex: a(f'v_mul_f32 v{v}, s{sL2e}, v{v}')
    for v in ex: a(f'v_exp_f32 v{v}, v{v}')
    a(f'v_mov_b32 v{vS+1}, s{sT1}\nv_mov_b32 v{vS+3}, s{sT1}\nv_bfi_b32 v{vS}, v{vMask}, s{sT}, v{vS}\nv_mul_f32 v{vS+2}, v{vML}, v{vML+1}\nv_fmac_f32 v{vS+2}, v{vML+2}, v{vML+3}')
    allred('v_add_f32',[vS+2],[],lo=(4,8),hi=())
    a(f'v_bfi_b32 v{vS+2}, v{vMask}, s{sT}, v{vS+2}')
    a(f's_mov_b64 exec, 0xff\ns_cmp_eq_u32 s{sLoc}, 2')
    st2(1,f'buffer_store_dwordx4 v[{vS}:{vS+3}], v{vpm}, s[{dWS}:{dWS+3}], s{sKo} offen offset:64')
    a('s_mov_b64 exec, -1\ns_waitcnt lgkmcnt(0)')
    for i in range(0,8,2): a(f'v_pk_mul_f32 v[{acc+i}:{acc+i+1}], v[{acc+i}:{acc+i+1}], v[{vML}:{vML+1}] op_sel_hi:[1,0]')
    allred('v_add_f32',list(range(acc,acc+8)),[],lo=(4,8),hi=())
    stamp(12)
    sEx=84
    a(f's_mov_b32 s{sEx}, 0x000f000f\ns_mov_b32 s{sEx+1}, 0x000f000f')
    for t in range(4):
        l=lab('vw'); l2=lab('vr'); o_=(gV[t]%R)*SLOT; assert o_+4096<65536
        f=vV+8*t; d=vD_+8*(t&1)
        a(f's_branch {l2}\n{l}:'); timeout()
        a(f's_waitcnt lgkmcnt(0)\n{l2}:\nds_read_b32 v{vT}, v{vFA}')
        for j,va in enumerate((vV0,vV1)): a(f'ds_read_b64_tr_b16 v[{f+4*j}:{f+4*j+1}], v{va} offset:{o_}\nds_read_b64_tr_b16 v[{f+4*j+2}:{f+4*j+3}], v{va} offset:{o_+4096}')
        a(f's_waitcnt lgkmcnt(4)\nv_cmp_ge_i32 vcc, {gV[t]}, v{vT}\ns_cbranch_vccnz {l}')
        for j in range(2): a(f's_waitcnt lgkmcnt({2-2*j})\nv_mfma_f32_16x16x32_bf16 v[{d+4*j}:{d+4*j+3}], v[{f+4*j}:{f+4*j+3}], v[{vPt+4*t}:{vPt+4*t+3}], 0')
        if t==3: a(f's_cmp_eq_u32 s{sLoc}, 2\ns_cbranch_scc0 L_outg')
        sel='op_sel_hi:[1,0,1]' if t%2==0 else 'op_sel:[0,1,0]'
        def fma(j):
            for i in (4*j,4*j+2): a(f'v_pk_fma_f32 v[{acc+i}:{acc+i+1}], v[{d+i}:{d+i+1}], v[{vMT+(t&2)}:{vMT+(t&2)+1}], v[{acc+i}:{acc+i+1}] {sel}')
        if t<3: fma(0); fma(1)
    for p in ('','sc1'):
        if p: a('L_outg:')
        a(f's_mov_b64 exec, s[{sEx}:{sEx+1}]')
        for j in range(2):
            fma(j); tag4(acc+4*j)
            a(f'buffer_store_dwordx4 v[{acc+4*j}:{acc+4*j+3}], v{vpa}, s[{dWS}:{dWS+3}], s{sO1 if j else sKo} offen {p}')
        stamp(9)
        stamp_out(dWS)
        a('s_endpgm')
    a('L_help:')
    vWo=192
    def wo_loads():
        a(f's_lshl_b32 s{sTmp}, s{sH}, 5\ns_add_u32 s{sTmp}, s{sTmp}, s{sC}\ns_lshl_b32 s{sTmp}, s{sTmp}, 14')
        for i in range(16):
            a(f'buffer_load_dwordx4 v[{vWo+4*i}:{vWo+4*i+3}], v{vL16}, s[{dWO}:{dWO+3}], s{sTmp} offen offset:{1024*(i&3)} {wpol}')
            if i&3==3 and i<15: a(f's_add_u32 s{sTmp}, s{sTmp}, 4096')
    a(f's_cmp_lt_u32 s{sF}, 224\ns_cbranch_scc0 L_noffn')
    a(f's_and_b32 s{sTmp2}, s{sF}, 7\ns_lshl_b32 s{sTmp2}, s{sTmp2}, 7\ns_add_u32 s{sTmp}, s{sTmp2}, {L_XN+1024}\nv_lshl_add_u32 v{t0}, v2, 3, s{sTmp}')
    for j in range(2): a(f'ds_read2_b64 v[{vXf+4*j}:{vXf+4*j+3}], v{t0} offset0:{8*j} offset1:{8*j+4}')
    a(f'v_lshlrev_b32 v{vAd}, 7, v1\nv_lshl_add_u32 v{vAd}, v{vTm}, 3, v{vAd}\nv_bfe_u32 v{vAd+1}, v1, 1, 2\nv_lshl_add_u32 v{vAd}, v{vAd+1}, 5, v{vAd}')
    for j in (1,2,3): a(f'v_xor_b32 v{vAd+j}, {32*j}, v{vAd}')
    stamp(2)
    wait_full(1,vT,vFA)
    a(f's_lshl_b32 s{sTmp}, s{sF}, 13\ns_add_u32 s{sTmp2}, s{sTmp}, 4096')
    for j in range(8): a(f'buffer_load_dwordx4 v[{vWD+4*j}:{vWD+4*j+3}], v{vL16}, s[{dWD}:{dWD+3}], s{sTmp if j<4 else sTmp2} offen offset:{1024*(j&3)} {wpol}')
    vAc=vX1
    def fgemv(mat):
        seq=[(s,j) for s in range(2) for j in range(4)]
        base=(2+2*mat)*SLOT
        def rd(i):
            s,j=seq[i]; b=vB+4*i
            a(f'ds_read_b64_tr_b16 v[{b}:{b+1}], v{vAd+j} offset:{base+4096*s}\nds_read_b64_tr_b16 v[{b+2}:{b+3}], v{vAd+j} offset:{base+4096*s+2048}')
        for i in range(5): rd(i)
        for i in range(8):
            if i+5<8: rd(i+5)
            a(f's_waitcnt lgkmcnt({2*(min(i+5,7)-i)})')
            s,j=seq[i]; b=vB+4*i; d=vAc+16*mat+4*j
            a(f'v_mfma_f32_16x16x32_bf16 v[{d}:{d+3}], v[{b}:{b+3}], v[{vXf+4*s}:{vXf+4*s+3}], '+('0' if s==0 else f'v[{d}:{d+3}]'))
    wait_full(2,vT,vFA); fgemv(0)
    wait_full(4,vT,vFA); stamp(3); fgemv(1)
    a(f'v_mov_b32 v{w0}, {INF:#x}\nds_write_b32 v{vRA}, v{w0}')
    for n in range(1,8):
        setexec(0x0001000100010001<<n)
        for k in range(4): a(f'v_mov_b32 v{vAc+k}, v{vAc+4*n+k}')
    a('s_mov_b64 exec, -1'); tag4(vAc)
    wait_q('L_hq',w0)
    a(f's_lshr_b32 s{sTmp}, s{sF}, 3\ns_lshr_b32 s{sTmp}, {(1<<3)|(1<<10)|(1<<17)|(1<<24):#x}, s{sTmp}\ns_and_b32 s{sTmp}, s{sTmp}, 1\ns_sub_u32 s{sTmp2}, s{sLoc}, s{sTmp}')
    a(f's_lshl_b32 s{sTmp}, s{sF}, 9\ns_add_u32 s{sTmp}, s{sTmp}, {W_F1:#x}\nv_lshlrev_b32 v{vT}, 4, v2\nv_lshl_add_u32 v{vT}, v3, 6, v{vT}')
    setexec(0x00ff00ff00ff00ff)
    a(f's_cmp_eq_u32 s{sTmp2}, 2')
    st2(1,f'buffer_store_dwordx4 v[{vAc}:{vAc+3}], v{vT}, s[{dWS}:{dWS+3}], s{sTmp} offen')
    a('s_mov_b64 exec, -1')
    stamp(4)
    if not jwo: wo_loads()
    a(f's_and_b32 s{sTmp}, s{sF}, 0xf8\ns_lshl_b32 s{sTmp}, s{sTmp}, 9\ns_and_b32 s{sTmp2}, s{sF}, 7\ns_lshl_b32 s{sTmp2}, s{sTmp2}, 5\ns_add_u32 s{sTmp}, s{sTmp}, s{sTmp2}\ns_add_u32 s{sKo}, s{sTmp}, {W_F1:#x}')
    a(f'v_bfe_u32 v{vT+2}, v0, 1, 4\nv_lshlrev_b32 v{vT+2}, 8, v{vT+2}\nv_and_b32 v{vT+3}, 1, v0\nv_lshl_add_u32 v{vT+2}, v{vT+3}, 4, v{vT+2}')
    if f1wait: wait_full(f1wait,vT,vFA)
    gu=vK
    a('L_f1poll:')
    a(f'buffer_load_dwordx4 v[{gu}:{gu+3}], v{vT+2}, s[{dWS}:{dWS+3}], s{sKo} offen sc1')
    timeout()
    a('s_waitcnt vmcnt(0)')
    chk(vT,[gu],[],None)
    a('s_cbranch_vccnz L_f1poll')
    allred('v_add_f32',[gu,gu+1,gu+2,gu+3],[vA,vA+1,vA+2,vA+3],lo=(4,8),hi=(16,))
    for k in range(4): bfr(gu+k,gu+k)
    k1=-2*0.7978845608028654*1.4426950408889634
    hh=gu+4; up=gu+8
    for k in range(4): a(f'v_mov_b32_dpp v{up+k}, v{gu+k} quad_perm:[2,3,2,3] row_mask:0xf bank_mask:0xf')
    for k in range(4): a(f'v_mul_f32 v{hh+k}, v{gu+k}, v{gu+k}')
    for k in range(4): a(f'v_mul_f32 v{hh+k}, {f2u(0.044715):#x}, v{hh+k}')
    for k in range(4): a(f'v_fma_f32 v{hh+k}, v{hh+k}, v{gu+k}, v{gu+k}')
    for k in range(4): a(f'v_mul_f32 v{hh+k}, {f2u(k1):#x}, v{hh+k}')
    for k in range(4): a(f'v_exp_f32 v{hh+k}, v{hh+k}')
    for k in range(4): a(f'v_add_f32 v{hh+k}, 1.0, v{hh+k}')
    for k in range(4): a(f'v_rcp_f32 v{hh+k}, v{hh+k}')
    for k in range(4): a(f'v_mul_f32 v{hh+k}, v{gu+k}, v{hh+k}')
    for k in range(4): bfr(hh+k,hh+k)
    for k in range(4): a(f'v_mul_f32 v{hh+k}, v{hh+k}, v{up+k}')
    for k in range(4): bfr(hh+k,hh+k)
    acc=vV; un=vV+8
    for k in range(8): a(f'v_mov_b32 v{acc+k}, 0')
    for j in range(8):
        for k in range(4): a(f'v_lshlrev_b32 v{un+2*k}, 16, v{vWD+4*j+k}\nv_and_b32 v{un+2*k+1}, 0xffff0000, v{vWD+4*j+k}')
        for k in range(8): a(f'v_fmac_f32_dpp v{acc+k}, v{hh+(j&3)}, v{un+k} quad_perm:[{j>>2},{j>>2},{j>>2},{j>>2}] row_mask:0xf bank_mask:0xf')
    tag4(acc); tag4(acc+4)
    a(f's_lshl_b32 s{sTmp}, s{sF}, 7\ns_add_u32 s{sTmp}, s{sTmp}, {W_B3:#x}\ns_add_u32 s{sTmp2}, s{sTmp}, {8*28672}')
    a(f'v_lshrrev_b32 v{vT}, 3, v0\nv_mul_u32_u24 v{vT}, 28672, v{vT}\nv_and_b32 v{vT+1}, 7, v0\nv_lshl_add_u32 v{vT}, v{vT+1}, 4, v{vT}\ns_cmp_eq_u32 s{sLoc}, 2')
    st2(1,f'buffer_store_dwordx4 v[{acc}:{acc+3}], v{vT}, s[{dWS}:{dWS+3}], s{sTmp} offen',f'buffer_store_dwordx4 v[{acc+4}:{acc+7}], v{vT}, s[{dWS}:{dWS+3}], s{sTmp2} offen')
    stamp(5)
    a('s_branch L_ffndone')
    a(f'L_noffn:\nv_mov_b32 v{w0}, {INF:#x}\nds_write_b32 v{vRA}, v{w0}')
    wait_q('L_hq2',w0)
    if not jwo: wo_loads()
    a('s_waitcnt vmcnt(0)\nL_ffndone:')
    vWl=160
    def wo_perm(behind=0,last=None):
        a(f's_mov_b32 s{sTmp}, 0x05040100\ns_mov_b32 s{sTmp2}, 0x07060302')
        for r_ in range(8):
            if jwo and r_<7: a(f's_waitcnt vmcnt({14-2*r_+behind})')
            if r_==7 and last: last()
            for k in range(4):
                x,y=vWo+8*r_+k,vWo+8*r_+4+k
                a(f'v_perm_b32 v{vWl+4*r_+k}, v{y}, v{x}, s{sTmp}\nv_perm_b32 v{y}, v{y}, v{x}, s{sTmp2}')
    if not jwo: wo_perm()
    vb=vK; gg=vQ; v128=vAd; vga=vAd+1; vgm=vAd+2; vS3=vAd+3
    sP2,sS3w,sS3r=sG,sSlot,sSlotV
    sDp,sDr=86,87
    a(f'v_lshlrev_b32 v{gg+5}, 1, v2\nv_lshlrev_b32 v{v128}, 7, v0\nv_lshrrev_b32 v{vgm}, 2, v0\nv_lshlrev_b32 v{vgm}, 7, v{vgm}\nv_lshl_add_u32 v{vga}, v{vTm}, 4, v{vgm}')
    a(f's_lshl_b32 s{sTmp}, s{sH}, 17\ns_lshl_b32 s{sTmp2}, s{sC}, 12\ns_add_u32 s{sTmp}, s{sTmp}, s{sTmp2}\ns_add_u32 s{sP2}, s{sTmp}, {W_P2:#x}')
    a(f'v_lshrrev_b32 v{vS3}, 3, v0\nv_lshlrev_b32 v{vS3}, 15, v{vS3}\nv_and_b32 v{vT}, 0x70, v{vL16}\nv_add_u32 v{vS3}, v{vS3}, v{vT}\ns_lshl_b32 s{sTmp}, s{sXj}, 5\ns_add_u32 s{sTmp}, s{sTmp}, s{sXi}\ns_lshl_b32 s{sTmp}, s{sTmp}, 7\ns_add_u32 s{sS3w}, s{sTmp}, {W_S3:#x}')
    a(f's_and_b32 s{sTmp}, s{sCg}, 1\ns_lshl_b32 s{sTmp}, s{sTmp}, 3\ns_lshr_b32 s{sTmp2}, s{sCg}, 4\ns_add_u32 s{sTmp}, s{sTmp}, s{sTmp2}\ns_bfe_u32 s{sTmp2}, s{sCg}, 0x30001\ns_lshl_b32 s{sTmp2}, s{sTmp2}, 4')
    a(f's_lshl_b32 s{sS3r}, s{sTmp}, 15\ns_add_u32 s{sS3r}, s{sS3r}, s{sTmp2}\ns_add_u32 s{sS3r}, s{sS3r}, {W_S3:#x}')
    a(f's_lshl_b32 s{sKo}, s{sTmp}, 10\ns_add_u32 s{sKo}, s{sKo}, s{sTmp2}\ns_add_u32 s{sKo}, s{sKo}, {W_B4:#x}')
    tk=vO
    mlast=min(mlast,2*S)
    def control(jend):
        l=lab('ctl'); sk=lab('cs')
        a(f'{l}:')
        wait_full(f's{sJ}',vT,vFA)
        if fb:
            a(f's_cmp_eq_u32 s{sLoc}, 2\ns_cbranch_scc0 {sk}')
            a(f's_add_u32 s{sTmp}, s{sMin}, s{sJ}\nv_mov_b32 v{tk}, s{sTmp}\ns_mov_b64 exec, 1\nbuffer_store_dword v{tk}, off, s[{dWS}:{dWS+3}], s{sKb}')
        if fb==5:
            l1,l2=lab('nr'),lab('np')
            a(f's_and_b32 s{sTmp}, s{sCnt}, 3\ns_add_u32 s{sTmp}, s{sTmp}, 28\ns_cmp_eq_u32 s{sTmp}, s{sXi}\ns_cselect_b32 s{sDp}, 1, 0\ns_add_u32 s{sCnt}, s{sCnt}, 1')
            a(f's_sub_u32 s{sGmR}, s{sGmR}, 1\ns_cselect_b32 s{sGmR}, {xev-1}, s{sGmR}\ns_cselect_b32 s{sDr}, s{sDp}, 0')
            a(f's_mul_i32 s{sTmp}, s{sDr}, 0xff0000\ns_or_b32 exec_hi, s{sTmp}, 1\ns_mov_b32 exec_lo, -1')
        elif fb: setexec(0xffffffff)
        if fb:
            a(f'buffer_load_dword v{tk+4}, v{tk+1}, s[{dWS}:{dWS+3}], 0 offen sc1\ns_waitcnt vmcnt(0)')
            a(f'v_sub_u32 v{tk+4}, v{tk+4}, v{tk+3}\nv_cmp_lt_u32 vcc, v{tk+4}, v{tk+6}\nv_cndmask_b32 v{tk+4}, v{tk+2}, v{tk+4}, vcc\ns_mov_b64 exec, -1')
            allred('v_add_u32',[tk+4],[tk+5],hi=())
            a(f'v_readlane_b32 s{sTmp}, v{tk+4}, 0\nv_readlane_b32 s{sTmp2}, v{tk+4}, 16\nv_readlane_b32 s{sTmp3}, v{tk+4}, 32\ns_add_u32 s{sTmp}, s{sTmp}, s{sTmp2}')
            d0=-256*(mk/2+tau)
        if fb==5:
            a(f's_cmp_eq_u32 s{sDp}, 0\ns_cbranch_scc1 {l2}\ns_lshl_b32 s{sDp}, s{sT}, 13\ns_add_u32 s{sTmp2}, s{sTmp}, s{sDp}\nv_mov_b32 v{tk}, s{sTmp2}\ns_mov_b64 exec, 1')
            a(f'buffer_store_dword v{tk}, off, s[{dWS}:{dWS+3}], s{sVo} offset:{0x480} sc1')
            a(f's_cmp_eq_u32 s{sDr}, 0\ns_cbranch_scc1 {l1}')
            a(f'v_readlane_b32 s{sTmp3}, v{tk+4}, 48\ns_lshl_b32 s{sTmp2}, s{sTmp}, 3\ns_sub_i32 s{sTmp3}, s{sTmp3}, s{sTmp2}\ns_add_i32 s{sTmp3}, s{sTmp3}, {int(256*xc)+4096}')
            a(f's_max_i32 s{sTmp3}, s{sTmp3}, 0\ns_min_i32 s{sTmp3}, s{sTmp3}, 8191\ns_add_u32 s{sTmp2}, s{sTmp3}, s{sDp}\nv_mov_b32 v{tk}, s{sTmp2}')
            a(f'buffer_store_dword v{tk}, off, s[{dWS}:{dWS+3}], s{sVo} offset:{0x80}')
            a(f'{l1}:\ns_mov_b64 exec, -1\n{l2}:')
            d0+=4096
        if fb:
            a(f'v_mov_b32 v{tk+4}, 0\ns_lshl_b32 s{sTmp}, s{sTmp}, 3')
            if fb==5: a(f's_add_u32 s{sTmp}, s{sTmp}, s{sTmp3}')
            a(f's_lshl_b32 s{sTmp2}, s{sJ}, 8\ns_sub_i32 s{sTmp}, s{sTmp}, s{sTmp2}')
            if ptau: a(f's_add_i32 s{sTmp}, s{sTmp}, s{sXcc}')
            a(f's_cmp_lt_i32 s{sTmp}, {int(d0-256*th)}\ns_cselect_b32 s{sTmp2}, 1, 0\ns_cmp_gt_i32 s{sTmp}, {int(d0+256*th)}\ns_cselect_b32 s{sTmp2}, 2, s{sTmp2}\nv_mov_b32 v{vT}, s{sTmp2}\nds_write_b32 v{vFA}, v{vT} offset:12')
            a(f'{sk}:')
        a(f's_add_u32 s{sJ}, s{sJ}, {mk}\ns_cmp_le_u32 s{sJ}, {jend}\ns_cbranch_scc1 {l}')
    a(f's_mov_b32 s{sJ}, {m0}')
    if ptau: a(f's_getreg_b32 s{sXcc}, hwreg(HW_REG_XCC_ID, 0, 1)\ns_mul_i32 s{sXcc}, s{sXcc}, {-2*int(256*ptau)}\ns_add_i32 s{sXcc}, s{sXcc}, {int(256*ptau)}')
    if fb:
        a(f's_lshl_b32 s{sMin}, s{sT}, 8\nv_mov_b32 v{tk+2}, {m0-mk}\nv_mov_b32 v{tk+3}, s{sMin}\nv_mov_b32 v{tk+6}, 0x100\nv_mov_b32 v{tk+4}, 0')
        a(f's_mul_i32 s{sVo}, s{sXj}, {CST2}\ns_add_u32 s{sVo}, s{sVo}, {W_CNT:#x}\nv_lshl_add_u32 v{tk+1}, v0, 2, s{sVo}\ns_lshl_b32 s{sKb}, s{sXi}, 2\ns_add_u32 s{sKb}, s{sKb}, s{sVo}')
    if fb==5:
        a(f's_mov_b32 s{sCnt}, 0\ns_mov_b32 s{sGmR}, {xev-1}')
        a(f's_mov_b32 exec_lo, 0\ns_lshl_b32 s{sTmp}, s{sT}, 13\nv_mov_b32 v{tk+2}, 4096\nv_mov_b32 v{tk+3}, s{sTmp}\nv_mov_b32 v{tk+6}, 0x2000\ns_mov_b32 exec_hi, 0xffff0000\nv_mov_b32 v{tk+2}, {32*(m0-mk)}')
        a(f'v_and_b32 v{tk+1}, 7, v0\nv_mul_u32_u24 v{tk+1}, {CST2}, v{tk+1}\nv_add_u32 v{tk+1}, {W_CNT+0x480:#x}, v{tk+1}\ns_mov_b64 exec, -1')
    control(jb1)
    a(f's_cmp_lt_u32 s{sXi}, 16\ns_cbranch_scc0 L_nob3')
    a(f's_mul_i32 s{sTmp2}, s{sXi}, 28672\ns_mul_i32 s{sTmp}, s{sXj}, 3584\ns_add_u32 s{sTmp2}, s{sTmp2}, s{sTmp}\ns_add_u32 s{sTmp2}, s{sTmp2}, {W_B3:#x}')
    for k in range(4): a(f'v_mov_b32 v{vb+12+k}, 0')
    tag4(vb+12)
    a('L_b3poll:')
    for i in range(4):
        if i==3: a('s_mov_b32 exec_hi, 0')
        a(f'buffer_load_dwordx4 v[{vb+4*i}:{vb+4*i+3}], v{vL16}, s[{dWS}:{dWS+3}], s{sTmp2} offen offset:{1024*i} sc1')
    a('s_mov_b64 exec, -1')
    timeout()
    a('s_waitcnt vmcnt(0)')
    chk(vT,[vb,vb+4,vb+8,vb+12],[],None)
    a('s_cbranch_vccnz L_b3poll')
    def sum4(dst,lo):
        for k in range(4): a(f'v_add_f32 v{dst+k}, v{vb+k}, v{vb+4+k}\nv_add_f32 v{vA+4+k}, v{vb+8+k}, v{vb+12+k}')
        for k in range(4): a(f'v_add_f32 v{dst+k}, v{dst+k}, v{vA+4+k}')
        allred('v_add_f32',[dst,dst+1,dst+2,dst+3],[vA,vA+1,vA+2,vA+3],lo=lo)
    sum4(gg,(8,)); tag4(gg)
    a(f's_lshl_b32 s{sTmp}, s{sXi}, 10\ns_lshl_b32 s{sTmp2}, s{sXj}, 7\ns_add_u32 s{sTmp}, s{sTmp}, s{sTmp2}\ns_add_u32 s{sTmp}, s{sTmp}, {W_B4:#x}\ns_mov_b64 exec, 0xff')
    a(f'buffer_store_dwordx4 v[{gg}:{gg+3}], v{vL16}, s[{dWS}:{dWS+3}], s{sTmp} offen sc1\ns_mov_b64 exec, -1')
    stamp(6)
    a('L_nob3:')
    control(jb2)
    a(f's_cmp_lt_u32 s{sXi}, 16\ns_cbranch_scc0 L_nob4\nv_and_b32 v{vT+2}, 0x380, v{v128}')
    a(f'L_b4poll:\nbuffer_load_dwordx4 v[{gg}:{gg+3}], v{vT+2}, s[{dWS}:{dWS+3}], s{sKo} offen sc1')
    timeout()
    a('s_waitcnt vmcnt(0)')
    chk(vT,[gg],[],None)
    a('s_cbranch_vccnz L_b4poll')
    allred('v_add_f32',[gg,gg+1,gg+2,gg+3],[],lo=(4,2,1),hi=())
    for k in range(4): bfr(gg+k,gg+k)
    for k in range(4): a(f'v_mul_f32 v{vA+k}, s{sL2e}, v{gg+k}')
    for k in range(4): a(f'v_exp_f32 v{vA+k}, -v{vA+k}')
    for k in range(4): a(f'v_add_f32 v{vA+k}, 1.0, v{vA+k}')
    for k in range(4): a(f'v_rcp_f32 v{vA+k}, v{vA+k}')
    for k in range(4): a(f'v_mul_f32 v{gg+k}, v{gg+k}, v{vA+k}')
    for k in range(4): bfr(gg+k,gg+k)
    a(f's_lshl_b32 s{sTmp}, s{sXf}, 16\nv_mov_b32 v{gg+4}, s{sTmp}')
    for k in range(1,4):
        setexec(0xffff<<(16*k))
        a((f's_lshl_b32 s{sTmp}, s{sXf+k//2}, 16' if k%2==0 else f's_and_b32 s{sTmp}, s{sXf+k//2}, 0xffff0000')+f'\nv_mov_b32 v{gg+4}, s{sTmp}\nv_mov_b32 v{gg}, v{gg+k}')
    a('s_mov_b64 exec, -1')
    stamp(7)
    a('L_nob4:')
    control(jpre)
    po=vV; pm=vV+8; sMk=84; sS3o=92
    for i in range(1,4): a(f's_add_u32 s{sS3o+i}, s{sS3r}, {8192*i}')
    s3o=lambda i: sS3r if i==0 else sS3o+i
    def ldm(i): a(f'buffer_load_dwordx4 v[{pm+4*i}:{pm+4*i+3}], v{vgm}, s[{dWS}:{dWS+3}], s{sP2} offen offset:{2048*i+64} sc1')
    def ldo(i): a(f'buffer_load_dwordx4 v[{po+4*i}:{po+4*i+3}], v{vga}, s[{dWS}:{dWS+3}], s{sP2} offen offset:{2048*i} sc1')
    def lds3(i): a(f'buffer_load_dwordx4 v[{vb+4*i}:{vb+4*i+3}], v{v128}, s[{dWS}:{dWS+3}], s{s3o(i)} offen {s3ld}')
    a(f'v_lshlrev_b32 v{vT+2}, 6, v0')
    if p2pre: a(f'buffer_load_dword v{pm}, v{vT+2}, s[{dWS}:{dWS+3}], s{sP2} offen sc1')
    else: ldm(0); ldm(1)
    if s3pre==2:
        a(f's_and_b32 s{sTmp}, s{sXi}, 1\ns_lshl_b32 s{sTmp}, s{sTmp}, 3\ns_add_u32 s{sTmp}, s{sTmp}, s{sXj}\ns_lshl_b32 s{sTmp}, s{sTmp}, 15\ns_lshr_b32 s{sTmp2}, s{sXi}, 1\ns_lshl_b32 s{sTmp2}, s{sTmp2}, 11')
        a(f's_add_u32 s{sTmp}, s{sTmp}, s{sTmp2}\ns_add_u32 s{sTmp}, s{sTmp}, {W_S3:#x}\ns_mov_b32 exec_hi, 0\nbuffer_load_dword v{vb}, v{vT+2}, s[{dWS}:{dWS+3}], s{sTmp} offen {s3ld}\ns_mov_b64 exec, -1')
    elif s3pre:
        a(f's_cmp_lt_u32 s{sXi}, 16\ns_cbranch_scc0 L_nopre')
        for i in range(4): lds3(i)
        a('L_nopre:')
    if mlast>jpre: control(mlast)
    stamp(8)
    def masked(n,ld):
        for i in range(n):
            l=lab('mz')
            a(f's_mov_b64 exec, s[{sMk+2*i}:{sMk+2*i+1}]\ns_cbranch_execz {l}'); ld(i); a(f'{l}:')
        a('s_mov_b64 exec, -1')
    def recheck(n,ck,skip=False):
        for i in range(n):
            l=lab('rc')
            if skip: a(f's_cmp_eq_u64 s[{sMk+2*i}:{sMk+2*i+1}], 0\ns_cbranch_scc1 {l}')
            ck(i); a(f's_mov_b64 s[{sMk+2*i}:{sMk+2*i+1}], vcc')
            if skip: a(f'{l}:')
        a(f's_or_b64 vcc, s[{sMk}:{sMk+1}], s[{sMk+2}:{sMk+3}]')
        if n==4: a(f's_or_b64 vcc, vcc, s[{sMk+4}:{sMk+5}]\ns_or_b64 vcc, vcc, s[{sMk+6}:{sMk+7}]')
    def rowsum(v,lo):
        a(f'v_permlane16_swap_b32 v{v}, v{v+1}\nv_permlane16_swap_b32 v{v+2}, v{v+3}\nv_add_f32 v{v}, v{v}, v{v+1}\nv_add_f32 v{v+2}, v{v+2}, v{v+3}')
        a(f'v_permlane32_swap_b32 v{v}, v{v+2}\nv_add_f32 v{v}, v{v}, v{v+2}')
        allred('v_add_f32',[v],[],lo=lo,hi=())
    def allmask(n):
        for i in range(n): a(f's_mov_b64 s[{sMk+2*i}:{sMk+2*i+1}], -1')
    allmask(2)
    if jwo:
        a('L_wowait:'); poll_full(vT,vFA)
        a(f's_cmp_eq_u32 s{sGend}, 0\ns_cbranch_scc0 L_wowait')
        wo_loads()
    def poll(name,n,ld,ck,depth,thr):
        a(f's_branch L_{name}chk\nL_{name}poll:')
        masked(n,ld); timeout()
        a(f'L_{name}chk:\ns_waitcnt vmcnt(0)')
        recheck(n,ck,True)
        if not depth:
            a(f's_cbranch_scc1 L_{name}poll'); return
        a(f's_cbranch_scc0 L_{name}ok')
        for i in range(n):
            a(f's_bcnt1_i32_b64 s{sTmp2 if i else sTmp}, s[{sMk+2*i}:{sMk+2*i+1}]')
            if i: a(f's_add_u32 s{sTmp}, s{sTmp}, s{sTmp2}')
        a(f's_cmp_gt_u32 s{sTmp}, {thr}\ns_cbranch_scc1 L_{name}poll\nL_{name}fast:')
        for i in range(n):
            a(f's_or_b64 exec, s[{sMk+2*i}:{sMk+2*i+1}], 1'); ld(i)
        a('s_mov_b64 exec, -1'); timeout()
        a(f's_waitcnt vmcnt({n*depth})')
        recheck(n,ck,True)
        a(f's_cbranch_scc1 L_{name}fast\nL_{name}ok:')
    wait_full(jml,vT,vFA)
    ldm(0); ldm(1)
    def ofirst(): a('s_waitcnt vmcnt(0)'); ldo(0); ldo(1)
    if jwo: wo_perm(2,ofirst)
    else: ofirst()
    stamp(14)
    ckm=lambda i: chk(vT,[pm+4*i],[],None)
    recheck(2,ckm)
    a('s_cbranch_scc0 L_mldone')
    masked(2,ldm)
    poll('ml',2,ldm,ckm,fp[0],fp[1])
    ldo(0); ldo(1)
    a('L_mldone:'); allmask(2)
    mx=vM; ls=vS+4; o=vS; pw=vA+4
    for i in range(2): a(f'v_and_b32 v{pw+2*i}, 0xffff0000, v{pm+4*i}')
    a(f'v_max_f32 v{mx}, v{pw}, v{pw+2}')
    allred('v_max_f32',[mx],[vT+1],lo=(4,8))
    for i in range(2): a(f'v_sub_f32 v{pw+2*i}, v{pw+2*i}, v{mx}')
    for i in range(2): a(f'v_mul_f32 v{pw+2*i}, s{sL2e}, v{pw+2*i}')
    for i in range(2): a(f'v_exp_f32 v{pw+2*i}, v{pw+2*i}')
    a(f'v_mul_f32 v{ls}, v{pw}, v{pm+2}\nv_fmac_f32 v{ls}, v{pw+2}, v{pm+6}')
    allred('v_add_f32',[ls],[vT+1],lo=(4,8))
    a(f'v_rcp_f32 v{ls}, v{ls}')
    for i in range(2): a(f'v_mul_f32 v{pw+2*i}, v{pw+2*i}, v{ls}')
    r=vO+8
    for k in range(8): a(f'v_mov_b32 v{r+k}, 0')
    stamp(9)
    poll('o',2,ldo,lambda i: chk(vT,[po+4*i],[],None),fp[2],fp[3])
    stamp(10)
    for k in (0,2): a(f'v_pk_mul_f32 v[{o+k}:{o+k+1}], v[{po+k}:{po+k+1}], v[{pw}:{pw+1}] op_sel_hi:[1,0]')
    for k in (0,2): a(f'v_pk_fma_f32 v[{o+k}:{o+k+1}], v[{po+4+k}:{po+4+k+1}], v[{pw+2}:{pw+3}], v[{o+k}:{o+k+1}] op_sel_hi:[1,0,1]')
    rowsum(o,(4,8))
    a(f'v_mov_b32 v{o+1}, v{o}\nv_permlane16_swap_b32 v{o}, v{o+1}\nv_cvt_pk_bf16_f32 v{vA}, v{o}, v{o+1}\nv_cvt_pk_bf16_f32 v{vA+1}, v{o}, v{o+1}\nv_permlane32_swap_b32 v{vA}, v{vA+1}')
    for r_ in range(8):
        u=r_>>1
        for k in range(8): a(f'v_dot2c_f32_bf16_dpp v{r+k}, v{vA+(r_&1)}, v{vWo+8*r_+4+(k>>1) if k&1 else vWl+4*r_+(k>>1)} quad_perm:[{u},{u},{u},{u}] row_mask:0xf bank_mask:0xf')
    tag4(r)
    a(f'buffer_store_dwordx4 v[{r}:{r+3}], v{vS3}, s[{dWS}:{dWS+3}], s{sS3w} offen {s3st}\ns_add_u32 s{sS3w}, s{sS3w}, {8*32768}')
    tag4(r+4)
    a(f'buffer_store_dwordx4 v[{r+4}:{r+7}], v{vS3}, s[{dWS}:{dWS+3}], s{sS3w} offen {s3st}')
    stamp(11)
    a(f's_cmp_lt_u32 s{sXi}, 16\ns_cbranch_scc0 L_hfin')
    allmask(4)
    cks=lambda i: chk(vT,[vb+4*i],[],None)
    a(f's_lshl_b32 s{sCnt}, s{sCg}, 3\ns_mov_b32 s{sLoc}, 0x00010001\ns_mov_b32 s{sLoc+1}, 0x00010001')
    for i in range(4): lds3(i)
    poll('s3',4,lds3,cks,fp[4],fp[5])
    stamp(12)
    ss=vS
    for d,x,y in ((ss,vb,vb+4),(ss+4,vb+8,vb+12),(ss,ss,ss+4)):
        for k in (0,2): a(f'v_pk_add_f32 v[{d+k}:{d+k+1}], v[{x+k}:{x+k+1}], v[{y+k}:{y+k+1}]')
    rowsum(ss,(8,4,2,1))
    bfr(ss,ss); a(f'v_mul_f32 v{ss}, v{ss}, v{gg}'); bfr(ss,ss)
    a(f'v_add_f32 v{ss}, v{ss}, v{gg+4}\nv_cvt_pk_bf16_f32 v{ss}, v{ss}, v{ss}\ns_mov_b64 exec, s[{sLoc}:{sLoc+1}]')
    a(f'buffer_store_short v{ss}, v{gg+5}, s[{dOUT}:{dOUT+3}], s{sCnt} offen\ns_mov_b64 exec, 1')
    a(f's_cmp_eq_u32 s{sCg}, 0\ns_cbranch_scc0 L_hfin\nv_mov_b32 v{vT+1}, s{sT}\nbuffer_store_dword v{vT+1}, off, s[{dWS}:{dWS+3}], 0')
    a('L_hfin:\ns_waitcnt vmcnt(0)')
    stamp(13)
    stamp_out(dWS)
    a('L_end:\ns_endpgm')
    n=a.fix()
    out=HDR+f'; @launch grid=(256,1,1) block=({64*NWAVE},1,1) lds=163840\n'
    out+=f'.amdgcn_target "amdgcn-amd-amdhsa--gfx950"\n.text\n.globl {NAME}\n.p2align 8\n.type {NAME},@function\n'
    out+=a.text()
    out+=f'''.section .rodata,"a"
.p2align 6
.amdhsa_kernel {NAME}
  .amdhsa_next_free_vgpr 256
  .amdhsa_next_free_sgpr 96
  .amdhsa_accum_offset 256
  .amdhsa_group_segment_fixed_size 0
  .amdhsa_kernarg_size 96
  .amdhsa_user_sgpr_count 2
  .amdhsa_user_sgpr_kernarg_segment_ptr 1
  .amdhsa_system_sgpr_workgroup_id_x 1
  .amdhsa_float_denorm_mode_32 3
.end_amdhsa_kernel
'''
    return out
if __name__=='__main__':
    kw=eval('dict(%s)'%(sys.argv[1] if len(sys.argv)>1 else ''))
    sys.stdout.write(gen(**kw))
```

```python
import sys, struct
from asmlib import Asm
NAME='recurrent_scan__gqa_block_cached__geglu_ffn__decode_kernel'
HDR=open('recurrent_scan__gqa_block_cached__geglu_ffn__decode.s.ref').read().split('; Override launch')[0]
def f2u(x): return struct.unpack('<I',struct.pack('<f',x))[0]
LOG2E=f2u(1.4426950408889634); SCALE=f2u(128**-0.5)
R=18; SLOT=8192; RING=R*SLOT
MISC=RING
L_FULL=MISC; L_QRDY=MISC+8; L_MODE=MISC+12; L_REL=MISC+16; L_PF=MISC+64; L_SM=MISC+128; L_MT=MISC+512; L_X=MISC+1024; L_XN=MISC+2048; L_Q=MISC+4096; L_SC=MISC+1024; L_P=MISC+10240
W_B4=0x40000; W_CNT=0x1000; W_QG=0x10000; W_QX=0x18000; W_F1=0x20000; W_P2=0x280000; W_S3=0x400000; W_CAL=0x500000; W_VT=0x50000; W_B3=0x180000; W_ST=0x200000; WS_SZ=0x600000
TB=10; S3NEW=1
PC=2112; NWAVE=6; INF=0x7fffffff; CST=0x180; CST2=0x1100
def gen(mapping='hx', N=20, S=64, diag=0, pol='nt', wpol='nt', local=1, f1wait=12, N0=None, fb=3, dN=4, m0=20, mk=4, mlast=116, th=1.5, tau=0.,
        xev=3, xc=5., keep=(13,), qfall=24, jb1=44, jb2=76, jpre=108, s3pipe=0, s3pre=2, jopen=0, Nend=24, jwo=1, jml=131, s3ld='sc1', s3st='sc1', hxor=0, ptau=0., p2pre=1, fp=(0,0,0,0,0,0), force=None, jv=36, wsw=0, wpolw='sc1', nvote=1, pv='D', cut=1, npair=2):
    a=Asm()
    N0=N0 or N
    vpol=pol
    W=N0-4
    modes=[N,N-dN,N+dN] if fb else [N]
    assert W%4==0 and S>=8 and mapping=='hx'
    GT=2*S+4
    sB,sW=2,3
    pX,pK,pV,pWQ,pWO,pWG,pWU,pWD,pOUT,pWS=4,6,8,10,12,16,18,20,22,26
    sH,sC,sXi,sF,sT,sTO=48,49,50,51,52,53
    sFull,sG,sSlot,sSlotV,sMin,sKo,sVo,sTmp,sTmp2,sCnt,sGmR=54,55,56,57,58,59,60,61,62,63,64
    sScale,sL2e,sT1,sGend,sCw,sXj=65,66,67,68,69,74
    sSt=70
    sSt0=72
    sXf=76
    sLoc,sKb,sJ,sCg,sXcc,sTmp3=78,79,80,81,82,83
    vSt=159
    uid=[0]
    def lab(p): uid[0]+=1; return f'L_{p}_{uid[0]}'
    def srd(d,p,size):
        a(f's_mov_b32 s{d}, s{p}\ns_mov_b32 s{d+1}, s{p+1}\ns_mov_b32 s{d+2}, {size:#x}\ns_mov_b32 s{d+3}, 0x20000')
    role=['L']
    def stamp(k):
        if diag==3 and not (role[0]=='L' or k in keep): return
        if diag: a(f's_memrealtime s[{sSt}:{sSt+1}]\ns_waitcnt lgkmcnt(0)\nv_writelane_b32 v{vSt}, s{sSt}, {k}')
    def stamp_out(srd_ws):
        if diag:
            a(f'v_writelane_b32 v{vSt}, s{sSt0}, 0')
            a(f's_mul_i32 s{sTmp}, s{sB}, {NWAVE}\ns_add_u32 s{sTmp}, s{sTmp}, s{sW}\ns_lshl_b32 s{sTmp}, s{sTmp}, 8\ns_add_u32 s{sTmp}, s{sTmp}, {W_ST:#x}')
            a(f's_mov_b64 exec, -1\nv_lshlrev_b32 v1, 2, v0\nbuffer_store_dword v{vSt}, v1, s[{srd_ws}:{srd_ws+3}], s{sTmp} offen sc1')
    def setexec(m):
        lo,hi=m&0xffffffff,m>>32
        if hi==0 and lo<0x80000000: a(f's_mov_b64 exec, {lo:#x}')
        else: a(f's_mov_b32 exec_lo, {lo:#x}\ns_mov_b32 exec_hi, {hi:#x}')
    def timeout():
        a(f's_sub_u32 s{sTO}, s{sTO}, 1\ns_cbranch_scc1 L_end')
    def poll_full(vtmp,vaddr):
        a(f'ds_read_b64 v[{vtmp}:{vtmp+1}], v{vaddr}')
        timeout()
        a(f's_waitcnt lgkmcnt(0)\nv_readfirstlane_b32 s{sFull}, v{vtmp}\nv_readfirstlane_b32 s{sGend}, v{vtmp+1}')
    def wait_full(x, vtmp, vaddr):
        assert vtmp%2==0
        ok=lab('fok'); p=lab('fp')
        a(f's_cmp_gt_i32 s{sFull}, {x}\ns_cbranch_scc1 {ok}\n{p}:')
        poll_full(vtmp,vaddr)
        a(f's_cmp_gt_i32 s{sFull}, {x}\ns_cbranch_scc0 {p}\n{ok}:')
    def bfr(dst,src):
        a(f'v_cvt_pk_bf16_f32 v{dst}, v{src}, v{src}\nv_and_b32 v{dst}, 0xffff0000, v{dst}')
    def allred(op, vs, ts, lo=(8,4,2,1), hi=(16,32)):
        for r in lo:
            for v in vs: a(f'{op}_dpp v{v}, v{v}, v{v} row_ror:{r} row_mask:0xf bank_mask:0xf')
        for sw in hi:
            for v,t in zip(vs,ts): a(f'v_mov_b32 v{t}, v{v}')
            for v,t in zip(vs,ts): a(f'v_permlane{sw}_swap_b32 v{v}, v{t}')
            for v,t in zip(vs,ts): a(f'{op} v{v}, v{v}, v{t}')
    vMask=157
    def tag4(v):
        for k in range(4): a(f'v_bfi_b32 v{v+k}, v{vMask}, s{sT if k%2==0 else sT1}, v{v+k}')
    def chk(acc,regs_mt,regs_full,acc2):
        first=True
        for v in regs_mt:
            for k in range(4):
                s=sT if k%2==0 else sT1
                a(f'v_xor_b32 v{acc}, s{s}, v{v+k}' if first else f'v_bitop3_b32 v{acc}, v{v+k}, s{s}, v{acc} bitop3:0xbe'); first=False
        if regs_full:
            first=True
            for v in regs_full:
                a(f'v_xor_b32 v{acc2}, s{sT}, v{v}' if first else f'v_bitop3_b32 v{acc2}, v{v}, s{sT}, v{acc2} bitop3:0xbe'); first=False
            a(f'v_and_or_b32 v{acc}, v{acc}, v{vMask}, v{acc2}')
        else: a(f'v_and_b32 v{acc}, v{vMask}, v{acc}')
        a(f'v_cmp_ne_u32 vcc, 0, v{acc}')

    a(f'{NAME}:')
    if diag: a(f's_memrealtime s[{sSt0}:{sSt0+1}]')
    a(f's_cmp_ge_u32 s{sB}, 256\ns_cbranch_scc1 L_end')
    a('s_load_dwordx16 s[4:19], s[0:1], 0\ns_load_dwordx8 s[20:27], s[0:1], 64')
    if diag: a(f'v_mov_b32 v{vSt}, 0')
    a(f'v_lshrrev_b32 v1, 6, v0\nv_and_b32 v0, 63, v0\nv_readfirstlane_b32 s{sW}, v1')
    a(f's_and_b32 s{sXj}, s{sB}, 7\ns_lshr_b32 s{sXi}, s{sB}, 3')
    a(f's_mul_i32 s{sF}, s{sXj}, 28\ns_add_u32 s{sF}, s{sF}, s{sXi}')
    a(f's_cmp_lt_u32 s{sXi}, 28\ns_cselect_b32 s{sF}, s{sF}, 0x100000')
    if mapping=='hx': a(f's_xor_b32 s{sH}, s{sXj}, {hxor}\ns_mov_b32 s{sC}, s{sXi}')
    else: a(f's_lshr_b32 s{sH}, s{sB}, 5\ns_and_b32 s{sC}, s{sB}, 31')
    a(f's_mov_b32 s{sTO}, 200000\ns_mov_b32 s{sFull}, -1\ns_mov_b32 s{sGend}, {INF:#x}')
    a(f'v_lshrrev_b32 v2, 4, v0\nv_and_b32 v3, 15, v0')
    a(f's_cmp_lg_u32 s{sW}, 0\ns_cbranch_scc1 L_cons')
    vK0,vV0,vWQ,vFF,vFA,vRA,vF,vX,vTQ=4,8,10,11,12,13,14,20,21
    a('s_setprio 3')
    a(f'v_lshlrev_b32 v{vX}, 4, v0')
    a(f'v_lshrrev_b32 v{vWQ}, 2, v0\nv_lshlrev_b32 v{vWQ}, 13, v{vWQ}\nv_lshlrev_b32 v1, 1, v2\nv_xor_b32 v1, v1, v0\nv_and_b32 v1, 3, v1\nv_lshl_add_u32 v{vWQ}, v1, 4, v{vWQ}')
    a(f's_and_b32 s{sTmp}, s{sC}, 7\ns_lshl_b32 s{sTmp}, s{sTmp}, 7\ns_bfe_u32 s{sTmp2}, s{sC}, 0x10003\ns_lshl_b32 s{sTmp2}, s{sTmp2}, 6\ns_add_u32 s{sTmp}, s{sTmp}, s{sTmp2}')
    a(f's_lshl_b32 s{sTmp2}, s{sH}, 10\ns_add_u32 s{sTmp}, s{sTmp}, s{sTmp2}\ns_lshr_b32 s{sTmp2}, s{sC}, 4\ns_lshl_b32 s{sTmp2}, s{sTmp2}, 21\ns_add_u32 s{sVo}, s{sTmp}, s{sTmp2}')
    a(f'v_xor_b32 v{vK0}, v2, v3\nv_lshlrev_b32 v{vK0}, 4, v{vK0}\nv_lshl_add_u32 v{vK0}, v2, 8, v{vK0}')
    for k in (1,2,3): a(f'v_xor_b32 v{vK0+k}, {64*k}, v{vK0}')
    a(f'v_lshlrev_b32 v{vV0}, 1, v2\nv_xor_b32 v{vV0}, v{vV0}, v3\nv_lshlrev_b32 v{vV0}, 4, v{vV0}\nv_lshl_add_u32 v{vV0}, v2, 8, v{vV0}\nv_xor_b32 v{vV0+1}, 128, v{vV0}')
    a(f'v_lshrrev_b32 v{vFF}, 3, v0\nv_mul_u32_u24 v{vFF}, 3584, v{vFF}\nv_lshlrev_b32 v1, 1, v2\nv_xor_b32 v1, v1, v0\nv_and_b32 v1, 7, v1\nv_lshl_add_u32 v{vFF}, v1, 4, v{vFF}')
    a(f's_and_b32 s{sTmp}, s{sF}, 7\ns_mul_i32 s{sTmp}, s{sTmp}, {64*3584}\ns_lshr_b32 s{sCnt}, s{sF}, 3\ns_lshl_b32 s{sCnt}, s{sCnt}, 7\ns_add_u32 s{sCnt}, s{sCnt}, s{sTmp}')
    a(f'v_mov_b32 v{vFA}, {L_FULL}\nv_mov_b32 v{vRA}, {L_REL}\nv_mov_b32 v{vF}, -1\nv_mov_b32 v{vF+1}, {INF:#x}\nds_write_b64 v{vFA}, v[{vF}:{vF+1}]')
    a(f's_lshl_b32 s{sKb}, s{sH}, 24\ns_lshl_b32 s{sTmp}, s{sC}, 19\ns_add_u32 s{sKo}, s{sKb}, s{sTmp}')
    def advk():
        a(f's_mov_b32 s{sVo}, s{sKo}\ns_add_u32 s{sKo}, s{sKo}, 8192')
    a(f's_mov_b32 m0, {L_X:#x}')
    a('s_waitcnt lgkmcnt(0)')
    dK,dV,dWQ,dWG,dWU,dXl,dWSl=28,32,36,40,44,84,88
    srd(dXl,pX,1024)
    a(f'buffer_load_dwordx4 v{vX}, s[{dXl}:{dXl+3}], 0 offen lds')
    srd(dWQ,pWQ,512*4096*2)
    stamp(10)
    issued=[1]; pub=[-1]
    def pubv(v): a(f'v_mov_b32 v{vF}, {v}\nds_write_b32 v{vFA}, v{vF}')
    def pace():
        if issued[0]>W:
            a(f's_waitcnt vmcnt({W})')
            g=(issued[0]-W-1)//8
            if g>pub[0]:
                pub[0]=g; pubv(g); stamp(11+g)
    def sub(kind, g, sb):
        base=(g%R)*SLOT+4096*sb
        a(f's_mov_b32 m0, {base:#x}')
        for k in range(4):
            n=4*sb+k
            if kind=='K':
                if k==0: a(f's_add_u32 s{sTmp}, s{sKo}, {4096*sb}')
                a(f'buffer_load_dwordx4 v{vK0+k}, s[{dK}:{dK+3}], s{sTmp} offen offset:{1024*k} {pol} lds')
            elif kind in('WQ0','WQ1'):
                n+=8*(kind=='WQ1')
                a(f's_add_u32 s{sTmp}, s{sVo}, {16*8192*n-1024*k}')
                a(f'buffer_load_dwordx4 v{vWQ}, s[{dWQ}:{dWQ+3}], s{sTmp} offen offset:{1024*k} {wpol} lds')
            elif kind in('G','U'):
                d=dWG if kind=='G' else dWU
                a(f's_add_u32 s{sTmp}, s{sCnt}, {8*3584*n-1024*k}')
                a(f'buffer_load_dwordx4 v{vFF}, s[{d}:{d+3}], s{sTmp} offen offset:{1024*k} {wpol} lds')
        issued[0]+=4
    barrier_done=False
    for g,kind in enumerate(['WQ0','WQ1','G','K','U']):
        if kind=='G': srd(dWG,pWG,512*1792*2); srd(dK,pK,1<<27); srd(dWU,pWU,512*1792*2); srd(dV,pV,1<<27)
        for sb in range(2):
            if issued[0]>W and not barrier_done:
                a('s_barrier'); barrier_done=True
            pace(); sub(kind,g,sb)
    if not barrier_done: a('s_barrier')
    if pub[0]<0 or issued[0]<=W+8:
        for left,g in ((40,0),(32,1),(24,2)):
            if g>pub[0]: a(f's_waitcnt vmcnt({left})'); pubv(g); stamp(11+g); pub[0]=g
    if diag: srd(dWSl,pWS,WS_SZ)
    advk()
    a(f's_mov_b32 s{sG}, 5\ns_mov_b32 s{sSlot}, {5*SLOT}\ns_mov_b32 s{sMin}, 0\ns_mov_b32 s{sJ}, 1\ns_mov_b32 s{sFull}, {pub[0]}\ns_mov_b32 s{sCg}, 0')
    def relcheck():
        ok=lab('rok'); p=lab('rp')
        a(f's_sub_i32 s{sGmR}, s{sG}, {R}\ns_cmp_gt_i32 s{sMin}, s{sGmR}\ns_cbranch_scc1 {ok}')
        a(f'{p}:\nds_read_b128 v[16:19], v{vRA}\nds_read_b32 v15, v{vRA} offset:16'); timeout()
        a(f's_waitcnt lgkmcnt(0)\nv_min3_i32 v16, v16, v17, v18\nv_min3_i32 v16, v16, v19, v15\nv_readfirstlane_b32 s{sMin}, v16\ns_cmp_gt_i32 s{sMin}, s{sGmR}\ns_cbranch_scc0 {p}\n{ok}:')
    def adv():
        a(f's_add_u32 s{sG}, s{sG}, 1\ns_add_u32 s{sSlot}, s{sSlot}, {SLOT}\ns_cmp_eq_u32 s{sSlot}, {RING}\ns_cselect_b32 s{sSlot}, 0, s{sSlot}')
    def batch(kind,sb):
        so=sKo if kind=='K' else sVo
        if sb==0: a(f's_mov_b32 m0, s{sSlot}')
        else: a(f's_add_u32 m0, s{sSlot}, 4096')
        a(f's_add_u32 s{sTmp}, s{so}, {4096*sb}')
        for k in range(4):
            if kind=='K': a(f'buffer_load_dwordx4 v{vK0+k}, s[{dK}:{dK+3}], s{sTmp} offen offset:{1024*k} {pol} lds')
            else: a(f'buffer_load_dwordx4 v{vV0+(k&1)}, s[{dV}:{dV+3}], s{sTmp} offen offset:{1024*k} {vpol} lds')
    def pubrel(d):
        a((f's_sub_u32 s{sTmp}, s{sG}, {-d}' if d<0 else f's_add_u32 s{sTmp}, s{sG}, {d}')+f'\ns_max_i32 s{sFull}, s{sFull}, s{sTmp}\nv_mov_b32 v{vF}, s{sFull}\nds_write_b32 v{vFA}, v{vF}')
    def dyn_group(kind,W,mid=None):
        relcheck()
        for sb in range(2):
            a(f's_waitcnt vmcnt({W})')
            if (4*sb-W)%8==0: pubrel(-(W-4*sb)//8)
            batch(kind,sb)
        if mid: mid()
        adv()
    def lstamp():
        if diag:
            l=lab('nost')
            a(f's_and_b32 s{sTmp}, s{sJ}, 7\ns_cmp_eq_u32 s{sTmp}, 0\ns_cbranch_scc0 {l}\ns_lshr_b32 s{sTmp}, s{sJ}, 3\ns_add_u32 s{sTmp}, s{sTmp}, 2\ns_min_u32 s{sTmp}, s{sTmp}, 9\ns_mov_b32 m0, s{sTmp}')
            a(f's_memrealtime s[{sSt}:{sSt+1}]\ns_waitcnt lgkmcnt(0)\nv_writelane_b32 v{vSt}, s{sSt}, m0\n{l}:')
    def moderead(): a(f'ds_read_b32 v{vTQ}, v{vFA} offset:12')
    if fb: moderead()
    a('L_ltop:')
    if jopen: a(f's_cmp_ge_u32 s{sJ}, {jopen}\ns_cbranch_scc1 L_lloop{len(modes)}')
    if fb:
        a(f's_waitcnt lgkmcnt(0)\nv_readfirstlane_b32 s{sTmp}, v{vTQ}')
        for mi in range(1,len(modes)): a(f's_cmp_eq_u32 s{sTmp}, {mi}\ns_cbranch_scc1 L_lloop{mi}')
    if jopen: modes=modes+[Nend]
    for mi,Np in enumerate(modes):
        W=Np-4; assert W%4==0 and W<=59
        a(f'L_lloop{mi}:')
        if diag: a(f's_add_u32 s{sCg}, s{sCg}, {1<<(8*mi)}')
        dyn_group('K',W); dyn_group('V',W,moderead if fb else None)
        lstamp()
        advk(); a(f's_add_u32 s{sJ}, s{sJ}, 1')
        a(f's_cmp_lt_u32 s{sJ}, {S-3}\ns_cbranch_scc1 L_ltop')
        if mi<len(modes)-1: a('s_branch L_lend')
    W=Nend-4
    a('L_lend:')
    for kind in 'KKKVVVV':
        dyn_group(kind,W)
        so=sKo if kind=='K' else sVo
        a(f's_add_u32 s{so}, s{so}, 8192')
    a(f'v_mov_b32 v{vF+1}, 0\nds_write_b32 v{vFA}, v{vF+1} offset:4')
    stamp(1)
    for left in range(8*((W-1)//8),-1,-8):
        a(f'v_mov_b32 v{vF}, {GT-left//8}\ns_waitcnt vmcnt({left})\nds_write_b32 v{vFA}, v{vF}')
    stamp(2)
    if diag: a(f'v_writelane_b32 v{vSt}, s{sJ}, 16\nv_writelane_b32 v{vSt}, s{sCg}, 17')
    stamp_out(dWSl)
    a('s_endpgm')
    a('L_cons:'); role[0]='C'
    vFA,vRA,vKp,vVp,vM,vMb,vL,vTm=4,5,6,7,8,9,10,11
    vQ=12; vO=28; vK=60; vV=92; vS=124; vA=132; vP=140; vT=144; vAd=148; vL16=156; vX1=160
    dWS,dWD,dWO,dOUT=28,36,40,44
    a(f's_sub_u32 s{sCw}, s{sW}, 1')
    a(f'v_mov_b32 v{vFA}, {L_FULL}\ns_lshl_b32 s{sTmp}, s{sCw}, 2\ns_add_u32 s{sTmp}, s{sTmp}, {L_REL}\nv_mov_b32 v{vRA}, s{sTmp}')
    a(f's_lshl_b32 s{sG}, s{sCw}, 1\ns_add_u32 s{sG}, s{sG}, 3')
    a(f's_cmp_eq_u32 s{sCw}, 0\ns_cselect_b32 s{sTmp}, 0, s{sG}\ns_cmp_eq_u32 s{sCw}, 4\ns_cselect_b32 s{sTmp}, 2, s{sTmp}\nv_mov_b32 v1, s{sTmp}\nds_write_b32 v{vRA}, v1')
    a(f'v_mov_b32 v1, 0\nds_write_b32 v{vFA}, v1 offset:8\nds_write_b32 v{vFA}, v1 offset:12\nds_write_b32 v{vRA}, v1 offset:{L_PF-L_REL}')
    a(f's_mov_b32 s{sScale}, {SCALE:#x}\ns_mov_b32 s{sL2e}, {LOG2E:#x}\nv_mov_b32 v{vMask}, {(1<<TB)-1:#x}')
    a(f'v_xor_b32 v{vKp}, v2, v3\nv_lshlrev_b32 v{vKp}, 4, v{vKp}\nv_lshl_add_u32 v{vKp}, v3, 8, v{vKp}')
    a(f'v_lshrrev_b32 v1, 2, v3\nv_lshl_add_u32 v1, v2, 2, v1\nv_and_b32 v{vVp}, 7, v1\nv_lshlrev_b32 v{vVp}, 5, v{vVp}\nv_lshl_add_u32 v{vVp}, v1, 8, v{vVp}\nv_and_b32 v{vTm}, 3, v0\nv_lshl_add_u32 v{vVp}, v{vTm}, 3, v{vVp}')
    a(f'v_lshlrev_b32 v{vL16}, 4, v0')
    a(f's_lshl_b32 s{sCg}, s{sXj}, 4\ns_add_u32 s{sCg}, s{sCg}, s{sXi}')
    a('s_waitcnt lgkmcnt(0)')
    a(f's_load_dword s{sT}, s[{pWS}:{pWS+1}], 0')
    a(f's_and_b32 s{sTmp}, s{sCg}, 127\ns_lshl_b32 s{sTmp}, s{sTmp}, 3\ns_load_dwordx2 s[{sXf}:{sXf+1}], s[{pX}:{pX+1}], s{sTmp}')
    srd(dWS,pWS,WS_SZ); srd(dWD,pWD,1792*512*2); srd(dWO,pWO,4096*512*2); srd(dOUT,pOUT,1024)
    a('s_barrier')
    w0,w1,w2,w3=vQ+8,vQ+9,vQ+10,vQ+11
    def wait_q(l,v):
        a(f'{l}:\nds_read_b32 v{v}, v{vFA} offset:8'); timeout()
        a(f's_waitcnt lgkmcnt(0)\nv_readfirstlane_b32 s{sLoc}, v{v}\ns_cmp_eq_u32 s{sLoc}, 0\ns_cbranch_scc1 {l}')
    def st2(loc,*st):
        l1,l2=lab('sl'),lab('sd')
        a(f's_cbranch_scc1 {l1}')
        for x in st: a(x+' sc1')
        a(f's_branch {l2}\n{l1}:')
        for x in st: a(x)
        a(f'{l2}:')
    a(f's_and_b32 s{sTmp}, s{sCw}, 3\ns_cmp_eq_u32 s{sTmp}, 0\ns_cbranch_scc1 L_ln')
    sPr=84; po_=[((i&1)<<12)+((i>>1&1)<<14)+((i>>2)<<7) for i in range(6)]
    a(f's_cmp_ge_u32 s{sCw}, {4-nvote}\ns_cbranch_scc0 L_waitq')
    a(f's_lshl_b32 s{sTmp}, s{sXi}, 15\ns_lshl_b32 s{sTmp2}, s{sXj}, 9\ns_add_u32 s{sTmp}, s{sTmp}, s{sTmp2}\ns_and_b32 s{sTmp2}, s{sCw}, 1\ns_lshl_b32 s{sTmp2}, s{sTmp2}, 8\ns_add_u32 s{sTmp}, s{sTmp}, s{sTmp2}\ns_add_u32 s{sKo}, s{sTmp}, {W_CAL:#x}\ns_add_u32 s{sKo+1}, s{sKo}, 0x2000')
    if wsw:
        a(f'v_and_b32 v{w0}, 7, v0\nv_lshlrev_b32 v{w0}, 12, v{w0}\nv_lshrrev_b32 v{w1}, 3, v0\nv_lshl_add_u32 v{w0}, v{w1}, 7, v{w0}\nv_mov_b32 v{w1}, 1\ns_mov_b64 exec, 0xffff')
        a(f'buffer_store_dword v{w1}, v{w0}, s[{dWS}:{dWS+3}], s{sKo} offen {wpolw}\ns_mov_b64 exec, -1\ns_mov_b32 s{sTmp3}, -1\ns_waitcnt vmcnt(0) lgkmcnt(0)')
    elif pv!='D': a(f's_waitcnt lgkmcnt(0)\ns_add_u32 s{sTmp3}, s{sT}, 1')
    a(f's_getreg_b32 s{sXcc}, hwreg(HW_REG_XCC_ID, 2, 1)\ns_mov_b32 s{sTmp}, 0\ns_mov_b32 s{sCnt}, s{sXcc}')
    if pv!='A':
        a(f's_and_b32 s{sTmp2}, s{sXi}, 1\ns_xor_b32 s{sCnt}, s{sCnt}, s{sTmp2}\ns_lshl_b32 s{sTmp2}, s{sTmp2}, 13\ns_add_u32 s{sKo}, s{sKo}, s{sTmp2}\ns_xor_b32 s{sKo+1}, s{sKo}, 0x2000')
    if pv!='D':
        for i in range(2*npair): a(f's_mov_b32 s{sPr+i}, s{sTmp3}')
    od=lambda i: (0,1) if i%2==0 or pv!='A' else (1,0)
    if pv=='D':
        a(f's_load_dword s{sTmp2}, s[{pWS}:{pWS+1}], s{sKo} offset:0x40\ns_waitcnt lgkmcnt(0)')
        for i in range(npair):
            for k in (0,1):
                l=lab('sp')
                a(f's_load_dword s{sPr}, s[{pWS}:{pWS+1}], s{sKo+k} offset:{po_[i]:#x}\n{l}:\ns_{"add" if k else "sub"}_u32 s{sTmp}, s{sTmp}, 1')
                timeout()
                a(f's_getreg_b32 s{sTmp2}, hwreg(HW_REG_IB_STS, 8, 4)\ns_cmp_lg_u32 s{sTmp2}, 0\ns_cbranch_scc1 {l}')
        a(f's_ashr_i32 s{sTmp}, s{sTmp}, {cut}\ns_min_i32 s{sTmp}, s{sTmp}, 7\ns_max_i32 s{sTmp}, s{sTmp}, -7')
    elif pv=='C':
        a(f's_load_dword s{sTmp2}, s[{pWS}:{pWS+1}], s{sKo} offset:0x40\ns_waitcnt lgkmcnt(0)')
        for i in range(npair):
            for k in (0,1):
                l=lab('sp')
                a(f's_load_dword s{sPr+2*i+k}, s[{pWS}:{pWS+1}], s{sKo+k} offset:{po_[i]:#x}\ns_mov_b32 s{sTmp2}, 200\n{l}:')
                a(f's_{"add" if k else "sub"}_u32 s{sTmp}, s{sTmp}, 1\ns_sub_u32 s{sTmp2}, s{sTmp2}, 1\ns_cbranch_scc1 {l}x\ns_cmp_eq_u32 s{sPr+2*i+k}, s{sTmp3}\ns_cbranch_scc1 {l}\n{l}x:')
        a(f's_ashr_i32 s{sTmp}, s{sTmp}, {cut}\ns_min_i32 s{sTmp}, s{sTmp}, 7\ns_max_i32 s{sTmp}, s{sTmp}, -7')
    else:
        for i in range(npair):
            for k in od(i): a(f's_load_dword s{sPr+2*i+k}, s[{pWS}:{pWS+1}], s{sKo+k} offset:{po_[i]:#x}')
        a(f's_waitcnt lgkmcnt({2*npair-cut})')
        sSn=36 if pv=='B' else sPr
        if pv=='B':
            for i in range(npair): a(f's_mov_b64 s[{sSn+2*i}:{sSn+2*i+1}], s[{sPr+2*i}:{sPr+2*i+1}]')
        for i in range(npair):
            for k in od(i): a(f's_cmp_lg_u32 s{sSn+2*i+k}, s{sTmp3}\n'+(f's_subb_u32' if k else 's_addc_u32')+f' s{sTmp}, s{sTmp}, 0')
    a(f's_sub_u32 s{sTmp2}, 0, s{sTmp}\ns_cmp_eq_u32 s{sCnt}, 0\ns_cselect_b32 s{sTmp}, s{sTmp}, s{sTmp2}\ns_add_u32 s{sTmp}, s{sTmp}, 8')
    if diag: a(f'v_writelane_b32 v{vSt}, s{sTmp}, 16')
    a(f's_lshl_b32 s{sXcc}, s{sXcc}, 7\ns_add_u32 s{sTmp}, s{sTmp}, s{sXcc}\ns_add_u32 s{sTmp2}, s{sT}, 1\ns_lshl_b32 s{sTmp2}, s{sTmp2}, 8\ns_add_u32 s{sTmp}, s{sTmp}, s{sTmp2}\nv_mov_b32 v{w0}, s{sTmp}')
    a(f's_lshl_b32 s{sTmp}, s{sXj}, 5\ns_add_u32 s{sTmp}, s{sTmp}, s{sXi}\ns_lshl_b32 s{sTmp}, s{sTmp}, 2\ns_sub_u32 s{sTmp2}, 3, s{sCw}\ns_lshl_b32 s{sTmp2}, s{sTmp2}, 10\ns_add_u32 s{sTmp}, s{sTmp}, s{sTmp2}')
    a(f's_add_u32 s{sTmp}, s{sTmp}, {W_VT:#x}\ns_mov_b64 exec, 1\nbuffer_store_dword v{w0}, off, s[{dWS}:{dWS+3}], s{sTmp} sc1\ns_mov_b64 exec, -1')
    wait_q('L_waitq',w0)
    a(f's_add_u32 s{sT}, s{sT}, 1\ns_lshr_b32 s{sT1}, s{sT}, {TB}\ns_branch L_qready')
    a('L_ln:')
    vx=vK; vxf=vK+4; vWD=vO; vXf=vV
    wait_full(-1,vT,vFA)
    a(f'v_add_u32 v{vT}, {L_X}, v{vL16}\nds_read_b128 v[{vx}:{vx+3}], v{vT}')
    a(f's_add_u32 s{sT}, s{sT}, 1\ns_lshr_b32 s{sT1}, s{sT}, {TB}')
    stamp(1)
    a('s_waitcnt lgkmcnt(0)')
    for j in range(4): a(f'v_lshlrev_b32 v{vxf+2*j}, 16, v{vx+j}\nv_and_b32 v{vxf+2*j+1}, 0xffff0000, v{vx+j}')
    t0=vxf+8; t1=t0+1; t2=t0+2; vd=t0+4
    a(f'v_add_f32 v{t0}, v{vxf}, v{vxf+1}\nv_add_f32 v{t1}, v{vxf+2}, v{vxf+3}\nv_add_f32 v{t2}, v{vxf+4}, v{vxf+5}\nv_add_f32 v{t0}, v{t0}, v{t1}\nv_add_f32 v{t1}, v{vxf+6}, v{vxf+7}\nv_add_f32 v{t0}, v{t0}, v{t2}\nv_add_f32 v{t0}, v{t0}, v{t1}')
    allred('v_add_f32',[t0],[t1])
    a(f'v_mul_f32 v{t0}, {f2u(1/512.):#x}, v{t0}')
    for j in range(8): a(f'v_sub_f32 v{vd+j}, v{vxf+j}, v{t0}')
    a(f'v_mul_f32 v{t2}, v{vd}, v{vd}')
    for j in range(1,8): a(f'v_fmac_f32 v{t2}, v{vd+j}, v{vd+j}')
    allred('v_add_f32',[t2],[t1])
    a(f'v_mul_f32 v{t2}, {f2u(1/512.):#x}, v{t2}')
    bfr(t0,t0); bfr(t2,t2)
    a(f'v_add_f32 v{t2}, {f2u(1e-5):#x}, v{t2}'); bfr(t2,t2)
    a(f'v_sqrt_f32 v{t2}, v{t2}'); bfr(t2,t2)
    a(f'v_rcp_f32 v{t2}, v{t2}')
    for j in range(8): a(f'v_sub_f32 v{vd+j}, v{vxf+j}, v{t0}')
    for j in range(4): a(f'v_cvt_pk_bf16_f32 v{vx+j}, v{vd+2*j}, v{vd+2*j+1}')
    for j in range(4): a(f'v_lshlrev_b32 v{vd+2*j}, 16, v{vx+j}\nv_and_b32 v{vd+2*j+1}, 0xffff0000, v{vx+j}')
    for j in range(8): a(f'v_mul_f32 v{vd+j}, v{vd+j}, v{t2}')
    for j in range(4): a(f'v_cvt_pk_bf16_f32 v{vx+j}, v{vd+2*j}, v{vd+2*j+1}')
    a(f's_lshl_b32 s{sTmp}, s{sCw}, 8\ns_add_u32 s{sTmp}, s{sTmp}, {L_XN}\nv_add_u32 v{t0}, s{sTmp}, v{vL16}\nds_write_b128 v{t0}, v[{vx}:{vx+3}]')
    a(f's_cmp_eq_u32 s{sCw}, 0\ns_cbranch_scc0 L_help')
    a(f's_lshr_b32 s{sTmp2}, s{sC}, 4\ns_lshl_b32 s{sTmp2}, s{sTmp2}, 9\ns_add_u32 s{sTmp}, s{sTmp}, s{sTmp2}\nv_lshl_add_u32 v{t0}, v2, 3, s{sTmp}')
    for j in range(8): a(f'ds_read2_b64 v[{vXf+4*j}:{vXf+4*j+3}], v{t0} offset0:{8*j} offset1:{8*j+4}')
    vD=vQ; vpt=vT; vB=vK
    a(f'v_lshlrev_b32 v{vpt}, 6, v1\nv_lshl_add_u32 v{vpt}, v{vTm}, 3, v{vpt}\nv_and_b32 v{vpt+1}, 1, v2\nv_lshl_add_u32 v{vpt}, v{vpt+1}, 5, v{vpt}\nv_xor_b32 v{vpt+1}, 32, v{vpt}')
    a(f's_getreg_b32 s{sXcc}, hwreg(HW_REG_XCC_ID, 0, 4)\ns_waitcnt lgkmcnt(2)')
    stamp(2)
    def qgemv(s0,s1):
        seq=[(s,j) for s in range(s0,s1) for j in range(2)]
        def rd(i):
            s,j=seq[i]; b=vB+4*(i%8)
            a(f'ds_read_b64_tr_b16 v[{b}:{b+1}], v{vpt+j} offset:{2048*s}\nds_read_b64_tr_b16 v[{b+2}:{b+3}], v{vpt+j} offset:{2048*s+1024}')
        for i in range(5): rd(i)
        for i in range(len(seq)):
            if i+5<len(seq): rd(i+5)
            a(f's_waitcnt lgkmcnt({2*(min(i+5,len(seq)-1)-i)})')
            s,j=seq[i]; b=vB+4*(i%8)
            a(f'v_mfma_f32_16x16x32_bf16 v[{vD+4*j}:{vD+4*j+3}], v[{b}:{b+3}], v[{vXf+4*s}:{vXf+4*s+3}], '+('0' if s==0 else f'v[{vD+4*j}:{vD+4*j+3}]'))
    wait_full(0,vT+2,vFA); qgemv(0,4)
    wait_full(1,vT+2,vFA); stamp(3); qgemv(4,8)
    a(f'v_mov_b32 v{w0}, 3\nds_write_b32 v{vRA}, v{w0}')
    a(f's_and_b32 s{sTmp}, s{sC}, 7\ns_lshl_b32 s{sTmp}, s{sTmp}, 8\ns_bfe_u32 s{sTmp2}, s{sC}, 0x10003\ns_lshl_b32 s{sTmp2}, s{sTmp2}, 7\ns_add_u32 s{sTmp}, s{sTmp}, s{sTmp2}')
    a(f's_lshr_b32 s{sTmp2}, s{sC}, 4\ns_lshl_b32 s{sTmp2}, s{sTmp2}, 11\ns_add_u32 s{sTmp}, s{sTmp}, s{sTmp2}\ns_lshl_b32 s{sKo}, s{sH}, 12\ns_add_u32 s{sKo}, s{sKo}, {W_QG:#x}\ns_add_u32 s{sTmp}, s{sTmp}, s{sKo}')
    a(f'v_lshlrev_b32 v{vpt}, 4, v2\nv_lshl_add_u32 v{vpt}, v3, 6, v{vpt}\nv_add_u32 v{vpt}, s{sTmp}, v{vpt}')
    a(f's_lshl_b32 s{sVo}, s{sH}, 9\ns_add_u32 s{sVo}, s{sVo}, {W_QX:#x}\ns_lshl_b32 s{sTmp}, s{sC}, 4\ns_add_u32 s{sTmp}, s{sTmp}, s{sVo}')
    setexec(0x0002000200020002)
    for k in range(4): a(f'v_mov_b32 v{vD+k}, v{vD+4+k}')
    a('s_mov_b64 exec, -1'); tag4(vD)
    a(f's_mov_b64 exec, 4\nv_mov_b32 v{vD}, s{sXcc}\nv_mov_b32 v{vD+1}, s{sT}\nv_mov_b32 v{vD+2}, s{sXcc}\nv_mov_b32 v{vD+3}, s{sT}\nv_mov_b32 v{vpt}, s{sTmp}')
    def qpub(p):
        setexec(0x0003000300030007)
        a(f'buffer_store_dwordx4 v[{vD}:{vD+3}], v{vpt}, s[{dWS}:{dWS+3}], 0 offen {p}\ns_mov_b64 exec, -1')
    qpub('' if local else 'sc1')
    stamp(4)
    a(f'v_and_b32 v{vpt+1}, 0x1f0, v{vL16}\ns_mov_b32 s{sCnt}, {qfall}')
    a('L_qpoll:')
    for i in range(4): a(f'buffer_load_dwordx4 v[{vK+4*i}:{vK+4*i+3}], v{vL16}, s[{dWS}:{dWS+3}], s{sKo} offen offset:{1024*i} sc1')
    a(f'buffer_load_dwordx4 v[{vK+16}:{vK+19}], v{vpt+1}, s[{dWS}:{dWS+3}], s{sVo} offen sc1')
    timeout()
    a('s_waitcnt vmcnt(0)')
    chk(w0,[vK,vK+4,vK+8,vK+12],[vK+17,vK+19],w1)
    a(f's_cbranch_vccz L_qok\ns_sub_u32 s{sCnt}, s{sCnt}, 1\ns_cmp_eq_u32 s{sCnt}, 0\ns_cbranch_scc0 L_qpoll')
    qpub('sc1')
    a('s_branch L_qpoll\nL_qok:')
    for k in range(8): a(f'v_add_f32 v{vK+k}, v{vK+k}, v{vK+8+k}')
    for k in range(4): a(f'v_cvt_pk_bf16_f32 v{vK+k}, v{vK+2*k}, v{vK+2*k+1}')
    a(f'v_lshlrev_b32 v{vpt+1}, 3, v0\nv_add_u32 v{vpt+1}, {L_Q}, v{vpt+1}\nds_write2st64_b64 v{vpt+1}, v[{vK}:{vK+1}], v[{vK+2}:{vK+3}] offset0:0 offset1:1')
    a(f'v_cmp_ne_u32 vcc, s{sXcc}, v{vK+16}\ns_mov_b32 s{sLoc}, 1')
    if local: a(f's_cmp_eq_u64 vcc, 0\ns_cselect_b32 s{sLoc}, 2, 1')
    a(f'v_mov_b32 v{w0}, s{sLoc}\nds_write_b32 v{vFA}, v{w0} offset:8')
    a(f's_cmp_eq_u32 s{sLoc}, 2\ns_cbranch_scc1 L_qnorep'); qpub('sc1'); a('L_qnorep:')
    stamp(5)
    a('L_qready:')
    a(f'v_lshlrev_b32 v{vT}, 8, v{vTm}\nv_lshl_add_u32 v{vT}, v2, 4, v{vT}\nv_add_u32 v{vT}, {L_Q}, v{vT}')
    for s in range(4): a(f'ds_read_b128 v[{vQ+4*s}:{vQ+4*s+3}], v{vT} offset:{64*s}')
    for i in range(32): a(f'v_mov_b32 v{vO+i}, 0')
    a(f'v_mov_b32 v{vM}, 0xff800000\nv_mov_b32 v{vMb}, 0\nv_mov_b32 v{vL}, 0\ns_mov_b32 s{sCnt}, {S//4-1}')
    a(f's_lshl_b32 s{sSlot}, s{sG}, 13\ns_add_u32 s{sSlotV}, s{sSlot}, {3*SLOT}')
    vE,vFl,vML,vMT=160,164,168,172
    vWa,vWm,vRo,vRm,vpa,vpm,vPw,vMw,vMr,vV0,vV1,vPr=range(176,188)
    sO1=sTmp3
    a(f'v_lshlrev_b32 v{vWm}, 4, v{vTm}\nv_lshl_add_u32 v{vWa}, v2, 6, v{vWm}\nv_lshrrev_b32 v{vT}, 2, v3\nv_mul_u32_u24 v{vRo}, {PC}, v{vT}\nv_add_u32 v{vRo}, v{vRo}, v{vWa}')
    a(f's_lshl_b32 s{sTmp}, s{sCw}, 9\ns_add_u32 s{sTmp}, s{sTmp}, {L_SC}\nv_add_u32 v{vRo}, s{sTmp}, v{vRo}\ns_mul_i32 s{sTmp}, s{sCw}, {PC}\ns_add_u32 s{sTmp}, s{sTmp}, {L_SC}\nv_add_u32 v{vWa}, s{sTmp}, v{vWa}')
    a(f'v_lshlrev_b32 v{vRm}, 4, v3\nv_add_u32 v{vRm}, {L_SM}, v{vRm}\nv_add_u32 v{vMr}, {L_MT}, v{vWm}\ns_lshl_b32 s{sTmp}, s{sCw}, 2\nv_add_u32 v{vMw}, s{sTmp}, v{vMr}')
    a(f's_lshl_b32 s{sTmp}, s{sCw}, 6\ns_add_u32 s{sTmp}, s{sTmp}, {L_SM}\nv_add_u32 v{vWm}, s{sTmp}, v{vWm}\ns_lshl_b32 s{sTmp}, s{sCw}, 6\nv_xor_b32 v{vV0}, s{sTmp}, v{vVp}\nv_xor_b32 v{vV1}, 32, v{vV0}')
    a(f'v_add_u32 v{vPr}, {L_P}, v{vL16}\ns_lshl_b32 s{sTmp}, s{sCw}, 10\nv_add_u32 v{vPw}, s{sTmp}, v{vPr}')
    a(f's_lshl_b32 s{sTmp}, s{sH}, 17\ns_lshl_b32 s{sTmp2}, s{sC}, 7\ns_add_u32 s{sTmp}, s{sTmp}, s{sTmp2}\ns_lshl_b32 s{sTmp2}, s{sCw}, 13\ns_add_u32 s{sTmp}, s{sTmp}, s{sTmp2}\ns_add_u32 s{sKo}, s{sTmp}, {W_P2:#x}\ns_add_u32 s{sO1}, s{sKo}, 4096')
    a(f'v_lshlrev_b32 v{vpa}, 15, v{vTm}\nv_bfe_u32 v{vpm}, v0, 2, 1\nv_lshl_add_u32 v{vpm}, v{vpm}, 12, v{vpa}\nv_lshl_add_u32 v{vpa}, v2, 4, v{vpa}')
    stamp(6)
    def qk(slot,rel):
        a(f'v_add_u32 v{vAd+4}, {slot}, v{vKp}')
        for s in (1,2,3): a(f'v_xor_b32 v{vAd+4+s}, {64*s}, v{vAd+4}')
        for t in range(2):
            for s in range(4): a(f'ds_read_b128 v[{vK+16*t+4*s}:{vK+16*t+4*s+3}], v{vAd+4+s} offset:{4096*t}')
        if rel: a(f's_add_u32 s{sG}, s{sG}, 3\nv_mov_b32 v{vT}, s{sG}')
        for t in range(2):
            a(f's_waitcnt lgkmcnt({4-4*t})')
            if t==1 and rel: a(f'ds_write_b32 v{vRA}, v{vT}')
            for s in range(4):
                a(f'v_mfma_f32_16x16x32_bf16 v[{vS+4*t}:{vS+4*t+3}], v[{vK+16*t+4*s}:{vK+16*t+4*s+3}], v[{vQ+4*s}:{vQ+4*s+3}], '+('0' if s==0 else f'v[{vS+4*t}:{vS+4*t+3}]'))
    def scores(A,m,mo):
        for j in range(4): a(f'v_cvt_pk_bf16_f32 v{vP+j}, v{vS+2*j}, v{vS+2*j+1}')
        for j in range(4): a(f'v_lshlrev_b32 v{A+2*j}, 16, v{vP+j}\nv_and_b32 v{A+2*j+1}, 0xffff0000, v{vP+j}')
        for j in range(8): a(f'v_mul_f32 v{A+j}, s{sScale}, v{A+j}')
        for j in range(4): a(f'v_cvt_pk_bf16_f32 v{vP+j}, v{A+2*j}, v{A+2*j+1}')
        for j in range(4): a(f'v_lshlrev_b32 v{A+2*j}, 16, v{vP+j}\nv_and_b32 v{A+2*j+1}, 0xffff0000, v{vP+j}')
        a(f'v_max3_f32 v{vT+3}, v{A}, v{A+1}, v{A+2}\nv_max3_f32 v{vT+1}, v{A+3}, v{A+4}, v{A+5}\nv_max3_f32 v{vT+2}, v{A+6}, v{A+7}, v{m}\nv_max3_f32 v{mo}, v{vT+3}, v{vT+1}, v{vT+2}')
    def probs(A,P):
        for j in range(8): a(f'v_fma_f32 v{A+j}, v{A+j}, s{sL2e}, -v{vMb}')
        for j in range(8): a(f'v_exp_f32 v{A+j}, v{A+j}')
        for j in range(4): a(f'v_cvt_pk_bf16_f32 v{P+j}, v{A+2*j}, v{A+2*j+1}')
        a(f'v_add_f32 v{vT}, v{A}, v{A+1}\nv_add_f32 v{vT+1}, v{A+2}, v{A+3}\nv_add_f32 v{vT+2}, v{A+4}, v{A+5}\nv_add_f32 v{vT+3}, v{A+6}, v{A+7}')
        a(f'v_add_f32 v{vT}, v{vT}, v{vT+1}\nv_add_f32 v{vT+2}, v{vT+2}, v{vT+3}\nv_add_f32 v{vT}, v{vT}, v{vT+2}\nv_add_f32 v{vL}, v{vL}, v{vT}')
    vVa=vK
    def vaddr(slot):
        a(f'v_add_u32 v{vVa}, {slot}, v{vVp}')
        for db in range(1,8): a(f'v_xor_b32 v{vVa+db}, {32*db}, v{vVa}')
    def pv(P,rel,after=None):
        def rdv(db): a(f'ds_read_b64_tr_b16 v[{vV+4*db}:{vV+4*db+1}], v{vVa+db}\nds_read_b64_tr_b16 v[{vV+4*db+2}:{vV+4*db+3}], v{vVa+db} offset:4096')
        for db in range(6): rdv(db)
        if rel: a(f's_add_u32 s{sG}, s{sG}, 5\nv_mov_b32 v{vT}, s{sG}')
        for db in range(8):
            a(f's_waitcnt lgkmcnt({2*(min(db+5,7)-db)})')
            if db==7 and rel: a(f'ds_write_b32 v{vRA}, v{vT}')
            a(f'v_mfma_f32_16x16x32_bf16 v[{vO+4*db}:{vO+4*db+3}], v[{vV+4*db}:{vV+4*db+3}], v[{P}:{P+3}], v[{vO+4*db}:{vO+4*db+3}]')
            if db+6<8: rdv(db+6)
            if after and db>=1: after(db-1)
        if after: after(7)
    a('L_step:')
    wait_full(f's{sG}',vT,vFA)
    qk(f's{sSlot}',True)
    scores(vA,vM,vT)
    allred('v_max_f32',[vT],[vT+1],lo=())
    vaddr(f's{sSlotV}')
    a(f'v_cmp_gt_f32 vcc, v{vT}, v{vM}\ns_cbranch_vccz L_norescale')
    a(f'v_sub_f32 v{vT+1}, v{vM}, v{vT}\nv_mul_f32 v{vT+1}, s{sL2e}, v{vT+1}\nv_exp_f32 v{vT+1}, v{vT+1}\nv_mov_b32 v{vM}, v{vT}\nv_mul_f32 v{vMb}, s{sL2e}, v{vT}\nv_mul_f32 v{vL}, v{vL}, v{vT+1}')
    for i in range(32): a(f'v_mul_f32 v{vO+i}, v{vO+i}, v{vT+1}')
    a('L_norescale:')
    probs(vA,vP)
    wait_full(f's{sG}',vT,vFA)
    pv(vP,True)
    for sl in (sSlot,sSlotV):
        a(f's_add_u32 s{sl}, s{sl}, {8*SLOT}\ns_sub_u32 s{sTmp}, s{sl}, {RING}\ns_cselect_b32 s{sl}, s{sl}, s{sTmp}')
    a(f's_sub_u32 s{sCnt}, s{sCnt}, 1\ns_cmp_lg_u32 s{sCnt}, 0\ns_cbranch_scc1 L_step')
    stamp(7)
    gK=[2*S-5]+[2*S-4+c for c in (1,2,3)]; gV=[2*S+t for t in range(4)]
    allred('v_add_f32',[vL],[vT],lo=())
    pk=lambda x: sum((v&255)<<(8*i) for i,v in enumerate(x))
    a(f's_lshl_b32 s{sTmp}, s{sCw}, 3\ns_lshr_b32 s{sG}, {pk(gK):#x}, s{sTmp}\ns_and_b32 s{sG}, s{sG}, 255\ns_lshr_b32 s{sSlot}, {pk([g%R for g in gK]):#x}, s{sTmp}\ns_and_b32 s{sSlot}, s{sSlot}, 255\ns_lshl_b32 s{sSlot}, s{sSlot}, 13')
    setexec(0x000f000f000f000f)
    for db in range(8): a(f'ds_write_b128 v{vWa}, v[{vO+4*db}:{vO+4*db+3}] offset:{256*db}')
    a(f's_mov_b64 exec, -1\nv_mov_b32 v{vE}, v{vM}\nv_mov_b32 v{vE+1}, v{vL}\nv_mov_b32 v{vL}, 0')
    wait_full(f's{sG}',vT,vFA)
    a('s_waitcnt lgkmcnt(6)')
    qk(f's{sSlot}',False)
    scores(vA,vA,vE+2)
    allred('v_max_f32',[vE+2],[vT+1],lo=())
    a(f'v_mul_f32 v{vMb}, s{sL2e}, v{vE+2}')
    probs(vA,vP)
    a(f'ds_write_b128 v{vPw}, v[{vP}:{vP+3}]')
    allred('v_add_f32',[vL],[vT],lo=())
    a(f'v_mov_b32 v{vE+3}, v{vL}\nv_mov_b32 v{vT}, 1\ns_mov_b64 exec, 15\nds_write_b128 v{vWm}, v[{vE}:{vE+3}]\nds_write_b32 v{vMw}, v{vE+2}\nds_write_b32 v{vRA}, v{vT} offset:{L_PF-L_REL}\ns_mov_b64 exec, -1')
    stamp(8)
    acc=vO; vD_=vO+8; vPt=vK
    a(f's_branch L_xrd\nL_xwait:'); timeout()
    a(f's_waitcnt lgkmcnt(0)\nL_xrd:\nds_read_b128 v[{vFl}:{vFl+3}], v{vFA} offset:{L_PF-L_FULL}\nds_read_b128 v[{vML}:{vML+3}], v{vRm}\nds_read_b128 v[{vMT}:{vMT+3}], v{vMr}')
    for j in range(2): a(f'ds_read_b128 v[{acc+4*j}:{acc+4*j+3}], v{vRo} offset:{256*j}')
    for t in range(4): a(f'ds_read_b128 v[{vPt+4*t}:{vPt+4*t+3}], v{vPr} offset:{1024*t}')
    a(f's_waitcnt lgkmcnt(8)\nv_min3_u32 v{vFl}, v{vFl}, v{vFl+1}, v{vFl+2}\nv_min_u32 v{vFl}, v{vFl}, v{vFl+3}\nv_cmp_eq_u32 vcc, 0, v{vFl}\ns_cbranch_vccnz L_xwait')
    a(f's_waitcnt lgkmcnt(6)\nv_max_f32 v{vS}, v{vML}, v{vML+2}')
    allred('v_max_f32',[vS],[],lo=(4,8),hi=())
    ex=[vML,vML+2,vMT,vMT+1,vMT+2,vMT+3]
    for v in ex: a(f'v_sub_f32 v{v}, v{v}, v{vS}')
    for v in ex: a(f'v_mul_f32 v{v}, s{sL2e}, v{v}')
    for v in ex: a(f'v_exp_f32 v{v}, v{v}')
    a(f'v_mov_b32 v{vS+1}, s{sT1}\nv_mov_b32 v{vS+3}, s{sT1}\nv_bfi_b32 v{vS}, v{vMask}, s{sT}, v{vS}\nv_mul_f32 v{vS+2}, v{vML}, v{vML+1}\nv_fmac_f32 v{vS+2}, v{vML+2}, v{vML+3}')
    allred('v_add_f32',[vS+2],[],lo=(4,8),hi=())
    a(f'v_bfi_b32 v{vS+2}, v{vMask}, s{sT}, v{vS+2}')
    a(f's_mov_b64 exec, 0xff\ns_cmp_eq_u32 s{sLoc}, 2')
    st2(1,f'buffer_store_dwordx4 v[{vS}:{vS+3}], v{vpm}, s[{dWS}:{dWS+3}], s{sKo} offen offset:64')
    a('s_mov_b64 exec, -1\ns_waitcnt lgkmcnt(0)')
    for i in range(0,8,2): a(f'v_pk_mul_f32 v[{acc+i}:{acc+i+1}], v[{acc+i}:{acc+i+1}], v[{vML}:{vML+1}] op_sel_hi:[1,0]')
    allred('v_add_f32',list(range(acc,acc+8)),[],lo=(4,8),hi=())
    stamp(12)
    sEx=84
    a(f's_mov_b32 s{sEx}, 0x000f000f\ns_mov_b32 s{sEx+1}, 0x000f000f')
    for t in range(4):
        l=lab('vw'); l2=lab('vr'); o_=(gV[t]%R)*SLOT; assert o_+4096<65536
        f=vV+8*t; d=vD_+8*(t&1)
        a(f's_branch {l2}\n{l}:'); timeout()
        a(f's_waitcnt lgkmcnt(0)\n{l2}:\nds_read_b32 v{vT}, v{vFA}')
        for j,va in enumerate((vV0,vV1)): a(f'ds_read_b64_tr_b16 v[{f+4*j}:{f+4*j+1}], v{va} offset:{o_}\nds_read_b64_tr_b16 v[{f+4*j+2}:{f+4*j+3}], v{va} offset:{o_+4096}')
        a(f's_waitcnt lgkmcnt(4)\nv_cmp_ge_i32 vcc, {gV[t]}, v{vT}\ns_cbranch_vccnz {l}')
        for j in range(2): a(f's_waitcnt lgkmcnt({2-2*j})\nv_mfma_f32_16x16x32_bf16 v[{d+4*j}:{d+4*j+3}], v[{f+4*j}:{f+4*j+3}], v[{vPt+4*t}:{vPt+4*t+3}], 0')
        if t==3: a(f's_cmp_eq_u32 s{sLoc}, 2\ns_cbranch_scc0 L_outg')
        sel='op_sel_hi:[1,0,1]' if t%2==0 else 'op_sel:[0,1,0]'
        def fma(j):
            for i in (4*j,4*j+2): a(f'v_pk_fma_f32 v[{acc+i}:{acc+i+1}], v[{d+i}:{d+i+1}], v[{vMT+(t&2)}:{vMT+(t&2)+1}], v[{acc+i}:{acc+i+1}] {sel}')
        if t<3: fma(0); fma(1)
    for p in ('','sc1'):
        if p: a('L_outg:')
        a(f's_mov_b64 exec, s[{sEx}:{sEx+1}]')
        for j in range(2):
            fma(j); tag4(acc+4*j)
            a(f'buffer_store_dwordx4 v[{acc+4*j}:{acc+4*j+3}], v{vpa}, s[{dWS}:{dWS+3}], s{sO1 if j else sKo} offen {p}')
        stamp(9)
        stamp_out(dWS)
        a('s_endpgm')
    a('L_help:')
    vWo=192
    def wo_loads():
        a(f's_lshl_b32 s{sTmp}, s{sH}, 5\ns_add_u32 s{sTmp}, s{sTmp}, s{sC}\ns_lshl_b32 s{sTmp}, s{sTmp}, 14')
        for i in range(16):
            a(f'buffer_load_dwordx4 v[{vWo+4*i}:{vWo+4*i+3}], v{vL16}, s[{dWO}:{dWO+3}], s{sTmp} offen offset:{1024*(i&3)} {wpol}')
            if i&3==3 and i<15: a(f's_add_u32 s{sTmp}, s{sTmp}, 4096')
    a(f's_cmp_lt_u32 s{sF}, 224\ns_cbranch_scc0 L_noffn')
    a(f's_and_b32 s{sTmp2}, s{sF}, 7\ns_lshl_b32 s{sTmp2}, s{sTmp2}, 7\ns_add_u32 s{sTmp}, s{sTmp2}, {L_XN+1024}\nv_lshl_add_u32 v{t0}, v2, 3, s{sTmp}')
    for j in range(2): a(f'ds_read2_b64 v[{vXf+4*j}:{vXf+4*j+3}], v{t0} offset0:{8*j} offset1:{8*j+4}')
    a(f'v_lshlrev_b32 v{vAd}, 7, v1\nv_lshl_add_u32 v{vAd}, v{vTm}, 3, v{vAd}\nv_bfe_u32 v{vAd+1}, v1, 1, 2\nv_lshl_add_u32 v{vAd}, v{vAd+1}, 5, v{vAd}')
    for j in (1,2,3): a(f'v_xor_b32 v{vAd+j}, {32*j}, v{vAd}')
    stamp(2)
    wait_full(1,vT,vFA)
    a(f's_lshl_b32 s{sTmp}, s{sF}, 13\ns_add_u32 s{sTmp2}, s{sTmp}, 4096')
    for j in range(8): a(f'buffer_load_dwordx4 v[{vWD+4*j}:{vWD+4*j+3}], v{vL16}, s[{dWD}:{dWD+3}], s{sTmp if j<4 else sTmp2} offen offset:{1024*(j&3)} {wpol}')
    vAc=vX1
    def fgemv(mat):
        seq=[(s,j) for s in range(2) for j in range(4)]
        base=(2+2*mat)*SLOT
        def rd(i):
            s,j=seq[i]; b=vB+4*i
            a(f'ds_read_b64_tr_b16 v[{b}:{b+1}], v{vAd+j} offset:{base+4096*s}\nds_read_b64_tr_b16 v[{b+2}:{b+3}], v{vAd+j} offset:{base+4096*s+2048}')
        for i in range(5): rd(i)
        for i in range(8):
            if i+5<8: rd(i+5)
            a(f's_waitcnt lgkmcnt({2*(min(i+5,7)-i)})')
            s,j=seq[i]; b=vB+4*i; d=vAc+16*mat+4*j
            a(f'v_mfma_f32_16x16x32_bf16 v[{d}:{d+3}], v[{b}:{b+3}], v[{vXf+4*s}:{vXf+4*s+3}], '+('0' if s==0 else f'v[{d}:{d+3}]'))
    wait_full(2,vT,vFA); fgemv(0)
    wait_full(4,vT,vFA); stamp(3); fgemv(1)
    a(f'v_mov_b32 v{w0}, {INF:#x}\nds_write_b32 v{vRA}, v{w0}')
    for n in range(1,8):
        setexec(0x0001000100010001<<n)
        for k in range(4): a(f'v_mov_b32 v{vAc+k}, v{vAc+4*n+k}')
    a('s_mov_b64 exec, -1'); tag4(vAc)
    wait_q('L_hq',w0)
    a(f's_lshr_b32 s{sTmp}, s{sF}, 3\ns_lshr_b32 s{sTmp}, {(1<<3)|(1<<10)|(1<<17)|(1<<24):#x}, s{sTmp}\ns_and_b32 s{sTmp}, s{sTmp}, 1\ns_sub_u32 s{sTmp2}, s{sLoc}, s{sTmp}')
    a(f's_lshl_b32 s{sTmp}, s{sF}, 9\ns_add_u32 s{sTmp}, s{sTmp}, {W_F1:#x}\nv_lshlrev_b32 v{vT}, 4, v2\nv_lshl_add_u32 v{vT}, v3, 6, v{vT}')
    setexec(0x00ff00ff00ff00ff)
    a(f's_cmp_eq_u32 s{sTmp2}, 2')
    st2(1,f'buffer_store_dwordx4 v[{vAc}:{vAc+3}], v{vT}, s[{dWS}:{dWS+3}], s{sTmp} offen')
    a('s_mov_b64 exec, -1')
    stamp(4)
    if not jwo: wo_loads()
    a(f's_and_b32 s{sTmp}, s{sF}, 0xf8\ns_lshl_b32 s{sTmp}, s{sTmp}, 9\ns_and_b32 s{sTmp2}, s{sF}, 7\ns_lshl_b32 s{sTmp2}, s{sTmp2}, 5\ns_add_u32 s{sTmp}, s{sTmp}, s{sTmp2}\ns_add_u32 s{sKo}, s{sTmp}, {W_F1:#x}')
    a(f'v_bfe_u32 v{vT+2}, v0, 1, 4\nv_lshlrev_b32 v{vT+2}, 8, v{vT+2}\nv_and_b32 v{vT+3}, 1, v0\nv_lshl_add_u32 v{vT+2}, v{vT+3}, 4, v{vT+2}')
    if f1wait: wait_full(f1wait,vT,vFA)
    gu=vK
    a('L_f1poll:')
    a(f'buffer_load_dwordx4 v[{gu}:{gu+3}], v{vT+2}, s[{dWS}:{dWS+3}], s{sKo} offen sc1')
    timeout()
    a('s_waitcnt vmcnt(0)')
    chk(vT,[gu],[],None)
    a('s_cbranch_vccnz L_f1poll')
    allred('v_add_f32',[gu,gu+1,gu+2,gu+3],[vA,vA+1,vA+2,vA+3],lo=(4,8),hi=(16,))
    for k in range(4): bfr(gu+k,gu+k)
    k1=-2*0.7978845608028654*1.4426950408889634
    hh=gu+4; up=gu+8
    for k in range(4): a(f'v_mov_b32_dpp v{up+k}, v{gu+k} quad_perm:[2,3,2,3] row_mask:0xf bank_mask:0xf')
    for k in range(4): a(f'v_mul_f32 v{hh+k}, v{gu+k}, v{gu+k}')
    for k in range(4): a(f'v_mul_f32 v{hh+k}, {f2u(0.044715):#x}, v{hh+k}')
    for k in range(4): a(f'v_fma_f32 v{hh+k}, v{hh+k}, v{gu+k}, v{gu+k}')
    for k in range(4): a(f'v_mul_f32 v{hh+k}, {f2u(k1):#x}, v{hh+k}')
    for k in range(4): a(f'v_exp_f32 v{hh+k}, v{hh+k}')
    for k in range(4): a(f'v_add_f32 v{hh+k}, 1.0, v{hh+k}')
    for k in range(4): a(f'v_rcp_f32 v{hh+k}, v{hh+k}')
    for k in range(4): a(f'v_mul_f32 v{hh+k}, v{gu+k}, v{hh+k}')
    for k in range(4): bfr(hh+k,hh+k)
    for k in range(4): a(f'v_mul_f32 v{hh+k}, v{hh+k}, v{up+k}')
    for k in range(4): bfr(hh+k,hh+k)
    acc=vV; un=vV+8
    for k in range(8): a(f'v_mov_b32 v{acc+k}, 0')
    for j in range(8):
        for k in range(4): a(f'v_lshlrev_b32 v{un+2*k}, 16, v{vWD+4*j+k}\nv_and_b32 v{un+2*k+1}, 0xffff0000, v{vWD+4*j+k}')
        for k in range(8): a(f'v_fmac_f32_dpp v{acc+k}, v{hh+(j&3)}, v{un+k} quad_perm:[{j>>2},{j>>2},{j>>2},{j>>2}] row_mask:0xf bank_mask:0xf')
    tag4(acc); tag4(acc+4)
    a(f's_lshl_b32 s{sTmp}, s{sF}, 7\ns_add_u32 s{sTmp}, s{sTmp}, {W_B3:#x}\ns_add_u32 s{sTmp2}, s{sTmp}, {8*28672}')
    a(f'v_lshrrev_b32 v{vT}, 3, v0\nv_mul_u32_u24 v{vT}, 28672, v{vT}\nv_and_b32 v{vT+1}, 7, v0\nv_lshl_add_u32 v{vT}, v{vT+1}, 4, v{vT}\ns_cmp_eq_u32 s{sLoc}, 2')
    st2(1,f'buffer_store_dwordx4 v[{acc}:{acc+3}], v{vT}, s[{dWS}:{dWS+3}], s{sTmp} offen',f'buffer_store_dwordx4 v[{acc+4}:{acc+7}], v{vT}, s[{dWS}:{dWS+3}], s{sTmp2} offen')
    stamp(5)
    a('s_branch L_ffndone')
    a(f'L_noffn:\nv_mov_b32 v{w0}, {INF:#x}\nds_write_b32 v{vRA}, v{w0}')
    wait_q('L_hq2',w0)
    if not jwo: wo_loads()
    a('s_waitcnt vmcnt(0)\nL_ffndone:')
    vWl=160
    def wo_perm(behind=0,last=None):
        a(f's_mov_b32 s{sTmp}, 0x05040100\ns_mov_b32 s{sTmp2}, 0x07060302')
        for r_ in range(8):
            if jwo and r_<7: a(f's_waitcnt vmcnt({14-2*r_+behind})')
            if r_==7 and last: last()
            for k in range(4):
                x,y=vWo+8*r_+k,vWo+8*r_+4+k
                a(f'v_perm_b32 v{vWl+4*r_+k}, v{y}, v{x}, s{sTmp}\nv_perm_b32 v{y}, v{y}, v{x}, s{sTmp2}')
    if not jwo: wo_perm()
    vb=vK; gg=vQ; v128=vAd; vga=vAd+1; vgm=vAd+2; vS3=vAd+3
    sP2,sS3w,sS3r=sG,sSlot,sSlotV
    sDp,sDr=86,87
    a(f'v_lshlrev_b32 v{gg+5}, 1, v2\nv_lshlrev_b32 v{v128}, 7, v0\nv_lshrrev_b32 v{vgm}, 2, v0\nv_lshlrev_b32 v{vgm}, 7, v{vgm}\nv_lshl_add_u32 v{vga}, v{vTm}, 4, v{vgm}')
    a(f's_lshl_b32 s{sTmp}, s{sH}, 17\ns_lshl_b32 s{sTmp2}, s{sC}, 12\ns_add_u32 s{sTmp}, s{sTmp}, s{sTmp2}\ns_add_u32 s{sP2}, s{sTmp}, {W_P2:#x}')
    SB=(12,14,7,8,9,10,11,15,16)
    def spread_s(dst,src,nb,first,sh=0):
        for j in range(nb): a(f's_bfe_u32 s{sTmp2}, s{src}, {(1<<16)|(j+sh):#x}\ns_lshl_b32 s{sTmp2}, s{sTmp2}, {SB[first+j]}\ns_add_u32 s{dst}, s{dst}, s{sTmp2}')
    def spread_v(dst,sh,nb):
        for j in range(nb): a(f'v_bfe_u32 v{vT}, v0, {j+sh}, 1\n'+(f'v_lshl_add_u32 v{dst}, v{vT}, {SB[j]}, v{dst}' if j else f'v_lshlrev_b32 v{dst}, {SB[j]}, v{vT}'))
    vG3,vPre=vAd+4,vAd+5; sPre=sXcc if not ptau else None
    a(f'v_lshrrev_b32 v{vS3}, 3, v0\nv_lshlrev_b32 v{vS3}, 17, v{vS3}\nv_and_b32 v{vT}, 0x70, v{vL16}\nv_add_u32 v{vS3}, v{vS3}, v{vT}\ns_mov_b32 s{sS3w}, {W_S3:#x}')
    spread_s(sS3w,sXi,5,0); spread_s(sS3w,sXj,3,5)
    spread_v(vG3,0,6); spread_v(vPre,1,4)
    a(f'v_and_b32 v{vT}, 1, v0\nv_lshl_add_u32 v{vPre}, v{vT}, 6, v{vPre}\ns_lshl_b32 s{sS3r}, s{sXj}, 17\ns_add_u32 s{sS3r}, s{sS3r}, {W_S3:#x}')
    spread_s(sS3r,sXi,1,8)
    a(f's_mov_b32 s{sPre}, s{sS3r}'); spread_s(sPre,sXi,4,4,1)
    a(f's_and_b32 s{sTmp}, s{sCg}, 1\ns_lshl_b32 s{sTmp}, s{sTmp}, 3\ns_lshr_b32 s{sTmp2}, s{sCg}, 4\ns_add_u32 s{sTmp}, s{sTmp}, s{sTmp2}\ns_bfe_u32 s{sTmp2}, s{sCg}, 0x30001\ns_lshl_b32 s{sTmp2}, s{sTmp2}, 4')
    a(f's_add_u32 s{sS3r}, s{sS3r}, s{sTmp2}')
    a(f's_lshl_b32 s{sKo}, s{sTmp}, 10\ns_add_u32 s{sKo}, s{sKo}, s{sTmp2}\ns_add_u32 s{sKo}, s{sKo}, {W_B4:#x}')
    tk=vO
    mlast=min(mlast,2*S)
    def control(jend):
        l=lab('ctl'); sk=lab('cs')
        a(f'{l}:')
        wait_full(f's{sJ}',vT,vFA)
        if fb:
            a(f's_cmp_eq_u32 s{sLoc}, 2\ns_cbranch_scc0 {sk}')
            a(f's_add_u32 s{sTmp}, s{sMin}, s{sJ}\nv_mov_b32 v{tk}, s{sTmp}\ns_mov_b64 exec, 1\nbuffer_store_dword v{tk}, off, s[{dWS}:{dWS+3}], s{sKb}')
        if fb==5:
            l1,l2=lab('nr'),lab('np')
            a(f's_and_b32 s{sTmp}, s{sCnt}, 3\ns_add_u32 s{sTmp}, s{sTmp}, 28\ns_cmp_eq_u32 s{sTmp}, s{sXi}\ns_cselect_b32 s{sDp}, 1, 0\ns_add_u32 s{sCnt}, s{sCnt}, 1')
            a(f's_sub_u32 s{sGmR}, s{sGmR}, 1\ns_cselect_b32 s{sGmR}, {xev-1}, s{sGmR}\ns_cselect_b32 s{sDr}, s{sDp}, 0')
            a(f's_mul_i32 s{sTmp}, s{sDr}, 0xff0000\ns_or_b32 exec_hi, s{sTmp}, 1\ns_mov_b32 exec_lo, -1')
        elif fb: setexec(0xffffffff)
        if fb:
            a(f'buffer_load_dword v{tk+4}, v{tk+1}, s[{dWS}:{dWS+3}], 0 offen sc1\ns_waitcnt vmcnt(0)')
            a(f'v_sub_u32 v{tk+4}, v{tk+4}, v{tk+3}\nv_cmp_lt_u32 vcc, v{tk+4}, v{tk+6}\nv_cndmask_b32 v{tk+4}, v{tk+2}, v{tk+4}, vcc\ns_mov_b64 exec, -1')
            allred('v_add_u32',[tk+4],[tk+5],hi=())
            a(f'v_readlane_b32 s{sTmp}, v{tk+4}, 0\nv_readlane_b32 s{sTmp2}, v{tk+4}, 16\nv_readlane_b32 s{sTmp3}, v{tk+4}, 32\ns_add_u32 s{sTmp}, s{sTmp}, s{sTmp2}')
            d0=-256*(mk/2+tau)
        if fb==5:
            a(f's_cmp_eq_u32 s{sDp}, 0\ns_cbranch_scc1 {l2}\ns_lshl_b32 s{sDp}, s{sT}, 13\ns_add_u32 s{sTmp2}, s{sTmp}, s{sDp}\nv_mov_b32 v{tk}, s{sTmp2}\ns_mov_b64 exec, 1')
            a(f'buffer_store_dword v{tk}, off, s[{dWS}:{dWS+3}], s{sVo} offset:{0x480} sc1')
            a(f's_cmp_eq_u32 s{sDr}, 0\ns_cbranch_scc1 {l1}')
            a(f'v_readlane_b32 s{sTmp3}, v{tk+4}, 48\ns_lshl_b32 s{sTmp2}, s{sTmp}, 3\ns_sub_i32 s{sTmp3}, s{sTmp3}, s{sTmp2}\ns_add_i32 s{sTmp3}, s{sTmp3}, {int(256*xc)+4096}')
            a(f's_max_i32 s{sTmp3}, s{sTmp3}, 0\ns_min_i32 s{sTmp3}, s{sTmp3}, 8191\ns_add_u32 s{sTmp2}, s{sTmp3}, s{sDp}\nv_mov_b32 v{tk}, s{sTmp2}')
            a(f'buffer_store_dword v{tk}, off, s[{dWS}:{dWS+3}], s{sVo} offset:{0x80}')
            a(f'{l1}:\ns_mov_b64 exec, -1\n{l2}:')
            d0+=4096
        if fb:
            a(f'v_mov_b32 v{tk+4}, 0\ns_lshl_b32 s{sTmp}, s{sTmp}, 3')
            if fb==5: a(f's_add_u32 s{sTmp}, s{sTmp}, s{sTmp3}')
            a(f's_lshl_b32 s{sTmp2}, s{sJ}, 8\ns_sub_i32 s{sTmp}, s{sTmp}, s{sTmp2}')
            if ptau: a(f's_add_i32 s{sTmp}, s{sTmp}, s{sXcc}')
            a(f's_cmp_lt_i32 s{sTmp}, {int(d0-256*th)}\ns_cselect_b32 s{sTmp2}, 1, 0\ns_cmp_gt_i32 s{sTmp}, {int(d0+256*th)}\ns_cselect_b32 s{sTmp2}, 2, s{sTmp2}\nv_mov_b32 v{vT}, s{sTmp2}\nds_write_b32 v{vFA}, v{vT} offset:12')
            a(f'{sk}:')
        a(f's_add_u32 s{sJ}, s{sJ}, {mk}\ns_cmp_le_u32 s{sJ}, {jend}\ns_cbranch_scc1 {l}')
    a(f's_mov_b32 s{sJ}, {m0}')
    if ptau: a(f's_getreg_b32 s{sXcc}, hwreg(HW_REG_XCC_ID, 0, 1)\ns_mul_i32 s{sXcc}, s{sXcc}, {-2*int(256*ptau)}\ns_add_i32 s{sXcc}, s{sXcc}, {int(256*ptau)}')
    if fb:
        a(f's_lshl_b32 s{sMin}, s{sT}, 8\nv_mov_b32 v{tk+2}, {m0-mk}\nv_mov_b32 v{tk+3}, s{sMin}\nv_mov_b32 v{tk+6}, 0x100\nv_mov_b32 v{tk+4}, 0')
        a(f's_mul_i32 s{sVo}, s{sXj}, {CST2}\ns_add_u32 s{sVo}, s{sVo}, {W_CNT:#x}\nv_lshl_add_u32 v{tk+1}, v0, 2, s{sVo}\ns_lshl_b32 s{sKb}, s{sXi}, 2\ns_add_u32 s{sKb}, s{sKb}, s{sVo}')
    if fb==5:
        a(f's_mov_b32 s{sCnt}, 0\ns_mov_b32 s{sGmR}, {xev-1}')
        a(f's_mov_b32 exec_lo, 0\ns_lshl_b32 s{sTmp}, s{sT}, 13\nv_mov_b32 v{tk+2}, 4096\nv_mov_b32 v{tk+3}, s{sTmp}\nv_mov_b32 v{tk+6}, 0x2000\ns_mov_b32 exec_hi, 0xffff0000\nv_mov_b32 v{tk+2}, {32*(m0-mk)}')
        a(f'v_and_b32 v{tk+1}, 7, v0\nv_mul_u32_u24 v{tk+1}, {CST2}, v{tk+1}\nv_add_u32 v{tk+1}, {W_CNT+0x480:#x}, v{tk+1}\ns_mov_b64 exec, -1')
    control(jv)
    a(f's_lshl_b32 s{sTmp2}, s{sT}, 8\ns_mov_b32 s{sTmp3}, {W_VT:#x}\nL_vtpoll:')
    for i in range(nvote): a(f'buffer_load_dwordx4 v[{vb+4*i}:{vb+4*i+3}], v{vL16}, s[{dWS}:{dWS+3}], s{sTmp3} offen offset:{1024*i} sc1')
    timeout()
    a(f's_waitcnt vmcnt(0)\nv_xor_b32 v{vT}, s{sTmp2}, v{vb}')
    for v in range(1,4*nvote): a(f'v_bitop3_b32 v{vT}, v{vb+v}, s{sTmp2}, v{vT} bitop3:0xbe')
    a(f'v_cmp_lt_u32 vcc, 0xff, v{vT}\ns_cbranch_vccnz L_vtpoll\nv_and_b32 v{vT}, 15, v{vb}')
    for v in range(1,4*nvote): a(f'v_and_b32 v{vT+1}, 15, v{vb+v}\nv_add_u32 v{vT}, v{vT}, v{vT+1}')
    allred('v_add_u32',[vT],[vT+1])
    if diag: a(f'v_readfirstlane_b32 s{sTmp}, v{vT}\nv_writelane_b32 v{vSt}, s{sTmp}, 16')
    if force is None: a(f'v_cmp_gt_u32 vcc, {2048*nvote}, v{vT}\nv_cndmask_b32 v{vT}, 0, 1, vcc')
    else: a(f'v_mov_b32 v{vT}, {force}')
    a(f'v_bfe_u32 v{vT+1}, v{vb}, 7, 1\nv_xor_b32 v{vT}, v{vT}, v{vT+1}\nv_lshlrev_b32 v{vT}, 13, v{vT}\nv_add_u32 v{vS3}, v{vS3}, v{vT}')
    a(f's_bfe_u32 s{sTmp}, s{sXi}, 0x30001\ns_lshl_b32 s{sTmp2}, s{sXj}, 3\ns_add_u32 s{sTmp}, s{sTmp}, s{sTmp2}\nv_readlane_b32 s{sTmp}, v{vT}, s{sTmp}\ns_add_u32 s{sS3r}, s{sS3r}, s{sTmp}\ns_add_u32 s{sPre}, s{sPre}, s{sTmp}')
    control(jb1)
    a(f's_cmp_lt_u32 s{sXi}, 16\ns_cbranch_scc0 L_nob3')
    a(f's_mul_i32 s{sTmp2}, s{sXi}, 28672\ns_mul_i32 s{sTmp}, s{sXj}, 3584\ns_add_u32 s{sTmp2}, s{sTmp2}, s{sTmp}\ns_add_u32 s{sTmp2}, s{sTmp2}, {W_B3:#x}')
    for k in range(4): a(f'v_mov_b32 v{vb+12+k}, 0')
    tag4(vb+12)
    a('L_b3poll:')
    for i in range(4):
        if i==3: a('s_mov_b32 exec_hi, 0')
        a(f'buffer_load_dwordx4 v[{vb+4*i}:{vb+4*i+3}], v{vL16}, s[{dWS}:{dWS+3}], s{sTmp2} offen offset:{1024*i} sc1')
    a('s_mov_b64 exec, -1')
    timeout()
    a('s_waitcnt vmcnt(0)')
    chk(vT,[vb,vb+4,vb+8,vb+12],[],None)
    a('s_cbranch_vccnz L_b3poll')
    def sum4(dst,lo):
        for k in range(4): a(f'v_add_f32 v{dst+k}, v{vb+k}, v{vb+4+k}\nv_add_f32 v{vA+4+k}, v{vb+8+k}, v{vb+12+k}')
        for k in range(4): a(f'v_add_f32 v{dst+k}, v{dst+k}, v{vA+4+k}')
        allred('v_add_f32',[dst,dst+1,dst+2,dst+3],[vA,vA+1,vA+2,vA+3],lo=lo)
    sum4(gg,(8,)); tag4(gg)
    a(f's_lshl_b32 s{sTmp}, s{sXi}, 10\ns_lshl_b32 s{sTmp2}, s{sXj}, 7\ns_add_u32 s{sTmp}, s{sTmp}, s{sTmp2}\ns_add_u32 s{sTmp}, s{sTmp}, {W_B4:#x}\ns_mov_b64 exec, 0xff')
    a(f'buffer_store_dwordx4 v[{gg}:{gg+3}], v{vL16}, s[{dWS}:{dWS+3}], s{sTmp} offen sc1\ns_mov_b64 exec, -1')
    stamp(6)
    a('L_nob3:')
    control(jb2)
    a(f's_cmp_lt_u32 s{sXi}, 16\ns_cbranch_scc0 L_nob4\nv_and_b32 v{vT+2}, 0x380, v{v128}')
    a(f'L_b4poll:\nbuffer_load_dwordx4 v[{gg}:{gg+3}], v{vT+2}, s[{dWS}:{dWS+3}], s{sKo} offen sc1')
    timeout()
    a('s_waitcnt vmcnt(0)')
    chk(vT,[gg],[],None)
    a('s_cbranch_vccnz L_b4poll')
    allred('v_add_f32',[gg,gg+1,gg+2,gg+3],[],lo=(4,2,1),hi=())
    for k in range(4): bfr(gg+k,gg+k)
    for k in range(4): a(f'v_mul_f32 v{vA+k}, s{sL2e}, v{gg+k}')
    for k in range(4): a(f'v_exp_f32 v{vA+k}, -v{vA+k}')
    for k in range(4): a(f'v_add_f32 v{vA+k}, 1.0, v{vA+k}')
    for k in range(4): a(f'v_rcp_f32 v{vA+k}, v{vA+k}')
    for k in range(4): a(f'v_mul_f32 v{gg+k}, v{gg+k}, v{vA+k}')
    for k in range(4): bfr(gg+k,gg+k)
    a(f's_lshl_b32 s{sTmp}, s{sXf}, 16\nv_mov_b32 v{gg+4}, s{sTmp}')
    for k in range(1,4):
        setexec(0xffff<<(16*k))
        a((f's_lshl_b32 s{sTmp}, s{sXf+k//2}, 16' if k%2==0 else f's_and_b32 s{sTmp}, s{sXf+k//2}, 0xffff0000')+f'\nv_mov_b32 v{gg+4}, s{sTmp}\nv_mov_b32 v{gg}, v{gg+k}')
    a('s_mov_b64 exec, -1')
    stamp(7)
    a('L_nob4:')
    control(jpre)
    po=vV; pm=vV+8; sMk=84; sS3o=92
    for i in range(1,4): a(f's_add_u32 s{sS3o+i}, s{sS3r}, {((i&1)<<SB[6])+((i>>1)<<SB[7])}')
    s3o=lambda i: sS3r if i==0 else sS3o+i
    def ldm(i): a(f'buffer_load_dwordx4 v[{pm+4*i}:{pm+4*i+3}], v{vgm}, s[{dWS}:{dWS+3}], s{sP2} offen offset:{2048*i+64} sc1')
    def ldo(i): a(f'buffer_load_dwordx4 v[{po+4*i}:{po+4*i+3}], v{vga}, s[{dWS}:{dWS+3}], s{sP2} offen offset:{2048*i} sc1')
    def lds3(i): a(f'buffer_load_dwordx4 v[{vb+4*i}:{vb+4*i+3}], v{vG3}, s[{dWS}:{dWS+3}], s{s3o(i)} offen {s3ld}')
    a(f'v_lshlrev_b32 v{vT+2}, 6, v0')
    if p2pre: a(f'buffer_load_dword v{pm}, v{vT+2}, s[{dWS}:{dWS+3}], s{sP2} offen sc1')
    else: ldm(0); ldm(1)
    if s3pre==2:
        a(f's_mov_b32 exec_hi, 0\nbuffer_load_dword v{vb}, v{vPre}, s[{dWS}:{dWS+3}], s{sPre} offen {s3ld}\ns_mov_b64 exec, -1')
    elif s3pre:
        a(f's_cmp_lt_u32 s{sXi}, 16\ns_cbranch_scc0 L_nopre')
        for i in range(4): lds3(i)
        a('L_nopre:')
    if mlast>jpre: control(mlast)
    stamp(8)
    def masked(n,ld):
        for i in range(n):
            l=lab('mz')
            a(f's_mov_b64 exec, s[{sMk+2*i}:{sMk+2*i+1}]\ns_cbranch_execz {l}'); ld(i); a(f'{l}:')
        a('s_mov_b64 exec, -1')
    def recheck(n,ck,skip=False):
        for i in range(n):
            l=lab('rc')
            if skip: a(f's_cmp_eq_u64 s[{sMk+2*i}:{sMk+2*i+1}], 0\ns_cbranch_scc1 {l}')
            ck(i); a(f's_mov_b64 s[{sMk+2*i}:{sMk+2*i+1}], vcc')
            if skip: a(f'{l}:')
        a(f's_or_b64 vcc, s[{sMk}:{sMk+1}], s[{sMk+2}:{sMk+3}]')
        if n==4: a(f's_or_b64 vcc, vcc, s[{sMk+4}:{sMk+5}]\ns_or_b64 vcc, vcc, s[{sMk+6}:{sMk+7}]')
    def rowsum(v,lo):
        a(f'v_permlane16_swap_b32 v{v}, v{v+1}\nv_permlane16_swap_b32 v{v+2}, v{v+3}\nv_add_f32 v{v}, v{v}, v{v+1}\nv_add_f32 v{v+2}, v{v+2}, v{v+3}')
        a(f'v_permlane32_swap_b32 v{v}, v{v+2}\nv_add_f32 v{v}, v{v}, v{v+2}')
        allred('v_add_f32',[v],[],lo=lo,hi=())
    def allmask(n):
        for i in range(n): a(f's_mov_b64 s[{sMk+2*i}:{sMk+2*i+1}], -1')
    allmask(2)
    if jwo:
        a('L_wowait:'); poll_full(vT,vFA)
        a(f's_cmp_eq_u32 s{sGend}, 0\ns_cbranch_scc0 L_wowait')
        wo_loads()
    def poll(name,n,ld,ck,depth,thr):
        a(f's_branch L_{name}chk\nL_{name}poll:')
        masked(n,ld); timeout()
        a(f'L_{name}chk:\ns_waitcnt vmcnt(0)')
        recheck(n,ck,True)
        if not depth:
            a(f's_cbranch_scc1 L_{name}poll'); return
        a(f's_cbranch_scc0 L_{name}ok')
        for i in range(n):
            a(f's_bcnt1_i32_b64 s{sTmp2 if i else sTmp}, s[{sMk+2*i}:{sMk+2*i+1}]')
            if i: a(f's_add_u32 s{sTmp}, s{sTmp}, s{sTmp2}')
        a(f's_cmp_gt_u32 s{sTmp}, {thr}\ns_cbranch_scc1 L_{name}poll\nL_{name}fast:')
        for i in range(n):
            a(f's_or_b64 exec, s[{sMk+2*i}:{sMk+2*i+1}], 1'); ld(i)
        a('s_mov_b64 exec, -1'); timeout()
        a(f's_waitcnt vmcnt({n*depth})')
        recheck(n,ck,True)
        a(f's_cbranch_scc1 L_{name}fast\nL_{name}ok:')
    wait_full(jml,vT,vFA)
    ldm(0); ldm(1)
    def ofirst(): a('s_waitcnt vmcnt(0)'); ldo(0); ldo(1)
    if jwo: wo_perm(2,ofirst)
    else: ofirst()
    stamp(14)
    ckm=lambda i: chk(vT,[pm+4*i],[],None)
    recheck(2,ckm)
    a('s_cbranch_scc0 L_mldone')
    masked(2,ldm)
    poll('ml',2,ldm,ckm,fp[0],fp[1])
    ldo(0); ldo(1)
    a('L_mldone:'); allmask(2)
    mx=vM; ls=vS+4; o=vS; pw=vA+4
    for i in range(2): a(f'v_and_b32 v{pw+2*i}, 0xffff0000, v{pm+4*i}')
    a(f'v_max_f32 v{mx}, v{pw}, v{pw+2}')
    allred('v_max_f32',[mx],[vT+1],lo=(4,8))
    for i in range(2): a(f'v_sub_f32 v{pw+2*i}, v{pw+2*i}, v{mx}')
    for i in range(2): a(f'v_mul_f32 v{pw+2*i}, s{sL2e}, v{pw+2*i}')
    for i in range(2): a(f'v_exp_f32 v{pw+2*i}, v{pw+2*i}')
    a(f'v_mul_f32 v{ls}, v{pw}, v{pm+2}\nv_fmac_f32 v{ls}, v{pw+2}, v{pm+6}')
    allred('v_add_f32',[ls],[vT+1],lo=(4,8))
    a(f'v_rcp_f32 v{ls}, v{ls}')
    for i in range(2): a(f'v_mul_f32 v{pw+2*i}, v{pw+2*i}, v{ls}')
    r=vO+8
    for k in range(8): a(f'v_mov_b32 v{r+k}, 0')
    stamp(9)
    poll('o',2,ldo,lambda i: chk(vT,[po+4*i],[],None),fp[2],fp[3])
    stamp(10)
    for k in (0,2): a(f'v_pk_mul_f32 v[{o+k}:{o+k+1}], v[{po+k}:{po+k+1}], v[{pw}:{pw+1}] op_sel_hi:[1,0]')
    for k in (0,2): a(f'v_pk_fma_f32 v[{o+k}:{o+k+1}], v[{po+4+k}:{po+4+k+1}], v[{pw+2}:{pw+3}], v[{o+k}:{o+k+1}] op_sel_hi:[1,0,1]')
    rowsum(o,(4,8))
    a(f'v_mov_b32 v{o+1}, v{o}\nv_permlane16_swap_b32 v{o}, v{o+1}\nv_cvt_pk_bf16_f32 v{vA}, v{o}, v{o+1}\nv_cvt_pk_bf16_f32 v{vA+1}, v{o}, v{o+1}\nv_permlane32_swap_b32 v{vA}, v{vA+1}')
    for r_ in range(8):
        u=r_>>1
        for k in range(8): a(f'v_dot2c_f32_bf16_dpp v{r+k}, v{vA+(r_&1)}, v{vWo+8*r_+4+(k>>1) if k&1 else vWl+4*r_+(k>>1)} quad_perm:[{u},{u},{u},{u}] row_mask:0xf bank_mask:0xf')
    tag4(r)
    a(f'buffer_store_dwordx4 v[{r}:{r+3}], v{vS3}, s[{dWS}:{dWS+3}], s{sS3w} offen {s3st}\ns_add_u32 s{sS3w}, s{sS3w}, {1<<SB[8]}')
    tag4(r+4)
    a(f'buffer_store_dwordx4 v[{r+4}:{r+7}], v{vS3}, s[{dWS}:{dWS+3}], s{sS3w} offen {s3st}')
    stamp(11)
    a(f's_cmp_lt_u32 s{sXi}, 16\ns_cbranch_scc0 L_hfin')
    allmask(4)
    cks=lambda i: chk(vT,[vb+4*i],[],None)
    a(f's_lshl_b32 s{sCnt}, s{sCg}, 3\ns_mov_b32 s{sLoc}, 0x00010001\ns_mov_b32 s{sLoc+1}, 0x00010001')
    for i in range(4): lds3(i)
    poll('s3',4,lds3,cks,fp[4],fp[5])
    stamp(12)
    ss=vS
    for d,x,y in ((ss,vb,vb+4),(ss+4,vb+8,vb+12),(ss,ss,ss+4)):
        for k in (0,2): a(f'v_pk_add_f32 v[{d+k}:{d+k+1}], v[{x+k}:{x+k+1}], v[{y+k}:{y+k+1}]')
    rowsum(ss,(8,4,2,1))
    bfr(ss,ss); a(f'v_mul_f32 v{ss}, v{ss}, v{gg}'); bfr(ss,ss)
    a(f'v_add_f32 v{ss}, v{ss}, v{gg+4}\nv_cvt_pk_bf16_f32 v{ss}, v{ss}, v{ss}\ns_mov_b64 exec, s[{sLoc}:{sLoc+1}]')
    a(f'buffer_store_short v{ss}, v{gg+5}, s[{dOUT}:{dOUT+3}], s{sCnt} offen\ns_mov_b64 exec, 1')
    a(f's_cmp_eq_u32 s{sCg}, 0\ns_cbranch_scc0 L_hfin\nv_mov_b32 v{vT+1}, s{sT}\nbuffer_store_dword v{vT+1}, off, s[{dWS}:{dWS+3}], 0')
    a('L_hfin:\ns_waitcnt vmcnt(0)')
    stamp(13)
    stamp_out(dWS)
    a('L_end:\ns_endpgm')
    n=a.fix()
    out=HDR+f'; @launch grid=(256,1,1) block=({64*NWAVE},1,1) lds=163840\n'
    out+=f'.amdgcn_target "amdgcn-amd-amdhsa--gfx950"\n.text\n.globl {NAME}\n.p2align 8\n.type {NAME},@function\n'
    out+=a.text()
    out+=f'''.section .rodata,"a"
.p2align 6
.amdhsa_kernel {NAME}
  .amdhsa_next_free_vgpr 256
  .amdhsa_next_free_sgpr 96
  .amdhsa_accum_offset 256
  .amdhsa_group_segment_fixed_size 0
  .amdhsa_kernarg_size 96
  .amdhsa_user_sgpr_count 2
  .amdhsa_user_sgpr_kernarg_segment_ptr 1
  .amdhsa_system_sgpr_workgroup_id_x 1
  .amdhsa_float_denorm_mode_32 3
.end_amdhsa_kernel
'''
    return out
if __name__=='__main__':
    kw=eval('dict(%s)'%(sys.argv[1] if len(sys.argv)>1 else ''))
    sys.stdout.write(gen(**kw))
```

```python
import sys, struct
from asmlib import Asm
NAME='recurrent_scan__gqa_block_cached__geglu_ffn__decode_kernel'
HDR=open('recurrent_scan__gqa_block_cached__geglu_ffn__decode.s.ref').read().split('; Override launch')[0]
def f2u(x): return struct.unpack('<I',struct.pack('<f',x))[0]
LOG2E=f2u(1.4426950408889634); SCALE=f2u(128**-0.5)
R=17; SLOT=8192; RING=R*SLOT
MISC=RING
L_FULL=MISC; L_QRDY=MISC+8; L_MODE=MISC+12; L_REL=MISC+16; L_PF=MISC+64; L_PF2=MISC+96; L_MT=MISC+128; L_SL=MISC+192; L_X=MISC+1024; L_XN=MISC+2048; L_Q=MISC+4096; L_S=MISC+5120
W_B4=0x40000; W_CNT=0x1000; W_QG=0x10000; W_QX=0x18000; W_F1=0x20000; W_P2=0x280000; W_S3=0x400000; W_CAL=0x500000; W_VT=0x50000; W_ML=0x58000; W_B3=0x180000; W_ST=0x200000; WS_SZ=0x600000
TB=10; S3NEW=1
PC=2112; NWAVE=6; INF=0x7fffffff; CST=0x180; CST2=0x1100
def gen(mapping='hx', N=20, S=64, diag=0, pol='nt', wpol='nt', local=1, f1wait=12, N0=None, fb=3, dN=4, m0=20, mk=4, mlast=116, th=1.5, tau=0.,
        xev=3, xc=5., keep=(13,), qfall=24, jb1=44, jb2=76, jpre=108, s3pipe=0, s3pre=2, jopen=0, Nend=24, jwo=1, jml=131, s3ld='sc1', s3st='sc1', hxor=0, ptau=0., p2pre=1, fp=(0,0,0,0,0,0), force=None, jv=36, wsw=0, wpolw='sc1', nvote=1, pv='D', cut=1, npair=2, nend=8, nsp=4, jw=92, rot=None, LX=(16,32,0,8,4,0,0,0)):
    a=Asm()
    N0=N0 or N
    vpol=pol
    W=N0-4
    modes=[N,N-dN,N+dN] if fb else [N]
    assert W%4==0 and S>=8 and mapping=='hx'
    GT=2*S+4
    sB,sW=2,3
    pX,pK,pV,pWQ,pWO,pWG,pWU,pWD,pOUT,pWS=4,6,8,10,12,16,18,20,22,26
    sH,sC,sXi,sF,sT,sTO=48,49,50,51,52,53
    sFull,sG,sSlot,sSlotV,sMin,sKo,sVo,sTmp,sTmp2,sCnt,sGmR=54,55,56,57,58,59,60,61,62,63,64
    sScale,sL2e,sT1,sGend,sCw,sXj=65,66,67,68,69,74
    sSt=70
    sSt0=72
    sXf=76
    sLoc,sKb,sJ,sCg,sXcc,sTmp3=78,79,80,81,82,83
    vSt=159
    uid=[0]
    def lab(p): uid[0]+=1; return f'L_{p}_{uid[0]}'
    def srd(d,p,size):
        a(f's_mov_b32 s{d}, s{p}\ns_mov_b32 s{d+1}, s{p+1}\ns_mov_b32 s{d+2}, {size:#x}\ns_mov_b32 s{d+3}, 0x20000')
    role=['L']
    def stamp(k):
        if diag==3 and not (role[0]=='L' or k in keep): return
        if diag: a(f's_memrealtime s[{sSt}:{sSt+1}]\ns_waitcnt lgkmcnt(0)\nv_writelane_b32 v{vSt}, s{sSt}, {k}')
    def stamp_out(srd_ws):
        if diag:
            a(f'v_writelane_b32 v{vSt}, s{sSt0}, 0')
            a(f's_mul_i32 s{sTmp}, s{sB}, {NWAVE}\ns_add_u32 s{sTmp}, s{sTmp}, s{sW}\ns_lshl_b32 s{sTmp}, s{sTmp}, 8\ns_add_u32 s{sTmp}, s{sTmp}, {W_ST:#x}')
            a(f's_mov_b64 exec, -1\nv_lshlrev_b32 v1, 2, v0\nbuffer_store_dword v{vSt}, v1, s[{srd_ws}:{srd_ws+3}], s{sTmp} offen sc1')
    def setexec(m):
        lo,hi=m&0xffffffff,m>>32
        if hi==0 and lo<0x80000000: a(f's_mov_b64 exec, {lo:#x}')
        else: a(f's_mov_b32 exec_lo, {lo:#x}\ns_mov_b32 exec_hi, {hi:#x}')
    def timeout():
        a(f's_sub_u32 s{sTO}, s{sTO}, 1\ns_cbranch_scc1 L_end')
    def poll_full(vtmp,vaddr):
        a(f'ds_read_b64 v[{vtmp}:{vtmp+1}], v{vaddr}')
        timeout()
        a(f's_waitcnt lgkmcnt(0)\nv_readfirstlane_b32 s{sFull}, v{vtmp}\nv_readfirstlane_b32 s{sGend}, v{vtmp+1}')
    def wait_full(x, vtmp, vaddr):
        assert vtmp%2==0
        ok=lab('fok'); p=lab('fp')
        a(f's_cmp_gt_i32 s{sFull}, {x}\ns_cbranch_scc1 {ok}\n{p}:')
        poll_full(vtmp,vaddr)
        a(f's_cmp_gt_i32 s{sFull}, {x}\ns_cbranch_scc0 {p}\n{ok}:')
    def bfr(dst,src):
        a(f'v_cvt_pk_bf16_f32 v{dst}, v{src}, v{src}\nv_and_b32 v{dst}, 0xffff0000, v{dst}')
    def allred(op, vs, ts, lo=(8,4,2,1), hi=(16,32)):
        for r in lo:
            for v in vs: a(f'{op}_dpp v{v}, v{v}, v{v} row_ror:{r} row_mask:0xf bank_mask:0xf')
        for sw in hi:
            for v,t in zip(vs,ts): a(f'v_mov_b32 v{t}, v{v}')
            for v,t in zip(vs,ts): a(f'v_permlane{sw}_swap_b32 v{v}, v{t}')
            for v,t in zip(vs,ts): a(f'{op} v{v}, v{v}, v{t}')
    vMask=157
    def tag4(v):
        for k in range(4): a(f'v_bfi_b32 v{v+k}, v{vMask}, s{sT if k%2==0 else sT1}, v{v+k}')
    def chk(acc,regs_mt,regs_full,acc2):
        first=True
        for v in regs_mt:
            for k in range(4):
                s=sT if k%2==0 else sT1
                a(f'v_xor_b32 v{acc}, s{s}, v{v+k}' if first else f'v_bitop3_b32 v{acc}, v{v+k}, s{s}, v{acc} bitop3:0xbe'); first=False
        if regs_full:
            first=True
            for v in regs_full:
                a(f'v_xor_b32 v{acc2}, s{sT}, v{v}' if first else f'v_bitop3_b32 v{acc2}, v{v}, s{sT}, v{acc2} bitop3:0xbe'); first=False
            a(f'v_and_or_b32 v{acc}, v{acc}, v{vMask}, v{acc2}')
        else: a(f'v_and_b32 v{acc}, v{vMask}, v{acc}')
        a(f'v_cmp_ne_u32 vcc, 0, v{acc}')

    a(f'{NAME}:')
    if diag: a(f's_memrealtime s[{sSt0}:{sSt0+1}]')
    a(f's_cmp_ge_u32 s{sB}, 256\ns_cbranch_scc1 L_end')
    a('s_load_dwordx16 s[4:19], s[0:1], 0\ns_load_dwordx8 s[20:27], s[0:1], 64')
    if diag: a(f'v_mov_b32 v{vSt}, 0')
    a(f'v_lshrrev_b32 v1, 6, v0\nv_and_b32 v0, 63, v0\nv_readfirstlane_b32 s{sW}, v1')
    a(f's_and_b32 s{sXj}, s{sB}, 7\ns_lshr_b32 s{sXi}, s{sB}, 3')
    a(f's_mul_i32 s{sF}, s{sXj}, 28\ns_add_u32 s{sF}, s{sF}, s{sXi}')
    a(f's_cmp_lt_u32 s{sXi}, 28\ns_cselect_b32 s{sF}, s{sF}, 0x100000')
    if mapping=='hx': a(f's_xor_b32 s{sH}, s{sXj}, {hxor}\ns_mov_b32 s{sC}, s{sXi}')
    else: a(f's_lshr_b32 s{sH}, s{sB}, 5\ns_and_b32 s{sC}, s{sB}, 31')
    a(f's_mov_b32 s{sTO}, 200000\ns_mov_b32 s{sFull}, -1\ns_mov_b32 s{sGend}, {INF:#x}')
    a(f'v_lshrrev_b32 v2, 4, v0\nv_and_b32 v3, 15, v0')
    a(f's_cmp_lg_u32 s{sW}, 0\ns_cbranch_scc1 L_cons')
    vK0,vV0,vWQ,vFF,vFA,vRA,vF,vX,vTQ=4,8,10,11,12,13,14,20,21
    a('s_setprio 3')
    a(f'v_lshlrev_b32 v{vX}, 4, v0')
    a(f'v_lshrrev_b32 v{vWQ}, 2, v0\nv_lshlrev_b32 v{vWQ}, 13, v{vWQ}\nv_lshlrev_b32 v1, 1, v2\nv_xor_b32 v1, v1, v0\nv_and_b32 v1, 3, v1\nv_lshl_add_u32 v{vWQ}, v1, 4, v{vWQ}')
    a(f's_and_b32 s{sTmp}, s{sC}, 7\ns_lshl_b32 s{sTmp}, s{sTmp}, 7\ns_bfe_u32 s{sTmp2}, s{sC}, 0x10003\ns_lshl_b32 s{sTmp2}, s{sTmp2}, 6\ns_add_u32 s{sTmp}, s{sTmp}, s{sTmp2}')
    a(f's_lshl_b32 s{sTmp2}, s{sH}, 10\ns_add_u32 s{sTmp}, s{sTmp}, s{sTmp2}\ns_lshr_b32 s{sTmp2}, s{sC}, 4\ns_lshl_b32 s{sTmp2}, s{sTmp2}, 21\ns_add_u32 s{sVo}, s{sTmp}, s{sTmp2}')
    a(f'v_xor_b32 v{vK0}, v2, v3\nv_lshlrev_b32 v{vK0}, 4, v{vK0}\nv_lshl_add_u32 v{vK0}, v2, 8, v{vK0}')
    for k in (1,2,3): a(f'v_xor_b32 v{vK0+k}, {64*k}, v{vK0}')
    a(f'v_lshlrev_b32 v{vV0}, 1, v2\nv_xor_b32 v{vV0}, v{vV0}, v3\nv_lshlrev_b32 v{vV0}, 4, v{vV0}\nv_lshl_add_u32 v{vV0}, v2, 8, v{vV0}\nv_xor_b32 v{vV0+1}, 128, v{vV0}')
    a(f'v_lshrrev_b32 v{vFF}, 3, v0\nv_mul_u32_u24 v{vFF}, 3584, v{vFF}\nv_lshlrev_b32 v1, 1, v2\nv_xor_b32 v1, v1, v0\nv_and_b32 v1, 7, v1\nv_lshl_add_u32 v{vFF}, v1, 4, v{vFF}')
    a(f's_and_b32 s{sTmp}, s{sF}, 7\ns_mul_i32 s{sTmp}, s{sTmp}, {64*3584}\ns_lshr_b32 s{sCnt}, s{sF}, 3\ns_lshl_b32 s{sCnt}, s{sCnt}, 7\ns_add_u32 s{sCnt}, s{sCnt}, s{sTmp}')
    a(f'v_mov_b32 v{vFA}, {L_FULL}\nv_mov_b32 v{vRA}, {L_REL}\nv_mov_b32 v{vF}, -1\nv_mov_b32 v{vF+1}, {INF:#x}\nds_write_b64 v{vFA}, v[{vF}:{vF+1}]')
    a(f's_lshl_b32 s{sKb}, s{sH}, 24\ns_lshl_b32 s{sTmp}, s{sC}, 19\ns_add_u32 s{sKb}, s{sKb}, s{sTmp}\ns_mov_b32 s{sKo}, 0')
    if rot:
        a(f's_mul_i32 s{sTmp}, s{sC}, {rot[0]}\ns_mul_i32 s{sTmp2}, s{sH}, {rot[1]}\ns_add_u32 s{sTmp}, s{sTmp}, s{sTmp2}\ns_and_b32 s{sTmp}, s{sTmp}, {rot[2] if len(rot)>2 else 31}\ns_lshl_b32 s{sKo}, s{sTmp}, {rot[3] if len(rot)>3 else 14}')
    for j,m in enumerate(LX or []):
        if m: a(f's_bitcmp1_b32 s{sKb}, {19+j}\ns_cselect_b32 s{sTmp}, {m<<13:#x}, 0\ns_xor_b32 s{sKb}, s{sKb}, s{sTmp}')
    def wrap(so):
        if rot: a(f's_and_b32 s{so}, s{so}, 0x7ffff')
    a(f's_mov_b32 m0, {L_X:#x}')
    a('s_waitcnt lgkmcnt(0)')
    dK,dV,dWQ,dWG,dWU,dXl,dWSl=28,32,36,40,44,84,88
    srd(dXl,pX,1024)
    a(f'buffer_load_dwordx4 v{vX}, s[{dXl}:{dXl+3}], 0 offen lds')
    srd(dWQ,pWQ,512*4096*2)
    stamp(10)
    issued=[1]; pub=[-1]
    def pubv(v): a(f'v_mov_b32 v{vF}, {v}\nds_write_b32 v{vFA}, v{vF}')
    def pace():
        if issued[0]>W:
            a(f's_waitcnt vmcnt({W})')
            g=(issued[0]-W-1)//8
            if g>pub[0]:
                pub[0]=g; pubv(g); stamp(11+g)
    def sub(kind, g, sb):
        base=(g%R)*SLOT+4096*sb
        a(f's_mov_b32 m0, {base:#x}')
        for k in range(4):
            n=4*sb+k
            if kind=='K':
                if k==0: a(f's_add_u32 s{sTmp}, s{sKo}, {4096*sb+8192*(g-4)}\ns_xor_b32 s{sTmp}, s{sTmp}, s{sKb}')
                a(f'buffer_load_dwordx4 v{vK0+k}, s[{dK}:{dK+3}], s{sTmp} offen offset:{1024*k} {pol} lds')
            elif kind in('WQ0','WQ1'):
                n+=8*(kind=='WQ1')
                a(f's_add_u32 s{sTmp}, s{sVo}, {16*8192*n-1024*k}')
                a(f'buffer_load_dwordx4 v{vWQ}, s[{dWQ}:{dWQ+3}], s{sTmp} offen offset:{1024*k} {wpol} lds')
            elif kind in('G','U'):
                d=dWG if kind=='G' else dWU
                a(f's_add_u32 s{sTmp}, s{sCnt}, {8*3584*n-1024*k}')
                a(f'buffer_load_dwordx4 v{vFF}, s[{d}:{d+3}], s{sTmp} offen offset:{1024*k} {wpol} lds')
        issued[0]+=4
    barrier_done=False
    for g,kind in enumerate(['WQ0','WQ1','G','U','K','K']):
        if kind=='G': srd(dWG,pWG,512*1792*2); srd(dWU,pWU,512*1792*2); srd(dK,pK,1<<27); srd(dV,pV,1<<27)
        for sb in range(2):
            if issued[0]>W and not barrier_done:
                a('s_barrier'); barrier_done=True
            pace(); sub(kind,g,sb)
    assert barrier_done
    if diag: srd(dWSl,pWS,WS_SZ)
    assert pub[0]>=2
    a(f's_mov_b32 s{sVo}, s{sKo}\ns_add_u32 s{sKo}, s{sKo}, 16384'); wrap(sKo)
    a(f's_mov_b32 s{sG}, 6\ns_mov_b32 s{sSlot}, {6*SLOT}\ns_mov_b32 s{sMin}, 0\ns_mov_b32 s{sJ}, 1\ns_mov_b32 s{sFull}, {pub[0]}\ns_mov_b32 s{sCg}, 0')
    def relcheck():
        ok=lab('rok'); p=lab('rp')
        a(f's_sub_i32 s{sGmR}, s{sG}, {R}\ns_cmp_gt_i32 s{sMin}, s{sGmR}\ns_cbranch_scc1 {ok}')
        a(f'{p}:\nds_read_b128 v[16:19], v{vRA}\nds_read_b32 v15, v{vRA} offset:16'); timeout()
        a(f's_waitcnt lgkmcnt(0)\nv_min3_i32 v16, v16, v17, v18\nv_min3_i32 v16, v16, v19, v15\nv_readfirstlane_b32 s{sMin}, v16\ns_cmp_gt_i32 s{sMin}, s{sGmR}\ns_cbranch_scc0 {p}\n{ok}:')
    def adv():
        a(f's_add_u32 s{sG}, s{sG}, 1\ns_add_u32 s{sSlot}, s{sSlot}, {SLOT}\ns_cmp_eq_u32 s{sSlot}, {RING}\ns_cselect_b32 s{sSlot}, 0, s{sSlot}')
    def batch(kind,sb):
        so=sKo if kind=='K' else sVo
        if sb==0: a(f's_mov_b32 m0, s{sSlot}')
        else: a(f's_add_u32 m0, s{sSlot}, 4096')
        a(f's_xor_b32 s{sTmp}, s{so}, s{sKb}' if sb==0 else f's_xor_b32 s{sTmp}, s{so}, s{sKb}\ns_add_u32 s{sTmp}, s{sTmp}, 4096')
        for k in range(4):
            if kind=='K': a(f'buffer_load_dwordx4 v{vK0+k}, s[{dK}:{dK+3}], s{sTmp} offen offset:{1024*k} {pol} lds')
            else: a(f'buffer_load_dwordx4 v{vV0+(k&1)}, s[{dV}:{dV+3}], s{sTmp} offen offset:{1024*k} {vpol} lds')
    def pubrel(d):
        a((f's_sub_u32 s{sTmp}, s{sG}, {-d}' if d<0 else f's_add_u32 s{sTmp}, s{sG}, {d}')+f'\ns_max_i32 s{sFull}, s{sFull}, s{sTmp}\nv_mov_b32 v{vF}, s{sFull}\nds_write_b32 v{vFA}, v{vF}')
    def dyn_group(kind,W,mid=None):
        relcheck()
        for sb in range(2):
            a(f's_waitcnt vmcnt({W})')
            if (4*sb-W)%8==0: pubrel(-(W-4*sb)//8)
            batch(kind,sb)
        if mid: mid()
        so=sKo if kind=='K' else sVo
        a(f's_add_u32 s{so}, s{so}, 8192'); wrap(so)
        adv()
    def lstamp():
        if diag:
            l=lab('nost')
            a(f's_and_b32 s{sTmp}, s{sJ}, 7\ns_cmp_eq_u32 s{sTmp}, 0\ns_cbranch_scc0 {l}\ns_lshr_b32 s{sTmp}, s{sJ}, 3\ns_add_u32 s{sTmp}, s{sTmp}, 2\ns_min_u32 s{sTmp}, s{sTmp}, 9\ns_mov_b32 m0, s{sTmp}')
            a(f's_memrealtime s[{sSt}:{sSt+1}]\ns_waitcnt lgkmcnt(0)\nv_writelane_b32 v{vSt}, s{sSt}, m0\n{l}:')
    def moderead(): a(f'ds_read_b32 v{vTQ}, v{vFA} offset:12')
    if fb: moderead()
    for kind,jend in (('K',S//2),('V',S-nend//2)):
        a(f'L_ltop{kind}:')
        if fb:
            a(f's_waitcnt lgkmcnt(0)\nv_readfirstlane_b32 s{sTmp}, v{vTQ}')
            for mi in range(1,len(modes)): a(f's_cmp_eq_u32 s{sTmp}, {mi}\ns_cbranch_scc1 L_lloop{kind}{mi}')
        for mi,Np in enumerate(modes):
            W=Np-4; assert W%4==0 and W<=59
            a(f'L_lloop{kind}{mi}:')
            if diag: a(f's_add_u32 s{sCg}, s{sCg}, {1<<(8*mi)}')
            dyn_group(kind,W); dyn_group(kind,W,moderead if fb else None)
            lstamp()
            a(f's_add_u32 s{sJ}, s{sJ}, 1\ns_cmp_lt_u32 s{sJ}, {jend}\ns_cbranch_scc1 L_ltop{kind}')
            if mi<len(modes)-1: a(f's_branch L_lend{kind}')
        a(f'L_lend{kind}:')
    W=Nend-4
    for i in range(nend): dyn_group('V',W)
    a(f'v_mov_b32 v{vF+1}, 0\nds_write_b32 v{vFA}, v{vF+1} offset:4')
    stamp(1)
    for left in range(8*((W-1)//8),-1,-8):
        a(f'v_mov_b32 v{vF}, {GT-left//8}\ns_waitcnt vmcnt({left})\nds_write_b32 v{vFA}, v{vF}')
    stamp(2)
    if diag: a(f'v_writelane_b32 v{vSt}, s{sJ}, 16\nv_writelane_b32 v{vSt}, s{sCg}, 17')
    stamp_out(dWSl)
    a('s_endpgm')
    a('L_cons:'); role[0]='C'
    vFA,vRA,vKp,vVp,vM,vMb,vL,vTm=4,5,6,7,8,9,10,11
    vQ=12; vO=28; vK=60; vV=92; vS=124; vA=132; vP=140; vT=144; vAd=148; vL16=156; vX1=160
    dWS,dWD,dWO,dOUT=28,36,40,44
    a(f's_sub_u32 s{sCw}, s{sW}, 1')
    a(f'v_mov_b32 v{vFA}, {L_FULL}\ns_lshl_b32 s{sTmp}, s{sCw}, 2\ns_add_u32 s{sTmp}, s{sTmp}, {L_REL}\nv_mov_b32 v{vRA}, s{sTmp}')
    a(f's_add_u32 s{sG}, s{sCw}, 4')
    a(f's_cmp_eq_u32 s{sCw}, 0\ns_cselect_b32 s{sTmp}, 0, s{sG}\ns_cmp_eq_u32 s{sCw}, 4\ns_cselect_b32 s{sTmp}, 2, s{sTmp}\nv_mov_b32 v1, s{sTmp}\nds_write_b32 v{vRA}, v1')
    a(f'v_mov_b32 v1, 0\nds_write_b32 v{vFA}, v1 offset:8\nds_write_b32 v{vFA}, v1 offset:12\nds_write_b32 v{vRA}, v1 offset:{L_PF-L_REL}\nds_write_b32 v{vRA}, v1 offset:{L_PF2-L_REL}')
    a(f's_mov_b32 s{sScale}, {SCALE:#x}\ns_mov_b32 s{sL2e}, {LOG2E:#x}\nv_mov_b32 v{vMask}, {(1<<TB)-1:#x}')
    a(f'v_xor_b32 v{vKp}, v2, v3\nv_lshlrev_b32 v{vKp}, 4, v{vKp}\nv_lshl_add_u32 v{vKp}, v3, 8, v{vKp}')
    a(f'v_lshrrev_b32 v1, 2, v3\nv_lshl_add_u32 v1, v2, 2, v1\nv_and_b32 v{vVp}, 7, v1\nv_lshlrev_b32 v{vVp}, 5, v{vVp}\nv_lshl_add_u32 v{vVp}, v1, 8, v{vVp}\nv_and_b32 v{vTm}, 3, v0\nv_lshl_add_u32 v{vVp}, v{vTm}, 3, v{vVp}')
    a(f'v_lshlrev_b32 v{vL16}, 4, v0')
    a(f's_lshl_b32 s{sCg}, s{sXj}, 4\ns_add_u32 s{sCg}, s{sCg}, s{sXi}')
    a('s_waitcnt lgkmcnt(0)')
    a(f's_load_dword s{sT}, s[{pWS}:{pWS+1}], 0')
    a(f's_and_b32 s{sTmp}, s{sCg}, 127\ns_lshl_b32 s{sTmp}, s{sTmp}, 3\ns_load_dwordx2 s[{sXf}:{sXf+1}], s[{pX}:{pX+1}], s{sTmp}')
    srd(dWS,pWS,WS_SZ); srd(dWD,pWD,1792*512*2); srd(dWO,pWO,4096*512*2); srd(dOUT,pOUT,1024)
    a('s_barrier')
    w0,w1,w2,w3=vQ+8,vQ+9,vQ+10,vQ+11
    def wait_q(l,v):
        a(f'{l}:\nds_read_b32 v{v}, v{vFA} offset:8'); timeout()
        a(f's_waitcnt lgkmcnt(0)\nv_readfirstlane_b32 s{sLoc}, v{v}\ns_cmp_eq_u32 s{sLoc}, 0\ns_cbranch_scc1 {l}')
    def st2(loc,*st):
        l1,l2=lab('sl'),lab('sd')
        a(f's_cbranch_scc1 {l1}')
        for x in st: a(x+' sc1')
        a(f's_branch {l2}\n{l1}:')
        for x in st: a(x)
        a(f'{l2}:')
    a(f's_and_b32 s{sTmp}, s{sCw}, 3\ns_cmp_eq_u32 s{sTmp}, 0\ns_cbranch_scc1 L_ln')
    sPr=84; po_=[((i&1)<<12)+((i>>1&1)<<14)+((i>>2)<<7) for i in range(6)]
    a(f's_cmp_ge_u32 s{sCw}, {4-nvote}\ns_cbranch_scc0 L_waitq')
    a(f's_lshl_b32 s{sTmp}, s{sXi}, 15\ns_lshl_b32 s{sTmp2}, s{sXj}, 9\ns_add_u32 s{sTmp}, s{sTmp}, s{sTmp2}\ns_and_b32 s{sTmp2}, s{sCw}, 1\ns_lshl_b32 s{sTmp2}, s{sTmp2}, 8\ns_add_u32 s{sTmp}, s{sTmp}, s{sTmp2}\ns_add_u32 s{sKo}, s{sTmp}, {W_CAL:#x}\ns_add_u32 s{sKo+1}, s{sKo}, 0x2000')
    if wsw:
        a(f'v_and_b32 v{w0}, 7, v0\nv_lshlrev_b32 v{w0}, 12, v{w0}\nv_lshrrev_b32 v{w1}, 3, v0\nv_lshl_add_u32 v{w0}, v{w1}, 7, v{w0}\nv_mov_b32 v{w1}, 1\ns_mov_b64 exec, 0xffff')
        a(f'buffer_store_dword v{w1}, v{w0}, s[{dWS}:{dWS+3}], s{sKo} offen {wpolw}\ns_mov_b64 exec, -1\ns_mov_b32 s{sTmp3}, -1\ns_waitcnt vmcnt(0) lgkmcnt(0)')
    elif pv!='D': a(f's_waitcnt lgkmcnt(0)\ns_add_u32 s{sTmp3}, s{sT}, 1')
    a(f's_getreg_b32 s{sXcc}, hwreg(HW_REG_XCC_ID, 2, 1)\ns_mov_b32 s{sTmp}, 0\ns_mov_b32 s{sCnt}, s{sXcc}')
    if pv!='A':
        a(f's_and_b32 s{sTmp2}, s{sXi}, 1\ns_xor_b32 s{sCnt}, s{sCnt}, s{sTmp2}\ns_lshl_b32 s{sTmp2}, s{sTmp2}, 13\ns_add_u32 s{sKo}, s{sKo}, s{sTmp2}\ns_xor_b32 s{sKo+1}, s{sKo}, 0x2000')
    if pv!='D':
        for i in range(2*npair): a(f's_mov_b32 s{sPr+i}, s{sTmp3}')
    od=lambda i: (0,1) if i%2==0 or pv!='A' else (1,0)
    if pv=='D':
        a(f's_load_dword s{sTmp2}, s[{pWS}:{pWS+1}], s{sKo} offset:0x40\ns_waitcnt lgkmcnt(0)')
        for i in range(npair):
            for k in (0,1):
                l=lab('sp')
                a(f's_load_dword s{sPr}, s[{pWS}:{pWS+1}], s{sKo+k} offset:{po_[i]:#x}\n{l}:\ns_{"add" if k else "sub"}_u32 s{sTmp}, s{sTmp}, 1')
                timeout()
                a(f's_getreg_b32 s{sTmp2}, hwreg(HW_REG_IB_STS, 8, 4)\ns_cmp_lg_u32 s{sTmp2}, 0\ns_cbranch_scc1 {l}')
        a(f's_ashr_i32 s{sTmp}, s{sTmp}, {cut}\ns_min_i32 s{sTmp}, s{sTmp}, 7\ns_max_i32 s{sTmp}, s{sTmp}, -7')
    elif pv=='C':
        a(f's_load_dword s{sTmp2}, s[{pWS}:{pWS+1}], s{sKo} offset:0x40\ns_waitcnt lgkmcnt(0)')
        for i in range(npair):
            for k in (0,1):
                l=lab('sp')
                a(f's_load_dword s{sPr+2*i+k}, s[{pWS}:{pWS+1}], s{sKo+k} offset:{po_[i]:#x}\ns_mov_b32 s{sTmp2}, 200\n{l}:')
                a(f's_{"add" if k else "sub"}_u32 s{sTmp}, s{sTmp}, 1\ns_sub_u32 s{sTmp2}, s{sTmp2}, 1\ns_cbranch_scc1 {l}x\ns_cmp_eq_u32 s{sPr+2*i+k}, s{sTmp3}\ns_cbranch_scc1 {l}\n{l}x:')
        a(f's_ashr_i32 s{sTmp}, s{sTmp}, {cut}\ns_min_i32 s{sTmp}, s{sTmp}, 7\ns_max_i32 s{sTmp}, s{sTmp}, -7')
    else:
        for i in range(npair):
            for k in od(i): a(f's_load_dword s{sPr+2*i+k}, s[{pWS}:{pWS+1}], s{sKo+k} offset:{po_[i]:#x}')
        a(f's_waitcnt lgkmcnt({2*npair-cut})')
        sSn=36 if pv=='B' else sPr
        if pv=='B':
            for i in range(npair): a(f's_mov_b64 s[{sSn+2*i}:{sSn+2*i+1}], s[{sPr+2*i}:{sPr+2*i+1}]')
        for i in range(npair):
            for k in od(i): a(f's_cmp_lg_u32 s{sSn+2*i+k}, s{sTmp3}\n'+(f's_subb_u32' if k else 's_addc_u32')+f' s{sTmp}, s{sTmp}, 0')
    a(f's_sub_u32 s{sTmp2}, 0, s{sTmp}\ns_cmp_eq_u32 s{sCnt}, 0\ns_cselect_b32 s{sTmp}, s{sTmp}, s{sTmp2}\ns_add_u32 s{sTmp}, s{sTmp}, 8')
    if diag: a(f'v_writelane_b32 v{vSt}, s{sTmp}, 16')
    a(f's_lshl_b32 s{sXcc}, s{sXcc}, 7\ns_add_u32 s{sTmp}, s{sTmp}, s{sXcc}\ns_add_u32 s{sTmp2}, s{sT}, 1\ns_lshl_b32 s{sTmp2}, s{sTmp2}, 8\ns_add_u32 s{sTmp}, s{sTmp}, s{sTmp2}\nv_mov_b32 v{w0}, s{sTmp}')
    a(f's_lshl_b32 s{sTmp}, s{sXj}, 5\ns_add_u32 s{sTmp}, s{sTmp}, s{sXi}\ns_lshl_b32 s{sTmp}, s{sTmp}, 2\ns_sub_u32 s{sTmp2}, 3, s{sCw}\ns_lshl_b32 s{sTmp2}, s{sTmp2}, 10\ns_add_u32 s{sTmp}, s{sTmp}, s{sTmp2}')
    a(f's_add_u32 s{sTmp}, s{sTmp}, {W_VT:#x}\ns_mov_b64 exec, 1\nbuffer_store_dword v{w0}, off, s[{dWS}:{dWS+3}], s{sTmp} sc1\ns_mov_b64 exec, -1')
    wait_q('L_waitq',w0)
    a(f's_add_u32 s{sT}, s{sT}, 1\ns_lshr_b32 s{sT1}, s{sT}, {TB}\ns_branch L_qready')
    a('L_ln:')
    vx=vK; vxf=vK+4; vWD=vO; vXf=vV
    wait_full(-1,vT,vFA)
    a(f'v_add_u32 v{vT}, {L_X}, v{vL16}\nds_read_b128 v[{vx}:{vx+3}], v{vT}')
    a(f's_add_u32 s{sT}, s{sT}, 1\ns_lshr_b32 s{sT1}, s{sT}, {TB}')
    stamp(1)
    a('s_waitcnt lgkmcnt(0)')
    for j in range(4): a(f'v_lshlrev_b32 v{vxf+2*j}, 16, v{vx+j}\nv_and_b32 v{vxf+2*j+1}, 0xffff0000, v{vx+j}')
    t0=vxf+8; t1=t0+1; t2=t0+2; vd=t0+4
    a(f'v_add_f32 v{t0}, v{vxf}, v{vxf+1}\nv_add_f32 v{t1}, v{vxf+2}, v{vxf+3}\nv_add_f32 v{t2}, v{vxf+4}, v{vxf+5}\nv_add_f32 v{t0}, v{t0}, v{t1}\nv_add_f32 v{t1}, v{vxf+6}, v{vxf+7}\nv_add_f32 v{t0}, v{t0}, v{t2}\nv_add_f32 v{t0}, v{t0}, v{t1}')
    allred('v_add_f32',[t0],[t1])
    a(f'v_mul_f32 v{t0}, {f2u(1/512.):#x}, v{t0}')
    for j in range(8): a(f'v_sub_f32 v{vd+j}, v{vxf+j}, v{t0}')
    a(f'v_mul_f32 v{t2}, v{vd}, v{vd}')
    for j in range(1,8): a(f'v_fmac_f32 v{t2}, v{vd+j}, v{vd+j}')
    allred('v_add_f32',[t2],[t1])
    a(f'v_mul_f32 v{t2}, {f2u(1/512.):#x}, v{t2}')
    bfr(t0,t0); bfr(t2,t2)
    a(f'v_add_f32 v{t2}, {f2u(1e-5):#x}, v{t2}'); bfr(t2,t2)
    a(f'v_sqrt_f32 v{t2}, v{t2}'); bfr(t2,t2)
    a(f'v_rcp_f32 v{t2}, v{t2}')
    for j in range(8): a(f'v_sub_f32 v{vd+j}, v{vxf+j}, v{t0}')
    for j in range(4): a(f'v_cvt_pk_bf16_f32 v{vx+j}, v{vd+2*j}, v{vd+2*j+1}')
    for j in range(4): a(f'v_lshlrev_b32 v{vd+2*j}, 16, v{vx+j}\nv_and_b32 v{vd+2*j+1}, 0xffff0000, v{vx+j}')
    for j in range(8): a(f'v_mul_f32 v{vd+j}, v{vd+j}, v{t2}')
    for j in range(4): a(f'v_cvt_pk_bf16_f32 v{vx+j}, v{vd+2*j}, v{vd+2*j+1}')
    a(f's_lshl_b32 s{sTmp}, s{sCw}, 8\ns_add_u32 s{sTmp}, s{sTmp}, {L_XN}\nv_add_u32 v{t0}, s{sTmp}, v{vL16}\nds_write_b128 v{t0}, v[{vx}:{vx+3}]')
    a(f's_cmp_eq_u32 s{sCw}, 0\ns_cbranch_scc0 L_help')
    a(f's_lshr_b32 s{sTmp2}, s{sC}, 4\ns_lshl_b32 s{sTmp2}, s{sTmp2}, 9\ns_add_u32 s{sTmp}, s{sTmp}, s{sTmp2}\nv_lshl_add_u32 v{t0}, v2, 3, s{sTmp}')
    for j in range(8): a(f'ds_read2_b64 v[{vXf+4*j}:{vXf+4*j+3}], v{t0} offset0:{8*j} offset1:{8*j+4}')
    vD=vQ; vpt=vT; vB=vK
    a(f'v_lshlrev_b32 v{vpt}, 6, v1\nv_lshl_add_u32 v{vpt}, v{vTm}, 3, v{vpt}\nv_and_b32 v{vpt+1}, 1, v2\nv_lshl_add_u32 v{vpt}, v{vpt+1}, 5, v{vpt}\nv_xor_b32 v{vpt+1}, 32, v{vpt}')
    a(f's_getreg_b32 s{sXcc}, hwreg(HW_REG_XCC_ID, 0, 4)\ns_waitcnt lgkmcnt(2)')
    stamp(2)
    def qgemv(s0,s1):
        seq=[(s,j) for s in range(s0,s1) for j in range(2)]
        def rd(i):
            s,j=seq[i]; b=vB+4*(i%8)
            a(f'ds_read_b64_tr_b16 v[{b}:{b+1}], v{vpt+j} offset:{2048*s}\nds_read_b64_tr_b16 v[{b+2}:{b+3}], v{vpt+j} offset:{2048*s+1024}')
        for i in range(5): rd(i)
        for i in range(len(seq)):
            if i+5<len(seq): rd(i+5)
            a(f's_waitcnt lgkmcnt({2*(min(i+5,len(seq)-1)-i)})')
            s,j=seq[i]; b=vB+4*(i%8)
            a(f'v_mfma_f32_16x16x32_bf16 v[{vD+4*j}:{vD+4*j+3}], v[{b}:{b+3}], v[{vXf+4*s}:{vXf+4*s+3}], '+('0' if s==0 else f'v[{vD+4*j}:{vD+4*j+3}]'))
    wait_full(0,vT+2,vFA); qgemv(0,4)
    wait_full(1,vT+2,vFA); stamp(3); qgemv(4,8)
    a(f'v_mov_b32 v{w0}, 4\nds_write_b32 v{vRA}, v{w0}')
    a(f's_and_b32 s{sTmp}, s{sC}, 7\ns_lshl_b32 s{sTmp}, s{sTmp}, 8\ns_bfe_u32 s{sTmp2}, s{sC}, 0x10003\ns_lshl_b32 s{sTmp2}, s{sTmp2}, 7\ns_add_u32 s{sTmp}, s{sTmp}, s{sTmp2}')
    a(f's_lshr_b32 s{sTmp2}, s{sC}, 4\ns_lshl_b32 s{sTmp2}, s{sTmp2}, 11\ns_add_u32 s{sTmp}, s{sTmp}, s{sTmp2}\ns_lshl_b32 s{sKo}, s{sH}, 12\ns_add_u32 s{sKo}, s{sKo}, {W_QG:#x}\ns_add_u32 s{sTmp}, s{sTmp}, s{sKo}')
    a(f'v_lshlrev_b32 v{vpt}, 4, v2\nv_lshl_add_u32 v{vpt}, v3, 6, v{vpt}\nv_add_u32 v{vpt}, s{sTmp}, v{vpt}')
    a(f's_lshl_b32 s{sVo}, s{sH}, 9\ns_add_u32 s{sVo}, s{sVo}, {W_QX:#x}\ns_lshl_b32 s{sTmp}, s{sC}, 4\ns_add_u32 s{sTmp}, s{sTmp}, s{sVo}')
    setexec(0x0002000200020002)
    for k in range(4): a(f'v_mov_b32 v{vD+k}, v{vD+4+k}')
    a('s_mov_b64 exec, -1'); tag4(vD)
    a(f's_mov_b64 exec, 4\nv_mov_b32 v{vD}, s{sXcc}\nv_mov_b32 v{vD+1}, s{sT}\nv_mov_b32 v{vD+2}, s{sXcc}\nv_mov_b32 v{vD+3}, s{sT}\nv_mov_b32 v{vpt}, s{sTmp}')
    def qpub(p):
        setexec(0x0003000300030007)
        a(f'buffer_store_dwordx4 v[{vD}:{vD+3}], v{vpt}, s[{dWS}:{dWS+3}], 0 offen {p}\ns_mov_b64 exec, -1')
    qpub('' if local else 'sc1')
    stamp(4)
    a(f'v_and_b32 v{vpt+1}, 0x1f0, v{vL16}\ns_mov_b32 s{sCnt}, {qfall}')
    a('L_qpoll:')
    for i in range(4): a(f'buffer_load_dwordx4 v[{vK+4*i}:{vK+4*i+3}], v{vL16}, s[{dWS}:{dWS+3}], s{sKo} offen offset:{1024*i} sc1')
    a(f'buffer_load_dwordx4 v[{vK+16}:{vK+19}], v{vpt+1}, s[{dWS}:{dWS+3}], s{sVo} offen sc1')
    timeout()
    a('s_waitcnt vmcnt(0)')
    chk(w0,[vK,vK+4,vK+8,vK+12],[vK+17,vK+19],w1)
    a(f's_cbranch_vccz L_qok\ns_sub_u32 s{sCnt}, s{sCnt}, 1\ns_cmp_eq_u32 s{sCnt}, 0\ns_cbranch_scc0 L_qpoll')
    qpub('sc1')
    a('s_branch L_qpoll\nL_qok:')
    for k in range(8): a(f'v_add_f32 v{vK+k}, v{vK+k}, v{vK+8+k}')
    for k in range(4): a(f'v_cvt_pk_bf16_f32 v{vK+k}, v{vK+2*k}, v{vK+2*k+1}')
    a(f'v_lshlrev_b32 v{vpt+1}, 3, v0\nv_add_u32 v{vpt+1}, {L_Q}, v{vpt+1}\nds_write2st64_b64 v{vpt+1}, v[{vK}:{vK+1}], v[{vK+2}:{vK+3}] offset0:0 offset1:1')
    a(f'v_cmp_ne_u32 vcc, s{sXcc}, v{vK+16}\ns_mov_b32 s{sLoc}, 1')
    if local: a(f's_cmp_eq_u64 vcc, 0\ns_cselect_b32 s{sLoc}, 2, 1')
    a(f'v_mov_b32 v{w0}, s{sLoc}\nds_write_b32 v{vFA}, v{w0} offset:8')
    a(f's_cmp_eq_u32 s{sLoc}, 2\ns_cbranch_scc1 L_qnorep'); qpub('sc1'); a('L_qnorep:')
    stamp(5)
    a('L_qready:')
    a(f'v_lshlrev_b32 v{vT}, 8, v{vTm}\nv_lshl_add_u32 v{vT}, v2, 4, v{vT}\nv_add_u32 v{vT}, {L_Q}, v{vT}')
    for s in range(4): a(f'ds_read_b128 v[{vQ+4*s}:{vQ+4*s+3}], v{vT} offset:{64*s}')
    acc=vO; GV=4+S; EX4=0x000f000f000f000f; sEx=84; sO1=sTmp3
    for i in range(8): a(f'v_mov_b32 v{acc+i}, 0')
    a(f'v_mov_b32 v{vM}, 0xff800000\nv_mov_b32 v{vL}, 0\ns_mov_b32 s{sCnt}, {S//4}\ns_lshl_b32 s{sSlot}, s{sG}, 13\ns_mov_b32 s{sEx}, 0x000f000f\ns_mov_b32 s{sEx+1}, 0x000f000f')
    vFl,vMT=164,168
    vSw,vPr,vCv,vMw,vMr,vV0,vV1,vpa,vpm=range(176,185)
    a(f'v_lshlrev_b32 v{vMr}, 4, v{vTm}\nv_lshl_add_u32 v{vPr}, v2, 6, v{vMr}\nv_add_u32 v{vPr}, {L_S}, v{vPr}\ns_lshl_b32 s{sTmp}, s{sCw}, 8\nv_add_u32 v{vSw}, s{sTmp}, v{vPr}')
    a(f's_add_u32 s{sTmp}, s{sTmp}, {L_S}\nv_lshlrev_b32 v{vCv}, 4, v3\nv_lshl_add_u32 v{vCv}, v2, 10, v{vCv}\nv_add_u32 v{vCv}, s{sTmp}, v{vCv}')
    a(f'v_add_u32 v{vMr}, {L_MT}, v{vMr}\ns_lshl_b32 s{sTmp}, s{sCw}, 2\nv_add_u32 v{vMw}, s{sTmp}, v{vMr}\ns_lshl_b32 s{sTmp}, s{sCw}, 6\nv_xor_b32 v{vV0}, s{sTmp}, v{vVp}\nv_xor_b32 v{vV1}, 32, v{vV0}')
    a(f's_lshl_b32 s{sTmp}, s{sH}, 17\ns_lshl_b32 s{sTmp2}, s{sC}, 7\ns_add_u32 s{sTmp}, s{sTmp}, s{sTmp2}\ns_lshl_b32 s{sTmp2}, s{sCw}, 13\ns_add_u32 s{sTmp}, s{sTmp}, s{sTmp2}\ns_add_u32 s{sKo}, s{sTmp}, {W_P2:#x}\ns_add_u32 s{sO1}, s{sKo}, 4096')
    a(f'v_lshlrev_b32 v{vpa}, 15, v{vTm}\nv_lshl_add_u32 v{vpa}, v2, 4, v{vpa}\nv_lshlrev_b32 v{vpm}, 9, v{vTm}')
    a(f's_lshl_b32 s{sTmp}, s{sH}, 11\ns_lshl_b32 s{sTmp2}, s{sC}, 4\ns_add_u32 s{sTmp}, s{sTmp}, s{sTmp2}\ns_add_u32 s{sVo}, s{sTmp}, {W_ML:#x}')
    stamp(6)
    def nextslot(n): a(f's_add_u32 s{sSlot}, s{sSlot}, {n*SLOT}\ns_sub_u32 s{sTmp}, s{sSlot}, {RING}\ns_cselect_b32 s{sSlot}, s{sSlot}, s{sTmp}')
    a('L_kstep:')
    wait_full(f's{sG}',vT,vFA)
    a(f'v_add_u32 v{vAd+4}, s{sSlot}, v{vKp}')
    for s_ in (1,2,3): a(f'v_xor_b32 v{vAd+4+s_}, {64*s_}, v{vAd+4}')
    for t in range(2):
        for s_ in range(4): a(f'ds_read_b128 v[{vK+16*t+4*s_}:{vK+16*t+4*s_+3}], v{vAd+4+s_} offset:{4096*t}')
    a(f's_add_u32 s{sG}, s{sG}, 4\ns_min_u32 s{sG}, s{sG}, {GV}\nv_mov_b32 v{vT}, s{sG}')
    for t in range(2):
        a(f's_waitcnt lgkmcnt({4-4*t})')
        if t==1: a(f'ds_write_b32 v{vRA}, v{vT}')
        for s_ in range(4):
            a(f'v_mfma_f32_16x16x32_bf16 v[{vS+4*t}:{vS+4*t+3}], v[{vK+16*t+4*s_}:{vK+16*t+4*s_+3}], v[{vQ+4*s_}:{vQ+4*s_+3}], '+('0' if s_==0 else f'v[{vS+4*t}:{vS+4*t+3}]'))
    nextslot(4)
    for j in range(4): a(f'v_cvt_pk_bf16_f32 v{vP+j}, v{vS+2*j}, v{vS+2*j+1}')
    a(f's_mov_b64 exec, s[{sEx}:{sEx+1}]\nds_write_b128 v{vSw}, v[{vP}:{vP+3}]\ns_mov_b64 exec, -1\nv_add_u32 v{vSw}, 1024, v{vSw}')
    a(f'v_max3_f32 v{vT+1}, v{vS}, v{vS+1}, v{vS+2}\nv_max3_f32 v{vT+2}, v{vS+3}, v{vS+4}, v{vS+5}\nv_max3_f32 v{vM}, v{vS+6}, v{vS+7}, v{vM}\nv_max3_f32 v{vM}, v{vT+1}, v{vT+2}, v{vM}')
    a(f's_sub_u32 s{sCnt}, s{sCnt}, 1\ns_cmp_lg_u32 s{sCnt}, 0\ns_cbranch_scc1 L_kstep')
    stamp(7)
    for i in range(4): a(f'ds_read_b128 v[{vK+4*i}:{vK+4*i+3}], v{vCv} offset:{4096*i}')
    allred('v_max_f32',[vM],[vT],lo=())
    def post(src,off,flag): a(f'v_mov_b32 v{vT}, 1\ns_mov_b64 exec, 15\nds_write_b32 v{vMw}, v{src} offset:{off}\nds_write_b32 v{vRA}, v{vT} offset:{flag-L_REL}\ns_mov_b64 exec, -1')
    def meet(l,off,flag):
        a(f's_branch {l}r\n{l}w:'); timeout()
        a(f's_waitcnt lgkmcnt(0)\n{l}r:\nds_read_b128 v[{vFl}:{vFl+3}], v{vFA} offset:{flag-L_FULL}\nds_read_b128 v[{vMT}:{vMT+3}], v{vMr} offset:{off}')
        a(f's_waitcnt lgkmcnt(1)\nv_min3_u32 v{vFl}, v{vFl}, v{vFl+1}, v{vFl+2}\nv_min_u32 v{vFl}, v{vFl}, v{vFl+3}\nv_cmp_eq_u32 vcc, 0, v{vFl}\ns_cbranch_vccnz {l}w\ns_waitcnt lgkmcnt(0)')
    post(vM,0,L_PF); meet('L_m',0,L_PF)
    a(f'v_max3_f32 v{vM}, v{vMT}, v{vMT+1}, v{vMT+2}\nv_max_f32 v{vM}, v{vM}, v{vMT+3}'); bfr(vM,vM)
    a(f'v_mul_f32 v{vM}, s{sScale}, v{vM}'); bfr(vM,vM)
    a(f'v_mul_f32 v{vMb}, s{sL2e}, v{vM}')
    for i in range(4):
        P=vK+4*i; A=vV+8*i
        for j in range(4): a(f'v_lshlrev_b32 v{A+2*j}, 16, v{P+j}\nv_and_b32 v{A+2*j+1}, 0xffff0000, v{P+j}')
        for j in range(8): a(f'v_mul_f32 v{A+j}, s{sScale}, v{A+j}')
        for j in range(4): a(f'v_cvt_pk_bf16_f32 v{P+j}, v{A+2*j}, v{A+2*j+1}')
        for j in range(4): a(f'v_lshlrev_b32 v{A+2*j}, 16, v{P+j}\nv_and_b32 v{A+2*j+1}, 0xffff0000, v{P+j}')
        for j in range(8): a(f'v_fma_f32 v{A+j}, v{A+j}, s{sL2e}, -v{vMb}')
        for j in range(8): a(f'v_exp_f32 v{A+j}, v{A+j}')
        for j in range(4): a(f'v_cvt_pk_bf16_f32 v{P+j}, v{A+2*j}, v{A+2*j+1}')
        a(f'ds_write_b128 v{vCv}, v[{P}:{P+3}] offset:{4096*i}')
        for w_ in (4,2,1):
            for j in range(w_): a(f'v_add_f32 v{A+j}, v{A+j}, v{A+j+w_}')
        a(f'v_add_f32 v{vL}, v{vL}, v{A}')
    allred('v_add_f32',[vL],[vT],lo=(4,8))
    post(vL,L_SL-L_MT,L_PF2); meet('L_l',L_SL-L_MT,L_PF2)
    a(f's_cmp_eq_u32 s{sCw}, 0\ns_cbranch_scc0 L_noml')
    a(f'v_add_f32 v{vMT}, v{vMT}, v{vMT+1}\nv_add_f32 v{vMT+2}, v{vMT+2}, v{vMT+3}\nv_add_f32 v{vMT+2}, v{vMT}, v{vMT+2}\nv_mov_b32 v{vMT}, v{vM}'); tag4(vMT)
    a(f's_mov_b64 exec, 15\ns_cmp_eq_u32 s{sLoc}, 2')
    st2(1,f'buffer_store_dwordx4 v[{vMT}:{vMT+3}], v{vpm}, s[{dWS}:{dWS+3}], s{sVo} offen')
    a(f's_mov_b64 exec, -1\nL_noml:\ns_mov_b32 s{sSlot}, {(GV%R)*SLOT}')
    stamp(8)
    def vrd(f,a0,a1):
        for j,va in enumerate((a0,a1)): a(f'ds_read_b64_tr_b16 v[{f+4*j}:{f+4*j+1}], v{va}\nds_read_b64_tr_b16 v[{f+4*j+2}:{f+4*j+3}], v{va} offset:4096')
    def vmm(f,P,j): a(f'v_mfma_f32_16x16x32_bf16 v[{acc+4*j}:{acc+4*j+3}], v[{f+4*j}:{f+4*j+3}], v[{P}:{P+3}], v[{acc+4*j}:{acc+4*j+3}]')
    a(f'L_vstep:\nv_add_u32 v{vAd}, s{sSlot}, v{vV0}\nv_add_u32 v{vAd+1}, s{sSlot}, v{vV1}\nds_read_b128 v[{vP}:{vP+3}], v{vPr}')
    wait_full(f's{sG}',vT,vFA)
    vrd(vV,vAd,vAd+1)
    a(f's_add_u32 s{sG}, s{sG}, 1\nv_mov_b32 v{vT}, s{sG}\nv_add_u32 v{vPr}, 256, v{vPr}'); nextslot(1)
    a('s_waitcnt lgkmcnt(2)'); vmm(vV,vP,0)
    a(f's_waitcnt lgkmcnt(0)\nds_write_b32 v{vRA}, v{vT}'); vmm(vV,vP,1)
    a(f's_cmp_lt_u32 s{sG}, {GT-nsp}\ns_cbranch_scc1 L_vstep')
    for t in range(nsp): a(f'ds_read_b128 v[{vK+4*t}:{vK+4*t+3}], v{vPr} offset:{256*t}')
    for t in range(nsp):
        o_=((GT-nsp+t)%R)*SLOT
        a(f'v_add_u32 v{vAd+2*t}, {o_}, v{vV0}\nv_add_u32 v{vAd+2*t+1}, {o_}, v{vV1}')
    stamp(12)
    for t in range(nsp):
        l=lab('vw'); l2=lab('vr'); f=vV+8*t
        a(f's_branch {l2}\n{l}:'); timeout()
        a(f's_waitcnt lgkmcnt(0)\n{l2}:\nds_read_b32 v{vT}, v{vFA}')
        vrd(f,vAd+2*t,vAd+2*t+1)
        a(f's_waitcnt lgkmcnt(4)\nv_cmp_ge_i32 vcc, {GT-nsp+t}, v{vT}\ns_cbranch_vccnz {l}')
        for j in range(2): a(f's_waitcnt lgkmcnt({2-2*j})'); vmm(f,vK+4*t,j)
    a(f's_cmp_eq_u32 s{sLoc}, 2\ns_cbranch_scc0 L_outg')
    for p in ('','sc1'):
        if p: a('L_outg:')
        a(f's_mov_b64 exec, s[{sEx}:{sEx+1}]')
        for j in range(2):
            tag4(acc+4*j)
            a(f'buffer_store_dwordx4 v[{acc+4*j}:{acc+4*j+3}], v{vpa}, s[{dWS}:{dWS+3}], s{sO1 if j else sKo} offen {p}')
        stamp(9)
        stamp_out(dWS)
        a('s_endpgm')
    a('L_help:')
    vWo=192
    def wo_loads():
        a(f's_lshl_b32 s{sTmp}, s{sH}, 5\ns_add_u32 s{sTmp}, s{sTmp}, s{sC}\ns_lshl_b32 s{sTmp}, s{sTmp}, 14')
        for i in range(16):
            a(f'buffer_load_dwordx4 v[{vWo+4*i}:{vWo+4*i+3}], v{vL16}, s[{dWO}:{dWO+3}], s{sTmp} offen offset:{1024*(i&3)} {wpol}')
            if i&3==3 and i<15: a(f's_add_u32 s{sTmp}, s{sTmp}, 4096')
    a(f's_cmp_lt_u32 s{sF}, 224\ns_cbranch_scc0 L_noffn')
    a(f's_and_b32 s{sTmp2}, s{sF}, 7\ns_lshl_b32 s{sTmp2}, s{sTmp2}, 7\ns_add_u32 s{sTmp}, s{sTmp2}, {L_XN+1024}\nv_lshl_add_u32 v{t0}, v2, 3, s{sTmp}')
    for j in range(2): a(f'ds_read2_b64 v[{vXf+4*j}:{vXf+4*j+3}], v{t0} offset0:{8*j} offset1:{8*j+4}')
    a(f'v_lshlrev_b32 v{vAd}, 7, v1\nv_lshl_add_u32 v{vAd}, v{vTm}, 3, v{vAd}\nv_bfe_u32 v{vAd+1}, v1, 1, 2\nv_lshl_add_u32 v{vAd}, v{vAd+1}, 5, v{vAd}')
    for j in (1,2,3): a(f'v_xor_b32 v{vAd+j}, {32*j}, v{vAd}')
    stamp(2)
    wait_full(1,vT,vFA)
    a(f's_lshl_b32 s{sTmp}, s{sF}, 13\ns_add_u32 s{sTmp2}, s{sTmp}, 4096')
    for j in range(8): a(f'buffer_load_dwordx4 v[{vWD+4*j}:{vWD+4*j+3}], v{vL16}, s[{dWD}:{dWD+3}], s{sTmp if j<4 else sTmp2} offen offset:{1024*(j&3)} {wpol}')
    vAc=vX1
    def fgemv(mat):
        seq=[(s,j) for s in range(2) for j in range(4)]
        base=(2+mat)*SLOT
        def rd(i):
            s,j=seq[i]; b=vB+4*i
            a(f'ds_read_b64_tr_b16 v[{b}:{b+1}], v{vAd+j} offset:{base+4096*s}\nds_read_b64_tr_b16 v[{b+2}:{b+3}], v{vAd+j} offset:{base+4096*s+2048}')
        for i in range(5): rd(i)
        for i in range(8):
            if i+5<8: rd(i+5)
            a(f's_waitcnt lgkmcnt({2*(min(i+5,7)-i)})')
            s,j=seq[i]; b=vB+4*i; d=vAc+16*mat+4*j
            a(f'v_mfma_f32_16x16x32_bf16 v[{d}:{d+3}], v[{b}:{b+3}], v[{vXf+4*s}:{vXf+4*s+3}], '+('0' if s==0 else f'v[{d}:{d+3}]'))
    wait_full(2,vT,vFA); fgemv(0)
    wait_full(3,vT,vFA); stamp(3); fgemv(1)
    a(f'v_mov_b32 v{w0}, {INF:#x}\nds_write_b32 v{vRA}, v{w0}')
    for n in range(1,8):
        setexec(0x0001000100010001<<n)
        for k in range(4): a(f'v_mov_b32 v{vAc+k}, v{vAc+4*n+k}')
    a('s_mov_b64 exec, -1'); tag4(vAc)
    wait_q('L_hq',w0)
    a(f's_lshr_b32 s{sTmp}, s{sF}, 3\ns_lshr_b32 s{sTmp}, {(1<<3)|(1<<10)|(1<<17)|(1<<24):#x}, s{sTmp}\ns_and_b32 s{sTmp}, s{sTmp}, 1\ns_sub_u32 s{sTmp2}, s{sLoc}, s{sTmp}')
    a(f's_lshl_b32 s{sTmp}, s{sF}, 9\ns_add_u32 s{sTmp}, s{sTmp}, {W_F1:#x}\nv_lshlrev_b32 v{vT}, 4, v2\nv_lshl_add_u32 v{vT}, v3, 6, v{vT}')
    setexec(0x00ff00ff00ff00ff)
    a(f's_cmp_eq_u32 s{sTmp2}, 2')
    st2(1,f'buffer_store_dwordx4 v[{vAc}:{vAc+3}], v{vT}, s[{dWS}:{dWS+3}], s{sTmp} offen')
    a('s_mov_b64 exec, -1')
    stamp(4)
    if not jwo: wo_loads()
    a(f's_and_b32 s{sTmp}, s{sF}, 0xf8\ns_lshl_b32 s{sTmp}, s{sTmp}, 9\ns_and_b32 s{sTmp2}, s{sF}, 7\ns_lshl_b32 s{sTmp2}, s{sTmp2}, 5\ns_add_u32 s{sTmp}, s{sTmp}, s{sTmp2}\ns_add_u32 s{sKo}, s{sTmp}, {W_F1:#x}')
    a(f'v_bfe_u32 v{vT+2}, v0, 1, 4\nv_lshlrev_b32 v{vT+2}, 8, v{vT+2}\nv_and_b32 v{vT+3}, 1, v0\nv_lshl_add_u32 v{vT+2}, v{vT+3}, 4, v{vT+2}')
    if f1wait: wait_full(f1wait,vT,vFA)
    gu=vK
    a('L_f1poll:')
    a(f'buffer_load_dwordx4 v[{gu}:{gu+3}], v{vT+2}, s[{dWS}:{dWS+3}], s{sKo} offen sc1')
    timeout()
    a('s_waitcnt vmcnt(0)')
    chk(vT,[gu],[],None)
    a('s_cbranch_vccnz L_f1poll')
    allred('v_add_f32',[gu,gu+1,gu+2,gu+3],[vA,vA+1,vA+2,vA+3],lo=(4,8),hi=(16,))
    for k in range(4): bfr(gu+k,gu+k)
    k1=-2*0.7978845608028654*1.4426950408889634
    hh=gu+4; up=gu+8
    for k in range(4): a(f'v_mov_b32_dpp v{up+k}, v{gu+k} quad_perm:[2,3,2,3] row_mask:0xf bank_mask:0xf')
    for k in range(4): a(f'v_mul_f32 v{hh+k}, v{gu+k}, v{gu+k}')
    for k in range(4): a(f'v_mul_f32 v{hh+k}, {f2u(0.044715):#x}, v{hh+k}')
    for k in range(4): a(f'v_fma_f32 v{hh+k}, v{hh+k}, v{gu+k}, v{gu+k}')
    for k in range(4): a(f'v_mul_f32 v{hh+k}, {f2u(k1):#x}, v{hh+k}')
    for k in range(4): a(f'v_exp_f32 v{hh+k}, v{hh+k}')
    for k in range(4): a(f'v_add_f32 v{hh+k}, 1.0, v{hh+k}')
    for k in range(4): a(f'v_rcp_f32 v{hh+k}, v{hh+k}')
    for k in range(4): a(f'v_mul_f32 v{hh+k}, v{gu+k}, v{hh+k}')
    for k in range(4): bfr(hh+k,hh+k)
    for k in range(4): a(f'v_mul_f32 v{hh+k}, v{hh+k}, v{up+k}')
    for k in range(4): bfr(hh+k,hh+k)
    acc=vV; un=vV+8
    for k in range(8): a(f'v_mov_b32 v{acc+k}, 0')
    for j in range(8):
        for k in range(4): a(f'v_lshlrev_b32 v{un+2*k}, 16, v{vWD+4*j+k}\nv_and_b32 v{un+2*k+1}, 0xffff0000, v{vWD+4*j+k}')
        for k in range(8): a(f'v_fmac_f32_dpp v{acc+k}, v{hh+(j&3)}, v{un+k} quad_perm:[{j>>2},{j>>2},{j>>2},{j>>2}] row_mask:0xf bank_mask:0xf')
    tag4(acc); tag4(acc+4)
    a(f's_lshl_b32 s{sTmp}, s{sF}, 7\ns_add_u32 s{sTmp}, s{sTmp}, {W_B3:#x}\ns_add_u32 s{sTmp2}, s{sTmp}, {8*28672}')
    a(f'v_lshrrev_b32 v{vT}, 3, v0\nv_mul_u32_u24 v{vT}, 28672, v{vT}\nv_and_b32 v{vT+1}, 7, v0\nv_lshl_add_u32 v{vT}, v{vT+1}, 4, v{vT}\ns_cmp_eq_u32 s{sLoc}, 2')
    st2(1,f'buffer_store_dwordx4 v[{acc}:{acc+3}], v{vT}, s[{dWS}:{dWS+3}], s{sTmp} offen',f'buffer_store_dwordx4 v[{acc+4}:{acc+7}], v{vT}, s[{dWS}:{dWS+3}], s{sTmp2} offen')
    stamp(5)
    a('s_branch L_ffndone')
    a(f'L_noffn:\nv_mov_b32 v{w0}, {INF:#x}\nds_write_b32 v{vRA}, v{w0}')
    wait_q('L_hq2',w0)
    if not jwo: wo_loads()
    a('s_waitcnt vmcnt(0)\nL_ffndone:')
    vWl=160
    def wo_perm(behind=0,last=None):
        a(f's_mov_b32 s{sTmp}, 0x05040100\ns_mov_b32 s{sTmp2}, 0x07060302')
        for r_ in range(8):
            if jwo and r_<7: a(f's_waitcnt vmcnt({14-2*r_+behind})')
            if r_==7 and last: last()
            for k in range(4):
                x,y=vWo+8*r_+k,vWo+8*r_+4+k
                a(f'v_perm_b32 v{vWl+4*r_+k}, v{y}, v{x}, s{sTmp}\nv_perm_b32 v{y}, v{y}, v{x}, s{sTmp2}')
    if not jwo: wo_perm()
    vb=vK; gg=vQ; v128=vAd; vga=vAd+1; vgm=vAd+2; vS3=vAd+3
    sP2,sS3w,sS3r=sG,sSlot,sSlotV
    sDp,sDr=86,87
    a(f'v_lshlrev_b32 v{gg+5}, 1, v2\nv_lshlrev_b32 v{v128}, 7, v0\nv_lshrrev_b32 v{vgm}, 2, v0\nv_lshlrev_b32 v{vga}, 7, v{vgm}\nv_lshl_add_u32 v{vga}, v{vTm}, 4, v{vga}\nv_lshlrev_b32 v{vgm}, 4, v{vgm}')
    a(f's_lshl_b32 s{sTmp}, s{sH}, 17\ns_lshl_b32 s{sTmp2}, s{sC}, 12\ns_add_u32 s{sTmp}, s{sTmp}, s{sTmp2}\ns_add_u32 s{sP2}, s{sTmp}, {W_P2:#x}')
    SB=(12,14,7,8,9,10,11,15,16)
    def spread_s(dst,src,nb,first,sh=0):
        for j in range(nb): a(f's_bfe_u32 s{sTmp2}, s{src}, {(1<<16)|(j+sh):#x}\ns_lshl_b32 s{sTmp2}, s{sTmp2}, {SB[first+j]}\ns_add_u32 s{dst}, s{dst}, s{sTmp2}')
    def spread_v(dst,sh,nb):
        for j in range(nb): a(f'v_bfe_u32 v{vT}, v0, {j+sh}, 1\n'+(f'v_lshl_add_u32 v{dst}, v{vT}, {SB[j]}, v{dst}' if j else f'v_lshlrev_b32 v{dst}, {SB[j]}, v{vT}'))
    vG3,vPre=vAd+4,vAd+5; sPre=sXcc if not ptau else None
    a(f'v_lshrrev_b32 v{vS3}, 3, v0\nv_lshlrev_b32 v{vS3}, 17, v{vS3}\nv_and_b32 v{vT}, 0x70, v{vL16}\nv_add_u32 v{vS3}, v{vS3}, v{vT}\ns_mov_b32 s{sS3w}, {W_S3:#x}')
    spread_s(sS3w,sXi,5,0); spread_s(sS3w,sXj,3,5)
    spread_v(vG3,0,6); spread_v(vPre,1,4)
    a(f'v_and_b32 v{vT}, 1, v0\nv_lshl_add_u32 v{vPre}, v{vT}, 6, v{vPre}\ns_lshl_b32 s{sS3r}, s{sXj}, 17\ns_add_u32 s{sS3r}, s{sS3r}, {W_S3:#x}')
    spread_s(sS3r,sXi,1,8)
    a(f's_mov_b32 s{sPre}, s{sS3r}'); spread_s(sPre,sXi,4,4,1)
    a(f's_and_b32 s{sTmp}, s{sCg}, 1\ns_lshl_b32 s{sTmp}, s{sTmp}, 3\ns_lshr_b32 s{sTmp2}, s{sCg}, 4\ns_add_u32 s{sTmp}, s{sTmp}, s{sTmp2}\ns_bfe_u32 s{sTmp2}, s{sCg}, 0x30001\ns_lshl_b32 s{sTmp2}, s{sTmp2}, 4')
    a(f's_add_u32 s{sS3r}, s{sS3r}, s{sTmp2}')
    a(f's_lshl_b32 s{sKo}, s{sTmp}, 10\ns_add_u32 s{sKo}, s{sKo}, s{sTmp2}\ns_add_u32 s{sKo}, s{sKo}, {W_B4:#x}')
    tk=vO
    mlast=min(mlast,2*S)
    def control(jend):
        l=lab('ctl'); sk=lab('cs')
        a(f'{l}:')
        wait_full(f's{sJ}',vT,vFA)
        if fb:
            a(f's_cmp_eq_u32 s{sLoc}, 2\ns_cbranch_scc0 {sk}')
            a(f's_add_u32 s{sTmp}, s{sMin}, s{sJ}\nv_mov_b32 v{tk}, s{sTmp}\ns_mov_b64 exec, 1\nbuffer_store_dword v{tk}, off, s[{dWS}:{dWS+3}], s{sKb}')
        if fb==5:
            l1,l2=lab('nr'),lab('np')
            a(f's_and_b32 s{sTmp}, s{sCnt}, 3\ns_add_u32 s{sTmp}, s{sTmp}, 28\ns_cmp_eq_u32 s{sTmp}, s{sXi}\ns_cselect_b32 s{sDp}, 1, 0\ns_add_u32 s{sCnt}, s{sCnt}, 1')
            a(f's_sub_u32 s{sGmR}, s{sGmR}, 1\ns_cselect_b32 s{sGmR}, {xev-1}, s{sGmR}\ns_cselect_b32 s{sDr}, s{sDp}, 0')
            a(f's_mul_i32 s{sTmp}, s{sDr}, 0xff0000\ns_or_b32 exec_hi, s{sTmp}, 1\ns_mov_b32 exec_lo, -1')
        elif fb: setexec(0xffffffff)
        if fb:
            a(f'buffer_load_dword v{tk+4}, v{tk+1}, s[{dWS}:{dWS+3}], 0 offen sc1\ns_waitcnt vmcnt(0)')
            a(f'v_sub_u32 v{tk+4}, v{tk+4}, v{tk+3}\nv_cmp_lt_u32 vcc, v{tk+4}, v{tk+6}\nv_cndmask_b32 v{tk+4}, v{tk+2}, v{tk+4}, vcc\ns_mov_b64 exec, -1')
            allred('v_add_u32',[tk+4],[tk+5],hi=())
            a(f'v_readlane_b32 s{sTmp}, v{tk+4}, 0\nv_readlane_b32 s{sTmp2}, v{tk+4}, 16\nv_readlane_b32 s{sTmp3}, v{tk+4}, 32\ns_add_u32 s{sTmp}, s{sTmp}, s{sTmp2}')
            d0=-256*(mk/2+tau)
        if fb==5:
            a(f's_cmp_eq_u32 s{sDp}, 0\ns_cbranch_scc1 {l2}\ns_lshl_b32 s{sDp}, s{sT}, 13\ns_add_u32 s{sTmp2}, s{sTmp}, s{sDp}\nv_mov_b32 v{tk}, s{sTmp2}\ns_mov_b64 exec, 1')
            a(f'buffer_store_dword v{tk}, off, s[{dWS}:{dWS+3}], s{sVo} offset:{0x480} sc1')
            a(f's_cmp_eq_u32 s{sDr}, 0\ns_cbranch_scc1 {l1}')
            a(f'v_readlane_b32 s{sTmp3}, v{tk+4}, 48\ns_lshl_b32 s{sTmp2}, s{sTmp}, 3\ns_sub_i32 s{sTmp3}, s{sTmp3}, s{sTmp2}\ns_add_i32 s{sTmp3}, s{sTmp3}, {int(256*xc)+4096}')
            a(f's_max_i32 s{sTmp3}, s{sTmp3}, 0\ns_min_i32 s{sTmp3}, s{sTmp3}, 8191\ns_add_u32 s{sTmp2}, s{sTmp3}, s{sDp}\nv_mov_b32 v{tk}, s{sTmp2}')
            a(f'buffer_store_dword v{tk}, off, s[{dWS}:{dWS+3}], s{sVo} offset:{0x80}')
            a(f'{l1}:\ns_mov_b64 exec, -1\n{l2}:')
            d0+=4096
        if fb:
            a(f'v_mov_b32 v{tk+4}, 0\ns_lshl_b32 s{sTmp}, s{sTmp}, 3')
            if fb==5: a(f's_add_u32 s{sTmp}, s{sTmp}, s{sTmp3}')
            a(f's_lshl_b32 s{sTmp2}, s{sJ}, 8\ns_sub_i32 s{sTmp}, s{sTmp}, s{sTmp2}')
            if ptau: a(f's_add_i32 s{sTmp}, s{sTmp}, s{sXcc}')
            a(f's_cmp_lt_i32 s{sTmp}, {int(d0-256*th)}\ns_cselect_b32 s{sTmp2}, 1, 0\ns_cmp_gt_i32 s{sTmp}, {int(d0+256*th)}\ns_cselect_b32 s{sTmp2}, 2, s{sTmp2}\nv_mov_b32 v{vT}, s{sTmp2}\nds_write_b32 v{vFA}, v{vT} offset:12')
            a(f'{sk}:')
        a(f's_add_u32 s{sJ}, s{sJ}, {mk}\ns_cmp_le_u32 s{sJ}, {jend}\ns_cbranch_scc1 {l}')
    a(f's_mov_b32 s{sJ}, {m0}')
    if ptau: a(f's_getreg_b32 s{sXcc}, hwreg(HW_REG_XCC_ID, 0, 1)\ns_mul_i32 s{sXcc}, s{sXcc}, {-2*int(256*ptau)}\ns_add_i32 s{sXcc}, s{sXcc}, {int(256*ptau)}')
    if fb:
        a(f's_lshl_b32 s{sMin}, s{sT}, 8\nv_mov_b32 v{tk+2}, {m0-mk}\nv_mov_b32 v{tk+3}, s{sMin}\nv_mov_b32 v{tk+6}, 0x100\nv_mov_b32 v{tk+4}, 0')
        a(f's_mul_i32 s{sVo}, s{sXj}, {CST2}\ns_add_u32 s{sVo}, s{sVo}, {W_CNT:#x}\nv_lshl_add_u32 v{tk+1}, v0, 2, s{sVo}\ns_lshl_b32 s{sKb}, s{sXi}, 2\ns_add_u32 s{sKb}, s{sKb}, s{sVo}')
    if fb==5:
        a(f's_mov_b32 s{sCnt}, 0\ns_mov_b32 s{sGmR}, {xev-1}')
        a(f's_mov_b32 exec_lo, 0\ns_lshl_b32 s{sTmp}, s{sT}, 13\nv_mov_b32 v{tk+2}, 4096\nv_mov_b32 v{tk+3}, s{sTmp}\nv_mov_b32 v{tk+6}, 0x2000\ns_mov_b32 exec_hi, 0xffff0000\nv_mov_b32 v{tk+2}, {32*(m0-mk)}')
        a(f'v_and_b32 v{tk+1}, 7, v0\nv_mul_u32_u24 v{tk+1}, {CST2}, v{tk+1}\nv_add_u32 v{tk+1}, {W_CNT+0x480:#x}, v{tk+1}\ns_mov_b64 exec, -1')
    control(jv)
    a(f's_lshl_b32 s{sTmp2}, s{sT}, 8\ns_mov_b32 s{sTmp3}, {W_VT:#x}\nL_vtpoll:')
    for i in range(nvote): a(f'buffer_load_dwordx4 v[{vb+4*i}:{vb+4*i+3}], v{vL16}, s[{dWS}:{dWS+3}], s{sTmp3} offen offset:{1024*i} sc1')
    timeout()
    a(f's_waitcnt vmcnt(0)\nv_xor_b32 v{vT}, s{sTmp2}, v{vb}')
    for v in range(1,4*nvote): a(f'v_bitop3_b32 v{vT}, v{vb+v}, s{sTmp2}, v{vT} bitop3:0xbe')
    a(f'v_cmp_lt_u32 vcc, 0xff, v{vT}\ns_cbranch_vccnz L_vtpoll\nv_and_b32 v{vT}, 15, v{vb}')
    for v in range(1,4*nvote): a(f'v_and_b32 v{vT+1}, 15, v{vb+v}\nv_add_u32 v{vT}, v{vT}, v{vT+1}')
    allred('v_add_u32',[vT],[vT+1])
    if diag: a(f'v_readfirstlane_b32 s{sTmp}, v{vT}\nv_writelane_b32 v{vSt}, s{sTmp}, 16')
    if force is None: a(f'v_cmp_gt_u32 vcc, {2048*nvote}, v{vT}\nv_cndmask_b32 v{vT}, 0, 1, vcc')
    else: a(f'v_mov_b32 v{vT}, {force}')
    a(f'v_bfe_u32 v{vT+1}, v{vb}, 7, 1\nv_xor_b32 v{vT}, v{vT}, v{vT+1}\nv_lshlrev_b32 v{vT}, 13, v{vT}\nv_add_u32 v{vS3}, v{vS3}, v{vT}')
    a(f's_bfe_u32 s{sTmp}, s{sXi}, 0x30001\ns_lshl_b32 s{sTmp2}, s{sXj}, 3\ns_add_u32 s{sTmp}, s{sTmp}, s{sTmp2}\nv_readlane_b32 s{sTmp}, v{vT}, s{sTmp}\ns_add_u32 s{sS3r}, s{sS3r}, s{sTmp}\ns_add_u32 s{sPre}, s{sPre}, s{sTmp}')
    control(jb1)
    a(f's_cmp_lt_u32 s{sXi}, 16\ns_cbranch_scc0 L_nob3')
    a(f's_mul_i32 s{sTmp2}, s{sXi}, 28672\ns_mul_i32 s{sTmp}, s{sXj}, 3584\ns_add_u32 s{sTmp2}, s{sTmp2}, s{sTmp}\ns_add_u32 s{sTmp2}, s{sTmp2}, {W_B3:#x}')
    for k in range(4): a(f'v_mov_b32 v{vb+12+k}, 0')
    tag4(vb+12)
    a('L_b3poll:')
    for i in range(4):
        if i==3: a('s_mov_b32 exec_hi, 0')
        a(f'buffer_load_dwordx4 v[{vb+4*i}:{vb+4*i+3}], v{vL16}, s[{dWS}:{dWS+3}], s{sTmp2} offen offset:{1024*i} sc1')
    a('s_mov_b64 exec, -1')
    timeout()
    a('s_waitcnt vmcnt(0)')
    chk(vT,[vb,vb+4,vb+8,vb+12],[],None)
    a('s_cbranch_vccnz L_b3poll')
    def sum4(dst,lo):
        for k in range(4): a(f'v_add_f32 v{dst+k}, v{vb+k}, v{vb+4+k}\nv_add_f32 v{vA+4+k}, v{vb+8+k}, v{vb+12+k}')
        for k in range(4): a(f'v_add_f32 v{dst+k}, v{dst+k}, v{vA+4+k}')
        allred('v_add_f32',[dst,dst+1,dst+2,dst+3],[vA,vA+1,vA+2,vA+3],lo=lo)
    sum4(gg,(8,)); tag4(gg)
    a(f's_lshl_b32 s{sTmp}, s{sXi}, 10\ns_lshl_b32 s{sTmp2}, s{sXj}, 7\ns_add_u32 s{sTmp}, s{sTmp}, s{sTmp2}\ns_add_u32 s{sTmp}, s{sTmp}, {W_B4:#x}\ns_mov_b64 exec, 0xff')
    a(f'buffer_store_dwordx4 v[{gg}:{gg+3}], v{vL16}, s[{dWS}:{dWS+3}], s{sTmp} offen sc1\ns_mov_b64 exec, -1')
    stamp(6)
    a('L_nob3:')
    control(jb2)
    a(f's_cmp_lt_u32 s{sXi}, 16\ns_cbranch_scc0 L_nob4\nv_and_b32 v{vT+2}, 0x380, v{v128}')
    a(f'L_b4poll:\nbuffer_load_dwordx4 v[{gg}:{gg+3}], v{vT+2}, s[{dWS}:{dWS+3}], s{sKo} offen sc1')
    timeout()
    a('s_waitcnt vmcnt(0)')
    chk(vT,[gg],[],None)
    a('s_cbranch_vccnz L_b4poll')
    allred('v_add_f32',[gg,gg+1,gg+2,gg+3],[],lo=(4,2,1),hi=())
    for k in range(4): bfr(gg+k,gg+k)
    for k in range(4): a(f'v_mul_f32 v{vA+k}, s{sL2e}, v{gg+k}')
    for k in range(4): a(f'v_exp_f32 v{vA+k}, -v{vA+k}')
    for k in range(4): a(f'v_add_f32 v{vA+k}, 1.0, v{vA+k}')
    for k in range(4): a(f'v_rcp_f32 v{vA+k}, v{vA+k}')
    for k in range(4): a(f'v_mul_f32 v{gg+k}, v{gg+k}, v{vA+k}')
    for k in range(4): bfr(gg+k,gg+k)
    a(f's_lshl_b32 s{sTmp}, s{sXf}, 16\nv_mov_b32 v{gg+4}, s{sTmp}')
    for k in range(1,4):
        setexec(0xffff<<(16*k))
        a((f's_lshl_b32 s{sTmp}, s{sXf+k//2}, 16' if k%2==0 else f's_and_b32 s{sTmp}, s{sXf+k//2}, 0xffff0000')+f'\nv_mov_b32 v{gg+4}, s{sTmp}\nv_mov_b32 v{gg}, v{gg+k}')
    a('s_mov_b64 exec, -1')
    stamp(7)
    a('L_nob4:')
    control(jw)
    pm=vV+8; mx=vM; ls=vS+4; o=vS; pw=vP
    a(f's_lshl_b32 s{sTmp}, s{sH}, 2\ns_lshr_b32 s{sTmp2}, s{sC}, 3\ns_add_u32 s{sTmp}, s{sTmp}, s{sTmp2}\ns_lshl_b32 s{sTmp}, s{sTmp}, 9\ns_add_u32 s{sTmp2}, s{sTmp}, {W_ML:#x}\nL_mlpoll:')
    for i in range(2): a(f'buffer_load_dwordx4 v[{pm+4*i}:{pm+4*i+3}], v{vgm}, s[{dWS}:{dWS+3}], s{sTmp2} offen offset:{256*i} sc1')
    timeout()
    a('s_waitcnt vmcnt(0)')
    chk(vT,[pm,pm+4],[],None)
    a('s_cbranch_vccnz L_mlpoll')
    for i in range(2): a(f'v_and_b32 v{pw+2*i}, 0xffff0000, v{pm+4*i}')
    a(f'v_max_f32 v{mx}, v{pw}, v{pw+2}')
    allred('v_max_f32',[mx],[vT+1],lo=(4,8))
    for i in range(2): a(f'v_sub_f32 v{pw+2*i}, v{pw+2*i}, v{mx}')
    for i in range(2): a(f'v_mul_f32 v{pw+2*i}, s{sL2e}, v{pw+2*i}')
    for i in range(2): a(f'v_exp_f32 v{pw+2*i}, v{pw+2*i}')
    a(f'v_mul_f32 v{ls}, v{pw}, v{pm+2}\nv_fmac_f32 v{ls}, v{pw+2}, v{pm+6}')
    allred('v_add_f32',[ls],[vT+1],lo=(4,8))
    a(f'v_rcp_f32 v{ls}, v{ls}')
    for i in range(2): a(f'v_mul_f32 v{pw+2*i}, v{pw+2*i}, v{ls}')
    stamp(9)
    control(jpre)
    po=vV; sMk=84; sS3o=92
    for i in range(1,4): a(f's_add_u32 s{sS3o+i}, s{sS3r}, {((i&1)<<SB[6])+((i>>1)<<SB[7])}')
    s3o=lambda i: sS3r if i==0 else sS3o+i
    def ldo(i): a(f'buffer_load_dwordx4 v[{po+4*i}:{po+4*i+3}], v{vga}, s[{dWS}:{dWS+3}], s{sP2} offen offset:{2048*i} sc1')
    def lds3(i): a(f'buffer_load_dwordx4 v[{vb+4*i}:{vb+4*i+3}], v{vG3}, s[{dWS}:{dWS+3}], s{s3o(i)} offen {s3ld}')
    if p2pre: a(f's_mov_b32 exec_hi, 0\nbuffer_load_dword v{pm}, v{v128}, s[{dWS}:{dWS+3}], s{sP2} offen sc1\ns_mov_b64 exec, -1')
    if s3pre==2:
        a(f's_mov_b32 exec_hi, 0\nbuffer_load_dword v{vb}, v{vPre}, s[{dWS}:{dWS+3}], s{sPre} offen {s3ld}\ns_mov_b64 exec, -1')
    elif s3pre:
        a(f's_cmp_lt_u32 s{sXi}, 16\ns_cbranch_scc0 L_nopre')
        for i in range(4): lds3(i)
        a('L_nopre:')
    if mlast>jpre: control(mlast)
    stamp(8)
    def masked(n,ld):
        for i in range(n):
            l=lab('mz')
            a(f's_mov_b64 exec, s[{sMk+2*i}:{sMk+2*i+1}]\ns_cbranch_execz {l}'); ld(i); a(f'{l}:')
        a('s_mov_b64 exec, -1')
    def recheck(n,ck,skip=False):
        for i in range(n):
            l=lab('rc')
            if skip: a(f's_cmp_eq_u64 s[{sMk+2*i}:{sMk+2*i+1}], 0\ns_cbranch_scc1 {l}')
            ck(i); a(f's_mov_b64 s[{sMk+2*i}:{sMk+2*i+1}], vcc')
            if skip: a(f'{l}:')
        a(f's_or_b64 vcc, s[{sMk}:{sMk+1}], s[{sMk+2}:{sMk+3}]')
        if n==4: a(f's_or_b64 vcc, vcc, s[{sMk+4}:{sMk+5}]\ns_or_b64 vcc, vcc, s[{sMk+6}:{sMk+7}]')
    def rowsum(v,lo):
        a(f'v_permlane16_swap_b32 v{v}, v{v+1}\nv_permlane16_swap_b32 v{v+2}, v{v+3}\nv_add_f32 v{v}, v{v}, v{v+1}\nv_add_f32 v{v+2}, v{v+2}, v{v+3}')
        a(f'v_permlane32_swap_b32 v{v}, v{v+2}\nv_add_f32 v{v}, v{v}, v{v+2}')
        allred('v_add_f32',[v],[],lo=lo,hi=())
    def allmask(n):
        for i in range(n): a(f's_mov_b64 s[{sMk+2*i}:{sMk+2*i+1}], -1')
    r=vO+8
    for k in range(8): a(f'v_mov_b32 v{r+k}, 0')
    allmask(2)
    if jwo:
        a('L_wowait:'); poll_full(vT,vFA)
        a(f's_cmp_eq_u32 s{sGend}, 0\ns_cbranch_scc0 L_wowait')
        wo_loads()
    def poll(name,n,ld,ck,depth,thr):
        a(f's_branch L_{name}chk\nL_{name}poll:')
        masked(n,ld); timeout()
        a(f'L_{name}chk:\ns_waitcnt vmcnt(0)')
        recheck(n,ck,True)
        if not depth:
            a(f's_cbranch_scc1 L_{name}poll'); return
        a(f's_cbranch_scc0 L_{name}ok')
        for i in range(n):
            a(f's_bcnt1_i32_b64 s{sTmp2 if i else sTmp}, s[{sMk+2*i}:{sMk+2*i+1}]')
            if i: a(f's_add_u32 s{sTmp}, s{sTmp}, s{sTmp2}')
        a(f's_cmp_gt_u32 s{sTmp}, {thr}\ns_cbranch_scc1 L_{name}poll\nL_{name}fast:')
        for i in range(n):
            a(f's_or_b64 exec, s[{sMk+2*i}:{sMk+2*i+1}], 1'); ld(i)
        a('s_mov_b64 exec, -1'); timeout()
        a(f's_waitcnt vmcnt({n*depth})')
        recheck(n,ck,True)
        a(f's_cbranch_scc1 L_{name}fast\nL_{name}ok:')
    def ofirst():
        a('s_waitcnt vmcnt(0)'); wait_full(jml,vT,vFA); ldo(0); ldo(1)
    if jwo: wo_perm(0,ofirst)
    else: ofirst()
    stamp(14)
    poll('o',2,ldo,lambda i: chk(vT,[po+4*i],[],None),fp[2],fp[3])
    stamp(10)
    for k in (0,2): a(f'v_pk_mul_f32 v[{o+k}:{o+k+1}], v[{po+k}:{po+k+1}], v[{pw}:{pw+1}] op_sel_hi:[1,0]')
    for k in (0,2): a(f'v_pk_fma_f32 v[{o+k}:{o+k+1}], v[{po+4+k}:{po+4+k+1}], v[{pw+2}:{pw+3}], v[{o+k}:{o+k+1}] op_sel_hi:[1,0,1]')
    rowsum(o,(4,8))
    a(f'v_mov_b32 v{o+1}, v{o}\nv_permlane16_swap_b32 v{o}, v{o+1}\nv_cvt_pk_bf16_f32 v{vA}, v{o}, v{o+1}\nv_cvt_pk_bf16_f32 v{vA+1}, v{o}, v{o+1}\nv_permlane32_swap_b32 v{vA}, v{vA+1}')
    for r_ in range(8):
        u=r_>>1
        for k in range(8): a(f'v_dot2c_f32_bf16_dpp v{r+k}, v{vA+(r_&1)}, v{vWo+8*r_+4+(k>>1) if k&1 else vWl+4*r_+(k>>1)} quad_perm:[{u},{u},{u},{u}] row_mask:0xf bank_mask:0xf')
    tag4(r)
    a(f'buffer_store_dwordx4 v[{r}:{r+3}], v{vS3}, s[{dWS}:{dWS+3}], s{sS3w} offen {s3st}\ns_add_u32 s{sS3w}, s{sS3w}, {1<<SB[8]}')
    tag4(r+4)
    a(f'buffer_store_dwordx4 v[{r+4}:{r+7}], v{vS3}, s[{dWS}:{dWS+3}], s{sS3w} offen {s3st}')
    stamp(11)
    a(f's_cmp_lt_u32 s{sXi}, 16\ns_cbranch_scc0 L_hfin')
    allmask(4)
    cks=lambda i: chk(vT,[vb+4*i],[],None)
    a(f's_lshl_b32 s{sCnt}, s{sCg}, 3\ns_mov_b32 s{sLoc}, 0x00010001\ns_mov_b32 s{sLoc+1}, 0x00010001')
    for i in range(4): lds3(i)
    poll('s3',4,lds3,cks,fp[4],fp[5])
    stamp(12)
    ss=vS
    for d,x,y in ((ss,vb,vb+4),(ss+4,vb+8,vb+12),(ss,ss,ss+4)):
        for k in (0,2): a(f'v_pk_add_f32 v[{d+k}:{d+k+1}], v[{x+k}:{x+k+1}], v[{y+k}:{y+k+1}]')
    rowsum(ss,(8,4,2,1))
    bfr(ss,ss); a(f'v_mul_f32 v{ss}, v{ss}, v{gg}'); bfr(ss,ss)
    a(f'v_add_f32 v{ss}, v{ss}, v{gg+4}\nv_cvt_pk_bf16_f32 v{ss}, v{ss}, v{ss}\ns_mov_b64 exec, s[{sLoc}:{sLoc+1}]')
    a(f'buffer_store_short v{ss}, v{gg+5}, s[{dOUT}:{dOUT+3}], s{sCnt} offen\ns_mov_b64 exec, 1')
    a(f's_cmp_eq_u32 s{sCg}, 0\ns_cbranch_scc0 L_hfin\nv_mov_b32 v{vT+1}, s{sT}\nbuffer_store_dword v{vT+1}, off, s[{dWS}:{dWS+3}], 0')
    a('L_hfin:\ns_waitcnt vmcnt(0)')
    stamp(13)
    stamp_out(dWS)
    a('L_end:\ns_endpgm')
    n=a.fix()
    out=HDR+f'; @launch grid=(256,1,1) block=({64*NWAVE},1,1) lds=163840\n'
    out+=f'.amdgcn_target "amdgcn-amd-amdhsa--gfx950"\n.text\n.globl {NAME}\n.p2align 8\n.type {NAME},@function\n'
    out+=a.text()
    out+=f'''.section .rodata,"a"
.p2align 6
.amdhsa_kernel {NAME}
  .amdhsa_next_free_vgpr 256
  .amdhsa_next_free_sgpr 96
  .amdhsa_accum_offset 256
  .amdhsa_group_segment_fixed_size 0
  .amdhsa_kernarg_size 96
  .amdhsa_user_sgpr_count 2
  .amdhsa_user_sgpr_kernarg_segment_ptr 1
  .amdhsa_system_sgpr_workgroup_id_x 1
  .amdhsa_float_denorm_mode_32 3
.end_amdhsa_kernel
'''
    return out
if __name__=='__main__':
    kw=eval('dict(%s)'%(sys.argv[1] if len(sys.argv)>1 else ''))
    sys.stdout.write(gen(**kw))
```

```python
import sys, struct
from asmlib import Asm
NAME='recurrent_scan__gqa_block_cached__geglu_ffn__decode_kernel'
HDR=open('recurrent_scan__gqa_block_cached__geglu_ffn__decode.s.ref').read().split('; Override launch')[0]
def f2u(x): return struct.unpack('<I',struct.pack('<f',x))[0]
LOG2E=f2u(1.4426950408889634); SCALE=f2u(128**-0.5)
R=17; SLOT=8192; RING=R*SLOT
MISC=RING
L_FULL=MISC; L_QRDY=MISC+8; L_MODE=MISC+12; L_REL=MISC+16; L_PF=MISC+64; L_PF2=MISC+96; L_MT=MISC+128; L_SL=MISC+192; L_X=MISC+1024; L_XN=MISC+2048; L_Q=MISC+4096; L_S=MISC+5120
W_B4=0x40000; W_CNT=0x1000; W_QG=0x10000; W_QX=0x18000; W_F1=0x20000; W_P2=0x280000; W_S3=0x400000; W_CAL=0x500000; W_VT=0x50000; W_ML=0x58000; W_B3=0x180000; W_ST=0x200000; WS_SZ=0x600000
TB=10; S3NEW=1
PC=2112; NWAVE=6; INF=0x7fffffff; CST=0x180; CST2=0x1100
def gen(mapping='hx', N=20, S=64, diag=0, pol='nt', wpol='nt', local=1, f1wait=12, N0=None, fb=3, dN=2, m0=20, mk=4, mlast=116, th=1.5, tau=0.,
        xev=3, xc=5., keep=(13,), qfall=24, jb1=44, jb2=76, jpre=108, s3pipe=0, s3pre=2, jopen=0, Nend=24, jwo=1, jml=131, s3ld='sc1', s3st='sc1', hxor=0, ptau=0.16, p2pre=1, fp=(0,0,0,0,0,0), force=None, jv=36, wsw=0, wpolw='sc1', nvote=1, pv='D', cut=1, npair=2, nend=8, nsp=4, jw=92, dU=4, qx=0, lp='', rot=None, LX=(16,32,0,8,4,0,0,0)):
    a=Asm()
    LP=lambda k: 'nt' if k in lp else 'sc1'
    N0=N0 or N
    vpol=pol
    W=N0-4
    modes=[N,N-dN,N+(dU or dN)] if fb else [N]
    assert S>=8 and mapping=='hx'
    GT=2*S+4
    sB,sW=2,3
    pX,pK,pV,pWQ,pWO,pWG,pWU,pWD,pOUT,pWS=4,6,8,10,12,16,18,20,22,26
    sH,sC,sXi,sF,sT,sTO=48,49,50,51,52,53
    sFull,sG,sSlot,sSlotV,sMin,sKo,sVo,sTmp,sTmp2,sCnt,sGmR=54,55,56,57,58,59,60,61,62,63,64
    sScale,sL2e,sT1,sGend,sCw,sXj=65,66,67,68,69,74
    sSt=70
    sSt0=72
    sXf=76
    sLoc,sKb,sJ,sCg,sXcc,sTmp3=78,79,80,81,82,83
    sTm=75
    vSt=159
    uid=[0]
    def lab(p): uid[0]+=1; return f'L_{p}_{uid[0]}'
    def srd(d,p,size):
        a(f's_mov_b32 s{d}, s{p}\ns_mov_b32 s{d+1}, s{p+1}\ns_mov_b32 s{d+2}, {size:#x}\ns_mov_b32 s{d+3}, 0x20000')
    role=['L']
    def stamp(k):
        if diag==3 and not (role[0]=='L' or k in keep): return
        if diag: a(f's_memrealtime s[{sSt}:{sSt+1}]\ns_waitcnt lgkmcnt(0)\nv_writelane_b32 v{vSt}, s{sSt}, {k}')
    def stamp_out(srd_ws):
        if diag:
            a(f'v_writelane_b32 v{vSt}, s{sSt0}, 0')
            a(f's_mul_i32 s{sTmp}, s{sB}, {NWAVE}\ns_add_u32 s{sTmp}, s{sTmp}, s{sW}\ns_lshl_b32 s{sTmp}, s{sTmp}, 8\ns_add_u32 s{sTmp}, s{sTmp}, {W_ST:#x}')
            a(f's_mov_b64 exec, -1\nv_lshlrev_b32 v1, 2, v0\nbuffer_store_dword v{vSt}, v1, s[{srd_ws}:{srd_ws+3}], s{sTmp} offen sc1')
    def setexec(m):
        lo,hi=m&0xffffffff,m>>32
        if hi==0 and lo<0x80000000: a(f's_mov_b64 exec, {lo:#x}')
        else: a(f's_mov_b32 exec_lo, {lo:#x}\ns_mov_b32 exec_hi, {hi:#x}')
    def timeout():
        a(f's_sub_u32 s{sTO}, s{sTO}, 1\ns_cbranch_scc1 L_end')
    def poll_full(vtmp,vaddr):
        a(f'ds_read_b64 v[{vtmp}:{vtmp+1}], v{vaddr}')
        timeout()
        a(f's_waitcnt lgkmcnt(0)\nv_readfirstlane_b32 s{sFull}, v{vtmp}\nv_readfirstlane_b32 s{sGend}, v{vtmp+1}')
    def wait_full(x, vtmp, vaddr):
        assert vtmp%2==0
        ok=lab('fok'); p=lab('fp')
        a(f's_cmp_gt_i32 s{sFull}, {x}\ns_cbranch_scc1 {ok}\n{p}:')
        poll_full(vtmp,vaddr)
        a(f's_cmp_gt_i32 s{sFull}, {x}\ns_cbranch_scc0 {p}\n{ok}:')
    def bfr(dst,src):
        a(f'v_cvt_pk_bf16_f32 v{dst}, v{src}, v{src}\nv_and_b32 v{dst}, 0xffff0000, v{dst}')
    def allred(op, vs, ts, lo=(8,4,2,1), hi=(16,32)):
        for r in lo:
            for v in vs: a(f'{op}_dpp v{v}, v{v}, v{v} row_ror:{r} row_mask:0xf bank_mask:0xf')
        for sw in hi:
            for v,t in zip(vs,ts): a(f'v_mov_b32 v{t}, v{v}')
            for v,t in zip(vs,ts): a(f'v_permlane{sw}_swap_b32 v{v}, v{t}')
            for v,t in zip(vs,ts): a(f'{op} v{v}, v{v}, v{t}')
    vMask=157
    def tag4(v):
        for k in range(4): a(f'v_bfi_b32 v{v+k}, v{vMask}, s{sT if k%2==0 else sT1}, v{v+k}')
    def chk(acc,regs_mt,regs_full,acc2,dst=None):
        X=[]
        for i,v in enumerate(regs_mt):
            for k in range(4):
                d=(v if dst is None else dst+4*i)+k; X.append(d)
                a(f'v_xor_b32 v{d}, s{sTm if k%2==0 else sT1}, v{v+k}')
        a(f'v_or3_b32 v{acc}, v{X[0]}, v{X[1]}, v{X[2]}')
        for i in range(3,len(X)-1,2): a(f'v_or3_b32 v{acc}, v{acc}, v{X[i]}, v{X[i+1]}')
        a(f'v_bitop3_b32 v{acc}, v{acc}, v{X[-1]}, v{vMask} bitop3:0xa8')
        for v in regs_full: a(f'v_bitop3_b32 v{acc}, v{v}, s{sT}, v{acc} bitop3:0xbe')
        a(f'v_cmp_ne_u32 vcc, 0, v{acc}')
    def newtag(): return f's_add_u32 s{sT}, s{sT}, 1\ns_bfe_u32 s{sT1}, s{sT}, {(TB<<16)|TB:#x}\ns_and_b32 s{sTm}, s{sT}, {(1<<TB)-1:#x}'

    a(f'{NAME}:')
    if diag: a(f's_memrealtime s[{sSt0}:{sSt0+1}]')
    a(f's_cmp_ge_u32 s{sB}, 256\ns_cbranch_scc1 L_end')
    a('s_load_dwordx16 s[4:19], s[0:1], 0\ns_load_dwordx8 s[20:27], s[0:1], 64')
    if diag: a(f'v_mov_b32 v{vSt}, 0')
    a(f'v_lshrrev_b32 v1, 6, v0\nv_and_b32 v0, 63, v0\nv_readfirstlane_b32 s{sW}, v1')
    a(f's_and_b32 s{sXj}, s{sB}, 7\ns_lshr_b32 s{sXi}, s{sB}, 3')
    a(f's_mul_i32 s{sF}, s{sXj}, 28\ns_add_u32 s{sF}, s{sF}, s{sXi}')
    a(f's_cmp_lt_u32 s{sXi}, 28\ns_cselect_b32 s{sF}, s{sF}, 0x100000')
    if mapping=='hx': a(f's_xor_b32 s{sH}, s{sXj}, {hxor}\ns_mov_b32 s{sC}, s{sXi}')
    else: a(f's_lshr_b32 s{sH}, s{sB}, 5\ns_and_b32 s{sC}, s{sB}, 31')
    sCq=95
    a(f's_xor_b32 s{sCq}, s{sC}, {qx}')
    a(f's_mov_b32 s{sTO}, 200000\ns_mov_b32 s{sFull}, -1\ns_mov_b32 s{sGend}, {INF:#x}')
    a(f'v_lshrrev_b32 v2, 4, v0\nv_and_b32 v3, 15, v0')
    a(f's_cmp_lg_u32 s{sW}, 0\ns_cbranch_scc1 L_cons')
    vK0,vV0,vWQ,vFF,vFA,vRA,vF,vX,vTQ=4,8,10,11,12,13,14,20,21
    a('s_setprio 3')
    a(f'v_lshlrev_b32 v{vX}, 4, v0')
    a(f'v_lshrrev_b32 v{vWQ}, 2, v0\nv_lshlrev_b32 v{vWQ}, 13, v{vWQ}\nv_lshlrev_b32 v1, 1, v2\nv_xor_b32 v1, v1, v0\nv_and_b32 v1, 3, v1\nv_lshl_add_u32 v{vWQ}, v1, 4, v{vWQ}')
    a(f's_and_b32 s{sTmp}, s{sCq}, 7\ns_lshl_b32 s{sTmp}, s{sTmp}, 7\ns_bfe_u32 s{sTmp2}, s{sCq}, 0x10003\ns_lshl_b32 s{sTmp2}, s{sTmp2}, 6\ns_add_u32 s{sTmp}, s{sTmp}, s{sTmp2}')
    a(f's_lshl_b32 s{sTmp2}, s{sH}, 10\ns_add_u32 s{sTmp}, s{sTmp}, s{sTmp2}\ns_lshr_b32 s{sTmp2}, s{sCq}, 4\ns_lshl_b32 s{sTmp2}, s{sTmp2}, 21\ns_add_u32 s{sVo}, s{sTmp}, s{sTmp2}')
    a(f'v_xor_b32 v{vK0}, v2, v3\nv_lshlrev_b32 v{vK0}, 4, v{vK0}\nv_lshl_add_u32 v{vK0}, v2, 8, v{vK0}')
    for k in (1,2,3): a(f'v_xor_b32 v{vK0+k}, {64*k}, v{vK0}')
    a(f'v_lshlrev_b32 v{vV0}, 1, v2\nv_xor_b32 v{vV0}, v{vV0}, v3\nv_lshlrev_b32 v{vV0}, 4, v{vV0}\nv_lshl_add_u32 v{vV0}, v2, 8, v{vV0}\nv_xor_b32 v{vV0+1}, 128, v{vV0}')
    a(f'v_lshrrev_b32 v{vFF}, 3, v0\nv_mul_u32_u24 v{vFF}, 3584, v{vFF}\nv_lshlrev_b32 v1, 1, v2\nv_xor_b32 v1, v1, v0\nv_and_b32 v1, 7, v1\nv_lshl_add_u32 v{vFF}, v1, 4, v{vFF}')
    a(f's_and_b32 s{sTmp}, s{sF}, 7\ns_mul_i32 s{sTmp}, s{sTmp}, {64*3584}\ns_lshr_b32 s{sCnt}, s{sF}, 3\ns_lshl_b32 s{sCnt}, s{sCnt}, 7\ns_add_u32 s{sCnt}, s{sCnt}, s{sTmp}')
    a(f'v_mov_b32 v{vFA}, {L_FULL}\nv_mov_b32 v{vRA}, {L_REL}\nv_mov_b32 v{vF}, -1\nv_mov_b32 v{vF+1}, {INF:#x}\nds_write_b64 v{vFA}, v[{vF}:{vF+1}]')
    a(f's_lshl_b32 s{sKb}, s{sH}, 24\ns_lshl_b32 s{sTmp}, s{sC}, 19\ns_add_u32 s{sKb}, s{sKb}, s{sTmp}\ns_mov_b32 s{sKo}, 0')
    if rot:
        a(f's_mul_i32 s{sTmp}, s{sC}, {rot[0]}\ns_mul_i32 s{sTmp2}, s{sH}, {rot[1]}\ns_add_u32 s{sTmp}, s{sTmp}, s{sTmp2}\ns_and_b32 s{sTmp}, s{sTmp}, {rot[2] if len(rot)>2 else 31}\ns_lshl_b32 s{sKo}, s{sTmp}, {rot[3] if len(rot)>3 else 14}')
    for j,m in enumerate(LX or []):
        if m: a(f's_bitcmp1_b32 s{sKb}, {19+j}\ns_cselect_b32 s{sTmp}, {m<<13:#x}, 0\ns_xor_b32 s{sKb}, s{sKb}, s{sTmp}')
    def wrap(so):
        if rot: a(f's_and_b32 s{so}, s{so}, 0x7ffff')
    a(f's_mov_b32 m0, {L_X:#x}')
    a('s_waitcnt lgkmcnt(0)')
    dK,dV,dWQ,dWG,dWU,dXl,dWSl=28,32,36,40,44,84,88
    srd(dXl,pX,1024)
    a(f'buffer_load_dwordx4 v{vX}, s[{dXl}:{dXl+3}], 0 offen lds')
    srd(dWQ,pWQ,512*4096*2)
    stamp(10)
    issued=[1]; pub=[-1]
    def pubv(v): a(f'v_mov_b32 v{vF}, {v}\nds_write_b32 v{vFA}, v{vF}')
    def pace():
        if issued[0]>W:
            a(f's_waitcnt vmcnt({W})')
            g=(issued[0]-W-1)//8
            if g>pub[0]:
                pub[0]=g; pubv(g); stamp(11+g)
    def sub(kind, g, sb):
        base=(g%R)*SLOT+4096*sb
        a(f's_mov_b32 m0, {base:#x}')
        for k in range(4):
            n=4*sb+k
            if kind=='K':
                if k==0: a(f's_add_u32 s{sTmp}, s{sKo}, {4096*sb+8192*(g-4)}\ns_xor_b32 s{sTmp}, s{sTmp}, s{sKb}')
                a(f'buffer_load_dwordx4 v{vK0+k}, s[{dK}:{dK+3}], s{sTmp} offen offset:{1024*k} {pol} lds')
            elif kind in('WQ0','WQ1'):
                n+=8*(kind=='WQ1')
                a(f's_add_u32 s{sTmp}, s{sVo}, {16*8192*n-1024*k}')
                a(f'buffer_load_dwordx4 v{vWQ}, s[{dWQ}:{dWQ+3}], s{sTmp} offen offset:{1024*k} {wpol} lds')
            elif kind in('G','U'):
                d=dWG if kind=='G' else dWU
                a(f's_add_u32 s{sTmp}, s{sCnt}, {8*3584*n-1024*k}')
                a(f'buffer_load_dwordx4 v{vFF}, s[{d}:{d+3}], s{sTmp} offen offset:{1024*k} {wpol} lds')
        issued[0]+=4
    barrier_done=False
    for g,kind in enumerate(['WQ0','WQ1','G','U','K','K']):
        if kind=='G': srd(dWG,pWG,512*1792*2); srd(dWU,pWU,512*1792*2); srd(dK,pK,1<<27); srd(dV,pV,1<<27)
        for sb in range(2):
            if issued[0]>W and not barrier_done:
                a('s_barrier'); barrier_done=True
            pace(); sub(kind,g,sb)
    assert barrier_done
    if diag: srd(dWSl,pWS,WS_SZ)
    assert pub[0]>=2
    a(f's_mov_b32 s{sVo}, s{sKo}\ns_add_u32 s{sKo}, s{sKo}, 16384'); wrap(sKo)
    a(f's_mov_b32 s{sG}, 6\ns_mov_b32 s{sSlot}, {6*SLOT}\ns_mov_b32 s{sMin}, 0\ns_mov_b32 s{sJ}, 1\ns_mov_b32 s{sFull}, {pub[0]}\ns_mov_b32 s{sCg}, 0')
    def relcheck():
        ok=lab('rok'); p=lab('rp')
        a(f's_sub_i32 s{sGmR}, s{sG}, {R}\ns_cmp_gt_i32 s{sMin}, s{sGmR}\ns_cbranch_scc1 {ok}')
        a(f'{p}:\nds_read_b128 v[16:19], v{vRA}\nds_read_b32 v15, v{vRA} offset:16'); timeout()
        a(f's_waitcnt lgkmcnt(0)\nv_min3_i32 v16, v16, v17, v18\nv_min3_i32 v16, v16, v19, v15\nv_readfirstlane_b32 s{sMin}, v16\ns_cmp_gt_i32 s{sMin}, s{sGmR}\ns_cbranch_scc0 {p}\n{ok}:')
    def adv():
        a(f's_add_u32 s{sG}, s{sG}, 1\ns_add_u32 s{sSlot}, s{sSlot}, {SLOT}\ns_cmp_eq_u32 s{sSlot}, {RING}\ns_cselect_b32 s{sSlot}, 0, s{sSlot}')
    def batch(kind,sb):
        so=sKo if kind=='K' else sVo
        if sb==0: a(f's_mov_b32 m0, s{sSlot}')
        else: a(f's_add_u32 m0, s{sSlot}, 4096')
        a(f's_xor_b32 s{sTmp}, s{so}, s{sKb}' if sb==0 else f's_xor_b32 s{sTmp}, s{so}, s{sKb}\ns_add_u32 s{sTmp}, s{sTmp}, 4096')
        for k in range(4):
            if kind=='K': a(f'buffer_load_dwordx4 v{vK0+k}, s[{dK}:{dK+3}], s{sTmp} offen offset:{1024*k} {pol} lds')
            else: a(f'buffer_load_dwordx4 v{vV0+(k&1)}, s[{dV}:{dV+3}], s{sTmp} offen offset:{1024*k} {vpol} lds')
    def pubrel(d):
        a((f's_sub_u32 s{sTmp}, s{sG}, {-d}' if d<0 else f's_add_u32 s{sTmp}, s{sG}, {d}')+f'\ns_max_i32 s{sFull}, s{sFull}, s{sTmp}\nv_mov_b32 v{vF}, s{sFull}\nds_write_b32 v{vFA}, v{vF}')
    def dyn_group(kind,W,mid=None):
        relcheck()
        for sb in range(2):
            a(f's_waitcnt vmcnt({W})')
            c0,c1=-(-W//8),-(-(W-4)//8)
            if sb==(c1<c0): pubrel(-c1)
            batch(kind,sb)
        if mid: mid()
        so=sKo if kind=='K' else sVo
        a(f's_add_u32 s{so}, s{so}, 8192'); wrap(so)
        adv()
    def lstamp():
        if diag:
            l=lab('nost')
            a(f's_and_b32 s{sTmp}, s{sJ}, 7\ns_cmp_eq_u32 s{sTmp}, 0\ns_cbranch_scc0 {l}\ns_lshr_b32 s{sTmp}, s{sJ}, 3\ns_add_u32 s{sTmp}, s{sTmp}, 2\ns_min_u32 s{sTmp}, s{sTmp}, 9\ns_mov_b32 m0, s{sTmp}')
            a(f's_memrealtime s[{sSt}:{sSt+1}]\ns_waitcnt lgkmcnt(0)\nv_writelane_b32 v{vSt}, s{sSt}, m0\n{l}:')
    def moderead(): a(f'ds_read_b32 v{vTQ}, v{vFA} offset:12')
    if fb: moderead()
    for kind,jend in (('K',S//2),('V',S-nend//2)):
        a(f'L_ltop{kind}:')
        if fb:
            a(f's_waitcnt lgkmcnt(0)\nv_readfirstlane_b32 s{sTmp}, v{vTQ}')
            for mi in range(1,len(modes)): a(f's_cmp_eq_u32 s{sTmp}, {mi}\ns_cbranch_scc1 L_lloop{kind}{mi}')
        for mi,Np in enumerate(modes):
            W=Np-4; assert W<=59
            a(f'L_lloop{kind}{mi}:')
            if diag: a(f's_add_u32 s{sCg}, s{sCg}, {1<<(8*mi)}')
            dyn_group(kind,W); dyn_group(kind,W,moderead if fb else None)
            lstamp()
            a(f's_add_u32 s{sJ}, s{sJ}, 1\ns_cmp_lt_u32 s{sJ}, {jend}\ns_cbranch_scc1 L_ltop{kind}')
            if mi<len(modes)-1: a(f's_branch L_lend{kind}')
        a(f'L_lend{kind}:')
    W=Nend-4
    for i in range(nend): dyn_group('V',W)
    a(f'v_mov_b32 v{vF+1}, 0\nds_write_b32 v{vFA}, v{vF+1} offset:4')
    stamp(1)
    for left in range(8*((W-1)//8),-1,-8):
        a(f'v_mov_b32 v{vF}, {GT-left//8}\ns_waitcnt vmcnt({left})\nds_write_b32 v{vFA}, v{vF}')
    stamp(2)
    if diag: a(f'v_writelane_b32 v{vSt}, s{sJ}, 16\nv_writelane_b32 v{vSt}, s{sCg}, 17')
    stamp_out(dWSl)
    a('s_endpgm')
    a('L_cons:'); role[0]='C'
    vFA,vRA,vKp,vVp,vM,vMb,vL,vTm=4,5,6,7,8,9,10,11
    vQ=12; vO=28; vK=60; vV=92; vS=124; vA=132; vP=140; vT=144; vAd=148; vL16=156; vX1=160
    dWS,dWD,dWO,dOUT=28,36,40,44
    a(f's_sub_u32 s{sCw}, s{sW}, 1')
    a(f'v_mov_b32 v{vFA}, {L_FULL}\ns_lshl_b32 s{sTmp}, s{sCw}, 2\ns_add_u32 s{sTmp}, s{sTmp}, {L_REL}\nv_mov_b32 v{vRA}, s{sTmp}')
    a(f's_add_u32 s{sG}, s{sCw}, 4')
    a(f's_cmp_eq_u32 s{sCw}, 0\ns_cselect_b32 s{sTmp}, 0, s{sG}\ns_cmp_eq_u32 s{sCw}, 4\ns_cselect_b32 s{sTmp}, 2, s{sTmp}\nv_mov_b32 v1, s{sTmp}\nds_write_b32 v{vRA}, v1')
    a(f'v_mov_b32 v1, 0\nds_write_b32 v{vFA}, v1 offset:8\nds_write_b32 v{vFA}, v1 offset:12\nds_write_b32 v{vRA}, v1 offset:{L_PF-L_REL}\nds_write_b32 v{vRA}, v1 offset:{L_PF2-L_REL}')
    a(f's_mov_b32 s{sScale}, {SCALE:#x}\ns_mov_b32 s{sL2e}, {LOG2E:#x}\nv_mov_b32 v{vMask}, {(1<<TB)-1:#x}')
    a(f'v_xor_b32 v{vKp}, v2, v3\nv_lshlrev_b32 v{vKp}, 4, v{vKp}\nv_lshl_add_u32 v{vKp}, v3, 8, v{vKp}')
    a(f'v_lshrrev_b32 v1, 2, v3\nv_lshl_add_u32 v1, v2, 2, v1\nv_and_b32 v{vVp}, 7, v1\nv_lshlrev_b32 v{vVp}, 5, v{vVp}\nv_lshl_add_u32 v{vVp}, v1, 8, v{vVp}\nv_and_b32 v{vTm}, 3, v0\nv_lshl_add_u32 v{vVp}, v{vTm}, 3, v{vVp}')
    a(f'v_lshlrev_b32 v{vL16}, 4, v0')
    a(f's_lshl_b32 s{sCg}, s{sXj}, 4\ns_add_u32 s{sCg}, s{sCg}, s{sXi}')
    a('s_waitcnt lgkmcnt(0)')
    a(f's_load_dword s{sT}, s[{pWS}:{pWS+1}], 0')
    a(f's_and_b32 s{sTmp}, s{sCg}, 127\ns_lshl_b32 s{sTmp}, s{sTmp}, 3\ns_load_dwordx2 s[{sXf}:{sXf+1}], s[{pX}:{pX+1}], s{sTmp}')
    srd(dWS,pWS,WS_SZ); srd(dWD,pWD,1792*512*2); srd(dWO,pWO,4096*512*2); srd(dOUT,pOUT,1024)
    a('s_barrier')
    w0,w1,w2,w3=vQ+8,vQ+9,vQ+10,vQ+11
    def wait_q(l,v):
        a(f'{l}:\nds_read_b32 v{v}, v{vFA} offset:8'); timeout()
        a(f's_waitcnt lgkmcnt(0)\nv_readfirstlane_b32 s{sLoc}, v{v}\ns_cmp_eq_u32 s{sLoc}, 0\ns_cbranch_scc1 {l}')
    def st2(loc,*st):
        l1,l2=lab('sl'),lab('sd')
        a(f's_cbranch_scc1 {l1}')
        for x in st: a(x+' sc1')
        a(f's_branch {l2}\n{l1}:')
        for x in st: a(x)
        a(f'{l2}:')
    a(f's_and_b32 s{sTmp}, s{sCw}, 3\ns_cmp_eq_u32 s{sTmp}, 0\ns_cbranch_scc1 L_ln')
    sPr=84; po_=[((i&1)<<12)+((i>>1&1)<<14)+((i>>2)<<7) for i in range(6)]
    a(f's_cmp_ge_u32 s{sCw}, {4-nvote}\ns_cbranch_scc0 L_waitq')
    a(f's_lshl_b32 s{sTmp}, s{sXi}, 15\ns_lshl_b32 s{sTmp2}, s{sXj}, 9\ns_add_u32 s{sTmp}, s{sTmp}, s{sTmp2}\ns_and_b32 s{sTmp2}, s{sCw}, 1\ns_lshl_b32 s{sTmp2}, s{sTmp2}, 8\ns_add_u32 s{sTmp}, s{sTmp}, s{sTmp2}\ns_add_u32 s{sKo}, s{sTmp}, {W_CAL:#x}\ns_add_u32 s{sKo+1}, s{sKo}, 0x2000')
    if wsw:
        a(f'v_and_b32 v{w0}, 7, v0\nv_lshlrev_b32 v{w0}, 12, v{w0}\nv_lshrrev_b32 v{w1}, 3, v0\nv_lshl_add_u32 v{w0}, v{w1}, 7, v{w0}\nv_mov_b32 v{w1}, 1\ns_mov_b64 exec, 0xffff')
        a(f'buffer_store_dword v{w1}, v{w0}, s[{dWS}:{dWS+3}], s{sKo} offen {wpolw}\ns_mov_b64 exec, -1\ns_mov_b32 s{sTmp3}, -1\ns_waitcnt vmcnt(0) lgkmcnt(0)')
    elif pv!='D': a(f's_waitcnt lgkmcnt(0)\ns_add_u32 s{sTmp3}, s{sT}, 1')
    a(f's_getreg_b32 s{sXcc}, hwreg(HW_REG_XCC_ID, 2, 1)\ns_mov_b32 s{sTmp}, 0\ns_mov_b32 s{sCnt}, s{sXcc}')
    if pv!='A':
        a(f's_and_b32 s{sTmp2}, s{sXi}, 1\ns_xor_b32 s{sCnt}, s{sCnt}, s{sTmp2}\ns_lshl_b32 s{sTmp2}, s{sTmp2}, 13\ns_add_u32 s{sKo}, s{sKo}, s{sTmp2}\ns_xor_b32 s{sKo+1}, s{sKo}, 0x2000')
    if pv!='D':
        for i in range(2*npair): a(f's_mov_b32 s{sPr+i}, s{sTmp3}')
    od=lambda i: (0,1) if i%2==0 or pv!='A' else (1,0)
    if pv=='D':
        a(f's_load_dword s{sTmp2}, s[{pWS}:{pWS+1}], s{sKo} offset:0x40\ns_waitcnt lgkmcnt(0)')
        for i in range(npair):
            for k in (0,1):
                l=lab('sp')
                a(f's_load_dword s{sPr}, s[{pWS}:{pWS+1}], s{sKo+k} offset:{po_[i]:#x}\n{l}:\ns_{"add" if k else "sub"}_u32 s{sTmp}, s{sTmp}, 1')
                timeout()
                a(f's_getreg_b32 s{sTmp2}, hwreg(HW_REG_IB_STS, 8, 4)\ns_cmp_lg_u32 s{sTmp2}, 0\ns_cbranch_scc1 {l}')
        a(f's_ashr_i32 s{sTmp}, s{sTmp}, {cut}\ns_min_i32 s{sTmp}, s{sTmp}, 7\ns_max_i32 s{sTmp}, s{sTmp}, -7')
    elif pv=='C':
        a(f's_load_dword s{sTmp2}, s[{pWS}:{pWS+1}], s{sKo} offset:0x40\ns_waitcnt lgkmcnt(0)')
        for i in range(npair):
            for k in (0,1):
                l=lab('sp')
                a(f's_load_dword s{sPr+2*i+k}, s[{pWS}:{pWS+1}], s{sKo+k} offset:{po_[i]:#x}\ns_mov_b32 s{sTmp2}, 200\n{l}:')
                a(f's_{"add" if k else "sub"}_u32 s{sTmp}, s{sTmp}, 1\ns_sub_u32 s{sTmp2}, s{sTmp2}, 1\ns_cbranch_scc1 {l}x\ns_cmp_eq_u32 s{sPr+2*i+k}, s{sTmp3}\ns_cbranch_scc1 {l}\n{l}x:')
        a(f's_ashr_i32 s{sTmp}, s{sTmp}, {cut}\ns_min_i32 s{sTmp}, s{sTmp}, 7\ns_max_i32 s{sTmp}, s{sTmp}, -7')
    else:
        for i in range(npair):
            for k in od(i): a(f's_load_dword s{sPr+2*i+k}, s[{pWS}:{pWS+1}], s{sKo+k} offset:{po_[i]:#x}')
        a(f's_waitcnt lgkmcnt({2*npair-cut})')
        sSn=36 if pv=='B' else sPr
        if pv=='B':
            for i in range(npair): a(f's_mov_b64 s[{sSn+2*i}:{sSn+2*i+1}], s[{sPr+2*i}:{sPr+2*i+1}]')
        for i in range(npair):
            for k in od(i): a(f's_cmp_lg_u32 s{sSn+2*i+k}, s{sTmp3}\n'+(f's_subb_u32' if k else 's_addc_u32')+f' s{sTmp}, s{sTmp}, 0')
    a(f's_sub_u32 s{sTmp2}, 0, s{sTmp}\ns_cmp_eq_u32 s{sCnt}, 0\ns_cselect_b32 s{sTmp}, s{sTmp}, s{sTmp2}\ns_add_u32 s{sTmp}, s{sTmp}, 8')
    if diag: a(f'v_writelane_b32 v{vSt}, s{sTmp}, 16')
    a(f's_lshl_b32 s{sXcc}, s{sXcc}, 7\ns_add_u32 s{sTmp}, s{sTmp}, s{sXcc}\ns_add_u32 s{sTmp2}, s{sT}, 1\ns_lshl_b32 s{sTmp2}, s{sTmp2}, 8\ns_add_u32 s{sTmp}, s{sTmp}, s{sTmp2}\nv_mov_b32 v{w0}, s{sTmp}')
    a(f's_lshl_b32 s{sTmp}, s{sXj}, 5\ns_add_u32 s{sTmp}, s{sTmp}, s{sXi}\ns_lshl_b32 s{sTmp}, s{sTmp}, 2\ns_sub_u32 s{sTmp2}, 3, s{sCw}\ns_lshl_b32 s{sTmp2}, s{sTmp2}, 10\ns_add_u32 s{sTmp}, s{sTmp}, s{sTmp2}')
    a(f's_add_u32 s{sTmp}, s{sTmp}, {W_VT:#x}\ns_mov_b64 exec, 1\nbuffer_store_dword v{w0}, off, s[{dWS}:{dWS+3}], s{sTmp} sc1\ns_mov_b64 exec, -1')
    wait_q('L_waitq',w0)
    a(newtag()+'\ns_branch L_qready')
    a('L_ln:')
    vx=vK; vxf=vK+4; vWD=vO; vXf=vV
    wait_full(-1,vT,vFA)
    a(f'v_add_u32 v{vT}, {L_X}, v{vL16}\nds_read_b128 v[{vx}:{vx+3}], v{vT}')
    a(newtag())
    stamp(1)
    a('s_waitcnt lgkmcnt(0)')
    for j in range(4): a(f'v_lshlrev_b32 v{vxf+2*j}, 16, v{vx+j}\nv_and_b32 v{vxf+2*j+1}, 0xffff0000, v{vx+j}')
    t0=vxf+8; t1=t0+1; t2=t0+2; vd=t0+4
    a(f'v_add_f32 v{t0}, v{vxf}, v{vxf+1}\nv_add_f32 v{t1}, v{vxf+2}, v{vxf+3}\nv_add_f32 v{t2}, v{vxf+4}, v{vxf+5}\nv_add_f32 v{t0}, v{t0}, v{t1}\nv_add_f32 v{t1}, v{vxf+6}, v{vxf+7}\nv_add_f32 v{t0}, v{t0}, v{t2}\nv_add_f32 v{t0}, v{t0}, v{t1}')
    allred('v_add_f32',[t0],[t1])
    a(f'v_mul_f32 v{t0}, {f2u(1/512.):#x}, v{t0}')
    for j in range(8): a(f'v_sub_f32 v{vd+j}, v{vxf+j}, v{t0}')
    a(f'v_mul_f32 v{t2}, v{vd}, v{vd}')
    for j in range(1,8): a(f'v_fmac_f32 v{t2}, v{vd+j}, v{vd+j}')
    allred('v_add_f32',[t2],[t1])
    a(f'v_mul_f32 v{t2}, {f2u(1/512.):#x}, v{t2}')
    bfr(t0,t0); bfr(t2,t2)
    a(f'v_add_f32 v{t2}, {f2u(1e-5):#x}, v{t2}'); bfr(t2,t2)
    a(f'v_sqrt_f32 v{t2}, v{t2}'); bfr(t2,t2)
    a(f'v_rcp_f32 v{t2}, v{t2}')
    for j in range(8): a(f'v_sub_f32 v{vd+j}, v{vxf+j}, v{t0}')
    for j in range(4): a(f'v_cvt_pk_bf16_f32 v{vx+j}, v{vd+2*j}, v{vd+2*j+1}')
    for j in range(4): a(f'v_lshlrev_b32 v{vd+2*j}, 16, v{vx+j}\nv_and_b32 v{vd+2*j+1}, 0xffff0000, v{vx+j}')
    for j in range(8): a(f'v_mul_f32 v{vd+j}, v{vd+j}, v{t2}')
    for j in range(4): a(f'v_cvt_pk_bf16_f32 v{vx+j}, v{vd+2*j}, v{vd+2*j+1}')
    a(f's_lshl_b32 s{sTmp}, s{sCw}, 8\ns_add_u32 s{sTmp}, s{sTmp}, {L_XN}\nv_add_u32 v{t0}, s{sTmp}, v{vL16}\nds_write_b128 v{t0}, v[{vx}:{vx+3}]')
    a(f's_cmp_eq_u32 s{sCw}, 0\ns_cbranch_scc0 L_help')
    a(f's_lshr_b32 s{sTmp2}, s{sCq}, 4\ns_lshl_b32 s{sTmp2}, s{sTmp2}, 9\ns_add_u32 s{sTmp}, s{sTmp}, s{sTmp2}\nv_lshl_add_u32 v{t0}, v2, 3, s{sTmp}')
    for j in range(8): a(f'ds_read2_b64 v[{vXf+4*j}:{vXf+4*j+3}], v{t0} offset0:{8*j} offset1:{8*j+4}')
    vD=vQ; vpt=vT; vB=vK
    a(f'v_lshlrev_b32 v{vpt}, 6, v1\nv_lshl_add_u32 v{vpt}, v{vTm}, 3, v{vpt}\nv_and_b32 v{vpt+1}, 1, v2\nv_lshl_add_u32 v{vpt}, v{vpt+1}, 5, v{vpt}\nv_xor_b32 v{vpt+1}, 32, v{vpt}')
    a(f's_getreg_b32 s{sXcc}, hwreg(HW_REG_XCC_ID, 0, 4)\ns_waitcnt lgkmcnt(2)')
    stamp(2)
    def qgemv(s0,s1):
        seq=[(s,j) for s in range(s0,s1) for j in range(2)]
        def rd(i):
            s,j=seq[i]; b=vB+4*(i%8)
            a(f'ds_read_b64_tr_b16 v[{b}:{b+1}], v{vpt+j} offset:{2048*s}\nds_read_b64_tr_b16 v[{b+2}:{b+3}], v{vpt+j} offset:{2048*s+1024}')
        for i in range(5): rd(i)
        for i in range(len(seq)):
            if i+5<len(seq): rd(i+5)
            a(f's_waitcnt lgkmcnt({2*(min(i+5,len(seq)-1)-i)})')
            s,j=seq[i]; b=vB+4*(i%8)
            a(f'v_mfma_f32_16x16x32_bf16 v[{vD+4*j}:{vD+4*j+3}], v[{b}:{b+3}], v[{vXf+4*s}:{vXf+4*s+3}], '+('0' if s==0 else f'v[{vD+4*j}:{vD+4*j+3}]'))
    wait_full(0,vT+2,vFA); qgemv(0,4)
    wait_full(1,vT+2,vFA); stamp(3); qgemv(4,8)
    a(f'v_mov_b32 v{w0}, 4\nds_write_b32 v{vRA}, v{w0}')
    a(f's_and_b32 s{sTmp}, s{sCq}, 7\ns_lshl_b32 s{sTmp}, s{sTmp}, 8\ns_bfe_u32 s{sTmp2}, s{sCq}, 0x10003\ns_lshl_b32 s{sTmp2}, s{sTmp2}, 7\ns_add_u32 s{sTmp}, s{sTmp}, s{sTmp2}')
    a(f's_lshr_b32 s{sTmp2}, s{sCq}, 4\ns_lshl_b32 s{sTmp2}, s{sTmp2}, 11\ns_add_u32 s{sTmp}, s{sTmp}, s{sTmp2}\ns_lshl_b32 s{sKo}, s{sH}, 12\ns_add_u32 s{sKo}, s{sKo}, {W_QG:#x}\ns_add_u32 s{sTmp}, s{sTmp}, s{sKo}')
    a(f'v_lshlrev_b32 v{vpt}, 4, v2\nv_lshl_add_u32 v{vpt}, v3, 6, v{vpt}\nv_add_u32 v{vpt}, s{sTmp}, v{vpt}')
    a(f's_lshl_b32 s{sVo}, s{sH}, 9\ns_add_u32 s{sVo}, s{sVo}, {W_QX:#x}\ns_lshl_b32 s{sTmp}, s{sC}, 4\ns_add_u32 s{sTmp}, s{sTmp}, s{sVo}')
    setexec(0x0002000200020002)
    for k in range(4): a(f'v_mov_b32 v{vD+k}, v{vD+4+k}')
    a('s_mov_b64 exec, -1'); tag4(vD)
    a(f's_mov_b64 exec, 4\nv_mov_b32 v{vD}, s{sXcc}\nv_mov_b32 v{vD+1}, s{sT}\nv_mov_b32 v{vD+2}, s{sXcc}\nv_mov_b32 v{vD+3}, s{sT}\nv_mov_b32 v{vpt}, s{sTmp}')
    def qpub(p):
        setexec(0x0003000300030007)
        a(f'buffer_store_dwordx4 v[{vD}:{vD+3}], v{vpt}, s[{dWS}:{dWS+3}], 0 offen {p}\ns_mov_b64 exec, -1')
    qpub('' if local else 'sc1')
    stamp(4)
    a(f'v_and_b32 v{vpt+1}, 0x1f0, v{vL16}\ns_mov_b32 s{sCnt}, {qfall}')
    a('L_qpoll:')
    for i in range(4): a(f'buffer_load_dwordx4 v[{vK+4*i}:{vK+4*i+3}], v{vL16}, s[{dWS}:{dWS+3}], s{sKo} offen offset:{1024*i} {LP("q")}')
    a(f'buffer_load_dwordx4 v[{vK+16}:{vK+19}], v{vpt+1}, s[{dWS}:{dWS+3}], s{sVo} offen {LP("q")}')
    timeout()
    a('s_waitcnt vmcnt(0)')
    chk(w0,[vK,vK+4,vK+8,vK+12],[vK+17,vK+19],w1)
    a(f's_cbranch_vccz L_qok\ns_sub_u32 s{sCnt}, s{sCnt}, 1\ns_cmp_eq_u32 s{sCnt}, 0\ns_cbranch_scc0 L_qpoll')
    qpub('sc1')
    a('s_branch L_qpoll\nL_qok:')
    for k in range(8): a(f'v_add_f32 v{vK+k}, v{vK+k}, v{vK+8+k}')
    for k in range(4): a(f'v_cvt_pk_bf16_f32 v{vK+k}, v{vK+2*k}, v{vK+2*k+1}')
    a(f'v_lshlrev_b32 v{vpt+1}, 3, v0\nv_add_u32 v{vpt+1}, {L_Q}, v{vpt+1}\nds_write2st64_b64 v{vpt+1}, v[{vK}:{vK+1}], v[{vK+2}:{vK+3}] offset0:0 offset1:1')
    a(f'v_cmp_ne_u32 vcc, s{sXcc}, v{vK+16}\ns_mov_b32 s{sLoc}, 1')
    if local: a(f's_cmp_eq_u64 vcc, 0\ns_cselect_b32 s{sLoc}, 2, 1')
    a(f'v_mov_b32 v{w0}, s{sLoc}\nds_write_b32 v{vFA}, v{w0} offset:8')
    a(f's_cmp_eq_u32 s{sLoc}, 2\ns_cbranch_scc1 L_qnorep'); qpub('sc1'); a('L_qnorep:')
    stamp(5)
    a('L_qready:')
    a(f'v_lshlrev_b32 v{vT}, 8, v{vTm}\nv_lshl_add_u32 v{vT}, v2, 4, v{vT}\nv_add_u32 v{vT}, {L_Q}, v{vT}')
    for s in range(4): a(f'ds_read_b128 v[{vQ+4*s}:{vQ+4*s+3}], v{vT} offset:{64*s}')
    acc=vO; GV=4+S; EX4=0x000f000f000f000f; sEx=84; sO1=sTmp3
    for i in range(8): a(f'v_mov_b32 v{acc+i}, 0')
    a(f'v_mov_b32 v{vM}, 0xff800000\nv_mov_b32 v{vL}, 0\ns_mov_b32 s{sCnt}, {S//4}\ns_lshl_b32 s{sSlot}, s{sG}, 13\ns_mov_b32 s{sEx}, 0x000f000f\ns_mov_b32 s{sEx+1}, 0x000f000f')
    vFl,vMT=164,168
    vSw,vPr,vCv,vMw,vMr,vV0,vV1,vpa,vpm=range(176,185)
    a(f'v_lshlrev_b32 v{vMr}, 4, v{vTm}\nv_lshl_add_u32 v{vPr}, v2, 6, v{vMr}\nv_add_u32 v{vPr}, {L_S}, v{vPr}\ns_lshl_b32 s{sTmp}, s{sCw}, 8\nv_add_u32 v{vSw}, s{sTmp}, v{vPr}')
    a(f's_add_u32 s{sTmp}, s{sTmp}, {L_S}\nv_lshlrev_b32 v{vCv}, 4, v3\nv_lshl_add_u32 v{vCv}, v2, 10, v{vCv}\nv_add_u32 v{vCv}, s{sTmp}, v{vCv}')
    a(f'v_add_u32 v{vMr}, {L_MT}, v{vMr}\ns_lshl_b32 s{sTmp}, s{sCw}, 2\nv_add_u32 v{vMw}, s{sTmp}, v{vMr}\ns_lshl_b32 s{sTmp}, s{sCw}, 6\nv_xor_b32 v{vV0}, s{sTmp}, v{vVp}\nv_xor_b32 v{vV1}, 32, v{vV0}')
    a(f's_lshl_b32 s{sTmp}, s{sH}, 17\ns_lshl_b32 s{sTmp2}, s{sC}, 7\ns_add_u32 s{sTmp}, s{sTmp}, s{sTmp2}\ns_lshl_b32 s{sTmp2}, s{sCw}, 13\ns_add_u32 s{sTmp}, s{sTmp}, s{sTmp2}\ns_add_u32 s{sKo}, s{sTmp}, {W_P2:#x}\ns_add_u32 s{sO1}, s{sKo}, 4096')
    a(f'v_lshlrev_b32 v{vpa}, 15, v{vTm}\nv_lshl_add_u32 v{vpa}, v2, 4, v{vpa}\nv_lshlrev_b32 v{vpm}, 9, v{vTm}')
    a(f's_lshl_b32 s{sTmp}, s{sH}, 11\ns_lshl_b32 s{sTmp2}, s{sC}, 4\ns_add_u32 s{sTmp}, s{sTmp}, s{sTmp2}\ns_add_u32 s{sVo}, s{sTmp}, {W_ML:#x}')
    stamp(6)
    def nextslot(n): a(f's_add_u32 s{sSlot}, s{sSlot}, {n*SLOT}\ns_sub_u32 s{sTmp}, s{sSlot}, {RING}\ns_cselect_b32 s{sSlot}, s{sSlot}, s{sTmp}')
    a('L_kstep:')
    wait_full(f's{sG}',vT,vFA)
    a(f'v_add_u32 v{vAd+4}, s{sSlot}, v{vKp}')
    for s_ in (1,2,3): a(f'v_xor_b32 v{vAd+4+s_}, {64*s_}, v{vAd+4}')
    for t in range(2):
        for s_ in range(4): a(f'ds_read_b128 v[{vK+16*t+4*s_}:{vK+16*t+4*s_+3}], v{vAd+4+s_} offset:{4096*t}')
    a(f's_add_u32 s{sG}, s{sG}, 4\ns_min_u32 s{sG}, s{sG}, {GV}\nv_mov_b32 v{vT}, s{sG}')
    for t in range(2):
        a(f's_waitcnt lgkmcnt({4-4*t})')
        if t==1: a(f'ds_write_b32 v{vRA}, v{vT}')
        for s_ in range(4):
            a(f'v_mfma_f32_16x16x32_bf16 v[{vS+4*t}:{vS+4*t+3}], v[{vK+16*t+4*s_}:{vK+16*t+4*s_+3}], v[{vQ+4*s_}:{vQ+4*s_+3}], '+('0' if s_==0 else f'v[{vS+4*t}:{vS+4*t+3}]'))
    nextslot(4)
    for j in range(4): a(f'v_cvt_pk_bf16_f32 v{vP+j}, v{vS+2*j}, v{vS+2*j+1}')
    a(f's_mov_b64 exec, s[{sEx}:{sEx+1}]\nds_write_b128 v{vSw}, v[{vP}:{vP+3}]\ns_mov_b64 exec, -1\nv_add_u32 v{vSw}, 1024, v{vSw}')
    a(f'v_max3_f32 v{vT+1}, v{vS}, v{vS+1}, v{vS+2}\nv_max3_f32 v{vT+2}, v{vS+3}, v{vS+4}, v{vS+5}\nv_max3_f32 v{vM}, v{vS+6}, v{vS+7}, v{vM}\nv_max3_f32 v{vM}, v{vT+1}, v{vT+2}, v{vM}')
    a(f's_sub_u32 s{sCnt}, s{sCnt}, 1\ns_cmp_lg_u32 s{sCnt}, 0\ns_cbranch_scc1 L_kstep')
    stamp(7)
    for i in range(4): a(f'ds_read_b128 v[{vK+4*i}:{vK+4*i+3}], v{vCv} offset:{4096*i}')
    allred('v_max_f32',[vM],[vT],lo=())
    def post(src,off,flag): a(f'v_mov_b32 v{vT}, 1\ns_mov_b64 exec, 15\nds_write_b32 v{vMw}, v{src} offset:{off}\nds_write_b32 v{vRA}, v{vT} offset:{flag-L_REL}\ns_mov_b64 exec, -1')
    def meet(l,off,flag):
        a(f's_branch {l}r\n{l}w:'); timeout()
        a(f's_waitcnt lgkmcnt(0)\n{l}r:\nds_read_b128 v[{vFl}:{vFl+3}], v{vFA} offset:{flag-L_FULL}\nds_read_b128 v[{vMT}:{vMT+3}], v{vMr} offset:{off}')
        a(f's_waitcnt lgkmcnt(1)\nv_min3_u32 v{vFl}, v{vFl}, v{vFl+1}, v{vFl+2}\nv_min_u32 v{vFl}, v{vFl}, v{vFl+3}\nv_cmp_eq_u32 vcc, 0, v{vFl}\ns_cbranch_vccnz {l}w\ns_waitcnt lgkmcnt(0)')
    post(vM,0,L_PF); meet('L_m',0,L_PF)
    a(f'v_max3_f32 v{vM}, v{vMT}, v{vMT+1}, v{vMT+2}\nv_max_f32 v{vM}, v{vM}, v{vMT+3}'); bfr(vM,vM)
    a(f'v_mul_f32 v{vM}, s{sScale}, v{vM}'); bfr(vM,vM)
    a(f'v_mul_f32 v{vMb}, s{sL2e}, v{vM}')
    for i in range(4):
        P=vK+4*i; A=vV+8*i
        for j in range(4): a(f'v_lshlrev_b32 v{A+2*j}, 16, v{P+j}\nv_and_b32 v{A+2*j+1}, 0xffff0000, v{P+j}')
        for j in range(8): a(f'v_mul_f32 v{A+j}, s{sScale}, v{A+j}')
        for j in range(4): a(f'v_cvt_pk_bf16_f32 v{P+j}, v{A+2*j}, v{A+2*j+1}')
        for j in range(4): a(f'v_lshlrev_b32 v{A+2*j}, 16, v{P+j}\nv_and_b32 v{A+2*j+1}, 0xffff0000, v{P+j}')
        for j in range(8): a(f'v_fma_f32 v{A+j}, v{A+j}, s{sL2e}, -v{vMb}')
        for j in range(8): a(f'v_exp_f32 v{A+j}, v{A+j}')
        for j in range(4): a(f'v_cvt_pk_bf16_f32 v{P+j}, v{A+2*j}, v{A+2*j+1}')
        a(f'ds_write_b128 v{vCv}, v[{P}:{P+3}] offset:{4096*i}')
        for w_ in (4,2,1):
            for j in range(w_): a(f'v_add_f32 v{A+j}, v{A+j}, v{A+j+w_}')
        a(f'v_add_f32 v{vL}, v{vL}, v{A}')
    allred('v_add_f32',[vL],[vT],lo=(4,8))
    post(vL,L_SL-L_MT,L_PF2); meet('L_l',L_SL-L_MT,L_PF2)
    a(f's_cmp_eq_u32 s{sCw}, 0\ns_cbranch_scc0 L_noml')
    a(f'v_add_f32 v{vMT}, v{vMT}, v{vMT+1}\nv_add_f32 v{vMT+2}, v{vMT+2}, v{vMT+3}\nv_add_f32 v{vMT+2}, v{vMT}, v{vMT+2}\nv_mov_b32 v{vMT}, v{vM}'); tag4(vMT)
    a(f's_mov_b64 exec, 15\ns_cmp_eq_u32 s{sLoc}, 2')
    st2(1,f'buffer_store_dwordx4 v[{vMT}:{vMT+3}], v{vpm}, s[{dWS}:{dWS+3}], s{sVo} offen')
    a(f's_mov_b64 exec, -1\nL_noml:\ns_mov_b32 s{sSlot}, {(GV%R)*SLOT}')
    stamp(8)
    def vrd(f,a0,a1):
        for j,va in enumerate((a0,a1)): a(f'ds_read_b64_tr_b16 v[{f+4*j}:{f+4*j+1}], v{va}\nds_read_b64_tr_b16 v[{f+4*j+2}:{f+4*j+3}], v{va} offset:4096')
    def vmm(f,P,j): a(f'v_mfma_f32_16x16x32_bf16 v[{acc+4*j}:{acc+4*j+3}], v[{f+4*j}:{f+4*j+3}], v[{P}:{P+3}], v[{acc+4*j}:{acc+4*j+3}]')
    a(f'L_vstep:\nv_add_u32 v{vAd}, s{sSlot}, v{vV0}\nv_add_u32 v{vAd+1}, s{sSlot}, v{vV1}\nds_read_b128 v[{vP}:{vP+3}], v{vPr}')
    wait_full(f's{sG}',vT,vFA)
    vrd(vV,vAd,vAd+1)
    a(f's_add_u32 s{sG}, s{sG}, 1\nv_mov_b32 v{vT}, s{sG}\nv_add_u32 v{vPr}, 256, v{vPr}'); nextslot(1)
    a('s_waitcnt lgkmcnt(2)'); vmm(vV,vP,0)
    a(f's_waitcnt lgkmcnt(0)\nds_write_b32 v{vRA}, v{vT}'); vmm(vV,vP,1)
    a(f's_cmp_lt_u32 s{sG}, {GT-nsp}\ns_cbranch_scc1 L_vstep')
    for t in range(nsp): a(f'ds_read_b128 v[{vK+4*t}:{vK+4*t+3}], v{vPr} offset:{256*t}')
    for t in range(nsp):
        o_=((GT-nsp+t)%R)*SLOT
        a(f'v_add_u32 v{vAd+2*t}, {o_}, v{vV0}\nv_add_u32 v{vAd+2*t+1}, {o_}, v{vV1}')
    stamp(12)
    for t in range(nsp):
        l=lab('vw'); l2=lab('vr'); f=vV+8*t
        a(f's_branch {l2}\n{l}:'); timeout()
        a(f's_waitcnt lgkmcnt(0)\n{l2}:\nds_read_b32 v{vT}, v{vFA}')
        vrd(f,vAd+2*t,vAd+2*t+1)
        a(f's_waitcnt lgkmcnt(4)\nv_cmp_ge_i32 vcc, {GT-nsp+t}, v{vT}\ns_cbranch_vccnz {l}')
        for j in range(2): a(f's_waitcnt lgkmcnt({2-2*j})'); vmm(f,vK+4*t,j)
    a(f's_cmp_eq_u32 s{sLoc}, 2\ns_cbranch_scc0 L_outg')
    for p in ('','sc1'):
        if p: a('L_outg:')
        a(f's_mov_b64 exec, s[{sEx}:{sEx+1}]')
        for j in range(2):
            tag4(acc+4*j)
            a(f'buffer_store_dwordx4 v[{acc+4*j}:{acc+4*j+3}], v{vpa}, s[{dWS}:{dWS+3}], s{sO1 if j else sKo} offen {p}')
        stamp(9)
        stamp_out(dWS)
        a('s_endpgm')
    a('L_help:')
    vWo=192
    def wo_loads():
        a(f's_lshl_b32 s{sTmp}, s{sH}, 5\ns_add_u32 s{sTmp}, s{sTmp}, s{sC}\ns_lshl_b32 s{sTmp}, s{sTmp}, 14')
        for i in range(16):
            a(f'buffer_load_dwordx4 v[{vWo+4*i}:{vWo+4*i+3}], v{vL16}, s[{dWO}:{dWO+3}], s{sTmp} offen offset:{1024*(i&3)} {wpol}')
            if i&3==3 and i<15: a(f's_add_u32 s{sTmp}, s{sTmp}, 4096')
    a(f's_cmp_lt_u32 s{sF}, 224\ns_cbranch_scc0 L_noffn')
    a(f's_and_b32 s{sTmp2}, s{sF}, 7\ns_lshl_b32 s{sTmp2}, s{sTmp2}, 7\ns_add_u32 s{sTmp}, s{sTmp2}, {L_XN+1024}\nv_lshl_add_u32 v{t0}, v2, 3, s{sTmp}')
    for j in range(2): a(f'ds_read2_b64 v[{vXf+4*j}:{vXf+4*j+3}], v{t0} offset0:{8*j} offset1:{8*j+4}')
    a(f'v_lshlrev_b32 v{vAd}, 7, v1\nv_lshl_add_u32 v{vAd}, v{vTm}, 3, v{vAd}\nv_bfe_u32 v{vAd+1}, v1, 1, 2\nv_lshl_add_u32 v{vAd}, v{vAd+1}, 5, v{vAd}')
    for j in (1,2,3): a(f'v_xor_b32 v{vAd+j}, {32*j}, v{vAd}')
    stamp(2)
    wait_full(1,vT,vFA)
    a(f's_lshl_b32 s{sTmp}, s{sF}, 13\ns_add_u32 s{sTmp2}, s{sTmp}, 4096')
    for j in range(8): a(f'buffer_load_dwordx4 v[{vWD+4*j}:{vWD+4*j+3}], v{vL16}, s[{dWD}:{dWD+3}], s{sTmp if j<4 else sTmp2} offen offset:{1024*(j&3)} {wpol}')
    vAc=vX1
    def fgemv(mat):
        seq=[(s,j) for s in range(2) for j in range(4)]
        base=(2+mat)*SLOT
        def rd(i):
            s,j=seq[i]; b=vB+4*i
            a(f'ds_read_b64_tr_b16 v[{b}:{b+1}], v{vAd+j} offset:{base+4096*s}\nds_read_b64_tr_b16 v[{b+2}:{b+3}], v{vAd+j} offset:{base+4096*s+2048}')
        for i in range(5): rd(i)
        for i in range(8):
            if i+5<8: rd(i+5)
            a(f's_waitcnt lgkmcnt({2*(min(i+5,7)-i)})')
            s,j=seq[i]; b=vB+4*i; d=vAc+16*mat+4*j
            a(f'v_mfma_f32_16x16x32_bf16 v[{d}:{d+3}], v[{b}:{b+3}], v[{vXf+4*s}:{vXf+4*s+3}], '+('0' if s==0 else f'v[{d}:{d+3}]'))
    wait_full(2,vT,vFA); fgemv(0)
    wait_full(3,vT,vFA); stamp(3); fgemv(1)
    a(f'v_mov_b32 v{w0}, {INF:#x}\nds_write_b32 v{vRA}, v{w0}')
    for n in range(1,8):
        setexec(0x0001000100010001<<n)
        for k in range(4): a(f'v_mov_b32 v{vAc+k}, v{vAc+4*n+k}')
    a('s_mov_b64 exec, -1'); tag4(vAc)
    wait_q('L_hq',w0)
    a(f's_lshr_b32 s{sTmp}, s{sF}, 3\ns_lshr_b32 s{sTmp}, {(1<<3)|(1<<10)|(1<<17)|(1<<24):#x}, s{sTmp}\ns_and_b32 s{sTmp}, s{sTmp}, 1\ns_sub_u32 s{sTmp2}, s{sLoc}, s{sTmp}')
    a(f's_lshl_b32 s{sTmp}, s{sF}, 9\ns_add_u32 s{sTmp}, s{sTmp}, {W_F1:#x}\nv_lshlrev_b32 v{vT}, 4, v2\nv_lshl_add_u32 v{vT}, v3, 6, v{vT}')
    setexec(0x00ff00ff00ff00ff)
    a(f's_cmp_eq_u32 s{sTmp2}, 2')
    st2(1,f'buffer_store_dwordx4 v[{vAc}:{vAc+3}], v{vT}, s[{dWS}:{dWS+3}], s{sTmp} offen')
    a('s_mov_b64 exec, -1')
    stamp(4)
    if not jwo: wo_loads()
    a(f's_and_b32 s{sTmp}, s{sF}, 0xf8\ns_lshl_b32 s{sTmp}, s{sTmp}, 9\ns_and_b32 s{sTmp2}, s{sF}, 7\ns_lshl_b32 s{sTmp2}, s{sTmp2}, 5\ns_add_u32 s{sTmp}, s{sTmp}, s{sTmp2}\ns_add_u32 s{sKo}, s{sTmp}, {W_F1:#x}')
    a(f'v_bfe_u32 v{vT+2}, v0, 1, 4\nv_lshlrev_b32 v{vT+2}, 8, v{vT+2}\nv_and_b32 v{vT+3}, 1, v0\nv_lshl_add_u32 v{vT+2}, v{vT+3}, 4, v{vT+2}')
    if f1wait: wait_full(f1wait,vT,vFA)
    gu=vK
    a('L_f1poll:')
    a(f'buffer_load_dwordx4 v[{gu}:{gu+3}], v{vT+2}, s[{dWS}:{dWS+3}], s{sKo} offen sc1')
    timeout()
    a('s_waitcnt vmcnt(0)')
    chk(vT,[gu],[],None)
    a('s_cbranch_vccnz L_f1poll')
    allred('v_add_f32',[gu,gu+1,gu+2,gu+3],[vA,vA+1,vA+2,vA+3],lo=(4,8),hi=(16,))
    for k in range(4): bfr(gu+k,gu+k)
    k1=-2*0.7978845608028654*1.4426950408889634
    hh=gu+4; up=gu+8
    for k in range(4): a(f'v_mov_b32_dpp v{up+k}, v{gu+k} quad_perm:[2,3,2,3] row_mask:0xf bank_mask:0xf')
    for k in range(4): a(f'v_mul_f32 v{hh+k}, v{gu+k}, v{gu+k}')
    for k in range(4): a(f'v_mul_f32 v{hh+k}, {f2u(0.044715):#x}, v{hh+k}')
    for k in range(4): a(f'v_fma_f32 v{hh+k}, v{hh+k}, v{gu+k}, v{gu+k}')
    for k in range(4): a(f'v_mul_f32 v{hh+k}, {f2u(k1):#x}, v{hh+k}')
    for k in range(4): a(f'v_exp_f32 v{hh+k}, v{hh+k}')
    for k in range(4): a(f'v_add_f32 v{hh+k}, 1.0, v{hh+k}')
    for k in range(4): a(f'v_rcp_f32 v{hh+k}, v{hh+k}')
    for k in range(4): a(f'v_mul_f32 v{hh+k}, v{gu+k}, v{hh+k}')
    for k in range(4): bfr(hh+k,hh+k)
    for k in range(4): a(f'v_mul_f32 v{hh+k}, v{hh+k}, v{up+k}')
    for k in range(4): bfr(hh+k,hh+k)
    acc=vV; un=vV+8
    for k in range(8): a(f'v_mov_b32 v{acc+k}, 0')
    for j in range(8):
        for k in range(4): a(f'v_lshlrev_b32 v{un+2*k}, 16, v{vWD+4*j+k}\nv_and_b32 v{un+2*k+1}, 0xffff0000, v{vWD+4*j+k}')
        for k in range(8): a(f'v_fmac_f32_dpp v{acc+k}, v{hh+(j&3)}, v{un+k} quad_perm:[{j>>2},{j>>2},{j>>2},{j>>2}] row_mask:0xf bank_mask:0xf')
    tag4(acc); tag4(acc+4)
    a(f's_lshl_b32 s{sTmp}, s{sF}, 7\ns_add_u32 s{sTmp}, s{sTmp}, {W_B3:#x}\ns_add_u32 s{sTmp2}, s{sTmp}, {8*28672}')
    a(f'v_lshrrev_b32 v{vT}, 3, v0\nv_mul_u32_u24 v{vT}, 28672, v{vT}\nv_and_b32 v{vT+1}, 7, v0\nv_lshl_add_u32 v{vT}, v{vT+1}, 4, v{vT}\ns_cmp_eq_u32 s{sLoc}, 2')
    st2(1,f'buffer_store_dwordx4 v[{acc}:{acc+3}], v{vT}, s[{dWS}:{dWS+3}], s{sTmp} offen',f'buffer_store_dwordx4 v[{acc+4}:{acc+7}], v{vT}, s[{dWS}:{dWS+3}], s{sTmp2} offen')
    stamp(5)
    a('s_branch L_ffndone')
    a(f'L_noffn:\nv_mov_b32 v{w0}, {INF:#x}\nds_write_b32 v{vRA}, v{w0}')
    wait_q('L_hq2',w0)
    if not jwo: wo_loads()
    a('s_waitcnt vmcnt(0)\nL_ffndone:')
    vWl=160
    def wo_perm(behind=0,last=None):
        a(f's_mov_b32 s{sTmp}, 0x05040100\ns_mov_b32 s{sTmp2}, 0x07060302')
        for r_ in range(8):
            if jwo and r_<7: a(f's_waitcnt vmcnt({14-2*r_+behind})')
            if r_==7 and last: last()
            for k in range(4):
                x,y=vWo+8*r_+k,vWo+8*r_+4+k
                a(f'v_perm_b32 v{vWl+4*r_+k}, v{y}, v{x}, s{sTmp}\nv_perm_b32 v{y}, v{y}, v{x}, s{sTmp2}')
    if not jwo: wo_perm()
    vb=vK; gg=vQ; v128=vAd; vga=vAd+1; vgm=vAd+2; vS3=vAd+3
    sP2,sS3w,sS3r=sG,sSlot,sSlotV
    sDp,sDr=86,87
    a(f'v_lshlrev_b32 v{gg+5}, 1, v2\nv_lshlrev_b32 v{v128}, 7, v0\nv_lshrrev_b32 v{vgm}, 2, v0\nv_lshlrev_b32 v{vga}, 7, v{vgm}\nv_lshl_add_u32 v{vga}, v{vTm}, 4, v{vga}\nv_lshlrev_b32 v{vgm}, 4, v{vgm}')
    a(f's_lshl_b32 s{sTmp}, s{sH}, 17\ns_lshl_b32 s{sTmp2}, s{sC}, 12\ns_add_u32 s{sTmp}, s{sTmp}, s{sTmp2}\ns_add_u32 s{sP2}, s{sTmp}, {W_P2:#x}')
    SB=(12,14,7,8,9,10,11,15,16)
    def spread_s(dst,src,nb,first,sh=0):
        for j in range(nb): a(f's_bfe_u32 s{sTmp2}, s{src}, {(1<<16)|(j+sh):#x}\ns_lshl_b32 s{sTmp2}, s{sTmp2}, {SB[first+j]}\ns_add_u32 s{dst}, s{dst}, s{sTmp2}')
    def spread_v(dst,sh,nb):
        for j in range(nb): a(f'v_bfe_u32 v{vT}, v0, {j+sh}, 1\n'+(f'v_lshl_add_u32 v{dst}, v{vT}, {SB[j]}, v{dst}' if j else f'v_lshlrev_b32 v{dst}, {SB[j]}, v{vT}'))
    vG3,vPre=vAd+4,vAd+5; sPre=14
    a(f'v_lshrrev_b32 v{vS3}, 3, v0\nv_lshlrev_b32 v{vS3}, 17, v{vS3}\nv_and_b32 v{vT}, 0x70, v{vL16}\nv_add_u32 v{vS3}, v{vS3}, v{vT}\ns_mov_b32 s{sS3w}, {W_S3:#x}')
    spread_s(sS3w,sXi,5,0); spread_s(sS3w,sXj,3,5)
    spread_v(vG3,0,6); spread_v(vPre,1,4)
    a(f'v_and_b32 v{vT}, 1, v0\nv_lshl_add_u32 v{vPre}, v{vT}, 6, v{vPre}\ns_lshl_b32 s{sS3r}, s{sXj}, 17\ns_add_u32 s{sS3r}, s{sS3r}, {W_S3:#x}')
    spread_s(sS3r,sXi,1,8)
    a(f's_mov_b32 s{sPre}, s{sS3r}'); spread_s(sPre,sXi,4,4,1)
    a(f's_and_b32 s{sTmp}, s{sCg}, 1\ns_lshl_b32 s{sTmp}, s{sTmp}, 3\ns_lshr_b32 s{sTmp2}, s{sCg}, 4\ns_add_u32 s{sTmp}, s{sTmp}, s{sTmp2}\ns_bfe_u32 s{sTmp2}, s{sCg}, 0x30001\ns_lshl_b32 s{sTmp2}, s{sTmp2}, 4')
    a(f's_add_u32 s{sS3r}, s{sS3r}, s{sTmp2}')
    a(f's_lshl_b32 s{sKo}, s{sTmp}, 10\ns_add_u32 s{sKo}, s{sKo}, s{sTmp2}\ns_add_u32 s{sKo}, s{sKo}, {W_B4:#x}')
    tk=vO
    mlast=min(mlast,2*S)
    def control(jend):
        l=lab('ctl'); sk=lab('cs')
        a(f'{l}:')
        wait_full(f's{sJ}',vT,vFA)
        if fb:
            a(f's_cmp_eq_u32 s{sLoc}, 2\ns_cbranch_scc0 {sk}')
            a(f's_add_u32 s{sTmp}, s{sMin}, s{sJ}\nv_mov_b32 v{tk}, s{sTmp}\ns_mov_b64 exec, 1\nbuffer_store_dword v{tk}, off, s[{dWS}:{dWS+3}], s{sKb}')
        if fb==5:
            l1,l2=lab('nr'),lab('np')
            a(f's_and_b32 s{sTmp}, s{sCnt}, 3\ns_add_u32 s{sTmp}, s{sTmp}, 28\ns_cmp_eq_u32 s{sTmp}, s{sXi}\ns_cselect_b32 s{sDp}, 1, 0\ns_add_u32 s{sCnt}, s{sCnt}, 1')
            a(f's_sub_u32 s{sGmR}, s{sGmR}, 1\ns_cselect_b32 s{sGmR}, {xev-1}, s{sGmR}\ns_cselect_b32 s{sDr}, s{sDp}, 0')
            a(f's_mul_i32 s{sTmp}, s{sDr}, 0xff0000\ns_or_b32 exec_hi, s{sTmp}, 1\ns_mov_b32 exec_lo, -1')
        elif fb: setexec(0xffffffff)
        if fb:
            a(f'buffer_load_dword v{tk+4}, v{tk+1}, s[{dWS}:{dWS+3}], 0 offen {LP("c")}\ns_waitcnt vmcnt(0)')
            a(f'v_sub_u32 v{tk+4}, v{tk+4}, v{tk+3}\nv_cmp_lt_u32 vcc, v{tk+4}, v{tk+6}\nv_cndmask_b32 v{tk+4}, v{tk+2}, v{tk+4}, vcc\ns_mov_b64 exec, -1')
            allred('v_add_u32',[tk+4],[tk+5],hi=())
            a(f'v_readlane_b32 s{sTmp}, v{tk+4}, 0\nv_readlane_b32 s{sTmp2}, v{tk+4}, 16\nv_readlane_b32 s{sTmp3}, v{tk+4}, 32\ns_add_u32 s{sTmp}, s{sTmp}, s{sTmp2}')
            d0=-256*(mk/2+tau)
        if fb==5:
            a(f's_cmp_eq_u32 s{sDp}, 0\ns_cbranch_scc1 {l2}\ns_lshl_b32 s{sDp}, s{sT}, 13\ns_add_u32 s{sTmp2}, s{sTmp}, s{sDp}\nv_mov_b32 v{tk}, s{sTmp2}\ns_mov_b64 exec, 1')
            a(f'buffer_store_dword v{tk}, off, s[{dWS}:{dWS+3}], s{sVo} offset:{0x480} sc1')
            a(f's_cmp_eq_u32 s{sDr}, 0\ns_cbranch_scc1 {l1}')
            a(f'v_readlane_b32 s{sTmp3}, v{tk+4}, 48\ns_lshl_b32 s{sTmp2}, s{sTmp}, 3\ns_sub_i32 s{sTmp3}, s{sTmp3}, s{sTmp2}\ns_add_i32 s{sTmp3}, s{sTmp3}, {int(256*xc)+4096}')
            a(f's_max_i32 s{sTmp3}, s{sTmp3}, 0\ns_min_i32 s{sTmp3}, s{sTmp3}, 8191\ns_add_u32 s{sTmp2}, s{sTmp3}, s{sDp}\nv_mov_b32 v{tk}, s{sTmp2}')
            a(f'buffer_store_dword v{tk}, off, s[{dWS}:{dWS+3}], s{sVo} offset:{0x80}')
            a(f'{l1}:\ns_mov_b64 exec, -1\n{l2}:')
            d0+=4096
        if fb:
            a(f'v_mov_b32 v{tk+4}, 0\ns_lshl_b32 s{sTmp}, s{sTmp}, 3')
            if fb==5: a(f's_add_u32 s{sTmp}, s{sTmp}, s{sTmp3}')
            a(f's_lshl_b32 s{sTmp2}, s{sJ}, 8\ns_sub_i32 s{sTmp}, s{sTmp}, s{sTmp2}')
            if ptau: a(f's_add_i32 s{sTmp}, s{sTmp}, s{sXcc}')
            a(f's_cmp_lt_i32 s{sTmp}, {int(d0-256*th)}\ns_cselect_b32 s{sTmp2}, 1, 0\ns_cmp_gt_i32 s{sTmp}, {int(d0+256*th)}\ns_cselect_b32 s{sTmp2}, 2, s{sTmp2}\nv_mov_b32 v{vT}, s{sTmp2}\nds_write_b32 v{vFA}, v{vT} offset:12')
            a(f'{sk}:')
        a(f's_add_u32 s{sJ}, s{sJ}, {mk}\ns_cmp_le_u32 s{sJ}, {jend}\ns_cbranch_scc1 {l}')
    a(f's_mov_b32 s{sJ}, {m0}')
    if ptau: a(f's_getreg_b32 s{sXcc}, hwreg(HW_REG_XCC_ID, 0, 1)\ns_mul_i32 s{sXcc}, s{sXcc}, {-2*int(256*ptau)}\ns_add_i32 s{sXcc}, s{sXcc}, {int(256*ptau)}')
    if fb:
        a(f's_lshl_b32 s{sMin}, s{sT}, 8\nv_mov_b32 v{tk+2}, {m0-mk}\nv_mov_b32 v{tk+3}, s{sMin}\nv_mov_b32 v{tk+6}, 0x100\nv_mov_b32 v{tk+4}, 0')
        a(f's_mul_i32 s{sVo}, s{sXj}, {CST2}\ns_add_u32 s{sVo}, s{sVo}, {W_CNT:#x}\nv_lshl_add_u32 v{tk+1}, v0, 2, s{sVo}\ns_lshl_b32 s{sKb}, s{sXi}, 2\ns_add_u32 s{sKb}, s{sKb}, s{sVo}')
    if fb==5:
        a(f's_mov_b32 s{sCnt}, 0\ns_mov_b32 s{sGmR}, {xev-1}')
        a(f's_mov_b32 exec_lo, 0\ns_lshl_b32 s{sTmp}, s{sT}, 13\nv_mov_b32 v{tk+2}, 4096\nv_mov_b32 v{tk+3}, s{sTmp}\nv_mov_b32 v{tk+6}, 0x2000\ns_mov_b32 exec_hi, 0xffff0000\nv_mov_b32 v{tk+2}, {32*(m0-mk)}')
        a(f'v_and_b32 v{tk+1}, 7, v0\nv_mul_u32_u24 v{tk+1}, {CST2}, v{tk+1}\nv_add_u32 v{tk+1}, {W_CNT+0x480:#x}, v{tk+1}\ns_mov_b64 exec, -1')
    control(jv)
    a(f's_lshl_b32 s{sTmp2}, s{sT}, 8\ns_mov_b32 s{sTmp3}, {W_VT:#x}\nL_vtpoll:')
    for i in range(nvote): a(f'buffer_load_dwordx4 v[{vb+4*i}:{vb+4*i+3}], v{vL16}, s[{dWS}:{dWS+3}], s{sTmp3} offen offset:{1024*i} sc1')
    timeout()
    a(f's_waitcnt vmcnt(0)\nv_xor_b32 v{vT}, s{sTmp2}, v{vb}')
    for v in range(1,4*nvote): a(f'v_bitop3_b32 v{vT}, v{vb+v}, s{sTmp2}, v{vT} bitop3:0xbe')
    a(f'v_cmp_lt_u32 vcc, 0xff, v{vT}\ns_cbranch_vccnz L_vtpoll\nv_and_b32 v{vT}, 15, v{vb}')
    for v in range(1,4*nvote): a(f'v_and_b32 v{vT+1}, 15, v{vb+v}\nv_add_u32 v{vT}, v{vT}, v{vT+1}')
    allred('v_add_u32',[vT],[vT+1])
    if diag: a(f'v_readfirstlane_b32 s{sTmp}, v{vT}\nv_writelane_b32 v{vSt}, s{sTmp}, 16')
    if force is None: a(f'v_cmp_gt_u32 vcc, {2048*nvote}, v{vT}\nv_cndmask_b32 v{vT}, 0, 1, vcc')
    else: a(f'v_mov_b32 v{vT}, {force}')
    a(f'v_bfe_u32 v{vT+1}, v{vb}, 7, 1\nv_xor_b32 v{vT}, v{vT}, v{vT+1}\nv_lshlrev_b32 v{vT}, 13, v{vT}\nv_add_u32 v{vS3}, v{vS3}, v{vT}')
    a(f's_bfe_u32 s{sTmp}, s{sXi}, 0x30001\ns_lshl_b32 s{sTmp2}, s{sXj}, 3\ns_add_u32 s{sTmp}, s{sTmp}, s{sTmp2}\nv_readlane_b32 s{sTmp}, v{vT}, s{sTmp}\ns_add_u32 s{sS3r}, s{sS3r}, s{sTmp}\ns_add_u32 s{sPre}, s{sPre}, s{sTmp}')
    control(jb1)
    a(f's_cmp_lt_u32 s{sXi}, 16\ns_cbranch_scc0 L_nob3')
    a(f's_mul_i32 s{sTmp2}, s{sXi}, 28672\ns_mul_i32 s{sTmp}, s{sXj}, 3584\ns_add_u32 s{sTmp2}, s{sTmp2}, s{sTmp}\ns_add_u32 s{sTmp2}, s{sTmp2}, {W_B3:#x}')
    for k in range(4): a(f'v_mov_b32 v{vb+12+k}, 0')
    tag4(vb+12)
    a('L_b3poll:')
    for i in range(4):
        if i==3: a('s_mov_b32 exec_hi, 0')
        a(f'buffer_load_dwordx4 v[{vb+4*i}:{vb+4*i+3}], v{vL16}, s[{dWS}:{dWS+3}], s{sTmp2} offen offset:{1024*i} {LP("b")}')
    a('s_mov_b64 exec, -1')
    timeout()
    a('s_waitcnt vmcnt(0)')
    chk(vT,[vb,vb+4,vb+8,vb+12],[],None,vb+16)
    a('s_cbranch_vccnz L_b3poll')
    def sum4(dst,lo):
        for k in range(4): a(f'v_add_f32 v{dst+k}, v{vb+16+k}, v{vb+20+k}\nv_add_f32 v{vA+4+k}, v{vb+24+k}, v{vb+28+k}')
        for k in range(4): a(f'v_add_f32 v{dst+k}, v{dst+k}, v{vA+4+k}')
        allred('v_add_f32',[dst,dst+1,dst+2,dst+3],[vA,vA+1,vA+2,vA+3],lo=lo)
    sum4(gg,(8,)); tag4(gg)
    a(f's_lshl_b32 s{sTmp}, s{sXi}, 10\ns_lshl_b32 s{sTmp2}, s{sXj}, 7\ns_add_u32 s{sTmp}, s{sTmp}, s{sTmp2}\ns_add_u32 s{sTmp}, s{sTmp}, {W_B4:#x}\ns_mov_b64 exec, 0xff')
    a(f'buffer_store_dwordx4 v[{gg}:{gg+3}], v{vL16}, s[{dWS}:{dWS+3}], s{sTmp} offen sc1\ns_mov_b64 exec, -1')
    stamp(6)
    a('L_nob3:')
    control(jb2)
    a(f's_cmp_lt_u32 s{sXi}, 16\ns_cbranch_scc0 L_nob4\nv_and_b32 v{vT+2}, 0x380, v{v128}')
    a(f'L_b4poll:\nbuffer_load_dwordx4 v[{gg}:{gg+3}], v{vT+2}, s[{dWS}:{dWS+3}], s{sKo} offen sc1')
    timeout()
    a('s_waitcnt vmcnt(0)')
    chk(vT,[gg],[],None)
    a('s_cbranch_vccnz L_b4poll')
    allred('v_add_f32',[gg,gg+1,gg+2,gg+3],[],lo=(4,2,1),hi=())
    for k in range(4): bfr(gg+k,gg+k)
    for k in range(4): a(f'v_mul_f32 v{vA+k}, s{sL2e}, v{gg+k}')
    for k in range(4): a(f'v_exp_f32 v{vA+k}, -v{vA+k}')
    for k in range(4): a(f'v_add_f32 v{vA+k}, 1.0, v{vA+k}')
    for k in range(4): a(f'v_rcp_f32 v{vA+k}, v{vA+k}')
    for k in range(4): a(f'v_mul_f32 v{gg+k}, v{gg+k}, v{vA+k}')
    for k in range(4): bfr(gg+k,gg+k)
    a(f's_lshl_b32 s{sTmp}, s{sXf}, 16\nv_mov_b32 v{gg+4}, s{sTmp}')
    for k in range(1,4):
        setexec(0xffff<<(16*k))
        a((f's_lshl_b32 s{sTmp}, s{sXf+k//2}, 16' if k%2==0 else f's_and_b32 s{sTmp}, s{sXf+k//2}, 0xffff0000')+f'\nv_mov_b32 v{gg+4}, s{sTmp}\nv_mov_b32 v{gg}, v{gg+k}')
    a('s_mov_b64 exec, -1')
    stamp(7)
    a('L_nob4:')
    control(jw)
    pm=vV+8; mx=vM; ls=vS+4; o=vS; pw=vP
    a(f's_lshl_b32 s{sTmp}, s{sH}, 2\ns_lshr_b32 s{sTmp2}, s{sC}, 3\ns_add_u32 s{sTmp}, s{sTmp}, s{sTmp2}\ns_lshl_b32 s{sTmp}, s{sTmp}, 9\ns_add_u32 s{sTmp2}, s{sTmp}, {W_ML:#x}\nL_mlpoll:')
    for i in range(2): a(f'buffer_load_dwordx4 v[{pm+4*i}:{pm+4*i+3}], v{vgm}, s[{dWS}:{dWS+3}], s{sTmp2} offen offset:{256*i} {LP("m")}')
    timeout()
    a('s_waitcnt vmcnt(0)')
    chk(vT,[pm,pm+4],[],None)
    a('s_cbranch_vccnz L_mlpoll')
    for i in range(2): a(f'v_and_b32 v{pw+2*i}, 0xffff0000, v{pm+4*i}')
    a(f'v_max_f32 v{mx}, v{pw}, v{pw+2}')
    allred('v_max_f32',[mx],[vT+1],lo=(4,8))
    for i in range(2): a(f'v_sub_f32 v{pw+2*i}, v{pw+2*i}, v{mx}')
    for i in range(2): a(f'v_mul_f32 v{pw+2*i}, s{sL2e}, v{pw+2*i}')
    for i in range(2): a(f'v_exp_f32 v{pw+2*i}, v{pw+2*i}')
    a(f'v_mul_f32 v{ls}, v{pw}, v{pm+2}\nv_fmac_f32 v{ls}, v{pw+2}, v{pm+6}')
    allred('v_add_f32',[ls],[vT+1],lo=(4,8))
    a(f'v_rcp_f32 v{ls}, v{ls}')
    for i in range(2): a(f'v_mul_f32 v{pw+2*i}, v{pw+2*i}, v{ls}')
    stamp(9)
    control(jpre)
    po=vV; sMk=84; sS3o=92
    for i in range(1,4): a(f's_add_u32 s{sS3o+i}, s{sS3r}, {((i&1)<<SB[6])+((i>>1)<<SB[7])}')
    s3o=lambda i: sS3r if i==0 else sS3o+i
    def ldo(i): a(f'buffer_load_dwordx4 v[{po+4*i}:{po+4*i+3}], v{vga}, s[{dWS}:{dWS+3}], s{sP2} offen offset:{2048*i} {LP("o")}')
    def lds3(i): a(f'buffer_load_dwordx4 v[{vb+4*i}:{vb+4*i+3}], v{vG3}, s[{dWS}:{dWS+3}], s{s3o(i)} offen {s3ld}')
    if p2pre: a(f's_mov_b32 exec_hi, 0\nbuffer_load_dword v{pm}, v{v128}, s[{dWS}:{dWS+3}], s{sP2} offen {LP("p")}\ns_mov_b64 exec, -1')
    if s3pre==2:
        a(f's_mov_b32 exec_hi, 0\nbuffer_load_dword v{vb}, v{vPre}, s[{dWS}:{dWS+3}], s{sPre} offen {s3ld}\ns_mov_b64 exec, -1')
    elif s3pre:
        a(f's_cmp_lt_u32 s{sXi}, 16\ns_cbranch_scc0 L_nopre')
        for i in range(4): lds3(i)
        a('L_nopre:')
    if mlast>jpre: control(mlast)
    stamp(8)
    def masked(n,ld):
        for i in range(n):
            l=lab('mz')
            a(f's_mov_b64 exec, s[{sMk+2*i}:{sMk+2*i+1}]\ns_cbranch_execz {l}'); ld(i); a(f'{l}:')
        a('s_mov_b64 exec, -1')
    def recheck(n,ck,skip=False):
        for i in range(n):
            l=lab('rc')
            if skip: a(f's_cmp_eq_u64 s[{sMk+2*i}:{sMk+2*i+1}], 0\ns_cbranch_scc1 {l}')
            ck(i); a(f's_mov_b64 s[{sMk+2*i}:{sMk+2*i+1}], vcc')
            if skip: a(f'{l}:')
        a(f's_or_b64 vcc, s[{sMk}:{sMk+1}], s[{sMk+2}:{sMk+3}]')
        if n==4: a(f's_or_b64 vcc, vcc, s[{sMk+4}:{sMk+5}]\ns_or_b64 vcc, vcc, s[{sMk+6}:{sMk+7}]')
    def rowsum(v,lo):
        a(f'v_permlane16_swap_b32 v{v}, v{v+1}\nv_permlane16_swap_b32 v{v+2}, v{v+3}\nv_add_f32 v{v}, v{v}, v{v+1}\nv_add_f32 v{v+2}, v{v+2}, v{v+3}')
        a(f'v_permlane32_swap_b32 v{v}, v{v+2}\nv_add_f32 v{v}, v{v}, v{v+2}')
        allred('v_add_f32',[v],[],lo=lo,hi=())
    def allmask(n):
        for i in range(n): a(f's_mov_b64 s[{sMk+2*i}:{sMk+2*i+1}], -1')
    r=vO+8
    for k in range(8): a(f'v_mov_b32 v{r+k}, 0')
    allmask(2)
    if jwo:
        a('L_wowait:'); poll_full(vT,vFA)
        a(f's_cmp_eq_u32 s{sGend}, 0\ns_cbranch_scc0 L_wowait')
        wo_loads()
    def poll(name,n,ld,ck,depth,thr):
        a(f's_branch L_{name}chk\nL_{name}poll:')
        masked(n,ld); timeout()
        a(f'L_{name}chk:\ns_waitcnt vmcnt(0)')
        recheck(n,ck,True)
        if not depth:
            a(f's_cbranch_scc1 L_{name}poll'); return
        a(f's_cbranch_scc0 L_{name}ok')
        for i in range(n):
            a(f's_bcnt1_i32_b64 s{sTmp2 if i else sTmp}, s[{sMk+2*i}:{sMk+2*i+1}]')
            if i: a(f's_add_u32 s{sTmp}, s{sTmp}, s{sTmp2}')
        a(f's_cmp_gt_u32 s{sTmp}, {thr}\ns_cbranch_scc1 L_{name}poll\nL_{name}fast:')
        for i in range(n):
            a(f's_or_b64 exec, s[{sMk+2*i}:{sMk+2*i+1}], 1'); ld(i)
        a('s_mov_b64 exec, -1'); timeout()
        a(f's_waitcnt vmcnt({n*depth})')
        recheck(n,ck,True)
        a(f's_cbranch_scc1 L_{name}fast\nL_{name}ok:')
    def ofirst():
        a('s_waitcnt vmcnt(0)'); wait_full(jml,vT,vFA); ldo(0); ldo(1)
    if jwo: wo_perm(0,ofirst)
    else: ofirst()
    stamp(14)
    pc=vb+16
    poll('o',2,ldo,lambda i: chk(vT,[po+4*i],[],None,pc+4*i),fp[2],fp[3])
    stamp(10)
    for k in (0,2): a(f'v_pk_mul_f32 v[{o+k}:{o+k+1}], v[{pc+k}:{pc+k+1}], v[{pw}:{pw+1}] op_sel_hi:[1,0]')
    for k in (0,2): a(f'v_pk_fma_f32 v[{o+k}:{o+k+1}], v[{pc+4+k}:{pc+4+k+1}], v[{pw+2}:{pw+3}], v[{o+k}:{o+k+1}] op_sel_hi:[1,0,1]')
    rowsum(o,(4,8))
    a(f'v_mov_b32 v{o+1}, v{o}\nv_permlane16_swap_b32 v{o}, v{o+1}\nv_cvt_pk_bf16_f32 v{vA}, v{o}, v{o+1}\nv_cvt_pk_bf16_f32 v{vA+1}, v{o}, v{o+1}\nv_permlane32_swap_b32 v{vA}, v{vA+1}')
    for r_ in range(8):
        u=r_>>1
        for k in range(8): a(f'v_dot2c_f32_bf16_dpp v{r+k}, v{vA+(r_&1)}, v{vWo+8*r_+4+(k>>1) if k&1 else vWl+4*r_+(k>>1)} quad_perm:[{u},{u},{u},{u}] row_mask:0xf bank_mask:0xf')
    tag4(r)
    a(f'buffer_store_dwordx4 v[{r}:{r+3}], v{vS3}, s[{dWS}:{dWS+3}], s{sS3w} offen {s3st}\ns_add_u32 s{sS3w}, s{sS3w}, {1<<SB[8]}')
    tag4(r+4)
    a(f'buffer_store_dwordx4 v[{r+4}:{r+7}], v{vS3}, s[{dWS}:{dWS+3}], s{sS3w} offen {s3st}')
    stamp(11)
    a(f's_cmp_lt_u32 s{sXi}, 16\ns_cbranch_scc0 L_hfin')
    allmask(4)
    cks=lambda i: chk(vT,[vb+4*i],[],None,pc+4*i)
    a(f's_lshl_b32 s{sCnt}, s{sCg}, 3\ns_mov_b32 s{sLoc}, 0x00010001\ns_mov_b32 s{sLoc+1}, 0x00010001')
    for i in range(4): lds3(i)
    poll('s3',4,lds3,cks,fp[4],fp[5])
    stamp(12)
    ss=vS
    for d,x,y in ((ss,pc,pc+4),(ss+4,pc+8,pc+12),(ss,ss,ss+4)):
        for k in (0,2): a(f'v_pk_add_f32 v[{d+k}:{d+k+1}], v[{x+k}:{x+k+1}], v[{y+k}:{y+k+1}]')
    rowsum(ss,(8,4,2,1))
    bfr(ss,ss); a(f'v_mul_f32 v{ss}, v{ss}, v{gg}'); bfr(ss,ss)
    a(f'v_add_f32 v{ss}, v{ss}, v{gg+4}\nv_cvt_pk_bf16_f32 v{ss}, v{ss}, v{ss}\ns_mov_b64 exec, s[{sLoc}:{sLoc+1}]')
    a(f'buffer_store_short v{ss}, v{gg+5}, s[{dOUT}:{dOUT+3}], s{sCnt} offen\ns_mov_b64 exec, 1')
    a(f's_cmp_eq_u32 s{sCg}, 0\ns_cbranch_scc0 L_hfin\nv_mov_b32 v{vT+1}, s{sT}\nbuffer_store_dword v{vT+1}, off, s[{dWS}:{dWS+3}], 0')
    a('L_hfin:\ns_waitcnt vmcnt(0)')
    stamp(13)
    stamp_out(dWS)
    a('L_end:\ns_endpgm')
    n=a.fix()
    out=HDR+f'; @launch grid=(256,1,1) block=({64*NWAVE},1,1) lds=163840\n'
    out+=f'.amdgcn_target "amdgcn-amd-amdhsa--gfx950"\n.text\n.globl {NAME}\n.p2align 8\n.type {NAME},@function\n'
    out+=a.text()
    out+=f'''.section .rodata,"a"
.p2align 6
.amdhsa_kernel {NAME}
  .amdhsa_next_free_vgpr 256
  .amdhsa_next_free_sgpr 96
  .amdhsa_accum_offset 256
  .amdhsa_group_segment_fixed_size 0
  .amdhsa_kernarg_size 96
  .amdhsa_user_sgpr_count 2
  .amdhsa_user_sgpr_kernarg_segment_ptr 1
  .amdhsa_system_sgpr_workgroup_id_x 1
  .amdhsa_float_denorm_mode_32 3
.end_amdhsa_kernel
'''
    return out
if __name__=='__main__':
    kw=eval('dict(%s)'%(sys.argv[1] if len(sys.argv)>1 else ''))
    sys.stdout.write(gen(**kw))
```

```python
import sys, struct
from asmlib import Asm
NAME='recurrent_scan__gqa_block_cached__geglu_ffn__decode_kernel'
HDR=open('recurrent_scan__gqa_block_cached__geglu_ffn__decode.s.ref').read().split('; Override launch')[0]
def f2u(x): return struct.unpack('<I',struct.pack('<f',x))[0]
LOG2E=f2u(1.4426950408889634); SCALE=f2u(128**-0.5)
R=17; SLOT=8192; RING=R*SLOT
MISC=RING
L_FULL=MISC; L_QRDY=MISC+8; L_MODE=MISC+12; L_REL=MISC+16; L_PF=MISC+64; L_PF2=MISC+96; L_MT=MISC+128; L_SL=MISC+192; L_X=MISC+1024; L_XN=MISC+2048; L_Q=MISC+4096; L_S=MISC+5120
W_B4=0x40000; W_CNT=0x1000; W_QG=0x10000; W_QX=0x18000; W_F1=0x20000; W_P2=0x280000; W_S3=0x400000; W_CAL=0x500000; W_VT=0x50000; W_VG=0x51000; W_ML=0x58000; W_B3=0x180000; W_ST=0x200000; WS_SZ=0x600000
TB=10; S3NEW=1; P2PACK=1
PC=2112; NWAVE=6; INF=0x7fffffff; CST=0x180; CST2=0x1100
def gen(mapping='hx', N=20, S=64, diag=0, pol='nt', wpol='nt', local=1, f1wait=12, N0=None, fb=3, dN=2, m0=20, mk=4, mlast=116, th=1.5, tau=0.,
        xev=3, xc=5., keep=(13,), qfall=24, jb1=28, jb2=48, jpre=108, s3pipe=0, s3pre=4, jopen=0, Nend=24, jwo=1, jml=131, s3ld='sc1', s3st='sc1', hxor=0, ptau=0.16, p2pre=3, fp=(0,0,0,0,0,0), force=None, jv=24, wsw=0, wpolw='sc1', nvote=1, pv='D', cut=1, npair=2, nend=8, nsp=4, jw=84, dU=4, qx=0, s3w=1, fpar=1, js3=None, p2h=1, pfw='t', s3g='glc', s3h=2, cutx='', lp='', rot=None, LX=(16,32,0,8,4,0,0,0)):
    a=Asm()
    LP=lambda k: 'nt' if k in lp else 'sc1'
    N0=N0 or N
    vpol=pol
    W=N0-4
    modes=[N,N-dN,N+(dU or dN)] if fb else [N]
    assert S>=8 and mapping=='hx'
    GT=2*S+4
    sB,sW=2,3
    pX,pK,pV,pWQ,pWO,pWG,pWU,pWD,pOUT,pWS=4,6,8,10,12,16,18,20,22,26
    sH,sC,sXi,sF,sT,sTO=48,49,50,51,52,53
    sFull,sG,sSlot,sSlotV,sMin,sKo,sVo,sTmp,sTmp2,sCnt,sGmR=54,55,56,57,58,59,60,61,62,63,64
    sScale,sL2e,sT1,sGend,sCw,sXj=65,66,67,68,69,74
    sSt=70
    sSt0=72
    sXf=76
    sLoc,sKb,sJ,sCg,sXcc,sTmp3=78,79,80,81,82,83
    sTm=75
    vSt=159
    uid=[0]
    def lab(p): uid[0]+=1; return f'L_{p}_{uid[0]}'
    def srd(d,p,size):
        a(f's_mov_b32 s{d}, s{p}\ns_mov_b32 s{d+1}, s{p+1}\ns_mov_b32 s{d+2}, {size:#x}\ns_mov_b32 s{d+3}, 0x20000')
    role=['L']
    def stamp(k):
        if diag==3 and not (role[0]=='L' or k in keep): return
        if diag: a(f's_memrealtime s[{sSt}:{sSt+1}]\ns_waitcnt lgkmcnt(0)\nv_writelane_b32 v{vSt}, s{sSt}, {k}')
    def stamp_out(srd_ws):
        if diag:
            a(f'v_writelane_b32 v{vSt}, s{sSt0}, 0')
            a(f's_mul_i32 s{sTmp}, s{sB}, {NWAVE}\ns_add_u32 s{sTmp}, s{sTmp}, s{sW}\ns_lshl_b32 s{sTmp}, s{sTmp}, 8\ns_add_u32 s{sTmp}, s{sTmp}, {W_ST:#x}')
            a(f's_mov_b64 exec, -1\nv_lshlrev_b32 v1, 2, v0\nbuffer_store_dword v{vSt}, v1, s[{srd_ws}:{srd_ws+3}], s{sTmp} offen sc1')
    def setexec(m):
        lo,hi=m&0xffffffff,m>>32
        if hi==0 and lo<0x80000000: a(f's_mov_b64 exec, {lo:#x}')
        else: a(f's_mov_b32 exec_lo, {lo:#x}\ns_mov_b32 exec_hi, {hi:#x}')
    def timeout():
        a(f's_sub_u32 s{sTO}, s{sTO}, 1\ns_cbranch_scc1 L_end')
    def poll_full(vtmp,vaddr):
        a(f'ds_read_b64 v[{vtmp}:{vtmp+1}], v{vaddr}')
        timeout()
        a(f's_waitcnt lgkmcnt(0)\nv_readfirstlane_b32 s{sFull}, v{vtmp}\nv_readfirstlane_b32 s{sGend}, v{vtmp+1}')
    def wait_full(x, vtmp, vaddr):
        assert vtmp%2==0
        ok=lab('fok'); p=lab('fp')
        a(f's_cmp_gt_i32 s{sFull}, {x}\ns_cbranch_scc1 {ok}\n{p}:')
        poll_full(vtmp,vaddr)
        a(f's_cmp_gt_i32 s{sFull}, {x}\ns_cbranch_scc0 {p}\n{ok}:')
    def bfr(dst,src):
        a(f'v_cvt_pk_bf16_f32 v{dst}, v{src}, v{src}\nv_and_b32 v{dst}, 0xffff0000, v{dst}')
    def allred(op, vs, ts, lo=(8,4,2,1), hi=(16,32)):
        for r in lo:
            for v in vs: a(f'{op}_dpp v{v}, v{v}, v{v} row_ror:{r} row_mask:0xf bank_mask:0xf')
        for sw in hi:
            for v,t in zip(vs,ts): a(f'v_mov_b32 v{t}, v{v}')
            for v,t in zip(vs,ts): a(f'v_permlane{sw}_swap_b32 v{v}, v{t}')
            for v,t in zip(vs,ts): a(f'{op} v{v}, v{v}, v{t}')
    vMask=157
    def tag4(v):
        for k in range(4): a(f'v_add_u32 v{v+k}, {1<<TB-1:#x}, v{v+k}')
        for k in range(4): a(f'v_bfi_b32 v{v+k}, v{vMask}, s{sT if k%2==0 else sT1}, v{v+k}')
    def chk(acc,regs_mt,regs_full,acc2,dst=None):
        X=[]
        for i,v in enumerate(regs_mt):
            for k in range(4):
                d=(v if dst is None else dst+4*i)+k; X.append(d)
                a(f'v_xor_b32 v{d}, s{sTm if k%2==0 else sT1}, v{v+k}')
        a(f'v_or3_b32 v{acc}, v{X[0]}, v{X[1]}, v{X[2]}')
        for i in range(3,len(X)-1,2): a(f'v_or3_b32 v{acc}, v{acc}, v{X[i]}, v{X[i+1]}')
        a(f'v_bitop3_b32 v{acc}, v{acc}, v{X[-1]}, v{vMask} bitop3:0xa8')
        for v in regs_full: a(f'v_bitop3_b32 v{acc}, v{v}, s{sT}, v{acc} bitop3:0xbe')
        a(f'v_cmp_ne_u32 vcc, 0, v{acc}')
    def newtag(): return f's_add_u32 s{sT}, s{sT}, 1\ns_bfe_u32 s{sT1}, s{sT}, {(TB<<16)|TB:#x}\ns_and_b32 s{sTm}, s{sT}, {(1<<TB)-1:#x}'

    a(f'{NAME}:')
    if diag: a(f's_memrealtime s[{sSt0}:{sSt0+1}]')
    a(f's_cmp_ge_u32 s{sB}, 256\ns_cbranch_scc1 L_end')
    a('s_load_dwordx16 s[4:19], s[0:1], 0\ns_load_dwordx8 s[20:27], s[0:1], 64')
    if diag: a(f'v_mov_b32 v{vSt}, 0')
    a(f'v_lshrrev_b32 v1, 6, v0\nv_and_b32 v0, 63, v0\nv_readfirstlane_b32 s{sW}, v1')
    a(f's_and_b32 s{sXj}, s{sB}, 7\ns_lshr_b32 s{sXi}, s{sB}, 3')
    sFb=94
    a(f's_lshr_b32 s{sFb}, s{sXj}, 1\ns_mul_i32 s{sFb}, s{sFb}, 56\ns_and_b32 s{sTmp}, s{sXj}, 1\ns_mul_i32 s{sTmp2}, s{sTmp}, {24 if fpar else 32}\ns_add_u32 s{sFb}, s{sFb}, s{sTmp2}')
    a(f's_cmp_eq_u32 s{sTmp}, {fpar}\ns_cselect_b32 s{sTmp}, 32, 24\ns_add_u32 s{sF}, s{sFb}, s{sXi}\ns_cmp_lt_u32 s{sXi}, s{sTmp}\ns_cselect_b32 s{sF}, s{sF}, 0x100000')
    if mapping=='hx': a(f's_xor_b32 s{sH}, s{sXj}, {hxor}\ns_mov_b32 s{sC}, s{sXi}')
    else: a(f's_lshr_b32 s{sH}, s{sB}, 5\ns_and_b32 s{sC}, s{sB}, 31')
    sCq=95
    a(f's_xor_b32 s{sCq}, s{sC}, {qx}')
    a(f's_mov_b32 s{sTO}, 200000\ns_mov_b32 s{sFull}, -1\ns_mov_b32 s{sGend}, {INF:#x}')
    a(f'v_lshrrev_b32 v2, 4, v0\nv_and_b32 v3, 15, v0')
    a(f's_cmp_lg_u32 s{sW}, 0\ns_cbranch_scc1 L_cons')
    vK0,vV0,vWQ,vFF,vFA,vRA,vF,vX,vTQ=4,8,10,11,12,13,14,20,21
    a('s_setprio 3')
    a(f'v_lshlrev_b32 v{vX}, 4, v0')
    a(f'v_lshrrev_b32 v{vWQ}, 2, v0\nv_lshlrev_b32 v{vWQ}, 13, v{vWQ}\nv_lshlrev_b32 v1, 1, v2\nv_xor_b32 v1, v1, v0\nv_and_b32 v1, 3, v1\nv_lshl_add_u32 v{vWQ}, v1, 4, v{vWQ}')
    a(f's_and_b32 s{sTmp}, s{sCq}, 7\ns_lshl_b32 s{sTmp}, s{sTmp}, 7\ns_bfe_u32 s{sTmp2}, s{sCq}, 0x10003\ns_lshl_b32 s{sTmp2}, s{sTmp2}, 6\ns_add_u32 s{sTmp}, s{sTmp}, s{sTmp2}')
    a(f's_lshl_b32 s{sTmp2}, s{sH}, 10\ns_add_u32 s{sTmp}, s{sTmp}, s{sTmp2}\ns_lshr_b32 s{sTmp2}, s{sCq}, 4\ns_lshl_b32 s{sTmp2}, s{sTmp2}, 21\ns_add_u32 s{sVo}, s{sTmp}, s{sTmp2}')
    a(f'v_xor_b32 v{vK0}, v2, v3\nv_lshlrev_b32 v{vK0}, 4, v{vK0}\nv_lshl_add_u32 v{vK0}, v2, 8, v{vK0}')
    for k in (1,2,3): a(f'v_xor_b32 v{vK0+k}, {64*k}, v{vK0}')
    a(f'v_lshlrev_b32 v{vV0}, 1, v2\nv_xor_b32 v{vV0}, v{vV0}, v3\nv_lshlrev_b32 v{vV0}, 4, v{vV0}\nv_lshl_add_u32 v{vV0}, v2, 8, v{vV0}\nv_xor_b32 v{vV0+1}, 128, v{vV0}')
    a(f'v_lshrrev_b32 v{vFF}, 3, v0\nv_mul_u32_u24 v{vFF}, 3584, v{vFF}\nv_lshlrev_b32 v1, 1, v2\nv_xor_b32 v1, v1, v0\nv_and_b32 v1, 7, v1\nv_lshl_add_u32 v{vFF}, v1, 4, v{vFF}')
    a(f's_and_b32 s{sTmp}, s{sF}, 7\ns_mul_i32 s{sTmp}, s{sTmp}, {64*3584}\ns_lshr_b32 s{sCnt}, s{sF}, 3\ns_lshl_b32 s{sCnt}, s{sCnt}, 7\ns_add_u32 s{sCnt}, s{sCnt}, s{sTmp}')
    a(f'v_mov_b32 v{vFA}, {L_FULL}\nv_mov_b32 v{vRA}, {L_REL}\nv_mov_b32 v{vF}, -1\nv_mov_b32 v{vF+1}, {INF:#x}\nds_write_b64 v{vFA}, v[{vF}:{vF+1}]')
    a(f's_lshl_b32 s{sKb}, s{sH}, 24\ns_lshl_b32 s{sTmp}, s{sC}, 19\ns_add_u32 s{sKb}, s{sKb}, s{sTmp}\ns_mov_b32 s{sKo}, 0')
    if rot:
        a(f's_mul_i32 s{sTmp}, s{sC}, {rot[0]}\ns_mul_i32 s{sTmp2}, s{sH}, {rot[1]}\ns_add_u32 s{sTmp}, s{sTmp}, s{sTmp2}\ns_and_b32 s{sTmp}, s{sTmp}, {rot[2] if len(rot)>2 else 31}\ns_lshl_b32 s{sKo}, s{sTmp}, {rot[3] if len(rot)>3 else 14}')
    for j,m in enumerate(LX or []):
        if m: a(f's_bitcmp1_b32 s{sKb}, {19+j}\ns_cselect_b32 s{sTmp}, {m<<13:#x}, 0\ns_xor_b32 s{sKb}, s{sKb}, s{sTmp}')
    def wrap(so):
        if rot: a(f's_and_b32 s{so}, s{so}, 0x7ffff')
    a(f's_mov_b32 m0, {L_X:#x}')
    a('s_waitcnt lgkmcnt(0)')
    dK,dV,dWQ,dWG,dWU,dXl,dWSl=28,32,36,40,44,84,88
    srd(dXl,pX,1024)
    a(f'buffer_load_dwordx4 v{vX}, s[{dXl}:{dXl+3}], 0 offen lds')
    srd(dWQ,pWQ,512*4096*2)
    stamp(10)
    issued=[1]; pub=[-1]
    def pubv(v): a(f'v_mov_b32 v{vF}, {v}\nds_write_b32 v{vFA}, v{vF}')
    def pace():
        if issued[0]>W:
            a(f's_waitcnt vmcnt({W})')
            g=(issued[0]-W-1)//8
            if g>pub[0]:
                pub[0]=g; pubv(g); stamp(11+g)
    def sub(kind, g, sb):
        base=(g%R)*SLOT+4096*sb
        a(f's_mov_b32 m0, {base:#x}')
        for k in range(4):
            n=4*sb+k
            if kind=='K':
                if k==0: a(f's_add_u32 s{sTmp}, s{sKo}, {4096*sb+8192*(g-4)}\ns_xor_b32 s{sTmp}, s{sTmp}, s{sKb}')
                a(f'buffer_load_dwordx4 v{vK0+k}, s[{dK}:{dK+3}], s{sTmp} offen offset:{1024*k} {pol} lds')
            elif kind in('WQ0','WQ1'):
                n+=8*(kind=='WQ1')
                a(f's_add_u32 s{sTmp}, s{sVo}, {16*8192*n-1024*k}')
                a(f'buffer_load_dwordx4 v{vWQ}, s[{dWQ}:{dWQ+3}], s{sTmp} offen offset:{1024*k} {wpol} lds')
            elif kind in('G','U'):
                d=dWG if kind=='G' else dWU
                a(f's_add_u32 s{sTmp}, s{sCnt}, {8*3584*n-1024*k}')
                a(f'buffer_load_dwordx4 v{vFF}, s[{d}:{d+3}], s{sTmp} offen offset:{1024*k} {wpol} lds')
        issued[0]+=4
    barrier_done=False
    for g,kind in enumerate(['WQ0','WQ1','G','U','K','K']):
        if kind=='G': srd(dWG,pWG,512*1792*2); srd(dWU,pWU,512*1792*2); srd(dK,pK,1<<27); srd(dV,pV,1<<27)
        for sb in range(2):
            if issued[0]>W and not barrier_done:
                a('s_barrier'); barrier_done=True
            pace(); sub(kind,g,sb)
    assert barrier_done
    if diag: srd(dWSl,pWS,WS_SZ)
    assert pub[0]>=2
    a(f's_mov_b32 s{sVo}, s{sKo}\ns_add_u32 s{sKo}, s{sKo}, 16384'); wrap(sKo)
    a(f's_mov_b32 s{sG}, 6\ns_mov_b32 s{sSlot}, {6*SLOT}\ns_mov_b32 s{sMin}, 0\ns_mov_b32 s{sJ}, 1\ns_mov_b32 s{sFull}, {pub[0]}\ns_mov_b32 s{sCg}, 0')
    def relcheck():
        ok=lab('rok'); p=lab('rp')
        a(f's_sub_i32 s{sGmR}, s{sG}, {R}\ns_cmp_gt_i32 s{sMin}, s{sGmR}\ns_cbranch_scc1 {ok}')
        a(f'{p}:\nds_read_b128 v[16:19], v{vRA}\nds_read_b32 v15, v{vRA} offset:16'); timeout()
        a(f's_waitcnt lgkmcnt(0)\nv_min3_i32 v16, v16, v17, v18\nv_min3_i32 v16, v16, v19, v15\nv_readfirstlane_b32 s{sMin}, v16\ns_cmp_gt_i32 s{sMin}, s{sGmR}\ns_cbranch_scc0 {p}\n{ok}:')
    def adv():
        a(f's_add_u32 s{sG}, s{sG}, 1\ns_add_u32 s{sSlot}, s{sSlot}, {SLOT}\ns_cmp_eq_u32 s{sSlot}, {RING}\ns_cselect_b32 s{sSlot}, 0, s{sSlot}')
    def batch(kind,sb):
        so=sKo if kind=='K' else sVo
        if sb==0: a(f's_mov_b32 m0, s{sSlot}')
        else: a(f's_add_u32 m0, s{sSlot}, 4096')
        a(f's_xor_b32 s{sTmp}, s{so}, s{sKb}' if sb==0 else f's_xor_b32 s{sTmp}, s{so}, s{sKb}\ns_add_u32 s{sTmp}, s{sTmp}, 4096')
        for k in range(4):
            if kind=='K': a(f'buffer_load_dwordx4 v{vK0+k}, s[{dK}:{dK+3}], s{sTmp} offen offset:{1024*k} {pol} lds')
            else: a(f'buffer_load_dwordx4 v{vV0+(k&1)}, s[{dV}:{dV+3}], s{sTmp} offen offset:{1024*k} {vpol} lds')
    def pubrel(d):
        a((f's_sub_u32 s{sTmp}, s{sG}, {-d}' if d<0 else f's_add_u32 s{sTmp}, s{sG}, {d}')+f'\ns_max_i32 s{sFull}, s{sFull}, s{sTmp}\nv_mov_b32 v{vF}, s{sFull}\nds_write_b32 v{vFA}, v{vF}')
    def dyn_group(kind,W,mid=None):
        relcheck()
        for sb in range(2):
            a(f's_waitcnt vmcnt({W})')
            c0,c1=-(-W//8),-(-(W-4)//8)
            if sb==(c1<c0): pubrel(-c1)
            batch(kind,sb)
        if mid: mid()
        so=sKo if kind=='K' else sVo
        a(f's_add_u32 s{so}, s{so}, 8192'); wrap(so)
        adv()
    def lstamp():
        if diag:
            l=lab('nost')
            a(f's_and_b32 s{sTmp}, s{sJ}, 7\ns_cmp_eq_u32 s{sTmp}, 0\ns_cbranch_scc0 {l}\ns_lshr_b32 s{sTmp}, s{sJ}, 3\ns_add_u32 s{sTmp}, s{sTmp}, 2\ns_min_u32 s{sTmp}, s{sTmp}, 9\ns_mov_b32 m0, s{sTmp}')
            a(f's_memrealtime s[{sSt}:{sSt+1}]\ns_waitcnt lgkmcnt(0)\nv_writelane_b32 v{vSt}, s{sSt}, m0\n{l}:')
    def moderead(): a(f'ds_read_b32 v{vTQ}, v{vFA} offset:12')
    if fb: moderead()
    for kind,jend in (('K',S//2),('V',S-nend//2)):
        a(f'L_ltop{kind}:')
        if fb:
            a(f's_waitcnt lgkmcnt(0)\nv_readfirstlane_b32 s{sTmp}, v{vTQ}')
            for mi in range(1,len(modes)): a(f's_cmp_eq_u32 s{sTmp}, {mi}\ns_cbranch_scc1 L_lloop{kind}{mi}')
        for mi,Np in enumerate(modes):
            W=Np-4; assert W<=59
            a(f'L_lloop{kind}{mi}:')
            if diag: a(f's_add_u32 s{sCg}, s{sCg}, {1<<(8*mi)}')
            dyn_group(kind,W); dyn_group(kind,W,moderead if fb else None)
            lstamp()
            a(f's_add_u32 s{sJ}, s{sJ}, 1\ns_cmp_lt_u32 s{sJ}, {jend}\ns_cbranch_scc1 L_ltop{kind}')
            if mi<len(modes)-1: a(f's_branch L_lend{kind}')
        a(f'L_lend{kind}:')
    W=Nend-4
    for i in range(nend): dyn_group('V',W)
    a(f'v_mov_b32 v{vF+1}, 0\nds_write_b32 v{vFA}, v{vF+1} offset:4')
    stamp(1)
    for left in range(8*((W-1)//8),-1,-8):
        a(f'v_mov_b32 v{vF}, {GT-left//8}\ns_waitcnt vmcnt({left})\nds_write_b32 v{vFA}, v{vF}')
    stamp(2)
    if diag: a(f'v_writelane_b32 v{vSt}, s{sJ}, 16\nv_writelane_b32 v{vSt}, s{sCg}, 17')
    stamp_out(dWSl)
    a('s_endpgm')
    a('L_cons:'); role[0]='C'
    vFA,vRA,vKp,vVp,vM,vMb,vL,vTm=4,5,6,7,8,9,10,11
    vQ=12; vO=28; vK=60; vV=92; vS=124; vA=132; vP=140; vT=144; vAd=148; vL16=156; vX1=160
    dWS,dWD,dWO,dOUT=28,36,40,44
    a(f's_sub_u32 s{sCw}, s{sW}, 1')
    a(f'v_mov_b32 v{vFA}, {L_FULL}\ns_lshl_b32 s{sTmp}, s{sCw}, 2\ns_add_u32 s{sTmp}, s{sTmp}, {L_REL}\nv_mov_b32 v{vRA}, s{sTmp}')
    a(f's_add_u32 s{sG}, s{sCw}, 4')
    a(f's_cmp_eq_u32 s{sCw}, 0\ns_cselect_b32 s{sTmp}, 0, s{sG}\ns_cmp_eq_u32 s{sCw}, 4\ns_cselect_b32 s{sTmp}, 2, s{sTmp}\nv_mov_b32 v1, s{sTmp}\nds_write_b32 v{vRA}, v1')
    a(f'v_mov_b32 v1, 0\nds_write_b32 v{vFA}, v1 offset:8\nds_write_b32 v{vFA}, v1 offset:12\nds_write_b32 v{vRA}, v1 offset:{L_PF-L_REL}\nds_write_b32 v{vRA}, v1 offset:{L_PF2-L_REL}')
    a(f's_mov_b32 s{sScale}, {SCALE:#x}\ns_mov_b32 s{sL2e}, {LOG2E:#x}\nv_mov_b32 v{vMask}, {(1<<TB)-1:#x}')
    a(f'v_xor_b32 v{vKp}, v2, v3\nv_lshlrev_b32 v{vKp}, 4, v{vKp}\nv_lshl_add_u32 v{vKp}, v3, 8, v{vKp}')
    a(f'v_lshrrev_b32 v1, 2, v3\nv_lshl_add_u32 v1, v2, 2, v1\nv_and_b32 v{vVp}, 7, v1\nv_lshlrev_b32 v{vVp}, 5, v{vVp}\nv_lshl_add_u32 v{vVp}, v1, 8, v{vVp}\nv_and_b32 v{vTm}, 3, v0\nv_lshl_add_u32 v{vVp}, v{vTm}, 3, v{vVp}')
    a(f'v_lshlrev_b32 v{vL16}, 4, v0')
    a(f's_lshl_b32 s{sCg}, s{sXj}, 4\ns_add_u32 s{sCg}, s{sCg}, s{sXi}')
    a('s_waitcnt lgkmcnt(0)')
    a(f's_load_dword s{sT}, s[{pWS}:{pWS+1}], 0')
    a(f's_and_b32 s{sTmp}, s{sCg}, 127\ns_lshl_b32 s{sTmp}, s{sTmp}, 3\ns_load_dwordx2 s[{sXf}:{sXf+1}], s[{pX}:{pX+1}], s{sTmp}')
    srd(dWS,pWS,WS_SZ); srd(dWD,pWD,1792*512*2); srd(dWO,pWO,4096*512*2); srd(dOUT,pOUT,1024)
    a('s_barrier')
    w0,w1,w2,w3=vQ+8,vQ+9,vQ+10,vQ+11
    def wait_q(l,v):
        a(f'{l}:\nds_read_b32 v{v}, v{vFA} offset:8'); timeout()
        a(f's_waitcnt lgkmcnt(0)\nv_readfirstlane_b32 s{sLoc}, v{v}\ns_cmp_eq_u32 s{sLoc}, 0\ns_cbranch_scc1 {l}')
    def st2(loc,*st):
        l1,l2=lab('sl'),lab('sd')
        a(f's_cbranch_scc1 {l1}')
        for x in st: a(x+' sc1')
        a(f's_branch {l2}\n{l1}:')
        for x in st: a(x)
        a(f'{l2}:')
    a(f's_and_b32 s{sTmp}, s{sCw}, 3\ns_cmp_eq_u32 s{sTmp}, 0\ns_cbranch_scc1 L_ln')
    sPr=84; po_=[((i&1)<<12)+((i>>1&1)<<14)+((i>>2)<<7) for i in range(6)]
    a(f's_cmp_ge_u32 s{sCw}, {4-nvote}\ns_cbranch_scc0 L_waitq')
    if 'V' in cutx: a('s_branch L_waitq')
    a(f's_lshl_b32 s{sTmp}, s{sXi}, 15\ns_lshl_b32 s{sTmp2}, s{sXj}, 9\ns_add_u32 s{sTmp}, s{sTmp}, s{sTmp2}\ns_and_b32 s{sTmp2}, s{sCw}, 1\ns_lshl_b32 s{sTmp2}, s{sTmp2}, 8\ns_add_u32 s{sTmp}, s{sTmp}, s{sTmp2}\ns_add_u32 s{sKo}, s{sTmp}, {W_CAL:#x}\ns_add_u32 s{sKo+1}, s{sKo}, 0x2000')
    if wsw:
        a(f'v_and_b32 v{w0}, 7, v0\nv_lshlrev_b32 v{w0}, 12, v{w0}\nv_lshrrev_b32 v{w1}, 3, v0\nv_lshl_add_u32 v{w0}, v{w1}, 7, v{w0}\nv_mov_b32 v{w1}, 1\ns_mov_b64 exec, 0xffff')
        a(f'buffer_store_dword v{w1}, v{w0}, s[{dWS}:{dWS+3}], s{sKo} offen {wpolw}\ns_mov_b64 exec, -1\ns_mov_b32 s{sTmp3}, -1\ns_waitcnt vmcnt(0) lgkmcnt(0)')
    elif pv!='D': a(f's_waitcnt lgkmcnt(0)\ns_add_u32 s{sTmp3}, s{sT}, 1')
    a(f's_getreg_b32 s{sXcc}, hwreg(HW_REG_XCC_ID, 2, 1)\ns_mov_b32 s{sTmp}, 0\ns_mov_b32 s{sCnt}, s{sXcc}')
    if pv!='A':
        a(f's_and_b32 s{sTmp2}, s{sXi}, 1\ns_xor_b32 s{sCnt}, s{sCnt}, s{sTmp2}\ns_lshl_b32 s{sTmp2}, s{sTmp2}, 13\ns_add_u32 s{sKo}, s{sKo}, s{sTmp2}\ns_xor_b32 s{sKo+1}, s{sKo}, 0x2000')
    if pv!='D':
        for i in range(2*npair): a(f's_mov_b32 s{sPr+i}, s{sTmp3}')
    od=lambda i: (0,1) if i%2==0 or pv!='A' else (1,0)
    if pv=='D':
        a(f's_load_dword s{sTmp2}, s[{pWS}:{pWS+1}], s{sKo} offset:0x40\ns_waitcnt lgkmcnt(0)')
        for i in range(npair):
            for k in (0,1):
                l=lab('sp')
                a(f's_load_dword s{sPr}, s[{pWS}:{pWS+1}], s{sKo+k} offset:{po_[i]:#x}\n{l}:\ns_{"add" if k else "sub"}_u32 s{sTmp}, s{sTmp}, 1')
                timeout()
                a(f's_getreg_b32 s{sTmp2}, hwreg(HW_REG_IB_STS, 8, 4)\ns_cmp_lg_u32 s{sTmp2}, 0\ns_cbranch_scc1 {l}')
        a(f's_ashr_i32 s{sTmp}, s{sTmp}, {cut}\ns_min_i32 s{sTmp}, s{sTmp}, 7\ns_max_i32 s{sTmp}, s{sTmp}, -7')
    elif pv=='C':
        a(f's_load_dword s{sTmp2}, s[{pWS}:{pWS+1}], s{sKo} offset:0x40\ns_waitcnt lgkmcnt(0)')
        for i in range(npair):
            for k in (0,1):
                l=lab('sp')
                a(f's_load_dword s{sPr+2*i+k}, s[{pWS}:{pWS+1}], s{sKo+k} offset:{po_[i]:#x}\ns_mov_b32 s{sTmp2}, 200\n{l}:')
                a(f's_{"add" if k else "sub"}_u32 s{sTmp}, s{sTmp}, 1\ns_sub_u32 s{sTmp2}, s{sTmp2}, 1\ns_cbranch_scc1 {l}x\ns_cmp_eq_u32 s{sPr+2*i+k}, s{sTmp3}\ns_cbranch_scc1 {l}\n{l}x:')
        a(f's_ashr_i32 s{sTmp}, s{sTmp}, {cut}\ns_min_i32 s{sTmp}, s{sTmp}, 7\ns_max_i32 s{sTmp}, s{sTmp}, -7')
    else:
        for i in range(npair):
            for k in od(i): a(f's_load_dword s{sPr+2*i+k}, s[{pWS}:{pWS+1}], s{sKo+k} offset:{po_[i]:#x}')
        a(f's_waitcnt lgkmcnt({2*npair-cut})')
        sSn=36 if pv=='B' else sPr
        if pv=='B':
            for i in range(npair): a(f's_mov_b64 s[{sSn+2*i}:{sSn+2*i+1}], s[{sPr+2*i}:{sPr+2*i+1}]')
        for i in range(npair):
            for k in od(i): a(f's_cmp_lg_u32 s{sSn+2*i+k}, s{sTmp3}\n'+(f's_subb_u32' if k else 's_addc_u32')+f' s{sTmp}, s{sTmp}, 0')
    a(f's_sub_u32 s{sTmp2}, 0, s{sTmp}\ns_cmp_eq_u32 s{sCnt}, 0\ns_cselect_b32 s{sTmp}, s{sTmp}, s{sTmp2}\ns_add_u32 s{sTmp}, s{sTmp}, 8')
    if diag: a(f'v_writelane_b32 v{vSt}, s{sTmp}, 16')
    a(f's_lshl_b32 s{sXcc}, s{sXcc}, 7\ns_add_u32 s{sTmp}, s{sTmp}, s{sXcc}\ns_add_u32 s{sTmp2}, s{sT}, 1\ns_lshl_b32 s{sTmp2}, s{sTmp2}, 8\ns_add_u32 s{sTmp}, s{sTmp}, s{sTmp2}\nv_mov_b32 v{w0}, s{sTmp}')
    a(f's_lshl_b32 s{sTmp}, s{sXj}, 5\ns_add_u32 s{sTmp}, s{sTmp}, s{sXi}\ns_lshl_b32 s{sTmp}, s{sTmp}, 2\ns_sub_u32 s{sTmp2}, 3, s{sCw}\ns_lshl_b32 s{sTmp2}, s{sTmp2}, 10\ns_add_u32 s{sTmp}, s{sTmp}, s{sTmp2}')
    a(f's_add_u32 s{sTmp}, s{sTmp}, {W_VT:#x}\ns_mov_b64 exec, 1\nbuffer_store_dword v{w0}, off, s[{dWS}:{dWS+3}], s{sTmp}\ns_mov_b64 exec, -1')
    wait_q('L_waitq',w0)
    a(newtag()+'\ns_branch L_qready')
    a('L_ln:')
    vx=vK; vxf=vK+4; vWD=vO; vXf=vV
    wait_full(-1,vT,vFA)
    a(f'v_add_u32 v{vT}, {L_X}, v{vL16}\nds_read_b128 v[{vx}:{vx+3}], v{vT}')
    a(newtag())
    stamp(1)
    a('s_waitcnt lgkmcnt(0)')
    for j in range(4): a(f'v_lshlrev_b32 v{vxf+2*j}, 16, v{vx+j}\nv_and_b32 v{vxf+2*j+1}, 0xffff0000, v{vx+j}')
    t0=vxf+8; t1=t0+1; t2=t0+2; vd=t0+4
    a(f'v_add_f32 v{t0}, v{vxf}, v{vxf+1}\nv_add_f32 v{t1}, v{vxf+2}, v{vxf+3}\nv_add_f32 v{t2}, v{vxf+4}, v{vxf+5}\nv_add_f32 v{t0}, v{t0}, v{t1}\nv_add_f32 v{t1}, v{vxf+6}, v{vxf+7}\nv_add_f32 v{t0}, v{t0}, v{t2}\nv_add_f32 v{t0}, v{t0}, v{t1}')
    allred('v_add_f32',[t0],[t1])
    a(f'v_mul_f32 v{t0}, {f2u(1/512.):#x}, v{t0}')
    for j in range(8): a(f'v_sub_f32 v{vd+j}, v{vxf+j}, v{t0}')
    a(f'v_mul_f32 v{t2}, v{vd}, v{vd}')
    for j in range(1,8): a(f'v_fmac_f32 v{t2}, v{vd+j}, v{vd+j}')
    allred('v_add_f32',[t2],[t1])
    a(f'v_mul_f32 v{t2}, {f2u(1/512.):#x}, v{t2}')
    bfr(t0,t0); bfr(t2,t2)
    a(f'v_add_f32 v{t2}, {f2u(1e-5):#x}, v{t2}'); bfr(t2,t2)
    a(f'v_sqrt_f32 v{t2}, v{t2}'); bfr(t2,t2)
    a(f'v_rcp_f32 v{t2}, v{t2}')
    for j in range(8): a(f'v_sub_f32 v{vd+j}, v{vxf+j}, v{t0}')
    for j in range(4): a(f'v_cvt_pk_bf16_f32 v{vx+j}, v{vd+2*j}, v{vd+2*j+1}')
    for j in range(4): a(f'v_lshlrev_b32 v{vd+2*j}, 16, v{vx+j}\nv_and_b32 v{vd+2*j+1}, 0xffff0000, v{vx+j}')
    for j in range(8): a(f'v_mul_f32 v{vd+j}, v{vd+j}, v{t2}')
    for j in range(4): a(f'v_cvt_pk_bf16_f32 v{vx+j}, v{vd+2*j}, v{vd+2*j+1}')
    a(f's_lshl_b32 s{sTmp}, s{sCw}, 8\ns_add_u32 s{sTmp}, s{sTmp}, {L_XN}\nv_add_u32 v{t0}, s{sTmp}, v{vL16}\nds_write_b128 v{t0}, v[{vx}:{vx+3}]')
    a(f's_cmp_eq_u32 s{sCw}, 0\ns_cbranch_scc0 L_help')
    a(f's_lshr_b32 s{sTmp2}, s{sCq}, 4\ns_lshl_b32 s{sTmp2}, s{sTmp2}, 9\ns_add_u32 s{sTmp}, s{sTmp}, s{sTmp2}\nv_lshl_add_u32 v{t0}, v2, 3, s{sTmp}')
    for j in range(8): a(f'ds_read2_b64 v[{vXf+4*j}:{vXf+4*j+3}], v{t0} offset0:{8*j} offset1:{8*j+4}')
    vD=vQ; vpt=vT; vB=vK
    a(f'v_lshlrev_b32 v{vpt}, 6, v1\nv_lshl_add_u32 v{vpt}, v{vTm}, 3, v{vpt}\nv_and_b32 v{vpt+1}, 1, v2\nv_lshl_add_u32 v{vpt}, v{vpt+1}, 5, v{vpt}\nv_xor_b32 v{vpt+1}, 32, v{vpt}')
    a(f's_getreg_b32 s{sXcc}, hwreg(HW_REG_XCC_ID, 0, 4)\ns_waitcnt lgkmcnt(2)')
    stamp(2)
    def qgemv(s0,s1):
        seq=[(s,j) for s in range(s0,s1) for j in range(2)]
        def rd(i):
            s,j=seq[i]; b=vB+4*(i%8)
            a(f'ds_read_b64_tr_b16 v[{b}:{b+1}], v{vpt+j} offset:{2048*s}\nds_read_b64_tr_b16 v[{b+2}:{b+3}], v{vpt+j} offset:{2048*s+1024}')
        for i in range(5): rd(i)
        for i in range(len(seq)):
            if i+5<len(seq): rd(i+5)
            a(f's_waitcnt lgkmcnt({2*(min(i+5,len(seq)-1)-i)})')
            s,j=seq[i]; b=vB+4*(i%8)
            a(f'v_mfma_f32_16x16x32_bf16 v[{vD+4*j}:{vD+4*j+3}], v[{b}:{b+3}], v[{vXf+4*s}:{vXf+4*s+3}], '+('0' if s==0 else f'v[{vD+4*j}:{vD+4*j+3}]'))
    wait_full(0,vT+2,vFA); qgemv(0,4)
    wait_full(1,vT+2,vFA); stamp(3); qgemv(4,8)
    a(f'v_mov_b32 v{w0}, 4\nds_write_b32 v{vRA}, v{w0}')
    a(f's_and_b32 s{sTmp}, s{sCq}, 7\ns_lshl_b32 s{sTmp}, s{sTmp}, 8\ns_bfe_u32 s{sTmp2}, s{sCq}, 0x10003\ns_lshl_b32 s{sTmp2}, s{sTmp2}, 7\ns_add_u32 s{sTmp}, s{sTmp}, s{sTmp2}')
    a(f's_lshr_b32 s{sTmp2}, s{sCq}, 4\ns_lshl_b32 s{sTmp2}, s{sTmp2}, 11\ns_add_u32 s{sTmp}, s{sTmp}, s{sTmp2}\ns_lshl_b32 s{sKo}, s{sH}, 12\ns_add_u32 s{sKo}, s{sKo}, {W_QG:#x}\ns_add_u32 s{sTmp}, s{sTmp}, s{sKo}')
    a(f'v_lshlrev_b32 v{vpt}, 4, v2\nv_lshl_add_u32 v{vpt}, v3, 6, v{vpt}\nv_add_u32 v{vpt}, s{sTmp}, v{vpt}')
    a(f's_lshl_b32 s{sVo}, s{sH}, 9\ns_add_u32 s{sVo}, s{sVo}, {W_QX:#x}\ns_lshl_b32 s{sTmp}, s{sC}, 4\ns_add_u32 s{sTmp}, s{sTmp}, s{sVo}')
    setexec(0x0002000200020002)
    for k in range(4): a(f'v_mov_b32 v{vD+k}, v{vD+4+k}')
    a('s_mov_b64 exec, -1'); tag4(vD)
    a(f's_mov_b64 exec, 4\nv_mov_b32 v{vD}, s{sXcc}\nv_mov_b32 v{vD+1}, s{sT}\nv_mov_b32 v{vD+2}, s{sXcc}\nv_mov_b32 v{vD+3}, s{sT}\nv_mov_b32 v{vpt}, s{sTmp}')
    def qpub(p):
        setexec(0x0003000300030007)
        a(f'buffer_store_dwordx4 v[{vD}:{vD+3}], v{vpt}, s[{dWS}:{dWS+3}], 0 offen {p}\ns_mov_b64 exec, -1')
    qpub('' if local else 'sc1')
    stamp(4)
    a(f'v_and_b32 v{vpt+1}, 0x1f0, v{vL16}\ns_mov_b32 s{sCnt}, {qfall}')
    a('L_qpoll:')
    for i in range(4): a(f'buffer_load_dwordx4 v[{vK+4*i}:{vK+4*i+3}], v{vL16}, s[{dWS}:{dWS+3}], s{sKo} offen offset:{1024*i} {LP("q")}')
    a(f'buffer_load_dwordx4 v[{vK+16}:{vK+19}], v{vpt+1}, s[{dWS}:{dWS+3}], s{sVo} offen {LP("q")}')
    timeout()
    a('s_waitcnt vmcnt(0)')
    chk(w0,[vK,vK+4,vK+8,vK+12],[vK+17,vK+19],w1)
    a(f's_cbranch_vccz L_qok\ns_sub_u32 s{sCnt}, s{sCnt}, 1\ns_cmp_eq_u32 s{sCnt}, 0\ns_cbranch_scc0 L_qpoll')
    qpub('sc1')
    a('s_branch L_qpoll\nL_qok:')
    for k in range(8): a(f'v_add_f32 v{vK+k}, v{vK+k}, v{vK+8+k}')
    for k in range(4): a(f'v_cvt_pk_bf16_f32 v{vK+k}, v{vK+2*k}, v{vK+2*k+1}')
    a(f'v_lshlrev_b32 v{vpt+1}, 3, v0\nv_add_u32 v{vpt+1}, {L_Q}, v{vpt+1}\nds_write2st64_b64 v{vpt+1}, v[{vK}:{vK+1}], v[{vK+2}:{vK+3}] offset0:0 offset1:1')
    a(f'v_cmp_ne_u32 vcc, s{sXcc}, v{vK+16}\ns_mov_b32 s{sLoc}, 1')
    if local: a(f's_cmp_eq_u64 vcc, 0\ns_cselect_b32 s{sLoc}, 2, 1')
    a(f'v_mov_b32 v{w0}, s{sLoc}\nds_write_b32 v{vFA}, v{w0} offset:8')
    a(f's_cmp_eq_u32 s{sLoc}, 2\ns_cbranch_scc1 L_qnorep'); qpub('sc1'); a('L_qnorep:')
    stamp(5)
    a('L_qready:')
    a(f'v_lshlrev_b32 v{vT}, 8, v{vTm}\nv_lshl_add_u32 v{vT}, v2, 4, v{vT}\nv_add_u32 v{vT}, {L_Q}, v{vT}')
    for s in range(4): a(f'ds_read_b128 v[{vQ+4*s}:{vQ+4*s+3}], v{vT} offset:{64*s}')
    acc=vO; GV=4+S; EX4=0x000f000f000f000f; sEx=84; sO1=sTmp3
    for i in range(8): a(f'v_mov_b32 v{acc+i}, 0')
    a(f'v_mov_b32 v{vM}, 0xff800000\nv_mov_b32 v{vL}, 0\ns_mov_b32 s{sCnt}, {S//4}\ns_lshl_b32 s{sSlot}, s{sG}, 13\ns_mov_b32 s{sEx}, 0x000f000f\ns_mov_b32 s{sEx+1}, 0x000f000f')
    vFl,vMT=164,168
    vSw,vPr,vCv,vMw,vMr,vV0,vV1,vpa,vpm=range(176,185)
    a(f'v_lshlrev_b32 v{vMr}, 4, v{vTm}\nv_lshl_add_u32 v{vPr}, v2, 6, v{vMr}\nv_add_u32 v{vPr}, {L_S}, v{vPr}\ns_lshl_b32 s{sTmp}, s{sCw}, 8\nv_add_u32 v{vSw}, s{sTmp}, v{vPr}')
    a(f's_add_u32 s{sTmp}, s{sTmp}, {L_S}\nv_lshlrev_b32 v{vCv}, 4, v3\nv_lshl_add_u32 v{vCv}, v2, 10, v{vCv}\nv_add_u32 v{vCv}, s{sTmp}, v{vCv}')
    a(f'v_add_u32 v{vMr}, {L_MT}, v{vMr}\ns_lshl_b32 s{sTmp}, s{sCw}, 2\nv_add_u32 v{vMw}, s{sTmp}, v{vMr}\ns_lshl_b32 s{sTmp}, s{sCw}, 6\nv_xor_b32 v{vV0}, s{sTmp}, v{vVp}\nv_xor_b32 v{vV1}, 32, v{vV0}')
    a(f's_lshl_b32 s{sTmp}, s{sH}, 16\ns_lshl_b32 s{sTmp2}, s{sC}, 6\ns_add_u32 s{sTmp}, s{sTmp}, s{sTmp2}\ns_lshl_b32 s{sTmp2}, s{sCw}, 12\ns_add_u32 s{sTmp}, s{sTmp}, s{sTmp2}\ns_add_u32 s{sKo}, s{sTmp}, {W_P2:#x}\ns_add_u32 s{sO1}, s{sKo}, 2048')
    a(f'v_lshlrev_b32 v{vpa}, 14, v{vTm}\nv_lshl_add_u32 v{vpa}, v2, 4, v{vpa}\nv_lshlrev_b32 v{vpm}, 9, v{vTm}')
    a(f's_lshl_b32 s{sTmp}, s{sH}, 11\ns_lshl_b32 s{sTmp2}, s{sC}, 4\ns_add_u32 s{sTmp}, s{sTmp}, s{sTmp2}\ns_add_u32 s{sVo}, s{sTmp}, {W_ML:#x}')
    def claim():
        l=lab('cl'); x=vA
        a(f's_cmp_eq_u32 s{sLoc}, 2\ns_cbranch_scc0 {l}\ns_add_u32 s{sTmp}, s{sT}, 1\nv_lshlrev_b32 v{x+4}, 15, v2\nv_bfe_u32 v{x+5}, v0, 3, 1\nv_lshl_add_u32 v{x+4}, v{x+5}, 12, v{x+4}\nv_and_b32 v{x+5}, 0x70, v{vL16}\nv_add_u32 v{x+4}, v{x+4}, v{x+5}')
        for k in range(4): a(f'v_mov_b32 v{x+k}, s{sTmp}')
        a(f'buffer_store_dwordx4 v[{x}:{x+3}], v{x+4}, s[{dWS}:{dWS+3}], s{sKo} offen\n{l}:')
    if p2pre==2 and pfw=='q': claim()
    stamp(6)
    def nextslot(n): a(f's_add_u32 s{sSlot}, s{sSlot}, {n*SLOT}\ns_sub_u32 s{sTmp}, s{sSlot}, {RING}\ns_cselect_b32 s{sSlot}, s{sSlot}, s{sTmp}')
    a('L_kstep:')
    wait_full(f's{sG}',vT,vFA)
    a(f'v_add_u32 v{vAd+4}, s{sSlot}, v{vKp}')
    for s_ in (1,2,3): a(f'v_xor_b32 v{vAd+4+s_}, {64*s_}, v{vAd+4}')
    for t in range(2):
        for s_ in range(4): a(f'ds_read_b128 v[{vK+16*t+4*s_}:{vK+16*t+4*s_+3}], v{vAd+4+s_} offset:{4096*t}')
    a(f's_add_u32 s{sG}, s{sG}, 4\ns_min_u32 s{sG}, s{sG}, {GV}\nv_mov_b32 v{vT}, s{sG}')
    for t in range(2):
        a(f's_waitcnt lgkmcnt({4-4*t})')
        if t==1: a(f'ds_write_b32 v{vRA}, v{vT}')
        for s_ in range(4):
            a(f'v_mfma_f32_16x16x32_bf16 v[{vS+4*t}:{vS+4*t+3}], v[{vK+16*t+4*s_}:{vK+16*t+4*s_+3}], v[{vQ+4*s_}:{vQ+4*s_+3}], '+('0' if s_==0 else f'v[{vS+4*t}:{vS+4*t+3}]'))
    nextslot(4)
    for j in range(4): a(f'v_cvt_pk_bf16_f32 v{vP+j}, v{vS+2*j}, v{vS+2*j+1}')
    a(f's_mov_b64 exec, s[{sEx}:{sEx+1}]\nds_write_b128 v{vSw}, v[{vP}:{vP+3}]\ns_mov_b64 exec, -1\nv_add_u32 v{vSw}, 1024, v{vSw}')
    a(f'v_max3_f32 v{vT+1}, v{vS}, v{vS+1}, v{vS+2}\nv_max3_f32 v{vT+2}, v{vS+3}, v{vS+4}, v{vS+5}\nv_max3_f32 v{vM}, v{vS+6}, v{vS+7}, v{vM}\nv_max3_f32 v{vM}, v{vT+1}, v{vT+2}, v{vM}')
    a(f's_sub_u32 s{sCnt}, s{sCnt}, 1\ns_cmp_lg_u32 s{sCnt}, 0\ns_cbranch_scc1 L_kstep')
    stamp(7)
    for i in range(4): a(f'ds_read_b128 v[{vK+4*i}:{vK+4*i+3}], v{vCv} offset:{4096*i}')
    allred('v_max_f32',[vM],[vT],lo=())
    def post(src,off,flag): a(f'v_mov_b32 v{vT}, 1\ns_mov_b64 exec, 15\nds_write_b32 v{vMw}, v{src} offset:{off}\nds_write_b32 v{vRA}, v{vT} offset:{flag-L_REL}\ns_mov_b64 exec, -1')
    def meet(l,off,flag):
        a(f's_branch {l}r\n{l}w:'); timeout()
        a(f's_waitcnt lgkmcnt(0)\n{l}r:\nds_read_b128 v[{vFl}:{vFl+3}], v{vFA} offset:{flag-L_FULL}\nds_read_b128 v[{vMT}:{vMT+3}], v{vMr} offset:{off}')
        a(f's_waitcnt lgkmcnt(1)\nv_min3_u32 v{vFl}, v{vFl}, v{vFl+1}, v{vFl+2}\nv_min_u32 v{vFl}, v{vFl}, v{vFl+3}\nv_cmp_eq_u32 vcc, 0, v{vFl}\ns_cbranch_vccnz {l}w\ns_waitcnt lgkmcnt(0)')
    post(vM,0,L_PF); meet('L_m',0,L_PF)
    a(f'v_max3_f32 v{vM}, v{vMT}, v{vMT+1}, v{vMT+2}\nv_max_f32 v{vM}, v{vM}, v{vMT+3}'); bfr(vM,vM)
    a(f'v_mul_f32 v{vM}, s{sScale}, v{vM}'); bfr(vM,vM)
    a(f'v_mul_f32 v{vMb}, s{sL2e}, v{vM}')
    for i in range(4):
        P=vK+4*i; A=vV+8*i
        for j in range(4): a(f'v_lshlrev_b32 v{A+2*j}, 16, v{P+j}\nv_and_b32 v{A+2*j+1}, 0xffff0000, v{P+j}')
        for j in range(8): a(f'v_mul_f32 v{A+j}, s{sScale}, v{A+j}')
        for j in range(4): a(f'v_cvt_pk_bf16_f32 v{P+j}, v{A+2*j}, v{A+2*j+1}')
        for j in range(4): a(f'v_lshlrev_b32 v{A+2*j}, 16, v{P+j}\nv_and_b32 v{A+2*j+1}, 0xffff0000, v{P+j}')
        for j in range(8): a(f'v_fma_f32 v{A+j}, v{A+j}, s{sL2e}, -v{vMb}')
        for j in range(8): a(f'v_exp_f32 v{A+j}, v{A+j}')
        for j in range(4): a(f'v_cvt_pk_bf16_f32 v{P+j}, v{A+2*j}, v{A+2*j+1}')
        a(f'ds_write_b128 v{vCv}, v[{P}:{P+3}] offset:{4096*i}')
        for w_ in (4,2,1):
            for j in range(w_): a(f'v_add_f32 v{A+j}, v{A+j}, v{A+j+w_}')
        a(f'v_add_f32 v{vL}, v{vL}, v{A}')
    allred('v_add_f32',[vL],[vT],lo=(4,8))
    post(vL,L_SL-L_MT,L_PF2); meet('L_l',L_SL-L_MT,L_PF2)
    a(f's_cmp_eq_u32 s{sCw}, 0\ns_cbranch_scc0 L_noml')
    a(f'v_add_f32 v{vMT}, v{vMT}, v{vMT+1}\nv_add_f32 v{vMT+2}, v{vMT+2}, v{vMT+3}\nv_add_f32 v{vMT+2}, v{vMT}, v{vMT+2}\nv_mov_b32 v{vMT}, v{vM}'); tag4(vMT)
    a(f's_mov_b64 exec, 15\ns_cmp_eq_u32 s{sLoc}, 2')
    st2(1,f'buffer_store_dwordx4 v[{vMT}:{vMT+3}], v{vpm}, s[{dWS}:{dWS+3}], s{sVo} offen')
    a(f's_mov_b64 exec, -1\nL_noml:\ns_mov_b32 s{sSlot}, {(GV%R)*SLOT}')
    if p2pre==2 and pfw=='t': claim()
    stamp(8)
    def vrd(f,a0,a1):
        for j,va in enumerate((a0,a1)): a(f'ds_read_b64_tr_b16 v[{f+4*j}:{f+4*j+1}], v{va}\nds_read_b64_tr_b16 v[{f+4*j+2}:{f+4*j+3}], v{va} offset:4096')
    def vmm(f,P,j): a(f'v_mfma_f32_16x16x32_bf16 v[{acc+4*j}:{acc+4*j+3}], v[{f+4*j}:{f+4*j+3}], v[{P}:{P+3}], v[{acc+4*j}:{acc+4*j+3}]')
    for ge in ([pfw] if p2pre==2 and isinstance(pfw,int) else [])+[GT-nsp]:
        a(f'L_vstep{ge}:\nv_add_u32 v{vAd}, s{sSlot}, v{vV0}\nv_add_u32 v{vAd+1}, s{sSlot}, v{vV1}\nds_read_b128 v[{vP}:{vP+3}], v{vPr}')
        wait_full(f's{sG}',vT,vFA)
        vrd(vV,vAd,vAd+1)
        a(f's_add_u32 s{sG}, s{sG}, 1\nv_mov_b32 v{vT}, s{sG}\nv_add_u32 v{vPr}, 256, v{vPr}'); nextslot(1)
        a('s_waitcnt lgkmcnt(2)'); vmm(vV,vP,0)
        a(f's_waitcnt lgkmcnt(0)\nds_write_b32 v{vRA}, v{vT}'); vmm(vV,vP,1)
        a(f's_cmp_lt_u32 s{sG}, {ge}\ns_cbranch_scc1 L_vstep{ge}')
        if ge!=GT-nsp: claim()
    for t in range(nsp): a(f'ds_read_b128 v[{vK+4*t}:{vK+4*t+3}], v{vPr} offset:{256*t}')
    for t in range(nsp):
        o_=((GT-nsp+t)%R)*SLOT
        a(f'v_add_u32 v{vAd+2*t}, {o_}, v{vV0}\nv_add_u32 v{vAd+2*t+1}, {o_}, v{vV1}')
    stamp(12)
    for t in range(nsp):
        l=lab('vw'); l2=lab('vr'); f=vV+8*t
        a(f's_branch {l2}\n{l}:'); timeout()
        a(f's_waitcnt lgkmcnt(0)\n{l2}:\nds_read_b32 v{vT}, v{vFA}')
        vrd(f,vAd+2*t,vAd+2*t+1)
        a(f's_waitcnt lgkmcnt(4)\nv_cmp_ge_i32 vcc, {GT-nsp+t}, v{vT}\ns_cbranch_vccnz {l}')
        for j in range(2): a(f's_waitcnt lgkmcnt({2-2*j})'); vmm(f,vK+4*t,j)
    a(f's_cmp_eq_u32 s{sLoc}, 2\ns_cbranch_scc0 L_outg')
    for p in ('','sc1'):
        if p: a('L_outg:')
        a(f's_mov_b64 exec, s[{sEx}:{sEx+1}]')
        for j in range(2):
            tag4(acc+4*j)
            a(f'buffer_store_dwordx4 v[{acc+4*j}:{acc+4*j+3}], v{vpa}, s[{dWS}:{dWS+3}], s{sO1 if j else sKo} offen {p}')
        stamp(9)
        stamp_out(dWS)
        a('s_endpgm')
    a('L_help:')
    def p2touch(sb):
        if p2h==1: a(f's_mov_b64 exec, 0xffff\nv_lshlrev_b32 v{vA}, 7, v0')
        else: a(f's_mov_b32 exec_hi, 0\nv_lshlrev_b32 v{vA}, 6, v0')
        a(f'buffer_load_dword v{vA+1}, v{vA}, s[{dWS}:{dWS+3}], s{sb} offen {LP("p")}\ns_mov_b64 exec, -1')
    if p2pre==3:
        a(f's_lshl_b32 s{sTmp}, s{sH}, 16\ns_lshl_b32 s{sTmp2}, s{sC}, 11\ns_add_u32 s{sTmp}, s{sTmp}, s{sTmp2}\ns_add_u32 s{sTmp}, s{sTmp}, {W_P2:#x}')
        p2touch(sTmp)
    vWo=192
    def wo_loads():
        a(f's_lshl_b32 s{sTmp}, s{sH}, 5\ns_add_u32 s{sTmp}, s{sTmp}, s{sC}\ns_lshl_b32 s{sTmp}, s{sTmp}, 14')
        for i in range(16):
            a(f'buffer_load_dwordx4 v[{vWo+4*i}:{vWo+4*i+3}], v{vL16}, s[{dWO}:{dWO+3}], s{sTmp} offen offset:{1024*(i&3)} {wpol}')
            if i&3==3 and i<15: a(f's_add_u32 s{sTmp}, s{sTmp}, 4096')
    def vagg():
        l=lab('va'); x=vS
        a(f's_cmp_eq_u32 s{sXi}, 31\ns_cbranch_scc0 {l}e\ns_mov_b32 s{sTmp}, 256\ns_cmp_eq_u32 s{sLoc}, 2\ns_cbranch_scc0 {l}p')
        a(f's_lshl_b32 s{sTmp}, s{sXj}, 7\ns_add_u32 s{sTmp}, s{sTmp}, {W_VT:#x}\ns_lshl_b32 s{sTmp2}, s{sT}, 8\nv_lshlrev_b32 v{x+1}, 2, v0\ns_mov_b32 exec_hi, 0')
        a(f'{l}:\nbuffer_load_dword v{x}, v{x+1}, s[{dWS}:{dWS+3}], s{sTmp} offen nt'); timeout()
        a(f's_waitcnt vmcnt(0)\nv_xor_b32 v{x}, s{sTmp2}, v{x}\nv_cmp_lt_u32 vcc, 0xff, v{x}\ns_cbranch_vccnz {l}\ns_mov_b64 exec, -1\nv_and_b32 v{x}, 15, v{x}')
        allred('v_add_u32',[x],[x+1],hi=())
        a(f'v_readlane_b32 s{sTmp}, v{x}, 0\nv_readlane_b32 s{sTmp2}, v{x}, 16\ns_add_u32 s{sTmp}, s{sTmp}, s{sTmp2}')
        a(f'{l}p:\ns_getreg_b32 s{sTmp2}, hwreg(HW_REG_XCC_ID, 2, 1)\ns_lshl_b32 s{sTmp2}, s{sTmp2}, 13\ns_add_u32 s{sTmp}, s{sTmp}, s{sTmp2}\nv_mov_b32 v{x}, s{sT}\nv_mov_b32 v{x+1}, s{sTmp}')
        a(f's_lshl_b32 s{sTmp}, s{sXj}, 7\ns_add_u32 s{sTmp}, s{sTmp}, {W_VG:#x}\ns_mov_b64 exec, 1\nbuffer_store_dwordx2 v[{x}:{x+1}], off, s[{dWS}:{dWS+3}], s{sTmp} sc1\ns_mov_b64 exec, -1\n{l}e:')
    a(f's_cmp_lt_u32 s{sF}, 224\ns_cbranch_scc0 L_noffn')
    a(f's_and_b32 s{sTmp2}, s{sF}, 7\ns_lshl_b32 s{sTmp2}, s{sTmp2}, 7\ns_add_u32 s{sTmp}, s{sTmp2}, {L_XN+1024}\nv_lshl_add_u32 v{t0}, v2, 3, s{sTmp}')
    for j in range(2): a(f'ds_read2_b64 v[{vXf+4*j}:{vXf+4*j+3}], v{t0} offset0:{8*j} offset1:{8*j+4}')
    a(f'v_lshlrev_b32 v{vAd}, 7, v1\nv_lshl_add_u32 v{vAd}, v{vTm}, 3, v{vAd}\nv_bfe_u32 v{vAd+1}, v1, 1, 2\nv_lshl_add_u32 v{vAd}, v{vAd+1}, 5, v{vAd}')
    for j in (1,2,3): a(f'v_xor_b32 v{vAd+j}, {32*j}, v{vAd}')
    stamp(2)
    wait_full(1,vT,vFA)
    a(f's_lshl_b32 s{sTmp}, s{sF}, 13\ns_add_u32 s{sTmp2}, s{sTmp}, 4096')
    for j in range(8): a(f'buffer_load_dwordx4 v[{vWD+4*j}:{vWD+4*j+3}], v{vL16}, s[{dWD}:{dWD+3}], s{sTmp if j<4 else sTmp2} offen offset:{1024*(j&3)} {wpol}')
    vAc=vX1
    def fgemv(mat):
        seq=[(s,j) for s in range(2) for j in range(4)]
        base=(2+mat)*SLOT
        def rd(i):
            s,j=seq[i]; b=vB+4*i
            a(f'ds_read_b64_tr_b16 v[{b}:{b+1}], v{vAd+j} offset:{base+4096*s}\nds_read_b64_tr_b16 v[{b+2}:{b+3}], v{vAd+j} offset:{base+4096*s+2048}')
        for i in range(5): rd(i)
        for i in range(8):
            if i+5<8: rd(i+5)
            a(f's_waitcnt lgkmcnt({2*(min(i+5,7)-i)})')
            s,j=seq[i]; b=vB+4*i; d=vAc+16*mat+4*j
            a(f'v_mfma_f32_16x16x32_bf16 v[{d}:{d+3}], v[{b}:{b+3}], v[{vXf+4*s}:{vXf+4*s+3}], '+('0' if s==0 else f'v[{d}:{d+3}]'))
    wait_full(2,vT,vFA); fgemv(0)
    wait_full(3,vT,vFA); stamp(3); fgemv(1)
    a(f'v_mov_b32 v{w0}, {INF:#x}\nds_write_b32 v{vRA}, v{w0}')
    for n in range(1,8):
        setexec(0x0001000100010001<<n)
        for k in range(4): a(f'v_mov_b32 v{vAc+k}, v{vAc+4*n+k}')
    a('s_mov_b64 exec, -1'); tag4(vAc)
    wait_q('L_hq',w0)
    a(f's_lshl_b32 s{sTmp}, s{sF}, 9\ns_add_u32 s{sTmp}, s{sTmp}, {W_F1:#x}\nv_lshlrev_b32 v{vT}, 4, v2\nv_lshl_add_u32 v{vT}, v3, 6, v{vT}')
    setexec(0x00ff00ff00ff00ff)
    a(f's_cmp_eq_u32 s{sLoc}, 2')
    st2(1,f'buffer_store_dwordx4 v[{vAc}:{vAc+3}], v{vT}, s[{dWS}:{dWS+3}], s{sTmp} offen')
    a('s_mov_b64 exec, -1')
    stamp(4)
    vagg()
    if not jwo: wo_loads()
    a(f's_and_b32 s{sTmp}, s{sF}, 0xf8\ns_lshl_b32 s{sTmp}, s{sTmp}, 9\ns_and_b32 s{sTmp2}, s{sF}, 7\ns_lshl_b32 s{sTmp2}, s{sTmp2}, 5\ns_add_u32 s{sTmp}, s{sTmp}, s{sTmp2}\ns_add_u32 s{sKo}, s{sTmp}, {W_F1:#x}')
    a(f'v_bfe_u32 v{vT+2}, v0, 1, 4\nv_lshlrev_b32 v{vT+2}, 8, v{vT+2}\nv_and_b32 v{vT+3}, 1, v0\nv_lshl_add_u32 v{vT+2}, v{vT+3}, 4, v{vT+2}')
    if f1wait: wait_full(f1wait,vT,vFA)
    gu=vK
    a('L_f1poll:')
    a(f'buffer_load_dwordx4 v[{gu}:{gu+3}], v{vT+2}, s[{dWS}:{dWS+3}], s{sKo} offen sc1')
    timeout()
    a('s_waitcnt vmcnt(0)')
    chk(vT,[gu],[],None)
    a('s_cbranch_vccnz L_f1poll')
    allred('v_add_f32',[gu,gu+1,gu+2,gu+3],[vA,vA+1,vA+2,vA+3],lo=(4,8),hi=(16,))
    for k in range(4): bfr(gu+k,gu+k)
    k1=-2*0.7978845608028654*1.4426950408889634
    hh=gu+4; up=gu+8
    for k in range(4): a(f'v_mov_b32_dpp v{up+k}, v{gu+k} quad_perm:[2,3,2,3] row_mask:0xf bank_mask:0xf')
    for k in range(4): a(f'v_mul_f32 v{hh+k}, v{gu+k}, v{gu+k}')
    for k in range(4): a(f'v_mul_f32 v{hh+k}, {f2u(0.044715):#x}, v{hh+k}')
    for k in range(4): a(f'v_fma_f32 v{hh+k}, v{hh+k}, v{gu+k}, v{gu+k}')
    for k in range(4): a(f'v_mul_f32 v{hh+k}, {f2u(k1):#x}, v{hh+k}')
    for k in range(4): a(f'v_exp_f32 v{hh+k}, v{hh+k}')
    for k in range(4): a(f'v_add_f32 v{hh+k}, 1.0, v{hh+k}')
    for k in range(4): a(f'v_rcp_f32 v{hh+k}, v{hh+k}')
    for k in range(4): a(f'v_mul_f32 v{hh+k}, v{gu+k}, v{hh+k}')
    for k in range(4): bfr(hh+k,hh+k)
    for k in range(4): a(f'v_mul_f32 v{hh+k}, v{hh+k}, v{up+k}')
    for k in range(4): bfr(hh+k,hh+k)
    acc=vV; un=vV+8
    for k in range(8): a(f'v_mov_b32 v{acc+k}, 0')
    for j in range(8):
        for k in range(4): a(f'v_lshlrev_b32 v{un+2*k}, 16, v{vWD+4*j+k}\nv_and_b32 v{un+2*k+1}, 0xffff0000, v{vWD+4*j+k}')
        for k in range(8): a(f'v_fmac_f32_dpp v{acc+k}, v{hh+(j&3)}, v{un+k} quad_perm:[{j>>2},{j>>2},{j>>2},{j>>2}] row_mask:0xf bank_mask:0xf')
    tag4(acc); tag4(acc+4)
    a(f's_lshl_b32 s{sTmp}, s{sF}, 7\ns_add_u32 s{sTmp}, s{sTmp}, {W_B3:#x}\ns_add_u32 s{sTmp2}, s{sTmp}, {8*28672}')
    a(f'v_lshrrev_b32 v{vT}, 3, v0\nv_mul_u32_u24 v{vT}, 28672, v{vT}\nv_and_b32 v{vT+1}, 7, v0\nv_lshl_add_u32 v{vT}, v{vT+1}, 4, v{vT}\ns_cmp_eq_u32 s{sLoc}, 2')
    st2(1,f'buffer_store_dwordx4 v[{acc}:{acc+3}], v{vT}, s[{dWS}:{dWS+3}], s{sTmp} offen',f'buffer_store_dwordx4 v[{acc+4}:{acc+7}], v{vT}, s[{dWS}:{dWS+3}], s{sTmp2} offen')
    stamp(5)
    a('s_branch L_ffndone')
    a(f'L_noffn:\nv_mov_b32 v{w0}, {INF:#x}\nds_write_b32 v{vRA}, v{w0}')
    wait_q('L_hq2',w0)
    vagg()
    if not jwo: wo_loads()
    a('s_waitcnt vmcnt(0)\nL_ffndone:')
    vWl=160
    def wo_perm(behind=0,last=None):
        a(f's_mov_b32 s{sTmp}, 0x05040100\ns_mov_b32 s{sTmp2}, 0x07060302')
        for r_ in range(8):
            if jwo and r_<7: a(f's_waitcnt vmcnt({14-2*r_+behind})')
            if r_==7 and last: last()
            for k in range(4):
                x,y=vWo+8*r_+k,vWo+8*r_+4+k
                a(f'v_perm_b32 v{vWl+4*r_+k}, v{y}, v{x}, s{sTmp}\nv_perm_b32 v{y}, v{y}, v{x}, s{sTmp2}')
    if not jwo: wo_perm()
    vb=vK; gg=vQ; v128=vAd; vga=vAd+1; vgm=vAd+2; vS3=vAd+3
    sP2,sS3w,sS3r=sG,sSlot,sSlotV
    sDp,sDr=86,87
    a(f'v_lshlrev_b32 v{gg+5}, 1, v2\nv_lshlrev_b32 v{v128}, 7, v0\nv_lshrrev_b32 v{vgm}, 2, v0\nv_lshlrev_b32 v{vgm}, 4, v{vgm}')
    a(f's_lshl_b32 s{sTmp}, s{sH}, 16\ns_lshl_b32 s{sTmp2}, s{sC}, 11\ns_add_u32 s{sTmp}, s{sTmp}, s{sTmp2}\ns_add_u32 s{sP2}, s{sTmp}, {W_P2:#x}')
    SB=(12,14,7,8,9,10,11,15,16)
    def spread_s(dst,src,nb,first,sh=0):
        for j in range(nb): a(f's_bfe_u32 s{sTmp2}, s{src}, {(1<<16)|(j+sh):#x}\ns_lshl_b32 s{sTmp2}, s{sTmp2}, {SB[first+j]}\ns_add_u32 s{dst}, s{dst}, s{sTmp2}')
    def spread_v(dst,sh,nb):
        for j in range(nb): a(f'v_bfe_u32 v{vT}, v0, {j+sh}, 1\n'+(f'v_lshl_add_u32 v{dst}, v{vT}, {SB[j]}, v{dst}' if j else f'v_lshlrev_b32 v{dst}, {SB[j]}, v{vT}'))
    vG3,vPre=vAd+4,vAd+5; sPre=14
    a(f'v_lshrrev_b32 v{vS3}, 3, v0\nv_lshlrev_b32 v{vS3}, 17, v{vS3}\nv_and_b32 v{vT}, 0x70, v{vL16}\nv_add_u32 v{vS3}, v{vS3}, v{vT}\ns_mov_b32 s{sS3w}, {W_S3:#x}')
    spread_s(sS3w,sXi,5,0); spread_s(sS3w,sXj,3,5)
    spread_v(vG3,0,6); spread_v(vPre,1,4)
    a(f'v_and_b32 v{vT}, 1, v0\nv_lshl_add_u32 v{vPre}, v{vT}, 6, v{vPre}\ns_lshl_b32 s{sS3r}, s{sXj}, 17\ns_add_u32 s{sS3r}, s{sS3r}, {W_S3:#x}')
    spread_s(sS3r,sXi,1,8)
    a(f's_mov_b32 s{sPre}, s{sS3r}'); spread_s(sPre,sXi,4,4,1)
    a(f's_and_b32 s{sTmp}, s{sCg}, 1\ns_lshl_b32 s{sTmp}, s{sTmp}, 3\ns_lshr_b32 s{sTmp2}, s{sCg}, 4\ns_add_u32 s{sTmp}, s{sTmp}, s{sTmp2}\ns_bfe_u32 s{sTmp2}, s{sCg}, 0x30001\ns_lshl_b32 s{sTmp2}, s{sTmp2}, 4')
    a(f's_add_u32 s{sS3r}, s{sS3r}, s{sTmp2}')
    a(f's_lshl_b32 s{sKo}, s{sTmp}, 10\ns_add_u32 s{sKo}, s{sKo}, s{sTmp2}\ns_add_u32 s{sKo}, s{sKo}, {W_B4:#x}')
    tk=vO
    mlast=min(mlast,2*S)
    def control(jend):
        l=lab('ctl'); sk=lab('cs')
        a(f'{l}:')
        wait_full(f's{sJ}',vT,vFA)
        if fb:
            a(f's_cmp_eq_u32 s{sLoc}, 2\ns_cbranch_scc0 {sk}')
            a(f's_add_u32 s{sTmp}, s{sMin}, s{sJ}\nv_mov_b32 v{tk}, s{sTmp}\ns_mov_b64 exec, 1\nbuffer_store_dword v{tk}, off, s[{dWS}:{dWS+3}], s{sKb}')
        if fb==5:
            l1,l2=lab('nr'),lab('np')
            a(f's_and_b32 s{sTmp}, s{sCnt}, 3\ns_add_u32 s{sTmp}, s{sTmp}, 28\ns_cmp_eq_u32 s{sTmp}, s{sXi}\ns_cselect_b32 s{sDp}, 1, 0\ns_add_u32 s{sCnt}, s{sCnt}, 1')
            a(f's_sub_u32 s{sGmR}, s{sGmR}, 1\ns_cselect_b32 s{sGmR}, {xev-1}, s{sGmR}\ns_cselect_b32 s{sDr}, s{sDp}, 0')
            a(f's_mul_i32 s{sTmp}, s{sDr}, 0xff0000\ns_or_b32 exec_hi, s{sTmp}, 1\ns_mov_b32 exec_lo, -1')
        elif fb: setexec(0xffffffff)
        if fb:
            a(f'buffer_load_dword v{tk+4}, v{tk+1}, s[{dWS}:{dWS+3}], 0 offen {LP("c")}\ns_waitcnt vmcnt(0)')
            a(f'v_sub_u32 v{tk+4}, v{tk+4}, v{tk+3}\nv_cmp_lt_u32 vcc, v{tk+4}, v{tk+6}\nv_cndmask_b32 v{tk+4}, v{tk+2}, v{tk+4}, vcc\ns_mov_b64 exec, -1')
            allred('v_add_u32',[tk+4],[tk+5],hi=())
            a(f'v_readlane_b32 s{sTmp}, v{tk+4}, 0\nv_readlane_b32 s{sTmp2}, v{tk+4}, 16\nv_readlane_b32 s{sTmp3}, v{tk+4}, 32\ns_add_u32 s{sTmp}, s{sTmp}, s{sTmp2}')
            d0=-256*(mk/2+tau)
        if fb==5:
            a(f's_cmp_eq_u32 s{sDp}, 0\ns_cbranch_scc1 {l2}\ns_lshl_b32 s{sDp}, s{sT}, 13\ns_add_u32 s{sTmp2}, s{sTmp}, s{sDp}\nv_mov_b32 v{tk}, s{sTmp2}\ns_mov_b64 exec, 1')
            a(f'buffer_store_dword v{tk}, off, s[{dWS}:{dWS+3}], s{sVo} offset:{0x480} sc1')
            a(f's_cmp_eq_u32 s{sDr}, 0\ns_cbranch_scc1 {l1}')
            a(f'v_readlane_b32 s{sTmp3}, v{tk+4}, 48\ns_lshl_b32 s{sTmp2}, s{sTmp}, 3\ns_sub_i32 s{sTmp3}, s{sTmp3}, s{sTmp2}\ns_add_i32 s{sTmp3}, s{sTmp3}, {int(256*xc)+4096}')
            a(f's_max_i32 s{sTmp3}, s{sTmp3}, 0\ns_min_i32 s{sTmp3}, s{sTmp3}, 8191\ns_add_u32 s{sTmp2}, s{sTmp3}, s{sDp}\nv_mov_b32 v{tk}, s{sTmp2}')
            a(f'buffer_store_dword v{tk}, off, s[{dWS}:{dWS+3}], s{sVo} offset:{0x80}')
            a(f'{l1}:\ns_mov_b64 exec, -1\n{l2}:')
            d0+=4096
        if fb:
            a(f'v_mov_b32 v{tk+4}, 0\ns_lshl_b32 s{sTmp}, s{sTmp}, 3')
            if fb==5: a(f's_add_u32 s{sTmp}, s{sTmp}, s{sTmp3}')
            a(f's_lshl_b32 s{sTmp2}, s{sJ}, 8\ns_sub_i32 s{sTmp}, s{sTmp}, s{sTmp2}')
            if ptau: a(f's_add_i32 s{sTmp}, s{sTmp}, s{sXcc}')
            a(f's_cmp_lt_i32 s{sTmp}, {int(d0-256*th)}\ns_cselect_b32 s{sTmp2}, 1, 0\ns_cmp_gt_i32 s{sTmp}, {int(d0+256*th)}\ns_cselect_b32 s{sTmp2}, 2, s{sTmp2}\nv_mov_b32 v{vT}, s{sTmp2}\nds_write_b32 v{vFA}, v{vT} offset:12')
            a(f'{sk}:')
        a(f's_add_u32 s{sJ}, s{sJ}, {mk}\ns_cmp_le_u32 s{sJ}, {jend}\ns_cbranch_scc1 {l}')
    a(f's_mov_b32 s{sJ}, {m0}')
    if ptau: a(f's_getreg_b32 s{sXcc}, hwreg(HW_REG_XCC_ID, 0, 1)\ns_mul_i32 s{sXcc}, s{sXcc}, {-2*int(256*ptau)}\ns_add_i32 s{sXcc}, s{sXcc}, {int(256*ptau)}')
    if fb:
        a(f's_lshl_b32 s{sMin}, s{sT}, 8\nv_mov_b32 v{tk+2}, {m0-mk}\nv_mov_b32 v{tk+3}, s{sMin}\nv_mov_b32 v{tk+6}, 0x100\nv_mov_b32 v{tk+4}, 0')
        a(f's_mul_i32 s{sVo}, s{sXj}, {CST2}\ns_add_u32 s{sVo}, s{sVo}, {W_CNT:#x}\nv_lshl_add_u32 v{tk+1}, v0, 2, s{sVo}\ns_lshl_b32 s{sKb}, s{sXi}, 2\ns_add_u32 s{sKb}, s{sKb}, s{sVo}')
    if fb==5:
        a(f's_mov_b32 s{sCnt}, 0\ns_mov_b32 s{sGmR}, {xev-1}')
        a(f's_mov_b32 exec_lo, 0\ns_lshl_b32 s{sTmp}, s{sT}, 13\nv_mov_b32 v{tk+2}, 4096\nv_mov_b32 v{tk+3}, s{sTmp}\nv_mov_b32 v{tk+6}, 0x2000\ns_mov_b32 exec_hi, 0xffff0000\nv_mov_b32 v{tk+2}, {32*(m0-mk)}')
        a(f'v_and_b32 v{tk+1}, 7, v0\nv_mul_u32_u24 v{tk+1}, {CST2}, v{tk+1}\nv_add_u32 v{tk+1}, {W_CNT+0x480:#x}, v{tk+1}\ns_mov_b64 exec, -1')
    control(jv)
    a(f'v_and_b32 v{vT+2}, 0x380, v{vL16}\ns_mov_b32 s{sTmp3}, {W_VG:#x}\nL_vtpoll:')
    a(f'buffer_load_dwordx2 v[{vb}:{vb+1}], v{vT+2}, s[{dWS}:{dWS+3}], s{sTmp3} offen sc1')
    timeout()
    a(f's_waitcnt vmcnt(0)\nv_cmp_ne_u32 vcc, s{sT}, v{vb}\ns_cbranch_vccnz L_vtpoll\nv_and_b32 v{vT}, 0x3ff, v{vb+1}')
    allred('v_add_u32',[vT],[vT+1],lo=(8,))
    if diag: a(f'v_readfirstlane_b32 s{sTmp}, v{vT}\nv_writelane_b32 v{vSt}, s{sTmp}, 16')
    if force is None: a(f'v_cmp_gt_u32 vcc, 2048, v{vT}\nv_cndmask_b32 v{vT}, 0, 1, vcc')
    else: a(f'v_mov_b32 v{vT}, {force}')
    a(f'v_lshlrev_b32 v{vT}, 13, v{vT}\nv_xor_b32 v{vT}, v{vT}, v{vb+1}\nv_and_b32 v{vT}, 0x2000, v{vT}\nv_add_u32 v{vS3}, v{vS3}, v{vT}')
    a(f's_lshl_b32 s{sTmp}, s{sXj}, 3\nv_readlane_b32 s{sTmp}, v{vT}, s{sTmp}\ns_add_u32 s{sS3r}, s{sS3r}, s{sTmp}\ns_add_u32 s{sPre}, s{sPre}, s{sTmp}')
    def s3touch():
        if s3h==2: a(f's_mov_b32 exec_hi, 0')
        else: a(f's_mov_b64 exec, 0x55555555')
        a(f'buffer_load_dword v{vb}, v{vPre}, s[{dWS}:{dWS+3}], s{sPre} offen {s3ld}\ns_mov_b64 exec, -1')
    def s3touch_s():
        for j in range(16*s3h):
            i=j//s3h; o_=(j%s3h<<6)+sum((i>>b&1)<<SB[b] for b in range(4))
            a(f's_load_dword s84, s[{pWS}:{pWS+1}], s{sPre} offset:{o_:#x} {s3g}')
    if s3pre==4: s3touch()
    if s3pre==5: s3touch_s()
    control(jb1)
    a(f's_cmp_lt_u32 s{sXi}, 16\ns_cbranch_scc0 L_nob3')
    a(f's_mul_i32 s{sTmp2}, s{sXi}, 28672\ns_lshl_b32 s{sTmp}, s{sFb}, 7\ns_add_u32 s{sTmp2}, s{sTmp2}, s{sTmp}\ns_add_u32 s{sTmp2}, s{sTmp2}, {W_B3:#x}')
    for k in range(4): a(f'v_mov_b32 v{vb+12+k}, 0')
    tag4(vb+12)
    a('L_b3poll:')
    for i in range(4):
        if i==3: a(f's_bitcmp{fpar}_b32 s{sXj}, 0\ns_cbranch_scc0 L_b3three')
        a(f'buffer_load_dwordx4 v[{vb+4*i}:{vb+4*i+3}], v{vL16}, s[{dWS}:{dWS+3}], s{sTmp2} offen offset:{1024*i} {LP("b")}')
    a('L_b3three:')
    timeout()
    a('s_waitcnt vmcnt(0)')
    chk(vT,[vb,vb+4,vb+8,vb+12],[],None,vb+16)
    a('s_cbranch_vccnz L_b3poll')
    def sum4(dst,lo):
        for k in range(4): a(f'v_add_f32 v{dst+k}, v{vb+16+k}, v{vb+20+k}\nv_add_f32 v{vA+4+k}, v{vb+24+k}, v{vb+28+k}')
        for k in range(4): a(f'v_add_f32 v{dst+k}, v{dst+k}, v{vA+4+k}')
        allred('v_add_f32',[dst,dst+1,dst+2,dst+3],[vA,vA+1,vA+2,vA+3],lo=lo)
    sum4(gg,(8,)); tag4(gg)
    a(f's_lshl_b32 s{sTmp}, s{sXi}, 10\ns_lshl_b32 s{sTmp2}, s{sXj}, 7\ns_add_u32 s{sTmp}, s{sTmp}, s{sTmp2}\ns_add_u32 s{sTmp}, s{sTmp}, {W_B4:#x}\ns_mov_b64 exec, 0xff')
    a(f'buffer_store_dwordx4 v[{gg}:{gg+3}], v{vL16}, s[{dWS}:{dWS+3}], s{sTmp} offen '+('' if 'b' in cutx else 'sc1')+'\ns_mov_b64 exec, -1')
    stamp(6)
    a('L_nob3:')
    control(jb2)
    a(f's_cmp_lt_u32 s{sXi}, 16\ns_cbranch_scc0 L_nob4\nv_and_b32 v{vT+2}, 0x380, v{v128}')
    a(f'L_b4poll:\nbuffer_load_dwordx4 v[{gg}:{gg+3}], v{vT+2}, s[{dWS}:{dWS+3}], s{sKo} offen sc1')
    timeout()
    a('s_waitcnt vmcnt(0)')
    chk(vT,[gg],[],None)
    if 'b' not in cutx: a('s_cbranch_vccnz L_b4poll')
    allred('v_add_f32',[gg,gg+1,gg+2,gg+3],[],lo=(4,2,1),hi=())
    for k in range(4): bfr(gg+k,gg+k)
    for k in range(4): a(f'v_mul_f32 v{vA+k}, s{sL2e}, v{gg+k}')
    for k in range(4): a(f'v_exp_f32 v{vA+k}, -v{vA+k}')
    for k in range(4): a(f'v_add_f32 v{vA+k}, 1.0, v{vA+k}')
    for k in range(4): a(f'v_rcp_f32 v{vA+k}, v{vA+k}')
    for k in range(4): a(f'v_mul_f32 v{gg+k}, v{gg+k}, v{vA+k}')
    for k in range(4): bfr(gg+k,gg+k)
    a(f's_lshl_b32 s{sTmp}, s{sXf}, 16\nv_mov_b32 v{gg+4}, s{sTmp}')
    for k in range(1,4):
        setexec(0xffff<<(16*k))
        a((f's_lshl_b32 s{sTmp}, s{sXf+k//2}, 16' if k%2==0 else f's_and_b32 s{sTmp}, s{sXf+k//2}, 0xffff0000')+f'\nv_mov_b32 v{gg+4}, s{sTmp}\nv_mov_b32 v{gg}, v{gg+k}')
    a('s_mov_b64 exec, -1')
    stamp(7)
    a('L_nob4:')
    control(jw)
    pm=vV+8; mx=vM; ls=vS+4; o=vS; pw=vP
    a(f's_lshl_b32 s{sTmp}, s{sH}, 2\ns_lshr_b32 s{sTmp2}, s{sC}, 3\ns_add_u32 s{sTmp}, s{sTmp}, s{sTmp2}\ns_lshl_b32 s{sTmp}, s{sTmp}, 9\ns_add_u32 s{sTmp2}, s{sTmp}, {W_ML:#x}\nL_mlpoll:')
    for i in range(2): a(f'buffer_load_dwordx4 v[{pm+4*i}:{pm+4*i+3}], v{vgm}, s[{dWS}:{dWS+3}], s{sTmp2} offen offset:{256*i} {LP("m")}')
    timeout()
    a('s_waitcnt vmcnt(0)')
    chk(vT,[pm,pm+4],[],None)
    a('s_cbranch_vccnz L_mlpoll')
    for i in range(2): a(f'v_and_b32 v{pw+2*i}, 0xffff0000, v{pm+4*i}')
    a(f'v_max_f32 v{mx}, v{pw}, v{pw+2}')
    allred('v_max_f32',[mx],[vT+1],lo=(4,8))
    for i in range(2): a(f'v_sub_f32 v{pw+2*i}, v{pw+2*i}, v{mx}')
    for i in range(2): a(f'v_mul_f32 v{pw+2*i}, s{sL2e}, v{pw+2*i}')
    for i in range(2): a(f'v_exp_f32 v{pw+2*i}, v{pw+2*i}')
    a(f'v_mul_f32 v{ls}, v{pw}, v{pm+2}\nv_fmac_f32 v{ls}, v{pw+2}, v{pm+6}')
    allred('v_add_f32',[ls],[vT+1],lo=(4,8))
    a(f'v_rcp_f32 v{ls}, v{ls}')
    for i in range(2): a(f'v_mul_f32 v{pw+2*i}, v{pw+2*i}, v{ls}')
    stamp(9)
    control(jpre)
    po=vV; sMk=84; sS3o=92
    for i in range(1,4): a(f's_add_u32 s{sS3o+i}, s{sS3r}, {((i&1)<<SB[6])+((i>>1)<<SB[7])}')
    s3o=lambda i: sS3r if i==0 else sS3o+i
    def ldo(i): a(f'buffer_load_dwordx4 v[{po+4*i}:{po+4*i+3}], v{vL16}, s[{dWS}:{dWS+3}], s{sP2} offen offset:{1024*i} {LP("o")}')
    def lds3(i): a(f'buffer_load_dwordx4 v[{vb+4*i}:{vb+4*i+3}], v{vG3}, s[{dWS}:{dWS+3}], s{s3o(i)} offen {s3ld}')
    if p2pre==1: p2touch(sP2)
    if s3pre==2: s3touch()
    elif s3pre==3: s3touch_s()
    elif s3pre==1:
        a(f's_cmp_lt_u32 s{sXi}, 16\ns_cbranch_scc0 L_nopre')
        for i in range(4): lds3(i)
        a('L_nopre:')
    if mlast>jpre: control(mlast)
    stamp(8)
    def masked(n,ld):
        for i in range(n):
            l=lab('mz')
            a(f's_mov_b64 exec, s[{sMk+2*i}:{sMk+2*i+1}]\ns_cbranch_execz {l}'); ld(i); a(f'{l}:')
        a('s_mov_b64 exec, -1')
    def recheck(n,ck,skip=False):
        for i in range(n):
            l=lab('rc')
            if skip: a(f's_cmp_eq_u64 s[{sMk+2*i}:{sMk+2*i+1}], 0\ns_cbranch_scc1 {l}')
            ck(i); a(f's_mov_b64 s[{sMk+2*i}:{sMk+2*i+1}], vcc')
            if skip: a(f'{l}:')
        a(f's_or_b64 vcc, s[{sMk}:{sMk+1}], s[{sMk+2}:{sMk+3}]')
        if n==4: a(f's_or_b64 vcc, vcc, s[{sMk+4}:{sMk+5}]\ns_or_b64 vcc, vcc, s[{sMk+6}:{sMk+7}]')
    def rowsum(v,lo):
        a(f'v_permlane16_swap_b32 v{v}, v{v+1}\nv_permlane16_swap_b32 v{v+2}, v{v+3}\nv_add_f32 v{v}, v{v}, v{v+1}\nv_add_f32 v{v+2}, v{v+2}, v{v+3}')
        a(f'v_permlane32_swap_b32 v{v}, v{v+2}\nv_add_f32 v{v}, v{v}, v{v+2}')
        allred('v_add_f32',[v],[],lo=lo,hi=())
    def allmask(n):
        for i in range(n): a(f's_mov_b64 s[{sMk+2*i}:{sMk+2*i+1}], -1')
    r=vO+8
    for k in range(8): a(f'v_mov_b32 v{r+k}, 0')
    allmask(2)
    if jwo:
        a('L_wowait:'); poll_full(vT,vFA)
        a(f's_cmp_eq_u32 s{sGend}, 0\ns_cbranch_scc0 L_wowait')
        wo_loads()
    def poll(name,n,ld,ck,depth,thr):
        a(f's_branch L_{name}chk\nL_{name}poll:')
        masked(n,ld); timeout()
        a(f'L_{name}chk:\ns_waitcnt vmcnt(0)')
        recheck(n,ck,True)
        if not depth:
            a(f's_cbranch_scc1 L_{name}poll'); return
        a(f's_cbranch_scc0 L_{name}ok')
        for i in range(n):
            a(f's_bcnt1_i32_b64 s{sTmp2 if i else sTmp}, s[{sMk+2*i}:{sMk+2*i+1}]')
            if i: a(f's_add_u32 s{sTmp}, s{sTmp}, s{sTmp2}')
        a(f's_cmp_gt_u32 s{sTmp}, {thr}\ns_cbranch_scc1 L_{name}poll\nL_{name}fast:')
        for i in range(n):
            a(f's_or_b64 exec, s[{sMk+2*i}:{sMk+2*i+1}], 1'); ld(i)
        a('s_mov_b64 exec, -1'); timeout()
        a(f's_waitcnt vmcnt({n*depth})')
        recheck(n,ck,True)
        a(f's_cbranch_scc1 L_{name}fast\nL_{name}ok:')
    def ofirst():
        a('s_waitcnt vmcnt(0)'); wait_full(jml,vT,vFA); ldo(0); ldo(1)
    if jwo: wo_perm(0,ofirst)
    else: ofirst()
    stamp(14)
    pc=vb+16
    poll('o',2,ldo,lambda i: chk(vT,[po+4*i],[],None,pc+4*i),fp[2],fp[3])
    stamp(10)
    for k in (0,2): a(f'v_pk_mul_f32 v[{o+k}:{o+k+1}], v[{pc+k}:{pc+k+1}], v[{pw}:{pw+1}] op_sel_hi:[1,0]')
    for k in (0,2): a(f'v_pk_fma_f32 v[{o+k}:{o+k+1}], v[{pc+4+k}:{pc+4+k+1}], v[{pw+2}:{pw+3}], v[{o+k}:{o+k+1}] op_sel_hi:[1,0,1]')
    rowsum(o,(4,8))
    a(f'v_mov_b32 v{o+1}, v{o}\nv_permlane16_swap_b32 v{o}, v{o+1}\nv_cvt_pk_bf16_f32 v{vA}, v{o}, v{o+1}\nv_cvt_pk_bf16_f32 v{vA+1}, v{o}, v{o+1}\nv_permlane32_swap_b32 v{vA}, v{vA+1}')
    for r_ in range(8):
        u=r_>>1
        for k in range(8): a(f'v_dot2c_f32_bf16_dpp v{r+k}, v{vA+(r_&1)}, v{vWo+8*r_+4+(k>>1) if k&1 else vWl+4*r_+(k>>1)} quad_perm:[{u},{u},{u},{u}] row_mask:0xf bank_mask:0xf')
    tag4(r)
    a(f'buffer_store_dwordx4 v[{r}:{r+3}], v{vS3}, s[{dWS}:{dWS+3}], s{sS3w} offen {s3st}\ns_add_u32 s{sS3w}, s{sS3w}, {1<<SB[8]}')
    tag4(r+4)
    a(f'buffer_store_dwordx4 v[{r+4}:{r+7}], v{vS3}, s[{dWS}:{dWS+3}], s{sS3w} offen {s3st}')
    stamp(11)
    a(f's_cmp_lt_u32 s{sXi}, 16\ns_cbranch_scc0 L_hfin')
    allmask(4)
    cks=lambda i: chk(vT,[vb+4*i],[],None,pc+4*i)
    a(f's_lshl_b32 s{sCnt}, s{sCg}, 3\ns_mov_b32 s{sLoc}, 0x00010001\ns_mov_b32 s{sLoc+1}, 0x00010001')
    if s3w: a('s_waitcnt vmcnt(0)')
    for i in range(4): lds3(i)
    poll('s3',4,lds3,cks,fp[4],fp[5])
    stamp(12)
    ss=vS
    for d,x,y in ((ss,pc,pc+4),(ss+4,pc+8,pc+12),(ss,ss,ss+4)):
        for k in (0,2): a(f'v_pk_add_f32 v[{d+k}:{d+k+1}], v[{x+k}:{x+k+1}], v[{y+k}:{y+k+1}]')
    rowsum(ss,(8,4,2,1))
    bfr(ss,ss); a(f'v_mul_f32 v{ss}, v{ss}, v{gg}'); bfr(ss,ss)
    a(f'v_add_f32 v{ss}, v{ss}, v{gg+4}\nv_cvt_pk_bf16_f32 v{ss}, v{ss}, v{ss}\ns_mov_b64 exec, s[{sLoc}:{sLoc+1}]')
    a(f'buffer_store_short v{ss}, v{gg+5}, s[{dOUT}:{dOUT+3}], s{sCnt} offen\ns_mov_b64 exec, 1')
    a(f's_cmp_eq_u32 s{sCg}, 0\ns_cbranch_scc0 L_hfin\nv_mov_b32 v{vT+1}, s{sT}\nbuffer_store_dword v{vT+1}, off, s[{dWS}:{dWS+3}], 0')
    a('L_hfin:\ns_waitcnt vmcnt(0)')
    stamp(13)
    stamp_out(dWS)
    a('L_end:\ns_endpgm')
    n=a.fix()
    out=HDR+f'; @launch grid=(256,1,1) block=({64*NWAVE},1,1) lds=163840\n'
    out+=f'.amdgcn_target "amdgcn-amd-amdhsa--gfx950"\n.text\n.globl {NAME}\n.p2align 8\n.type {NAME},@function\n'
    out+=a.text()
    out+=f'''.section .rodata,"a"
.p2align 6
.amdhsa_kernel {NAME}
  .amdhsa_next_free_vgpr 256
  .amdhsa_next_free_sgpr 96
  .amdhsa_accum_offset 256
  .amdhsa_group_segment_fixed_size 0
  .amdhsa_kernarg_size 96
  .amdhsa_user_sgpr_count 2
  .amdhsa_user_sgpr_kernarg_segment_ptr 1
  .amdhsa_system_sgpr_workgroup_id_x 1
  .amdhsa_float_denorm_mode_32 3
.end_amdhsa_kernel
'''
    return out
if __name__=='__main__':
    kw=eval('dict(%s)'%(sys.argv[1] if len(sys.argv)>1 else ''))
    sys.stdout.write(gen(**kw))
```

```python
import sys, struct
from asmlib import Asm
NAME='recurrent_scan__gqa_block_cached__geglu_ffn__decode_kernel'
HDR=open('recurrent_scan__gqa_block_cached__geglu_ffn__decode.s.ref').read().split('; Override launch')[0]
def f2u(x): return struct.unpack('<I',struct.pack('<f',x))[0]
LOG2E=f2u(1.4426950408889634); SCALE=f2u(128**-0.5)
R=17; SLOT=8192; RING=R*SLOT
MISC=RING
L_FULL=MISC; L_QRDY=MISC+8; L_MODE=MISC+12; L_REL=MISC+16; L_PF=MISC+64; L_PF2=MISC+96; L_MT=MISC+128; L_SL=MISC+192; L_X=MISC+1024; L_XN=MISC+2048; L_Q=MISC+4096; L_S=MISC+5120; L_PW=L_X; L_PS=L_XN
W_B4=0x40000; W_CNT=0x1000; W_QG=0x10000; W_QX=0x18000; W_F1=0x20000; W_P2=0x280000; W_S3=0x400000; W_CAL=0x500000; W_VT=0x50000; W_VG=0x51000; W_ML=0x58000; W_B3=0x180000; W_ST=0x200000; WS_SZ=0x600000
TB=10; S3NEW=1; P2PACK=1
PC=2112; NWAVE=6; INF=0x7fffffff; CST=0x180; CST2=0x1100
def gen(mapping='hx', N=20, S=64, diag=0, pol='nt', wpol='nt', local=1, f1wait=12, N0=None, fb=3, dN=2, m0=20, mk=4, mlast=116, th=1.5, tau=0.04,
        xev=3, xc=5., keep=(13,), qfall=24, jb1=28, jb2=48, jpre=108, s3pipe=0, s3pre=4, jopen=0, Nend=24, jwo=1, jml=131, s3ld='sc1', s3st='sc1', hxor=0, ptau=0.12, p2pre=3, fp=(0,0,0,0,0,0), force=None, jv=24, wsw=0, wpolw='sc1', nvote=1, pv='D', cut=1, npair=2, nend=8, nsp=4, jw=84, dU=4, qx=0, s3w=1, fpar=1, js3=None, p2h=1, pfw='t', s3g='glc', s3h=2, cutx='', lp='', cs=4, wl=12, wp=None, wpx=(1,), wopol=None, p2w=1, jwt=None, SB4=(12,14,7,8,9,10,11), rot=None, LX=(16,32,0,8,4,0,0,0)):
    a=Asm()
    LP=lambda k: 'nt' if k in lp else 'sc1'
    N0=N0 or N
    if cs!=4: wl=None
    vpol=pol
    W=N0-4
    modes=[N,N-dN,N+(dU or dN)] if fb else [N]
    assert S>=8 and mapping=='hx'
    GT=2*S+4
    sB,sW=2,3
    pX,pK,pV,pWQ,pWO,pWG,pWU,pWD,pOUT,pWS=4,6,8,10,12,16,18,20,22,26
    sH,sC,sXi,sF,sT,sTO=48,49,50,51,52,53
    sFull,sG,sSlot,sSlotV,sMin,sKo,sVo,sTmp,sTmp2,sCnt,sGmR=54,55,56,57,58,59,60,61,62,63,64
    sScale,sL2e,sT1,sGend,sCw,sXj=65,66,67,68,69,74
    sSt=70
    sSt0=72
    sXf=76
    sLoc,sKb,sJ,sCg,sXcc,sTmp3=78,79,80,81,82,83
    sTm=75
    vSt=159
    uid=[0]
    def lab(p): uid[0]+=1; return f'L_{p}_{uid[0]}'
    def srd(d,p,size):
        a(f's_mov_b32 s{d}, s{p}\ns_mov_b32 s{d+1}, s{p+1}\ns_mov_b32 s{d+2}, {size:#x}\ns_mov_b32 s{d+3}, 0x20000')
    role=['L']
    def stamp(k):
        if diag==3 and not (role[0]=='L' or k in keep): return
        if diag: a(f's_memrealtime s[{sSt}:{sSt+1}]\ns_waitcnt lgkmcnt(0)\nv_writelane_b32 v{vSt}, s{sSt}, {k}')
    def stamp_out(srd_ws):
        if diag:
            a(f'v_writelane_b32 v{vSt}, s{sSt0}, 0')
            a(f's_mul_i32 s{sTmp}, s{sB}, {NWAVE}\ns_add_u32 s{sTmp}, s{sTmp}, s{sW}\ns_lshl_b32 s{sTmp}, s{sTmp}, 8\ns_add_u32 s{sTmp}, s{sTmp}, {W_ST:#x}')
            a(f's_mov_b64 exec, -1\nv_lshlrev_b32 v1, 2, v0\nbuffer_store_dword v{vSt}, v1, s[{srd_ws}:{srd_ws+3}], s{sTmp} offen sc1')
    def setexec(m):
        lo,hi=m&0xffffffff,m>>32
        if hi==0 and lo<0x80000000: a(f's_mov_b64 exec, {lo:#x}')
        else: a(f's_mov_b32 exec_lo, {lo:#x}\ns_mov_b32 exec_hi, {hi:#x}')
    def timeout():
        a(f's_sub_u32 s{sTO}, s{sTO}, 1\ns_cbranch_scc1 L_end')
    def poll_full(vtmp,vaddr):
        a(f'ds_read_b64 v[{vtmp}:{vtmp+1}], v{vaddr}')
        timeout()
        a(f's_waitcnt lgkmcnt(0)\nv_readfirstlane_b32 s{sFull}, v{vtmp}\nv_readfirstlane_b32 s{sGend}, v{vtmp+1}')
    def wait_full(x, vtmp, vaddr):
        assert vtmp%2==0
        ok=lab('fok'); p=lab('fp')
        a(f's_cmp_gt_i32 s{sFull}, {x}\ns_cbranch_scc1 {ok}\n{p}:')
        poll_full(vtmp,vaddr)
        a(f's_cmp_gt_i32 s{sFull}, {x}\ns_cbranch_scc0 {p}\n{ok}:')
    def bfr(dst,src):
        a(f'v_cvt_pk_bf16_f32 v{dst}, v{src}, v{src}\nv_and_b32 v{dst}, 0xffff0000, v{dst}')
    def allred(op, vs, ts, lo=(8,4,2,1), hi=(16,32)):
        for r in lo:
            for v in vs: a(f'{op}_dpp v{v}, v{v}, v{v} row_ror:{r} row_mask:0xf bank_mask:0xf')
        for sw in hi:
            for v,t in zip(vs,ts): a(f'v_mov_b32 v{t}, v{v}')
            for v,t in zip(vs,ts): a(f'v_permlane{sw}_swap_b32 v{v}, v{t}')
            for v,t in zip(vs,ts): a(f'{op} v{v}, v{v}, v{t}')
    vMask=157
    def tag4(v):
        for k in range(4): a(f'v_add_u32 v{v+k}, {1<<TB-1:#x}, v{v+k}')
        for k in range(4): a(f'v_bfi_b32 v{v+k}, v{vMask}, s{sT if k%2==0 else sT1}, v{v+k}')
    def chk(acc,regs_mt,regs_full,acc2,dst=None):
        X=[]
        for i,v in enumerate(regs_mt):
            for k in range(4):
                d=(v if dst is None else dst+4*i)+k; X.append(d)
                a(f'v_xor_b32 v{d}, s{sTm if k%2==0 else sT1}, v{v+k}')
        a(f'v_or3_b32 v{acc}, v{X[0]}, v{X[1]}, v{X[2]}')
        for i in range(3,len(X)-1,2): a(f'v_or3_b32 v{acc}, v{acc}, v{X[i]}, v{X[i+1]}')
        a(f'v_bitop3_b32 v{acc}, v{acc}, v{X[-1]}, v{vMask} bitop3:0xa8')
        for v in regs_full: a(f'v_bitop3_b32 v{acc}, v{v}, s{sT}, v{acc} bitop3:0xbe')
        a(f'v_cmp_ne_u32 vcc, 0, v{acc}')
    def newtag(): return f's_add_u32 s{sT}, s{sT}, 1\ns_bfe_u32 s{sT1}, s{sT}, {(TB<<16)|TB:#x}\ns_and_b32 s{sTm}, s{sT}, {(1<<TB)-1:#x}'

    a(f'{NAME}:')
    if diag: a(f's_memrealtime s[{sSt0}:{sSt0+1}]')
    a(f's_cmp_ge_u32 s{sB}, 256\ns_cbranch_scc1 L_end')
    a('s_load_dwordx16 s[4:19], s[0:1], 0\ns_load_dwordx8 s[20:27], s[0:1], 64')
    if diag: a(f'v_mov_b32 v{vSt}, 0')
    a(f'v_lshrrev_b32 v1, 6, v0\nv_and_b32 v0, 63, v0\nv_readfirstlane_b32 s{sW}, v1')
    a(f's_and_b32 s{sXj}, s{sB}, 7\ns_lshr_b32 s{sXi}, s{sB}, 3')
    sFb=94
    a(f's_lshr_b32 s{sFb}, s{sXj}, 1\ns_mul_i32 s{sFb}, s{sFb}, 56\ns_and_b32 s{sTmp}, s{sXj}, 1\ns_mul_i32 s{sTmp2}, s{sTmp}, {24 if fpar else 32}\ns_add_u32 s{sFb}, s{sFb}, s{sTmp2}')
    a(f's_cmp_eq_u32 s{sTmp}, {fpar}\ns_cselect_b32 s{sTmp}, 32, 24\ns_add_u32 s{sF}, s{sFb}, s{sXi}\ns_cmp_lt_u32 s{sXi}, s{sTmp}\ns_cselect_b32 s{sF}, s{sF}, 0x100000')
    if mapping=='hx': a(f's_xor_b32 s{sH}, s{sXj}, {hxor}\ns_mov_b32 s{sC}, s{sXi}')
    else: a(f's_lshr_b32 s{sH}, s{sB}, 5\ns_and_b32 s{sC}, s{sB}, 31')
    sCq=95
    a(f's_xor_b32 s{sCq}, s{sC}, {qx}')
    a(f's_mov_b32 s{sTO}, 200000\ns_mov_b32 s{sFull}, -1\ns_mov_b32 s{sGend}, {INF:#x}')
    a(f'v_lshrrev_b32 v2, 4, v0\nv_and_b32 v3, 15, v0')
    a(f's_cmp_lg_u32 s{sW}, 0\ns_cbranch_scc1 L_cons')
    vK0,vV0,vWQ,vFF,vFA,vRA,vF,vX,vTQ=4,8,10,11,12,13,14,20,21
    a('s_setprio 3')
    a(f'v_lshlrev_b32 v{vX}, 4, v0')
    a(f'v_lshrrev_b32 v{vWQ}, 2, v0\nv_lshlrev_b32 v{vWQ}, 13, v{vWQ}\nv_lshlrev_b32 v1, 1, v2\nv_xor_b32 v1, v1, v0\nv_and_b32 v1, 3, v1\nv_lshl_add_u32 v{vWQ}, v1, 4, v{vWQ}')
    a(f's_and_b32 s{sTmp}, s{sCq}, 7\ns_lshl_b32 s{sTmp}, s{sTmp}, 7\ns_bfe_u32 s{sTmp2}, s{sCq}, 0x10003\ns_lshl_b32 s{sTmp2}, s{sTmp2}, 6\ns_add_u32 s{sTmp}, s{sTmp}, s{sTmp2}')
    a(f's_lshl_b32 s{sTmp2}, s{sH}, 10\ns_add_u32 s{sTmp}, s{sTmp}, s{sTmp2}\ns_lshr_b32 s{sTmp2}, s{sCq}, 4\ns_lshl_b32 s{sTmp2}, s{sTmp2}, 21\ns_add_u32 s{sVo}, s{sTmp}, s{sTmp2}')
    a(f'v_xor_b32 v{vK0}, v2, v3\nv_lshlrev_b32 v{vK0}, 4, v{vK0}\nv_lshl_add_u32 v{vK0}, v2, 8, v{vK0}')
    for k in (1,2,3): a(f'v_xor_b32 v{vK0+k}, {64*k}, v{vK0}')
    a(f'v_lshlrev_b32 v{vV0}, 1, v2\nv_xor_b32 v{vV0}, v{vV0}, v3\nv_lshlrev_b32 v{vV0}, 4, v{vV0}\nv_lshl_add_u32 v{vV0}, v2, 8, v{vV0}\nv_xor_b32 v{vV0+1}, 128, v{vV0}')
    a(f'v_lshrrev_b32 v{vFF}, 3, v0\nv_mul_u32_u24 v{vFF}, 3584, v{vFF}\nv_lshlrev_b32 v1, 1, v2\nv_xor_b32 v1, v1, v0\nv_and_b32 v1, 7, v1\nv_lshl_add_u32 v{vFF}, v1, 4, v{vFF}')
    a(f's_and_b32 s{sTmp}, s{sF}, 7\ns_mul_i32 s{sTmp}, s{sTmp}, {64*3584}\ns_lshr_b32 s{sCnt}, s{sF}, 3\ns_lshl_b32 s{sCnt}, s{sCnt}, 7\ns_add_u32 s{sCnt}, s{sCnt}, s{sTmp}')
    a(f'v_mov_b32 v{vFA}, {L_FULL}\nv_mov_b32 v{vRA}, {L_REL}\nv_mov_b32 v{vF}, -1\nv_mov_b32 v{vF+1}, {INF:#x}\nds_write_b64 v{vFA}, v[{vF}:{vF+1}]')
    a(f's_lshl_b32 s{sKb}, s{sH}, 24\ns_lshl_b32 s{sTmp}, s{sC}, 19\ns_add_u32 s{sKb}, s{sKb}, s{sTmp}\ns_mov_b32 s{sKo}, 0')
    if rot:
        a(f's_mul_i32 s{sTmp}, s{sC}, {rot[0]}\ns_mul_i32 s{sTmp2}, s{sH}, {rot[1]}\ns_add_u32 s{sTmp}, s{sTmp}, s{sTmp2}\ns_and_b32 s{sTmp}, s{sTmp}, {rot[2] if len(rot)>2 else 31}\ns_lshl_b32 s{sKo}, s{sTmp}, {rot[3] if len(rot)>3 else 14}')
    for j,m in enumerate(LX or []):
        if m: a(f's_bitcmp1_b32 s{sKb}, {19+j}\ns_cselect_b32 s{sTmp}, {m<<13:#x}, 0\ns_xor_b32 s{sKb}, s{sKb}, s{sTmp}')
    def wrap(so):
        if rot: a(f's_and_b32 s{so}, s{so}, 0x7ffff')
    a(f's_mov_b32 m0, {L_X:#x}')
    a('s_waitcnt lgkmcnt(0)')
    dK,dV,dWQ,dWG,dWU,dXl,dWSl=28,32,36,40,44,84,88
    srd(dXl,pX,1024)
    a(f'buffer_load_dwordx4 v{vX}, s[{dXl}:{dXl+3}], 0 offen lds')
    srd(dWQ,pWQ,512*4096*2)
    stamp(10)
    issued=[1]; pub=[-1]
    def pubv(v): a(f'v_mov_b32 v{vF}, {v}\nds_write_b32 v{vFA}, v{vF}')
    def pace():
        if issued[0]>W:
            a(f's_waitcnt vmcnt({W})')
            g=(issued[0]-W-1)//8
            if g>pub[0]:
                pub[0]=g; pubv(g); stamp(11+g)
    def sub(kind, g, sb):
        base=(g%R)*SLOT+4096*sb
        a(f's_mov_b32 m0, {base:#x}')
        for k in range(4):
            n=4*sb+k
            if kind=='K':
                if k==0: a(f's_add_u32 s{sTmp}, s{sKo}, {4096*sb+8192*(g-4)}\ns_xor_b32 s{sTmp}, s{sTmp}, s{sKb}')
                a(f'buffer_load_dwordx4 v{vK0+k}, s[{dK}:{dK+3}], s{sTmp} offen offset:{1024*k} {pol} lds')
            elif kind in('WQ0','WQ1'):
                n+=8*(kind=='WQ1')
                a(f's_add_u32 s{sTmp}, s{sVo}, {16*8192*n-1024*k}')
                a(f'buffer_load_dwordx4 v{vWQ}, s[{dWQ}:{dWQ+3}], s{sTmp} offen offset:{1024*k} {wpol} lds')
            elif kind in('G','U'):
                d=dWG if kind=='G' else dWU
                a(f's_add_u32 s{sTmp}, s{sCnt}, {8*3584*n-1024*k}')
                a(f'buffer_load_dwordx4 v{vFF}, s[{d}:{d+3}], s{sTmp} offen offset:{1024*k} {wpol} lds')
        issued[0]+=4
    barrier_done=False
    for g,kind in enumerate(['WQ0','WQ1','G','U','K','K']):
        if kind=='G': srd(dWG,pWG,512*1792*2); srd(dWU,pWU,512*1792*2); srd(dK,pK,1<<27); srd(dV,pV,1<<27)
        for sb in range(2):
            if issued[0]>W and not barrier_done:
                a('s_barrier'); barrier_done=True
            pace(); sub(kind,g,sb)
    assert barrier_done
    if diag: srd(dWSl,pWS,WS_SZ)
    assert pub[0]>=2
    a(f's_mov_b32 s{sVo}, s{sKo}\ns_add_u32 s{sKo}, s{sKo}, 16384'); wrap(sKo)
    a(f's_mov_b32 s{sG}, 6\ns_mov_b32 s{sSlot}, {6*SLOT}\ns_mov_b32 s{sMin}, 0\ns_mov_b32 s{sJ}, 1\ns_mov_b32 s{sFull}, {pub[0]}\ns_mov_b32 s{sCg}, 0')
    def relcheck():
        ok=lab('rok'); p=lab('rp')
        a(f's_sub_i32 s{sGmR}, s{sG}, {R}\ns_cmp_gt_i32 s{sMin}, s{sGmR}\ns_cbranch_scc1 {ok}')
        a(f'{p}:\nds_read_b128 v[16:19], v{vRA}\nds_read_b32 v15, v{vRA} offset:16'); timeout()
        a(f's_waitcnt lgkmcnt(0)\nv_min3_i32 v16, v16, v17, v18\nv_min3_i32 v16, v16, v19, v15\nv_readfirstlane_b32 s{sMin}, v16\ns_cmp_gt_i32 s{sMin}, s{sGmR}\ns_cbranch_scc0 {p}\n{ok}:')
    def adv():
        a(f's_add_u32 s{sG}, s{sG}, 1\ns_add_u32 s{sSlot}, s{sSlot}, {SLOT}\ns_cmp_eq_u32 s{sSlot}, {RING}\ns_cselect_b32 s{sSlot}, 0, s{sSlot}')
    def batch(kind,sb):
        so=sKo if kind=='K' else sVo
        if sb==0: a(f's_mov_b32 m0, s{sSlot}')
        else: a(f's_add_u32 m0, s{sSlot}, 4096')
        a(f's_xor_b32 s{sTmp}, s{so}, s{sKb}' if sb==0 else f's_xor_b32 s{sTmp}, s{so}, s{sKb}\ns_add_u32 s{sTmp}, s{sTmp}, 4096')
        for k in range(4):
            if kind=='K': a(f'buffer_load_dwordx4 v{vK0+k}, s[{dK}:{dK+3}], s{sTmp} offen offset:{1024*k} {pol} lds')
            else: a(f'buffer_load_dwordx4 v{vV0+(k&1)}, s[{dV}:{dV+3}], s{sTmp} offen offset:{1024*k} {vpol} lds')
    def pubrel(d):
        a((f's_sub_u32 s{sTmp}, s{sG}, {-d}' if d<0 else f's_add_u32 s{sTmp}, s{sG}, {d}')+f'\ns_max_i32 s{sFull}, s{sFull}, s{sTmp}\nv_mov_b32 v{vF}, s{sFull}\nds_write_b32 v{vFA}, v{vF}')
    def dyn_group(kind,W,mid=None):
        relcheck()
        for sb in range(2):
            a(f's_waitcnt vmcnt({W})')
            c0,c1=-(-W//8),-(-(W-4)//8)
            if sb==(c1<c0): pubrel(-c1)
            batch(kind,sb)
        if mid: mid()
        so=sKo if kind=='K' else sVo
        a(f's_add_u32 s{so}, s{so}, 8192'); wrap(so)
        adv()
    def lstamp():
        if diag:
            l=lab('nost')
            a(f's_and_b32 s{sTmp}, s{sJ}, 7\ns_cmp_eq_u32 s{sTmp}, 0\ns_cbranch_scc0 {l}\ns_lshr_b32 s{sTmp}, s{sJ}, 3\ns_add_u32 s{sTmp}, s{sTmp}, 2\ns_min_u32 s{sTmp}, s{sTmp}, 9\ns_mov_b32 m0, s{sTmp}')
            a(f's_memrealtime s[{sSt}:{sSt+1}]\ns_waitcnt lgkmcnt(0)\nv_writelane_b32 v{vSt}, s{sSt}, m0\n{l}:')
    def moderead(): a(f'ds_read_b32 v{vTQ}, v{vFA} offset:12')
    if fb: moderead()
    for kind,jend in (('K',S//2),('V',S-nend//2)):
        a(f'L_ltop{kind}:')
        if fb:
            a(f's_waitcnt lgkmcnt(0)\nv_readfirstlane_b32 s{sTmp}, v{vTQ}')
            for mi in range(1,len(modes)): a(f's_cmp_eq_u32 s{sTmp}, {mi}\ns_cbranch_scc1 L_lloop{kind}{mi}')
        for mi,Np in enumerate(modes):
            W=Np-4; assert W<=59
            a(f'L_lloop{kind}{mi}:')
            if diag: a(f's_add_u32 s{sCg}, s{sCg}, {1<<(8*mi)}')
            dyn_group(kind,W); dyn_group(kind,W,moderead if fb else None)
            lstamp()
            a(f's_add_u32 s{sJ}, s{sJ}, 1\ns_cmp_lt_u32 s{sJ}, {jend}\ns_cbranch_scc1 L_ltop{kind}')
            if mi<len(modes)-1: a(f's_branch L_lend{kind}')
        a(f'L_lend{kind}:')
    W=Nend-4
    for i in range(nend): dyn_group('V',W)
    a(f'v_mov_b32 v{vF+1}, 0\nds_write_b32 v{vFA}, v{vF+1} offset:4')
    stamp(1)
    if wl is None:
        for left in range(8*((W-1)//8),-1,-8):
            a(f'v_mov_b32 v{vF}, {GT-left//8}\ns_waitcnt vmcnt({left})\nds_write_b32 v{vFA}, v{vF}')
        stamp(2)
    else:
        dWOl=20; srd(dWOl,pWO,4096*512*2)
        a(f'v_and_b32 v{vK0}, 0xff, v{vV0}\nv_lshl_add_u32 v{vK0}, v2, 10, v{vK0}\nv_xor_b32 v{vK0+1}, 128, v{vK0}')
        a(f's_and_b32 s{sTmp}, s{sC}, 28\ns_lshl_b32 s{sTmp2}, s{sH}, 5\ns_add_u32 s{sTmp}, s{sTmp}, s{sTmp2}\ns_lshl_b32 s{sTmp}, s{sTmp}, 14\ns_and_b32 s{sTmp2}, s{sC}, 3\ns_lshl_b32 s{sTmp2}, s{sTmp2}, 8\ns_add_u32 s{sKo}, s{sTmp}, s{sTmp2}')
        a(f's_mov_b32 s{sG}, {GT+1}'); relcheck()
        beh=aft=0
        if wopol is None: wopol=wpol if wp is None else ''
        for left in range(W+4,-1,-4):
            pb=left%8==0 and left<W
            if not (pb or left in (wl,wp)): continue
            if pb: a(f'v_mov_b32 v{vF}, {GT-left//8}')
            if left<W+4: a(f's_waitcnt vmcnt({left+beh})')
            if pb: a(f'ds_write_b32 v{vFA}, v{vF}')
            if left==wl:
                for n in range(16):
                    if n&3==0: a(f's_mov_b32 m0, {((GT+n//8)%R)*SLOT+1024*(n&7):#x}')
                    a(f's_add_u32 s{sTmp}, s{sKo}, {4096*n-1024*(n&3)}\nbuffer_load_dwordx4 v{vK0+(n&1)}, s[{dWOl}:{dWOl+3}], s{sTmp} offen offset:{1024*(n&3)} {wopol} lds')
                beh+=16; aft=0
            if left==wp:
                for x in wpx:
                    a(f's_xor_b32 s{sVo}, s{sKo}, {((x&3)<<8)+((x&28)<<14):#x}')
                    for n in range(16):
                        a(f'buffer_load_dwordx4 v[24:27], v{vK0}, s[{dWOl}:{dWOl+3}], s{sVo} offen {wopol}')
                        if n<15: a(f's_add_u32 s{sVo}, s{sVo}, 4096')
                    beh+=16; aft+=16
        assert beh<=48
        stamp(2)
        for left in (8,0): a(f'v_mov_b32 v{vF}, {GT+2-left//8}\ns_waitcnt vmcnt({left+aft})\nds_write_b32 v{vFA}, v{vF}')
        stamp(15)
        if aft: a('s_barrier\ns_waitcnt vmcnt(0)')
    if diag: a(f'v_writelane_b32 v{vSt}, s{sJ}, 16\nv_writelane_b32 v{vSt}, s{sCg}, 17')
    stamp_out(dWSl)
    a('s_endpgm')
    a('L_cons:'); role[0]='C'
    vFA,vRA,vKp,vVp,vM,vMb,vL,vTm=4,5,6,7,8,9,10,11
    vQ=12; vO=28; vK=60; vV=92; vS=124; vA=132; vP=140; vT=144; vAd=148; vL16=156; vX1=160
    dWS,dWD,dWO,dOUT=28,36,40,44
    a(f's_sub_u32 s{sCw}, s{sW}, 1')
    a(f'v_mov_b32 v{vFA}, {L_FULL}\ns_lshl_b32 s{sTmp}, s{sCw}, 2\ns_add_u32 s{sTmp}, s{sTmp}, {L_REL}\nv_mov_b32 v{vRA}, s{sTmp}')
    a(f's_add_u32 s{sG}, s{sCw}, 4')
    a(f's_cmp_eq_u32 s{sCw}, 0\ns_cselect_b32 s{sTmp}, 0, s{sG}\ns_cmp_eq_u32 s{sCw}, 4\ns_cselect_b32 s{sTmp}, 2, s{sTmp}\nv_mov_b32 v1, s{sTmp}\nds_write_b32 v{vRA}, v1')
    a(f'v_mov_b32 v1, 0\nds_write_b32 v{vFA}, v1 offset:8\nds_write_b32 v{vFA}, v1 offset:12\nds_write_b32 v{vRA}, v1 offset:{L_PF-L_REL}\nds_write_b32 v{vRA}, v1 offset:{L_PF2-L_REL}')
    a(f's_mov_b32 s{sScale}, {SCALE:#x}\ns_mov_b32 s{sL2e}, {LOG2E:#x}\nv_mov_b32 v{vMask}, {(1<<TB)-1:#x}')
    a(f'v_xor_b32 v{vKp}, v2, v3\nv_lshlrev_b32 v{vKp}, 4, v{vKp}\nv_lshl_add_u32 v{vKp}, v3, 8, v{vKp}')
    a(f'v_lshrrev_b32 v1, 2, v3\nv_lshl_add_u32 v1, v2, 2, v1\nv_and_b32 v{vVp}, 7, v1\nv_lshlrev_b32 v{vVp}, 5, v{vVp}\nv_lshl_add_u32 v{vVp}, v1, 8, v{vVp}\nv_and_b32 v{vTm}, 3, v0\nv_lshl_add_u32 v{vVp}, v{vTm}, 3, v{vVp}')
    a(f'v_lshlrev_b32 v{vL16}, 4, v0')
    a(f's_lshl_b32 s{sCg}, s{sXj}, 4\ns_add_u32 s{sCg}, s{sCg}, s{sXi}')
    a('s_waitcnt lgkmcnt(0)')
    a(f's_load_dword s{sT}, s[{pWS}:{pWS+1}], 0')
    a(f's_and_b32 s{sTmp}, s{sCg}, 127\ns_lshl_b32 s{sTmp}, s{sTmp}, 3\ns_load_dwordx2 s[{sXf}:{sXf+1}], s[{pX}:{pX+1}], s{sTmp}')
    srd(dWS,pWS,WS_SZ); srd(dWD,pWD,1792*512*2); srd(dWO,pWO,4096*512*2); srd(dOUT,pOUT,1024)
    a('s_barrier')
    w0,w1,w2,w3=vQ+8,vQ+9,vQ+10,vQ+11
    def wait_q(l,v):
        a(f'{l}:\nds_read_b32 v{v}, v{vFA} offset:8'); timeout()
        a(f's_waitcnt lgkmcnt(0)\nv_readfirstlane_b32 s{sLoc}, v{v}\ns_cmp_eq_u32 s{sLoc}, 0\ns_cbranch_scc1 {l}')
    def st2(loc,*st):
        l1,l2=lab('sl'),lab('sd')
        a(f's_cbranch_scc1 {l1}')
        for x in st: a(x+' sc1')
        a(f's_branch {l2}\n{l1}:')
        for x in st: a(x)
        a(f'{l2}:')
    a(f's_and_b32 s{sTmp}, s{sCw}, 3\ns_cmp_eq_u32 s{sTmp}, 0\ns_cbranch_scc1 L_ln')
    sPr=84; po_=[((i&1)<<12)+((i>>1&1)<<14)+((i>>2)<<7) for i in range(6)]
    a(f's_cmp_ge_u32 s{sCw}, {4-nvote}\ns_cbranch_scc0 L_waitq')
    if 'V' in cutx: a('s_branch L_waitq')
    a(f's_lshl_b32 s{sTmp}, s{sXi}, 15\ns_lshl_b32 s{sTmp2}, s{sXj}, 9\ns_add_u32 s{sTmp}, s{sTmp}, s{sTmp2}\ns_and_b32 s{sTmp2}, s{sCw}, 1\ns_lshl_b32 s{sTmp2}, s{sTmp2}, 8\ns_add_u32 s{sTmp}, s{sTmp}, s{sTmp2}\ns_add_u32 s{sKo}, s{sTmp}, {W_CAL:#x}\ns_add_u32 s{sKo+1}, s{sKo}, 0x2000')
    if wsw:
        a(f'v_and_b32 v{w0}, 7, v0\nv_lshlrev_b32 v{w0}, 12, v{w0}\nv_lshrrev_b32 v{w1}, 3, v0\nv_lshl_add_u32 v{w0}, v{w1}, 7, v{w0}\nv_mov_b32 v{w1}, 1\ns_mov_b64 exec, 0xffff')
        a(f'buffer_store_dword v{w1}, v{w0}, s[{dWS}:{dWS+3}], s{sKo} offen {wpolw}\ns_mov_b64 exec, -1\ns_mov_b32 s{sTmp3}, -1\ns_waitcnt vmcnt(0) lgkmcnt(0)')
    elif pv!='D': a(f's_waitcnt lgkmcnt(0)\ns_add_u32 s{sTmp3}, s{sT}, 1')
    a(f's_getreg_b32 s{sXcc}, hwreg(HW_REG_XCC_ID, 2, 1)\ns_mov_b32 s{sTmp}, 0\ns_mov_b32 s{sCnt}, s{sXcc}')
    if pv!='A':
        a(f's_and_b32 s{sTmp2}, s{sXi}, 1\ns_xor_b32 s{sCnt}, s{sCnt}, s{sTmp2}\ns_lshl_b32 s{sTmp2}, s{sTmp2}, 13\ns_add_u32 s{sKo}, s{sKo}, s{sTmp2}\ns_xor_b32 s{sKo+1}, s{sKo}, 0x2000')
    if pv!='D':
        for i in range(2*npair): a(f's_mov_b32 s{sPr+i}, s{sTmp3}')
    od=lambda i: (0,1) if i%2==0 or pv!='A' else (1,0)
    if pv=='D':
        a(f's_load_dword s{sTmp2}, s[{pWS}:{pWS+1}], s{sKo} offset:0x40\ns_waitcnt lgkmcnt(0)')
        for i in range(npair):
            for k in (0,1):
                l=lab('sp')
                a(f's_load_dword s{sPr}, s[{pWS}:{pWS+1}], s{sKo+k} offset:{po_[i]:#x}\n{l}:\ns_{"add" if k else "sub"}_u32 s{sTmp}, s{sTmp}, 1')
                timeout()
                a(f's_getreg_b32 s{sTmp2}, hwreg(HW_REG_IB_STS, 8, 4)\ns_cmp_lg_u32 s{sTmp2}, 0\ns_cbranch_scc1 {l}')
        a(f's_ashr_i32 s{sTmp}, s{sTmp}, {cut}\ns_min_i32 s{sTmp}, s{sTmp}, 7\ns_max_i32 s{sTmp}, s{sTmp}, -7')
    elif pv=='C':
        a(f's_load_dword s{sTmp2}, s[{pWS}:{pWS+1}], s{sKo} offset:0x40\ns_waitcnt lgkmcnt(0)')
        for i in range(npair):
            for k in (0,1):
                l=lab('sp')
                a(f's_load_dword s{sPr+2*i+k}, s[{pWS}:{pWS+1}], s{sKo+k} offset:{po_[i]:#x}\ns_mov_b32 s{sTmp2}, 200\n{l}:')
                a(f's_{"add" if k else "sub"}_u32 s{sTmp}, s{sTmp}, 1\ns_sub_u32 s{sTmp2}, s{sTmp2}, 1\ns_cbranch_scc1 {l}x\ns_cmp_eq_u32 s{sPr+2*i+k}, s{sTmp3}\ns_cbranch_scc1 {l}\n{l}x:')
        a(f's_ashr_i32 s{sTmp}, s{sTmp}, {cut}\ns_min_i32 s{sTmp}, s{sTmp}, 7\ns_max_i32 s{sTmp}, s{sTmp}, -7')
    else:
        for i in range(npair):
            for k in od(i): a(f's_load_dword s{sPr+2*i+k}, s[{pWS}:{pWS+1}], s{sKo+k} offset:{po_[i]:#x}')
        a(f's_waitcnt lgkmcnt({2*npair-cut})')
        sSn=36 if pv=='B' else sPr
        if pv=='B':
            for i in range(npair): a(f's_mov_b64 s[{sSn+2*i}:{sSn+2*i+1}], s[{sPr+2*i}:{sPr+2*i+1}]')
        for i in range(npair):
            for k in od(i): a(f's_cmp_lg_u32 s{sSn+2*i+k}, s{sTmp3}\n'+(f's_subb_u32' if k else 's_addc_u32')+f' s{sTmp}, s{sTmp}, 0')
    a(f's_sub_u32 s{sTmp2}, 0, s{sTmp}\ns_cmp_eq_u32 s{sCnt}, 0\ns_cselect_b32 s{sTmp}, s{sTmp}, s{sTmp2}\ns_add_u32 s{sTmp}, s{sTmp}, 8')
    if diag: a(f'v_writelane_b32 v{vSt}, s{sTmp}, 16')
    a(f's_lshl_b32 s{sXcc}, s{sXcc}, 7\ns_add_u32 s{sTmp}, s{sTmp}, s{sXcc}\ns_add_u32 s{sTmp2}, s{sT}, 1\ns_lshl_b32 s{sTmp2}, s{sTmp2}, 8\ns_add_u32 s{sTmp}, s{sTmp}, s{sTmp2}\nv_mov_b32 v{w0}, s{sTmp}')
    a(f's_lshl_b32 s{sTmp}, s{sXj}, 5\ns_add_u32 s{sTmp}, s{sTmp}, s{sXi}\ns_lshl_b32 s{sTmp}, s{sTmp}, 2\ns_sub_u32 s{sTmp2}, 3, s{sCw}\ns_lshl_b32 s{sTmp2}, s{sTmp2}, 10\ns_add_u32 s{sTmp}, s{sTmp}, s{sTmp2}')
    a(f's_add_u32 s{sTmp}, s{sTmp}, {W_VT:#x}\ns_mov_b64 exec, 1\nbuffer_store_dword v{w0}, off, s[{dWS}:{dWS+3}], s{sTmp}\ns_mov_b64 exec, -1')
    wait_q('L_waitq',w0)
    a(newtag()+'\ns_branch L_qready')
    a('L_ln:')
    vx=vK; vxf=vK+4; vWD=vO; vXf=vV
    wait_full(-1,vT,vFA)
    a(f'v_add_u32 v{vT}, {L_X}, v{vL16}\nds_read_b128 v[{vx}:{vx+3}], v{vT}')
    a(newtag())
    stamp(1)
    a('s_waitcnt lgkmcnt(0)')
    for j in range(4): a(f'v_lshlrev_b32 v{vxf+2*j}, 16, v{vx+j}\nv_and_b32 v{vxf+2*j+1}, 0xffff0000, v{vx+j}')
    t0=vxf+8; t1=t0+1; t2=t0+2; vd=t0+4
    a(f'v_add_f32 v{t0}, v{vxf}, v{vxf+1}\nv_add_f32 v{t1}, v{vxf+2}, v{vxf+3}\nv_add_f32 v{t2}, v{vxf+4}, v{vxf+5}\nv_add_f32 v{t0}, v{t0}, v{t1}\nv_add_f32 v{t1}, v{vxf+6}, v{vxf+7}\nv_add_f32 v{t0}, v{t0}, v{t2}\nv_add_f32 v{t0}, v{t0}, v{t1}')
    allred('v_add_f32',[t0],[t1])
    a(f'v_mul_f32 v{t0}, {f2u(1/512.):#x}, v{t0}')
    for j in range(8): a(f'v_sub_f32 v{vd+j}, v{vxf+j}, v{t0}')
    a(f'v_mul_f32 v{t2}, v{vd}, v{vd}')
    for j in range(1,8): a(f'v_fmac_f32 v{t2}, v{vd+j}, v{vd+j}')
    allred('v_add_f32',[t2],[t1])
    a(f'v_mul_f32 v{t2}, {f2u(1/512.):#x}, v{t2}')
    bfr(t0,t0); bfr(t2,t2)
    a(f'v_add_f32 v{t2}, {f2u(1e-5):#x}, v{t2}'); bfr(t2,t2)
    a(f'v_sqrt_f32 v{t2}, v{t2}'); bfr(t2,t2)
    a(f'v_rcp_f32 v{t2}, v{t2}')
    for j in range(8): a(f'v_sub_f32 v{vd+j}, v{vxf+j}, v{t0}')
    for j in range(4): a(f'v_cvt_pk_bf16_f32 v{vx+j}, v{vd+2*j}, v{vd+2*j+1}')
    for j in range(4): a(f'v_lshlrev_b32 v{vd+2*j}, 16, v{vx+j}\nv_and_b32 v{vd+2*j+1}, 0xffff0000, v{vx+j}')
    for j in range(8): a(f'v_mul_f32 v{vd+j}, v{vd+j}, v{t2}')
    for j in range(4): a(f'v_cvt_pk_bf16_f32 v{vx+j}, v{vd+2*j}, v{vd+2*j+1}')
    a(f's_lshl_b32 s{sTmp}, s{sCw}, 8\ns_add_u32 s{sTmp}, s{sTmp}, {L_XN}\nv_add_u32 v{t0}, s{sTmp}, v{vL16}\nds_write_b128 v{t0}, v[{vx}:{vx+3}]')
    a(f's_cmp_eq_u32 s{sCw}, 0\ns_cbranch_scc0 L_help')
    a(f's_lshr_b32 s{sTmp2}, s{sCq}, 4\ns_lshl_b32 s{sTmp2}, s{sTmp2}, 9\ns_add_u32 s{sTmp}, s{sTmp}, s{sTmp2}\nv_lshl_add_u32 v{t0}, v2, 3, s{sTmp}')
    for j in range(8): a(f'ds_read2_b64 v[{vXf+4*j}:{vXf+4*j+3}], v{t0} offset0:{8*j} offset1:{8*j+4}')
    vD=vQ; vpt=vT; vB=vK
    a(f'v_lshlrev_b32 v{vpt}, 6, v1\nv_lshl_add_u32 v{vpt}, v{vTm}, 3, v{vpt}\nv_and_b32 v{vpt+1}, 1, v2\nv_lshl_add_u32 v{vpt}, v{vpt+1}, 5, v{vpt}\nv_xor_b32 v{vpt+1}, 32, v{vpt}')
    a(f's_getreg_b32 s{sXcc}, hwreg(HW_REG_XCC_ID, 0, 4)\ns_waitcnt lgkmcnt(2)')
    stamp(2)
    def qgemv(s0,s1):
        seq=[(s,j) for s in range(s0,s1) for j in range(2)]
        def rd(i):
            s,j=seq[i]; b=vB+4*(i%8)
            a(f'ds_read_b64_tr_b16 v[{b}:{b+1}], v{vpt+j} offset:{2048*s}\nds_read_b64_tr_b16 v[{b+2}:{b+3}], v{vpt+j} offset:{2048*s+1024}')
        for i in range(5): rd(i)
        for i in range(len(seq)):
            if i+5<len(seq): rd(i+5)
            a(f's_waitcnt lgkmcnt({2*(min(i+5,len(seq)-1)-i)})')
            s,j=seq[i]; b=vB+4*(i%8)
            a(f'v_mfma_f32_16x16x32_bf16 v[{vD+4*j}:{vD+4*j+3}], v[{b}:{b+3}], v[{vXf+4*s}:{vXf+4*s+3}], '+('0' if s==0 else f'v[{vD+4*j}:{vD+4*j+3}]'))
    wait_full(0,vT+2,vFA); qgemv(0,4)
    wait_full(1,vT+2,vFA); stamp(3); qgemv(4,8)
    a(f'v_mov_b32 v{w0}, 4\nds_write_b32 v{vRA}, v{w0}')
    a(f's_and_b32 s{sTmp}, s{sCq}, 7\ns_lshl_b32 s{sTmp}, s{sTmp}, 8\ns_bfe_u32 s{sTmp2}, s{sCq}, 0x10003\ns_lshl_b32 s{sTmp2}, s{sTmp2}, 7\ns_add_u32 s{sTmp}, s{sTmp}, s{sTmp2}')
    a(f's_lshr_b32 s{sTmp2}, s{sCq}, 4\ns_lshl_b32 s{sTmp2}, s{sTmp2}, 11\ns_add_u32 s{sTmp}, s{sTmp}, s{sTmp2}\ns_lshl_b32 s{sKo}, s{sH}, 12\ns_add_u32 s{sKo}, s{sKo}, {W_QG:#x}\ns_add_u32 s{sTmp}, s{sTmp}, s{sKo}')
    a(f'v_lshlrev_b32 v{vpt}, 4, v2\nv_lshl_add_u32 v{vpt}, v3, 6, v{vpt}\nv_add_u32 v{vpt}, s{sTmp}, v{vpt}')
    a(f's_lshl_b32 s{sVo}, s{sH}, 9\ns_add_u32 s{sVo}, s{sVo}, {W_QX:#x}\ns_lshl_b32 s{sTmp}, s{sC}, 4\ns_add_u32 s{sTmp}, s{sTmp}, s{sVo}')
    setexec(0x0002000200020002)
    for k in range(4): a(f'v_mov_b32 v{vD+k}, v{vD+4+k}')
    a('s_mov_b64 exec, -1'); tag4(vD)
    a(f's_mov_b64 exec, 4\nv_mov_b32 v{vD}, s{sXcc}\nv_mov_b32 v{vD+1}, s{sT}\nv_mov_b32 v{vD+2}, s{sXcc}\nv_mov_b32 v{vD+3}, s{sT}\nv_mov_b32 v{vpt}, s{sTmp}')
    def qpub(p):
        setexec(0x0003000300030007)
        a(f'buffer_store_dwordx4 v[{vD}:{vD+3}], v{vpt}, s[{dWS}:{dWS+3}], 0 offen {p}\ns_mov_b64 exec, -1')
    qpub('' if local else 'sc1')
    stamp(4)
    a(f'v_and_b32 v{vpt+1}, 0x1f0, v{vL16}\ns_mov_b32 s{sCnt}, {qfall}')
    a('L_qpoll:')
    for i in range(4): a(f'buffer_load_dwordx4 v[{vK+4*i}:{vK+4*i+3}], v{vL16}, s[{dWS}:{dWS+3}], s{sKo} offen offset:{1024*i} {LP("q")}')
    a(f'buffer_load_dwordx4 v[{vK+16}:{vK+19}], v{vpt+1}, s[{dWS}:{dWS+3}], s{sVo} offen {LP("q")}')
    timeout()
    a('s_waitcnt vmcnt(0)')
    chk(w0,[vK,vK+4,vK+8,vK+12],[vK+17,vK+19],w1)
    a(f's_cbranch_vccz L_qok\ns_sub_u32 s{sCnt}, s{sCnt}, 1\ns_cmp_eq_u32 s{sCnt}, 0\ns_cbranch_scc0 L_qpoll')
    qpub('sc1')
    a('s_branch L_qpoll\nL_qok:')
    for k in range(8): a(f'v_add_f32 v{vK+k}, v{vK+k}, v{vK+8+k}')
    for k in range(4): a(f'v_cvt_pk_bf16_f32 v{vK+k}, v{vK+2*k}, v{vK+2*k+1}')
    a(f'v_lshlrev_b32 v{vpt+1}, 3, v0\nv_add_u32 v{vpt+1}, {L_Q}, v{vpt+1}\nds_write2st64_b64 v{vpt+1}, v[{vK}:{vK+1}], v[{vK+2}:{vK+3}] offset0:0 offset1:1')
    a(f'v_cmp_ne_u32 vcc, s{sXcc}, v{vK+16}\ns_mov_b32 s{sLoc}, 1')
    if local: a(f's_cmp_eq_u64 vcc, 0\ns_cselect_b32 s{sLoc}, 2, 1')
    a(f'v_mov_b32 v{w0}, s{sLoc}\nds_write_b32 v{vFA}, v{w0} offset:8')
    a(f's_cmp_eq_u32 s{sLoc}, 2\ns_cbranch_scc1 L_qnorep'); qpub('sc1'); a('L_qnorep:')
    stamp(5)
    a('L_qready:')
    a(f'v_lshlrev_b32 v{vT}, 8, v{vTm}\nv_lshl_add_u32 v{vT}, v2, 4, v{vT}\nv_add_u32 v{vT}, {L_Q}, v{vT}')
    for s in range(4): a(f'ds_read_b128 v[{vQ+4*s}:{vQ+4*s+3}], v{vT} offset:{64*s}')
    acc=vO; GV=4+S; EX4=0x000f000f000f000f; sEx=84; sO1=sTmp3
    for i in range(8): a(f'v_mov_b32 v{acc+i}, 0')
    a(f'v_mov_b32 v{vM}, 0xff800000\nv_mov_b32 v{vL}, 0\ns_mov_b32 s{sCnt}, {S//4}\ns_lshl_b32 s{sSlot}, s{sG}, 13\ns_mov_b32 s{sEx}, 0x000f000f\ns_mov_b32 s{sEx+1}, 0x000f000f')
    vFl,vMT=164,168
    vSw,vPr,vCv,vMw,vMr,vV0,vV1,vpa,vpm=range(176,185)
    a(f'v_lshlrev_b32 v{vMr}, 4, v{vTm}\nv_lshl_add_u32 v{vPr}, v2, 6, v{vMr}\nv_add_u32 v{vPr}, {L_S}, v{vPr}\ns_lshl_b32 s{sTmp}, s{sCw}, 8\nv_add_u32 v{vSw}, s{sTmp}, v{vPr}')
    a(f's_add_u32 s{sTmp}, s{sTmp}, {L_S}\nv_lshlrev_b32 v{vCv}, 4, v3\nv_lshl_add_u32 v{vCv}, v2, 10, v{vCv}\nv_add_u32 v{vCv}, s{sTmp}, v{vCv}')
    a(f'v_add_u32 v{vMr}, {L_MT}, v{vMr}\ns_lshl_b32 s{sTmp}, s{sCw}, 2\nv_add_u32 v{vMw}, s{sTmp}, v{vMr}\ns_lshl_b32 s{sTmp}, s{sCw}, 6\nv_xor_b32 v{vV0}, s{sTmp}, v{vVp}\nv_xor_b32 v{vV1}, 32, v{vV0}')
    a(f's_lshl_b32 s{sTmp}, s{sH}, 16\ns_lshl_b32 s{sTmp2}, s{sC}, 6\ns_add_u32 s{sTmp}, s{sTmp}, s{sTmp2}\ns_lshl_b32 s{sTmp2}, s{sCw}, 12\ns_add_u32 s{sTmp}, s{sTmp}, s{sTmp2}\ns_add_u32 s{sKo}, s{sTmp}, {W_P2:#x}\ns_add_u32 s{sO1}, s{sKo}, 2048')
    a(f'v_lshlrev_b32 v{vpa}, 14, v{vTm}\nv_lshl_add_u32 v{vpa}, v2, 4, v{vpa}\nv_lshlrev_b32 v{vpm}, 9, v{vTm}')
    a(f's_lshl_b32 s{sTmp}, s{sH}, 11\ns_lshl_b32 s{sTmp2}, s{sC}, 4\ns_add_u32 s{sTmp}, s{sTmp}, s{sTmp2}\ns_add_u32 s{sVo}, s{sTmp}, {W_ML:#x}')
    def claim():
        l=lab('cl'); x=vA
        a(f's_cmp_eq_u32 s{sLoc}, 2\ns_cbranch_scc0 {l}\ns_add_u32 s{sTmp}, s{sT}, 1\nv_lshlrev_b32 v{x+4}, 15, v2\nv_bfe_u32 v{x+5}, v0, 3, 1\nv_lshl_add_u32 v{x+4}, v{x+5}, 12, v{x+4}\nv_and_b32 v{x+5}, 0x70, v{vL16}\nv_add_u32 v{x+4}, v{x+4}, v{x+5}')
        for k in range(4): a(f'v_mov_b32 v{x+k}, s{sTmp}')
        a(f'buffer_store_dwordx4 v[{x}:{x+3}], v{x+4}, s[{dWS}:{dWS+3}], s{sKo} offen\n{l}:')
    if p2pre==2 and pfw=='q': claim()
    stamp(6)
    def nextslot(n): a(f's_add_u32 s{sSlot}, s{sSlot}, {n*SLOT}\ns_sub_u32 s{sTmp}, s{sSlot}, {RING}\ns_cselect_b32 s{sSlot}, s{sSlot}, s{sTmp}')
    a('L_kstep:')
    wait_full(f's{sG}',vT,vFA)
    a(f'v_add_u32 v{vAd+4}, s{sSlot}, v{vKp}')
    for s_ in (1,2,3): a(f'v_xor_b32 v{vAd+4+s_}, {64*s_}, v{vAd+4}')
    for t in range(2):
        for s_ in range(4): a(f'ds_read_b128 v[{vK+16*t+4*s_}:{vK+16*t+4*s_+3}], v{vAd+4+s_} offset:{4096*t}')
    a(f's_add_u32 s{sG}, s{sG}, 4\ns_min_u32 s{sG}, s{sG}, {GV}\nv_mov_b32 v{vT}, s{sG}')
    for t in range(2):
        a(f's_waitcnt lgkmcnt({4-4*t})')
        if t==1: a(f'ds_write_b32 v{vRA}, v{vT}')
        for s_ in range(4):
            a(f'v_mfma_f32_16x16x32_bf16 v[{vS+4*t}:{vS+4*t+3}], v[{vK+16*t+4*s_}:{vK+16*t+4*s_+3}], v[{vQ+4*s_}:{vQ+4*s_+3}], '+('0' if s_==0 else f'v[{vS+4*t}:{vS+4*t+3}]'))
    nextslot(4)
    for j in range(4): a(f'v_cvt_pk_bf16_f32 v{vP+j}, v{vS+2*j}, v{vS+2*j+1}')
    a(f's_mov_b64 exec, s[{sEx}:{sEx+1}]\nds_write_b128 v{vSw}, v[{vP}:{vP+3}]\ns_mov_b64 exec, -1\nv_add_u32 v{vSw}, 1024, v{vSw}')
    a(f'v_max3_f32 v{vT+1}, v{vS}, v{vS+1}, v{vS+2}\nv_max3_f32 v{vT+2}, v{vS+3}, v{vS+4}, v{vS+5}\nv_max3_f32 v{vM}, v{vS+6}, v{vS+7}, v{vM}\nv_max3_f32 v{vM}, v{vT+1}, v{vT+2}, v{vM}')
    a(f's_sub_u32 s{sCnt}, s{sCnt}, 1\ns_cmp_lg_u32 s{sCnt}, 0\ns_cbranch_scc1 L_kstep')
    stamp(7)
    for i in range(4): a(f'ds_read_b128 v[{vK+4*i}:{vK+4*i+3}], v{vCv} offset:{4096*i}')
    allred('v_max_f32',[vM],[vT],lo=())
    def post(src,off,flag): a(f'v_mov_b32 v{vT}, 1\ns_mov_b64 exec, 15\nds_write_b32 v{vMw}, v{src} offset:{off}\nds_write_b32 v{vRA}, v{vT} offset:{flag-L_REL}\ns_mov_b64 exec, -1')
    def meet(l,off,flag):
        a(f's_branch {l}r\n{l}w:'); timeout()
        a(f's_waitcnt lgkmcnt(0)\n{l}r:\nds_read_b128 v[{vFl}:{vFl+3}], v{vFA} offset:{flag-L_FULL}\nds_read_b128 v[{vMT}:{vMT+3}], v{vMr} offset:{off}')
        a(f's_waitcnt lgkmcnt(1)\nv_min3_u32 v{vFl}, v{vFl}, v{vFl+1}, v{vFl+2}\nv_min_u32 v{vFl}, v{vFl}, v{vFl+3}\nv_cmp_eq_u32 vcc, 0, v{vFl}\ns_cbranch_vccnz {l}w\ns_waitcnt lgkmcnt(0)')
    post(vM,0,L_PF); meet('L_m',0,L_PF)
    a(f'v_max3_f32 v{vM}, v{vMT}, v{vMT+1}, v{vMT+2}\nv_max_f32 v{vM}, v{vM}, v{vMT+3}'); bfr(vM,vM)
    a(f'v_mul_f32 v{vM}, s{sScale}, v{vM}'); bfr(vM,vM)
    a(f'v_mul_f32 v{vMb}, s{sL2e}, v{vM}')
    for i in range(4):
        P=vK+4*i; A=vV+8*i
        for j in range(4): a(f'v_lshlrev_b32 v{A+2*j}, 16, v{P+j}\nv_and_b32 v{A+2*j+1}, 0xffff0000, v{P+j}')
        for j in range(8): a(f'v_mul_f32 v{A+j}, s{sScale}, v{A+j}')
        for j in range(4): a(f'v_cvt_pk_bf16_f32 v{P+j}, v{A+2*j}, v{A+2*j+1}')
        for j in range(4): a(f'v_lshlrev_b32 v{A+2*j}, 16, v{P+j}\nv_and_b32 v{A+2*j+1}, 0xffff0000, v{P+j}')
        for j in range(8): a(f'v_fma_f32 v{A+j}, v{A+j}, s{sL2e}, -v{vMb}')
        for j in range(8): a(f'v_exp_f32 v{A+j}, v{A+j}')
        for j in range(4): a(f'v_cvt_pk_bf16_f32 v{P+j}, v{A+2*j}, v{A+2*j+1}')
        a(f'ds_write_b128 v{vCv}, v[{P}:{P+3}] offset:{4096*i}')
        for w_ in (4,2,1):
            for j in range(w_): a(f'v_add_f32 v{A+j}, v{A+j}, v{A+j+w_}')
        a(f'v_add_f32 v{vL}, v{vL}, v{A}')
    allred('v_add_f32',[vL],[vT],lo=(4,8))
    post(vL,L_SL-L_MT,L_PF2); meet('L_l',L_SL-L_MT,L_PF2)
    a(f's_cmp_eq_u32 s{sCw}, 0\ns_cbranch_scc0 L_noml')
    a(f'v_add_f32 v{vMT}, v{vMT}, v{vMT+1}\nv_add_f32 v{vMT+2}, v{vMT+2}, v{vMT+3}\nv_add_f32 v{vMT+2}, v{vMT}, v{vMT+2}\nv_mov_b32 v{vMT}, v{vM}'); tag4(vMT)
    a(f's_mov_b64 exec, 15\ns_cmp_eq_u32 s{sLoc}, 2')
    st2(1,f'buffer_store_dwordx4 v[{vMT}:{vMT+3}], v{vpm}, s[{dWS}:{dWS+3}], s{sVo} offen')
    a(f's_mov_b64 exec, -1\nL_noml:\ns_mov_b32 s{sSlot}, {(GV%R)*SLOT}')
    if p2pre==2 and pfw=='t': claim()
    stamp(8)
    sMk=86 if cs==4 else 84
    def masked(n,ld):
        for i in range(n):
            l=lab('mz')
            a(f's_mov_b64 exec, s[{sMk+2*i}:{sMk+2*i+1}]\ns_cbranch_execz {l}'); ld(i); a(f'{l}:')
        a('s_mov_b64 exec, -1')
    def recheck(n,ck,skip=False):
        for i in range(n):
            l=lab('rc')
            if skip: a(f's_cmp_eq_u64 s[{sMk+2*i}:{sMk+2*i+1}], 0\ns_cbranch_scc1 {l}')
            ck(i); a(f's_mov_b64 s[{sMk+2*i}:{sMk+2*i+1}], vcc')
            if skip: a(f'{l}:')
        a(f's_or_b64 vcc, s[{sMk}:{sMk+1}], s[{sMk+2}:{sMk+3}]')
        if n==4: a(f's_or_b64 vcc, vcc, s[{sMk+4}:{sMk+5}]\ns_or_b64 vcc, vcc, s[{sMk+6}:{sMk+7}]')
    def rowsum(v,lo):
        a(f'v_permlane16_swap_b32 v{v}, v{v+1}\nv_permlane16_swap_b32 v{v+2}, v{v+3}\nv_add_f32 v{v}, v{v}, v{v+1}\nv_add_f32 v{v+2}, v{v+2}, v{v+3}')
        a(f'v_permlane32_swap_b32 v{v}, v{v+2}\nv_add_f32 v{v}, v{v}, v{v+2}')
        allred('v_add_f32',[v],[],lo=lo,hi=())
    def allmask(n):
        for i in range(n): a(f's_mov_b64 s[{sMk+2*i}:{sMk+2*i+1}], -1')
    def poll(name,n,ld,ck,depth,thr,mid=None):
        a(f's_branch L_{name}chk\nL_{name}poll:')
        masked(n,ld)
        if mid: mid()
        timeout()
        a(f'L_{name}chk:\ns_waitcnt vmcnt(0)')
        recheck(n,ck,True)
        if not depth:
            a(f's_cbranch_scc1 L_{name}poll'); return
        a(f's_cbranch_scc0 L_{name}ok')
        for i in range(n):
            a(f's_bcnt1_i32_b64 s{sTmp2 if i else sTmp}, s[{sMk+2*i}:{sMk+2*i+1}]')
            if i: a(f's_add_u32 s{sTmp}, s{sTmp}, s{sTmp2}')
        a(f's_cmp_gt_u32 s{sTmp}, {thr}\ns_cbranch_scc1 L_{name}poll\nL_{name}fast:')
        for i in range(n):
            a(f's_or_b64 exec, s[{sMk+2*i}:{sMk+2*i+1}], 1'); ld(i)
        a('s_mov_b64 exec, -1'); timeout()
        a(f's_waitcnt vmcnt({n*depth})')
        recheck(n,ck,True)
        a(f's_cbranch_scc1 L_{name}fast\nL_{name}ok:')
    def merge(o,pc,pw,packed):
        for k in (0,2): a(f'v_pk_mul_f32 v[{o+k}:{o+k+1}], v[{pc+k}:{pc+k+1}], v[{pw}:{pw+1}] op_sel_hi:[1,0]')
        for k in (0,2): a(f'v_pk_fma_f32 v[{o+k}:{o+k+1}], v[{pc+4+k}:{pc+4+k+1}], '+(f'v[{pw}:{pw+1}], v[{o+k}:{o+k+1}] op_sel:[0,1,0] op_sel_hi:[1,1,1]' if packed else f'v[{pw+2}:{pw+3}], v[{o+k}:{o+k+1}] op_sel_hi:[1,0,1]'))
        rowsum(o,(4,8))
        a(f'v_mov_b32 v{o+1}, v{o}\nv_permlane16_swap_b32 v{o}, v{o+1}\nv_cvt_pk_bf16_f32 v{vA}, v{o}, v{o+1}\nv_cvt_pk_bf16_f32 v{vA+1}, v{o}, v{o+1}\nv_permlane32_swap_b32 v{vA}, v{vA+1}')
    vWo=192; vWl=208; vW4,vPW,vPS=185,186,187; sP2c,sWo=sMin,sKb; r4=44
    def wo4():
        for i in range(16):
            a(f'buffer_load_dword v{vWo+i}, v{vW4}, s[{dWO}:{dWO+3}], s{sWo} offen offset:{1024*(i&3)} {wpol}')
            if i&3==3 and i<15: a(f's_add_u32 s{sWo}, s{sWo}, 4096')
    if cs==4:
        a(f's_and_b32 s{sTmp}, s{sC}, 28\ns_add_u32 s{sTmp}, s{sTmp}, s{sCw}\ns_lshl_b32 s{sTmp2}, s{sH}, 5\ns_add_u32 s{sTmp}, s{sTmp}, s{sTmp2}\ns_lshl_b32 s{sP2c}, s{sTmp}, 11\ns_add_u32 s{sP2c}, s{sP2c}, {W_P2:#x}')
        a(f's_lshl_b32 s{sTmp}, s{sTmp}, 14\ns_and_b32 s{sTmp2}, s{sC}, 3\ns_lshl_b32 s{sTmp2}, s{sTmp2}, 8\ns_add_u32 s{sWo}, s{sTmp}, s{sTmp2}')
        a(f'v_lshlrev_b32 v{vW4}, 2, v0\nv_lshlrev_b32 v{vPW}, 3, v0\ns_lshl_b32 s{sTmp}, s{sCw}, 9\ns_add_u32 s{sTmp}, s{sTmp}, {L_PS}\nv_add_u32 v{vPS}, s{sTmp}, v{vPW}\nv_add_u32 v{vPW}, {L_PW}, v{vPW}')
        for k in range(4): a(f'v_mov_b32 v{r4+k}, 0')
        allmask(2)
        if wl is not None:
            assert (GT+1)%R==GT%R+1
            a(f'v_bfe_u32 v{vT}, v0, 2, 2\nv_xor_b32 v{vT+1}, v2, v{vT}\nv_lshlrev_b32 v{vT+1}, 5, v{vT+1}\nv_lshl_add_u32 v{vT+1}, v{vT}, 8, v{vT+1}\nv_lshl_add_u32 v{vT+1}, v{vTm}, 3, v{vT+1}')
            a(f's_lshl_b32 s{sTmp}, s{sCw}, 12\ns_add_u32 s{sTmp}, s{sTmp}, {(GT%R)*SLOT}\nv_add_u32 v{vW4+3}, s{sTmp}, v{vT+1}\ns_lshr_b32 s{sWo}, s{sCw}, 1\ns_add_u32 s{sWo}, s{sWo}, {GT}')
            a(f's_lshl_b32 s{sTmp}, s{sCw}, 9\ns_add_u32 s{sTmp}, s{sTmp}, {L_PS}\nv_add_u32 v{vPS}, s{sTmp}, v{vW4}')
    jwt=jwt or GT-nsp+1
    if wl is not None: jwt=GT+1
    def pwread():
        a(f'L_pww:\nds_read_b32 v{vT}, v{vFA} offset:{L_PF+16-L_FULL}\nds_read_b64 v[{vP}:{vP+1}], v{vPW}'); timeout()
        a(f's_waitcnt lgkmcnt(0)\nv_cmp_eq_u32 vcc, 0, v{vT}\ns_cbranch_vccnz L_pww')
    def wread():
        a(f'ds_read_b32 v{vT+1}, v{vFA}')
        for q in range(4):
            for hc in range(2): a(f'ds_read_b64_tr_b16 v[{vWo+4*q+2*hc}:{vWo+4*q+2*hc+1}], v{vW4+3} offset:{1024*q+128*(hc^(q&1))}')
    def vrd(f,a0,a1):
        for j,va in enumerate((a0,a1)): a(f'ds_read_b64_tr_b16 v[{f+4*j}:{f+4*j+1}], v{va}\nds_read_b64_tr_b16 v[{f+4*j+2}:{f+4*j+3}], v{va} offset:4096')
    def vmm(f,P,j): a(f'v_mfma_f32_16x16x32_bf16 v[{acc+4*j}:{acc+4*j+3}], v[{f+4*j}:{f+4*j+3}], v[{P}:{P+3}], v[{acc+4*j}:{acc+4*j+3}]')
    for ge in ([pfw] if p2pre==2 and isinstance(pfw,int) else [])+([jwt] if cs==4 and jwt<GT-nsp else [])+[GT-nsp]:
        a(f'L_vstep{ge}:\nv_add_u32 v{vAd}, s{sSlot}, v{vV0}\nv_add_u32 v{vAd+1}, s{sSlot}, v{vV1}\nds_read_b128 v[{vP}:{vP+3}], v{vPr}')
        wait_full(f's{sG}',vT,vFA)
        vrd(vV,vAd,vAd+1)
        a(f's_add_u32 s{sG}, s{sG}, 1\nv_mov_b32 v{vT}, s{sG}\nv_add_u32 v{vPr}, 256, v{vPr}'); nextslot(1)
        a('s_waitcnt lgkmcnt(2)'); vmm(vV,vP,0)
        a(f's_waitcnt lgkmcnt(0)\nds_write_b32 v{vRA}, v{vT}'); vmm(vV,vP,1)
        a(f's_cmp_lt_u32 s{sG}, {ge}\ns_cbranch_scc1 L_vstep{ge}')
        if cs==4 and ge==jwt: wo4()
        elif ge!=GT-nsp: claim()
    if wl is not None: pwread()
    for t in range(nsp): a(f'ds_read_b128 v[{vK+4*t}:{vK+4*t+3}], v{vPr} offset:{256*t}')
    for t in range(nsp):
        o_=((GT-nsp+t)%R)*SLOT
        a(f'v_add_u32 v{vAd+2*t}, {o_}, v{vV0}\nv_add_u32 v{vAd+2*t+1}, {o_}, v{vV1}')
    stamp(12)
    for t in range(nsp):
        l=lab('vw'); l2=lab('vr'); f=vV+8*t
        a(f's_branch {l2}\n{l}:'); timeout()
        a(f's_waitcnt lgkmcnt(0)\n{l2}:\nds_read_b32 v{vT}, v{vFA}')
        vrd(f,vAd+2*t,vAd+2*t+1)
        a(f's_waitcnt lgkmcnt(4)\nv_cmp_ge_i32 vcc, {GT-nsp+t}, v{vT}\ns_cbranch_vccnz {l}')
        for j in range(2): a(f's_waitcnt lgkmcnt({2-2*j})'); vmm(f,vK+4*t,j)
        if cs==4 and jwt==GT-nsp+t+1 and t<nsp-1: wo4()
    a(f's_cmp_eq_u32 s{sLoc}, 2\ns_cbranch_scc0 L_outg')
    for p in ('','sc1'):
        if p: a('L_outg:')
        a(f's_mov_b64 exec, s[{sEx}:{sEx+1}]')
        for j in range(2):
            tag4(acc+4*j)
            a(f'buffer_store_dwordx4 v[{acc+4*j}:{acc+4*j+3}], v{vpa}, s[{dWS}:{dWS+3}], s{sO1 if j else sKo} offen {p}')
        if cs==4:
            if not p: a('s_branch L_outd')
            continue
        stamp(9)
        stamp_out(dWS)
        a('s_endpgm')
    if cs==4:
        po=vV; pc=vK+16; pw=vP; o=vS
        def ldc(i): a(f'buffer_load_dwordx4 v[{po+4*i}:{po+4*i+3}], v{vL16}, s[{dWS}:{dWS+3}], s{sP2c} offen offset:{1024*i} {LP("o")}')
        a('L_outd:\ns_mov_b64 exec, -1')
        stamp(9)
        if jwt==GT: wo4()
        if p2w: a('s_waitcnt vmcnt(0)')
        ldc(0); ldc(1)
        if wl is None:
            pwread()
            if not p2w: a('s_waitcnt vmcnt(0)')
            a(f's_mov_b32 s{sTmp}, 0x05040100\ns_mov_b32 s{sTmp2}, 0x07060302')
            for r_ in range(8):
                x,y=vWo+2*r_,vWo+2*r_+1
                a(f'v_perm_b32 v{vWl+r_}, v{y}, v{x}, s{sTmp}\nv_perm_b32 v{y}, v{y}, v{x}, s{sTmp2}')
        else: wread()
        poll('c',2,ldc,lambda i: chk(vT,[po+4*i],[],None,pc+4*i),fp[0],fp[1],None if wl is None else wread)
        stamp(10)
        merge(o,pc,pw,1)
        if wl is not None:
            a(f's_waitcnt lgkmcnt(0)\nv_cmp_ge_i32 vcc, s{sWo}, v{vT+1}\ns_cbranch_vccnz L_wlate\nL_wok:')
        for r_ in range(8):
            u=r_>>1
            for k in range(2): a(f'v_dot2c_f32_bf16_dpp v{r4+2*(r_&1)+k}, v{vA+(r_&1)}, v{(vWo+2*r_+1 if k else vWl+r_) if wl is None else vWo+4*u+2*k+(r_&1)} quad_perm:[{u},{u},{u},{u}] row_mask:0xf bank_mask:0xf')
        a(f'v_pk_add_f32 v[{r4}:{r4+1}], v[{r4}:{r4+1}], v[{r4+2}:{r4+3}]')
        a(f'ds_write_b64 v{vPS}, v[{r4}:{r4+1}]' if wl is None else f'ds_write2st64_b32 v{vPS}, v{r4}, v{r4+1} offset0:0 offset1:1')
        a('s_waitcnt lgkmcnt(0)\ns_barrier')
        stamp_out(dWS)
        a('s_endpgm')
        if wl is not None:
            a('L_wlate:'); wread(); timeout()
            a(f's_waitcnt lgkmcnt(0)\nv_cmp_ge_i32 vcc, s{sWo}, v{vT+1}\ns_cbranch_vccnz L_wlate\ns_branch L_wok')
    a('L_help:')
    def p2touch(sb):
        if p2h==1: a(f's_mov_b64 exec, 0xffff\nv_lshlrev_b32 v{vA}, 7, v0')
        else: a(f's_mov_b32 exec_hi, 0\nv_lshlrev_b32 v{vA}, 6, v0')
        a(f'buffer_load_dword v{vA+1}, v{vA}, s[{dWS}:{dWS+3}], s{sb} offen {LP("p")}\ns_mov_b64 exec, -1')
    if p2pre==3:
        a(f's_lshl_b32 s{sTmp}, s{sH}, 16\ns_lshl_b32 s{sTmp2}, s{sC}, 11\ns_add_u32 s{sTmp}, s{sTmp}, s{sTmp2}\ns_add_u32 s{sTmp}, s{sTmp}, {W_P2:#x}')
        p2touch(sTmp)
    vWo=192
    def wo_loads():
        a(f's_lshl_b32 s{sTmp}, s{sH}, 5\ns_add_u32 s{sTmp}, s{sTmp}, s{sC}\ns_lshl_b32 s{sTmp}, s{sTmp}, 14')
        for i in range(16):
            a(f'buffer_load_dwordx4 v[{vWo+4*i}:{vWo+4*i+3}], v{vL16}, s[{dWO}:{dWO+3}], s{sTmp} offen offset:{1024*(i&3)} {wpol}')
            if i&3==3 and i<15: a(f's_add_u32 s{sTmp}, s{sTmp}, 4096')
    def vagg():
        l=lab('va'); x=vS
        a(f's_cmp_eq_u32 s{sXi}, 31\ns_cbranch_scc0 {l}e\ns_mov_b32 s{sTmp}, 256\ns_cmp_eq_u32 s{sLoc}, 2\ns_cbranch_scc0 {l}p')
        a(f's_lshl_b32 s{sTmp}, s{sXj}, 7\ns_add_u32 s{sTmp}, s{sTmp}, {W_VT:#x}\ns_lshl_b32 s{sTmp2}, s{sT}, 8\nv_lshlrev_b32 v{x+1}, 2, v0\ns_mov_b32 exec_hi, 0')
        a(f'{l}:\nbuffer_load_dword v{x}, v{x+1}, s[{dWS}:{dWS+3}], s{sTmp} offen nt'); timeout()
        a(f's_waitcnt vmcnt(0)\nv_xor_b32 v{x}, s{sTmp2}, v{x}\nv_cmp_lt_u32 vcc, 0xff, v{x}\ns_cbranch_vccnz {l}\ns_mov_b64 exec, -1\nv_and_b32 v{x}, 15, v{x}')
        allred('v_add_u32',[x],[x+1],hi=())
        a(f'v_readlane_b32 s{sTmp}, v{x}, 0\nv_readlane_b32 s{sTmp2}, v{x}, 16\ns_add_u32 s{sTmp}, s{sTmp}, s{sTmp2}')
        a(f'{l}p:\ns_getreg_b32 s{sTmp2}, hwreg(HW_REG_XCC_ID, 2, 1)\ns_lshl_b32 s{sTmp2}, s{sTmp2}, 13\ns_add_u32 s{sTmp}, s{sTmp}, s{sTmp2}\nv_mov_b32 v{x}, s{sT}\nv_mov_b32 v{x+1}, s{sTmp}')
        a(f's_lshl_b32 s{sTmp}, s{sXj}, 7\ns_add_u32 s{sTmp}, s{sTmp}, {W_VG:#x}\ns_mov_b64 exec, 1\nbuffer_store_dwordx2 v[{x}:{x+1}], off, s[{dWS}:{dWS+3}], s{sTmp} sc1\ns_mov_b64 exec, -1\n{l}e:')
    a(f's_cmp_lt_u32 s{sF}, 224\ns_cbranch_scc0 L_noffn')
    a(f's_and_b32 s{sTmp2}, s{sF}, 7\ns_lshl_b32 s{sTmp2}, s{sTmp2}, 7\ns_add_u32 s{sTmp}, s{sTmp2}, {L_XN+1024}\nv_lshl_add_u32 v{t0}, v2, 3, s{sTmp}')
    for j in range(2): a(f'ds_read2_b64 v[{vXf+4*j}:{vXf+4*j+3}], v{t0} offset0:{8*j} offset1:{8*j+4}')
    a(f'v_lshlrev_b32 v{vAd}, 7, v1\nv_lshl_add_u32 v{vAd}, v{vTm}, 3, v{vAd}\nv_bfe_u32 v{vAd+1}, v1, 1, 2\nv_lshl_add_u32 v{vAd}, v{vAd+1}, 5, v{vAd}')
    for j in (1,2,3): a(f'v_xor_b32 v{vAd+j}, {32*j}, v{vAd}')
    stamp(2)
    wait_full(1,vT,vFA)
    a(f's_lshl_b32 s{sTmp}, s{sF}, 13\ns_add_u32 s{sTmp2}, s{sTmp}, 4096')
    for j in range(8): a(f'buffer_load_dwordx4 v[{vWD+4*j}:{vWD+4*j+3}], v{vL16}, s[{dWD}:{dWD+3}], s{sTmp if j<4 else sTmp2} offen offset:{1024*(j&3)} {wpol}')
    vAc=vX1
    def fgemv(mat):
        seq=[(s,j) for s in range(2) for j in range(4)]
        base=(2+mat)*SLOT
        def rd(i):
            s,j=seq[i]; b=vB+4*i
            a(f'ds_read_b64_tr_b16 v[{b}:{b+1}], v{vAd+j} offset:{base+4096*s}\nds_read_b64_tr_b16 v[{b+2}:{b+3}], v{vAd+j} offset:{base+4096*s+2048}')
        for i in range(5): rd(i)
        for i in range(8):
            if i+5<8: rd(i+5)
            a(f's_waitcnt lgkmcnt({2*(min(i+5,7)-i)})')
            s,j=seq[i]; b=vB+4*i; d=vAc+16*mat+4*j
            a(f'v_mfma_f32_16x16x32_bf16 v[{d}:{d+3}], v[{b}:{b+3}], v[{vXf+4*s}:{vXf+4*s+3}], '+('0' if s==0 else f'v[{d}:{d+3}]'))
    wait_full(2,vT,vFA); fgemv(0)
    wait_full(3,vT,vFA); stamp(3); fgemv(1)
    a(f'v_mov_b32 v{w0}, {INF:#x}\nds_write_b32 v{vRA}, v{w0}')
    for n in range(1,8):
        setexec(0x0001000100010001<<n)
        for k in range(4): a(f'v_mov_b32 v{vAc+k}, v{vAc+4*n+k}')
    a('s_mov_b64 exec, -1'); tag4(vAc)
    wait_q('L_hq',w0)
    a(f's_lshl_b32 s{sTmp}, s{sF}, 9\ns_add_u32 s{sTmp}, s{sTmp}, {W_F1:#x}\nv_lshlrev_b32 v{vT}, 4, v2\nv_lshl_add_u32 v{vT}, v3, 6, v{vT}')
    setexec(0x00ff00ff00ff00ff)
    a(f's_cmp_eq_u32 s{sLoc}, 2')
    st2(1,f'buffer_store_dwordx4 v[{vAc}:{vAc+3}], v{vT}, s[{dWS}:{dWS+3}], s{sTmp} offen')
    a('s_mov_b64 exec, -1')
    stamp(4)
    vagg()
    if not jwo: wo_loads()
    a(f's_and_b32 s{sTmp}, s{sF}, 0xf8\ns_lshl_b32 s{sTmp}, s{sTmp}, 9\ns_and_b32 s{sTmp2}, s{sF}, 7\ns_lshl_b32 s{sTmp2}, s{sTmp2}, 5\ns_add_u32 s{sTmp}, s{sTmp}, s{sTmp2}\ns_add_u32 s{sKo}, s{sTmp}, {W_F1:#x}')
    a(f'v_bfe_u32 v{vT+2}, v0, 1, 4\nv_lshlrev_b32 v{vT+2}, 8, v{vT+2}\nv_and_b32 v{vT+3}, 1, v0\nv_lshl_add_u32 v{vT+2}, v{vT+3}, 4, v{vT+2}')
    if f1wait: wait_full(f1wait,vT,vFA)
    gu=vK
    a('L_f1poll:')
    a(f'buffer_load_dwordx4 v[{gu}:{gu+3}], v{vT+2}, s[{dWS}:{dWS+3}], s{sKo} offen sc1')
    timeout()
    a('s_waitcnt vmcnt(0)')
    chk(vT,[gu],[],None)
    a('s_cbranch_vccnz L_f1poll')
    allred('v_add_f32',[gu,gu+1,gu+2,gu+3],[vA,vA+1,vA+2,vA+3],lo=(4,8),hi=(16,))
    for k in range(4): bfr(gu+k,gu+k)
    k1=-2*0.7978845608028654*1.4426950408889634
    hh=gu+4; up=gu+8
    for k in range(4): a(f'v_mov_b32_dpp v{up+k}, v{gu+k} quad_perm:[2,3,2,3] row_mask:0xf bank_mask:0xf')
    for k in range(4): a(f'v_mul_f32 v{hh+k}, v{gu+k}, v{gu+k}')
    for k in range(4): a(f'v_mul_f32 v{hh+k}, {f2u(0.044715):#x}, v{hh+k}')
    for k in range(4): a(f'v_fma_f32 v{hh+k}, v{hh+k}, v{gu+k}, v{gu+k}')
    for k in range(4): a(f'v_mul_f32 v{hh+k}, {f2u(k1):#x}, v{hh+k}')
    for k in range(4): a(f'v_exp_f32 v{hh+k}, v{hh+k}')
    for k in range(4): a(f'v_add_f32 v{hh+k}, 1.0, v{hh+k}')
    for k in range(4): a(f'v_rcp_f32 v{hh+k}, v{hh+k}')
    for k in range(4): a(f'v_mul_f32 v{hh+k}, v{gu+k}, v{hh+k}')
    for k in range(4): bfr(hh+k,hh+k)
    for k in range(4): a(f'v_mul_f32 v{hh+k}, v{hh+k}, v{up+k}')
    for k in range(4): bfr(hh+k,hh+k)
    acc=vV; un=vV+8
    for k in range(8): a(f'v_mov_b32 v{acc+k}, 0')
    for j in range(8):
        for k in range(4): a(f'v_lshlrev_b32 v{un+2*k}, 16, v{vWD+4*j+k}\nv_and_b32 v{un+2*k+1}, 0xffff0000, v{vWD+4*j+k}')
        for k in range(8): a(f'v_fmac_f32_dpp v{acc+k}, v{hh+(j&3)}, v{un+k} quad_perm:[{j>>2},{j>>2},{j>>2},{j>>2}] row_mask:0xf bank_mask:0xf')
    tag4(acc); tag4(acc+4)
    a(f's_lshl_b32 s{sTmp}, s{sF}, 7\ns_add_u32 s{sTmp}, s{sTmp}, {W_B3:#x}\ns_add_u32 s{sTmp2}, s{sTmp}, {8*28672}')
    a(f'v_lshrrev_b32 v{vT}, 3, v0\nv_mul_u32_u24 v{vT}, 28672, v{vT}\nv_and_b32 v{vT+1}, 7, v0\nv_lshl_add_u32 v{vT}, v{vT+1}, 4, v{vT}\ns_cmp_eq_u32 s{sLoc}, 2')
    st2(1,f'buffer_store_dwordx4 v[{acc}:{acc+3}], v{vT}, s[{dWS}:{dWS+3}], s{sTmp} offen',f'buffer_store_dwordx4 v[{acc+4}:{acc+7}], v{vT}, s[{dWS}:{dWS+3}], s{sTmp2} offen')
    stamp(5)
    a('s_branch L_ffndone')
    a(f'L_noffn:\nv_mov_b32 v{w0}, {INF:#x}\nds_write_b32 v{vRA}, v{w0}')
    wait_q('L_hq2',w0)
    vagg()
    if not jwo: wo_loads()
    a('s_waitcnt vmcnt(0)\nL_ffndone:')
    vWl=160
    def wo_perm(behind=0,last=None):
        a(f's_mov_b32 s{sTmp}, 0x05040100\ns_mov_b32 s{sTmp2}, 0x07060302')
        for r_ in range(8):
            if jwo and r_<7: a(f's_waitcnt vmcnt({14-2*r_+behind})')
            if r_==7 and last: last()
            for k in range(4):
                x,y=vWo+8*r_+k,vWo+8*r_+4+k
                a(f'v_perm_b32 v{vWl+4*r_+k}, v{y}, v{x}, s{sTmp}\nv_perm_b32 v{y}, v{y}, v{x}, s{sTmp2}')
    if not jwo: wo_perm()
    vb=vK; gg=vQ; v128=vAd; vga=vAd+1; vgm=vAd+2; vS3=vAd+3
    sP2,sS3w,sS3r=sG,sSlot,sSlotV
    sDp,sDr=86,87
    a(f'v_lshlrev_b32 v{gg+5}, 1, v2\nv_lshlrev_b32 v{v128}, 7, v0\nv_lshrrev_b32 v{vgm}, 2, v0\nv_lshlrev_b32 v{vgm}, 4, v{vgm}')
    a(f's_lshl_b32 s{sTmp}, s{sH}, 16\ns_lshl_b32 s{sTmp2}, s{sC}, 11\ns_add_u32 s{sTmp}, s{sTmp}, s{sTmp2}\ns_add_u32 s{sP2}, s{sTmp}, {W_P2:#x}')
    SB=SB4 if cs==4 else (12,14,7,8,9,10,11,15,16)
    def spread_s(dst,src,nb,first,sh=0):
        for j in range(nb): a(f's_bfe_u32 s{sTmp2}, s{src}, {(1<<16)|(j+sh):#x}\ns_lshl_b32 s{sTmp2}, s{sTmp2}, {SB[first+j]}\ns_add_u32 s{dst}, s{dst}, s{sTmp2}')
    def spread_v(dst,sh,nb):
        for j in range(nb): a(f'v_bfe_u32 v{vT}, v0, {j+sh}, 1\n'+(f'v_lshl_add_u32 v{dst}, v{vT}, {SB[j]}, v{dst}' if j else f'v_lshlrev_b32 v{dst}, {SB[j]}, v{vT}'))
    vG3,vPre=vAd+4,vAd+5; sPre=14
    if cs==4:
        a(f'v_bfe_u32 v{vS3}, v0, 4, 1\nv_lshlrev_b32 v{vS3}, 17, v{vS3}\nv_bfe_u32 v{vT}, v0, 3, 1\nv_lshl_add_u32 v{vS3}, v{vT}, {SB[6]}, v{vS3}\nv_and_b32 v{vT+1}, 0x70, v{vL16}\nv_add_u32 v{vS3}, v{vS3}, v{vT+1}')
        a(f'v_lshlrev_b32 v{vPS}, 1, v{vT+1}\nv_lshl_add_u32 v{vPS}, v{vT}, 4, v{vPS}\nv_and_b32 v{vT}, 0x100, v{vL16}\nv_add_u32 v{vPS}, v{vPS}, v{vT}\nv_add_u32 v{vPS}, {L_PS}, v{vPS}')
        a(f'v_lshlrev_b32 v{vPW}, 3, v0\nv_add_u32 v{vPW}, {L_PW}, v{vPW}')
        a(f's_and_b32 s{sS3w}, s{sXi}, 3\ns_lshl_b32 s{sS3w}, s{sS3w}, 18\ns_add_u32 s{sS3w}, s{sS3w}, {W_S3:#x}')
        spread_s(sS3w,sXi,3,0,2); spread_s(sS3w,sXj,3,3)
        spread_v(vG3,0,6); spread_v(vPre,1,2)
    else:
        a(f'v_lshrrev_b32 v{vS3}, 3, v0\nv_lshlrev_b32 v{vS3}, 17, v{vS3}\nv_and_b32 v{vT}, 0x70, v{vL16}\nv_add_u32 v{vS3}, v{vS3}, v{vT}\ns_mov_b32 s{sS3w}, {W_S3:#x}')
        spread_s(sS3w,sXi,5,0); spread_s(sS3w,sXj,3,5)
        spread_v(vG3,0,6); spread_v(vPre,1,4)
    a(f'v_and_b32 v{vT}, 1, v0\nv_lshl_add_u32 v{vPre}, v{vT}, 6, v{vPre}\ns_lshl_b32 s{sS3r}, s{sXj}, 17\ns_add_u32 s{sS3r}, s{sS3r}, {W_S3:#x}')
    if cs==4:
        a(f's_mov_b32 s{sPre}, s{sS3r}'); spread_s(sPre,sXi,5,2); spread_s(sS3r,sXi,1,6)
    else:
        spread_s(sS3r,sXi,1,8)
        a(f's_mov_b32 s{sPre}, s{sS3r}'); spread_s(sPre,sXi,4,4,1)
    a(f's_and_b32 s{sTmp}, s{sCg}, 1\ns_lshl_b32 s{sTmp}, s{sTmp}, 3\ns_lshr_b32 s{sTmp2}, s{sCg}, 4\ns_add_u32 s{sTmp}, s{sTmp}, s{sTmp2}\ns_bfe_u32 s{sTmp2}, s{sCg}, 0x30001\ns_lshl_b32 s{sTmp2}, s{sTmp2}, 4')
    a(f's_add_u32 s{sS3r}, s{sS3r}, s{sTmp2}')
    a(f's_lshl_b32 s{sKo}, s{sTmp}, 10\ns_add_u32 s{sKo}, s{sKo}, s{sTmp2}\ns_add_u32 s{sKo}, s{sKo}, {W_B4:#x}')
    tk=vO
    mlast=min(mlast,2*S)
    def control(jend):
        l=lab('ctl'); sk=lab('cs')
        a(f'{l}:')
        wait_full(f's{sJ}',vT,vFA)
        if fb:
            a(f's_cmp_eq_u32 s{sLoc}, 2\ns_cbranch_scc0 {sk}')
            a(f's_add_u32 s{sTmp}, s{sMin}, s{sJ}\nv_mov_b32 v{tk}, s{sTmp}\ns_mov_b64 exec, 1\nbuffer_store_dword v{tk}, off, s[{dWS}:{dWS+3}], s{sKb}')
        if fb==5:
            l1,l2=lab('nr'),lab('np')
            a(f's_and_b32 s{sTmp}, s{sCnt}, 3\ns_add_u32 s{sTmp}, s{sTmp}, 28\ns_cmp_eq_u32 s{sTmp}, s{sXi}\ns_cselect_b32 s{sDp}, 1, 0\ns_add_u32 s{sCnt}, s{sCnt}, 1')
            a(f's_sub_u32 s{sGmR}, s{sGmR}, 1\ns_cselect_b32 s{sGmR}, {xev-1}, s{sGmR}\ns_cselect_b32 s{sDr}, s{sDp}, 0')
            a(f's_mul_i32 s{sTmp}, s{sDr}, 0xff0000\ns_or_b32 exec_hi, s{sTmp}, 1\ns_mov_b32 exec_lo, -1')
        elif fb: setexec(0xffffffff)
        if fb:
            a(f'buffer_load_dword v{tk+4}, v{tk+1}, s[{dWS}:{dWS+3}], 0 offen {LP("c")}\ns_waitcnt vmcnt(0)')
            a(f'v_sub_u32 v{tk+4}, v{tk+4}, v{tk+3}\nv_cmp_lt_u32 vcc, v{tk+4}, v{tk+6}\nv_cndmask_b32 v{tk+4}, v{tk+2}, v{tk+4}, vcc\ns_mov_b64 exec, -1')
            allred('v_add_u32',[tk+4],[tk+5],hi=())
            a(f'v_readlane_b32 s{sTmp}, v{tk+4}, 0\nv_readlane_b32 s{sTmp2}, v{tk+4}, 16\nv_readlane_b32 s{sTmp3}, v{tk+4}, 32\ns_add_u32 s{sTmp}, s{sTmp}, s{sTmp2}')
            d0=-256*(mk/2+tau)
        if fb==5:
            a(f's_cmp_eq_u32 s{sDp}, 0\ns_cbranch_scc1 {l2}\ns_lshl_b32 s{sDp}, s{sT}, 13\ns_add_u32 s{sTmp2}, s{sTmp}, s{sDp}\nv_mov_b32 v{tk}, s{sTmp2}\ns_mov_b64 exec, 1')
            a(f'buffer_store_dword v{tk}, off, s[{dWS}:{dWS+3}], s{sVo} offset:{0x480} sc1')
            a(f's_cmp_eq_u32 s{sDr}, 0\ns_cbranch_scc1 {l1}')
            a(f'v_readlane_b32 s{sTmp3}, v{tk+4}, 48\ns_lshl_b32 s{sTmp2}, s{sTmp}, 3\ns_sub_i32 s{sTmp3}, s{sTmp3}, s{sTmp2}\ns_add_i32 s{sTmp3}, s{sTmp3}, {int(256*xc)+4096}')
            a(f's_max_i32 s{sTmp3}, s{sTmp3}, 0\ns_min_i32 s{sTmp3}, s{sTmp3}, 8191\ns_add_u32 s{sTmp2}, s{sTmp3}, s{sDp}\nv_mov_b32 v{tk}, s{sTmp2}')
            a(f'buffer_store_dword v{tk}, off, s[{dWS}:{dWS+3}], s{sVo} offset:{0x80}')
            a(f'{l1}:\ns_mov_b64 exec, -1\n{l2}:')
            d0+=4096
        if fb:
            a(f'v_mov_b32 v{tk+4}, 0\ns_lshl_b32 s{sTmp}, s{sTmp}, 3')
            if fb==5: a(f's_add_u32 s{sTmp}, s{sTmp}, s{sTmp3}')
            a(f's_lshl_b32 s{sTmp2}, s{sJ}, 8\ns_sub_i32 s{sTmp}, s{sTmp}, s{sTmp2}')
            if ptau: a(f's_add_i32 s{sTmp}, s{sTmp}, s{sXcc}')
            a(f's_cmp_lt_i32 s{sTmp}, {int(d0-256*th)}\ns_cselect_b32 s{sTmp2}, 1, 0\ns_cmp_gt_i32 s{sTmp}, {int(d0+256*th)}\ns_cselect_b32 s{sTmp2}, 2, s{sTmp2}\nv_mov_b32 v{vT}, s{sTmp2}\nds_write_b32 v{vFA}, v{vT} offset:12')
            a(f'{sk}:')
        a(f's_add_u32 s{sJ}, s{sJ}, {mk}\ns_cmp_le_u32 s{sJ}, {jend}\ns_cbranch_scc1 {l}')
    a(f's_mov_b32 s{sJ}, {m0}')
    if ptau: a(f's_getreg_b32 s{sXcc}, hwreg(HW_REG_XCC_ID, 0, 1)\ns_mul_i32 s{sXcc}, s{sXcc}, {-2*int(256*ptau)}\ns_add_i32 s{sXcc}, s{sXcc}, {int(256*ptau)}')
    if fb:
        a(f's_lshl_b32 s{sMin}, s{sT}, 8\nv_mov_b32 v{tk+2}, {m0-mk}\nv_mov_b32 v{tk+3}, s{sMin}\nv_mov_b32 v{tk+6}, 0x100\nv_mov_b32 v{tk+4}, 0')
        a(f's_mul_i32 s{sVo}, s{sXj}, {CST2}\ns_add_u32 s{sVo}, s{sVo}, {W_CNT:#x}\nv_lshl_add_u32 v{tk+1}, v0, 2, s{sVo}\ns_lshl_b32 s{sKb}, s{sXi}, 2\ns_add_u32 s{sKb}, s{sKb}, s{sVo}')
    if fb==5:
        a(f's_mov_b32 s{sCnt}, 0\ns_mov_b32 s{sGmR}, {xev-1}')
        a(f's_mov_b32 exec_lo, 0\ns_lshl_b32 s{sTmp}, s{sT}, 13\nv_mov_b32 v{tk+2}, 4096\nv_mov_b32 v{tk+3}, s{sTmp}\nv_mov_b32 v{tk+6}, 0x2000\ns_mov_b32 exec_hi, 0xffff0000\nv_mov_b32 v{tk+2}, {32*(m0-mk)}')
        a(f'v_and_b32 v{tk+1}, 7, v0\nv_mul_u32_u24 v{tk+1}, {CST2}, v{tk+1}\nv_add_u32 v{tk+1}, {W_CNT+0x480:#x}, v{tk+1}\ns_mov_b64 exec, -1')
    control(jv)
    a(f'v_and_b32 v{vT+2}, 0x380, v{vL16}\ns_mov_b32 s{sTmp3}, {W_VG:#x}\nL_vtpoll:')
    a(f'buffer_load_dwordx2 v[{vb}:{vb+1}], v{vT+2}, s[{dWS}:{dWS+3}], s{sTmp3} offen sc1')
    timeout()
    a(f's_waitcnt vmcnt(0)\nv_cmp_ne_u32 vcc, s{sT}, v{vb}\ns_cbranch_vccnz L_vtpoll\nv_and_b32 v{vT}, 0x3ff, v{vb+1}')
    allred('v_add_u32',[vT],[vT+1],lo=(8,))
    if diag: a(f'v_readfirstlane_b32 s{sTmp}, v{vT}\nv_writelane_b32 v{vSt}, s{sTmp}, 16')
    if force is None: a(f'v_cmp_gt_u32 vcc, 2048, v{vT}\nv_cndmask_b32 v{vT}, 0, 1, vcc')
    else: a(f'v_mov_b32 v{vT}, {force}')
    a(f'v_lshlrev_b32 v{vT}, 13, v{vT}\nv_xor_b32 v{vT}, v{vT}, v{vb+1}\nv_and_b32 v{vT}, 0x2000, v{vT}')
    if cs==4:
        a(f's_and_b32 s{sTmp}, s{sXi}, 3\ns_lshl_b32 s{sTmp}, s{sTmp}, 4\nv_readlane_b32 s{sTmp2}, v{vT}, s{sTmp}\ns_add_u32 s{sTmp}, s{sTmp}, 8\nv_readlane_b32 s{sTmp}, v{vT}, s{sTmp}')
        a(f's_mov_b64 exec, 0xffff\nv_add_u32 v{vS3}, s{sTmp2}, v{vS3}\ns_mov_b32 exec_lo, 0xffff0000\nv_add_u32 v{vS3}, s{sTmp}, v{vS3}\ns_mov_b64 exec, -1')
    else: a(f'v_add_u32 v{vS3}, v{vS3}, v{vT}')
    a(f's_lshl_b32 s{sTmp}, s{sXj}, 3\nv_readlane_b32 s{sTmp}, v{vT}, s{sTmp}\ns_add_u32 s{sS3r}, s{sS3r}, s{sTmp}\ns_add_u32 s{sPre}, s{sPre}, s{sTmp}')
    def s3touch():
        if cs==4: a(f's_mov_b64 exec, {0xff if s3h==2 else 0x55}')
        elif s3h==2: a(f's_mov_b32 exec_hi, 0')
        else: a(f's_mov_b64 exec, 0x55555555')
        a(f'buffer_load_dword v{vb}, v{vPre}, s[{dWS}:{dWS+3}], s{sPre} offen {s3ld}\ns_mov_b64 exec, -1')
    def s3touch_s():
        for j in range(16*s3h):
            i=j//s3h; o_=(j%s3h<<6)+sum((i>>b&1)<<SB[b] for b in range(4))
            a(f's_load_dword s84, s[{pWS}:{pWS+1}], s{sPre} offset:{o_:#x} {s3g}')
    if s3pre==4: s3touch()
    if s3pre==5: s3touch_s()
    control(jb1)
    a(f's_cmp_lt_u32 s{sXi}, 16\ns_cbranch_scc0 L_nob3')
    a(f's_mul_i32 s{sTmp2}, s{sXi}, 28672\ns_lshl_b32 s{sTmp}, s{sFb}, 7\ns_add_u32 s{sTmp2}, s{sTmp2}, s{sTmp}\ns_add_u32 s{sTmp2}, s{sTmp2}, {W_B3:#x}')
    for k in range(4): a(f'v_mov_b32 v{vb+12+k}, 0')
    tag4(vb+12)
    a('L_b3poll:')
    for i in range(4):
        if i==3: a(f's_bitcmp{fpar}_b32 s{sXj}, 0\ns_cbranch_scc0 L_b3three')
        a(f'buffer_load_dwordx4 v[{vb+4*i}:{vb+4*i+3}], v{vL16}, s[{dWS}:{dWS+3}], s{sTmp2} offen offset:{1024*i} {LP("b")}')
    a('L_b3three:')
    timeout()
    a('s_waitcnt vmcnt(0)')
    chk(vT,[vb,vb+4,vb+8,vb+12],[],None,vb+16)
    a('s_cbranch_vccnz L_b3poll')
    def sum4(dst,lo):
        for k in range(4): a(f'v_add_f32 v{dst+k}, v{vb+16+k}, v{vb+20+k}\nv_add_f32 v{vA+4+k}, v{vb+24+k}, v{vb+28+k}')
        for k in range(4): a(f'v_add_f32 v{dst+k}, v{dst+k}, v{vA+4+k}')
        allred('v_add_f32',[dst,dst+1,dst+2,dst+3],[vA,vA+1,vA+2,vA+3],lo=lo)
    sum4(gg,(8,)); tag4(gg)
    a(f's_lshl_b32 s{sTmp}, s{sXi}, 10\ns_lshl_b32 s{sTmp2}, s{sXj}, 7\ns_add_u32 s{sTmp}, s{sTmp}, s{sTmp2}\ns_add_u32 s{sTmp}, s{sTmp}, {W_B4:#x}\ns_mov_b64 exec, 0xff')
    a(f'buffer_store_dwordx4 v[{gg}:{gg+3}], v{vL16}, s[{dWS}:{dWS+3}], s{sTmp} offen '+('' if 'b' in cutx else 'sc1')+'\ns_mov_b64 exec, -1')
    stamp(6)
    a('L_nob3:')
    control(jb2)
    a(f's_cmp_lt_u32 s{sXi}, 16\ns_cbranch_scc0 L_nob4\nv_and_b32 v{vT+2}, 0x380, v{v128}')
    a(f'L_b4poll:\nbuffer_load_dwordx4 v[{gg}:{gg+3}], v{vT+2}, s[{dWS}:{dWS+3}], s{sKo} offen sc1')
    timeout()
    a('s_waitcnt vmcnt(0)')
    chk(vT,[gg],[],None)
    if 'b' not in cutx: a('s_cbranch_vccnz L_b4poll')
    allred('v_add_f32',[gg,gg+1,gg+2,gg+3],[],lo=(4,2,1),hi=())
    for k in range(4): bfr(gg+k,gg+k)
    for k in range(4): a(f'v_mul_f32 v{vA+k}, s{sL2e}, v{gg+k}')
    for k in range(4): a(f'v_exp_f32 v{vA+k}, -v{vA+k}')
    for k in range(4): a(f'v_add_f32 v{vA+k}, 1.0, v{vA+k}')
    for k in range(4): a(f'v_rcp_f32 v{vA+k}, v{vA+k}')
    for k in range(4): a(f'v_mul_f32 v{gg+k}, v{gg+k}, v{vA+k}')
    for k in range(4): bfr(gg+k,gg+k)
    a(f's_lshl_b32 s{sTmp}, s{sXf}, 16\nv_mov_b32 v{gg+4}, s{sTmp}')
    for k in range(1,4):
        setexec(0xffff<<(16*k))
        a((f's_lshl_b32 s{sTmp}, s{sXf+k//2}, 16' if k%2==0 else f's_and_b32 s{sTmp}, s{sXf+k//2}, 0xffff0000')+f'\nv_mov_b32 v{gg+4}, s{sTmp}\nv_mov_b32 v{gg}, v{gg+k}')
    a('s_mov_b64 exec, -1')
    stamp(7)
    a('L_nob4:')
    control(jw)
    pm=vV+8; mx=vM; ls=vS+4; o=vS; pw=vP
    a(f's_lshl_b32 s{sTmp}, s{sH}, 2\ns_lshr_b32 s{sTmp2}, s{sC}, 3\ns_add_u32 s{sTmp}, s{sTmp}, s{sTmp2}\ns_lshl_b32 s{sTmp}, s{sTmp}, 9\ns_add_u32 s{sTmp2}, s{sTmp}, {W_ML:#x}\nL_mlpoll:')
    for i in range(2): a(f'buffer_load_dwordx4 v[{pm+4*i}:{pm+4*i+3}], v{vgm}, s[{dWS}:{dWS+3}], s{sTmp2} offen offset:{256*i} {LP("m")}')
    timeout()
    a('s_waitcnt vmcnt(0)')
    chk(vT,[pm,pm+4],[],None)
    a('s_cbranch_vccnz L_mlpoll')
    for i in range(2): a(f'v_and_b32 v{pw+2*i}, 0xffff0000, v{pm+4*i}')
    a(f'v_max_f32 v{mx}, v{pw}, v{pw+2}')
    allred('v_max_f32',[mx],[vT+1],lo=(4,8))
    for i in range(2): a(f'v_sub_f32 v{pw+2*i}, v{pw+2*i}, v{mx}')
    for i in range(2): a(f'v_mul_f32 v{pw+2*i}, s{sL2e}, v{pw+2*i}')
    for i in range(2): a(f'v_exp_f32 v{pw+2*i}, v{pw+2*i}')
    a(f'v_mul_f32 v{ls}, v{pw}, v{pm+2}\nv_fmac_f32 v{ls}, v{pw+2}, v{pm+6}')
    allred('v_add_f32',[ls],[vT+1],lo=(4,8))
    a(f'v_rcp_f32 v{ls}, v{ls}')
    for i in range(2): a(f'v_mul_f32 v{pw+2*i}, v{pw+2*i}, v{ls}')
    if cs==4: a(f'v_mov_b32 v{vT}, 1\nds_write2_b32 v{vPW}, v{pw}, v{pw+2} offset0:0 offset1:1\nds_write_b32 v{vRA}, v{vT} offset:{L_PF-L_REL}')
    stamp(9)
    control(jpre)
    po=vV; sS3o=92
    for i in range(1,4 if cs==1 else 1): a(f's_add_u32 s{sS3o+i}, s{sS3r}, {((i&1)<<SB[6])+((i>>1)<<SB[7])}')
    s3o=lambda i: sS3r if i==0 else sS3o+i
    def ldo(i): a(f'buffer_load_dwordx4 v[{po+4*i}:{po+4*i+3}], v{vL16}, s[{dWS}:{dWS+3}], s{sP2} offen offset:{1024*i} {LP("o")}')
    def lds3(i): a(f'buffer_load_dwordx4 v[{vb+4*i}:{vb+4*i+3}], v{vG3}, s[{dWS}:{dWS+3}], s{s3o(i)} offen {s3ld}')
    if p2pre==1: p2touch(sP2)
    if s3pre==2: s3touch()
    elif s3pre==3: s3touch_s()
    elif s3pre==1:
        a(f's_cmp_lt_u32 s{sXi}, 16\ns_cbranch_scc0 L_nopre')
        for i in range(4): lds3(i)
        a('L_nopre:')
    if mlast>jpre: control(mlast)
    stamp(8)
    if cs==4:
        r=vV; pc=vb+16; ss=pc
        a(f's_lshl_b32 s{sCnt}, s{sCg}, 3\ns_mov_b32 s{sLoc}, 0x00010001\ns_mov_b32 s{sLoc+1}, 0x00010001\ns_mov_b32 exec_hi, 0\ns_barrier')
        for w_ in range(4): a(f'ds_read_b128 v[{r+4*w_}:{r+4*w_+3}], v{vPS} offset:{512*w_}')
        for d,x,y,n_ in ((r,r,r+4,2),(r+8,r+8,r+12,0),(r,r,r+8,None)):
            if n_ is not None: a(f's_waitcnt lgkmcnt({n_})')
            for k in (0,2): a(f'v_pk_add_f32 v[{d+k}:{d+k+1}], v[{x+k}:{x+k+1}], v[{y+k}:{y+k+1}]')
        tag4(r)
        a(f'buffer_store_dwordx4 v[{r}:{r+3}], v{vS3}, s[{dWS}:{dWS+3}], s{sS3w} offen {s3st}\ns_mov_b64 exec, -1')
        stamp(11)
        a(f's_cmp_lt_u32 s{sXi}, 16\ns_cbranch_scc0 L_hfin\ns_mov_b64 vcc, -1')
        if s3w: a('s_waitcnt vmcnt(0)')
        a('L_s3poll:\ns_mov_b64 exec, vcc'); lds3(0); a('s_mov_b64 exec, -1'); timeout()
        a('s_waitcnt vmcnt(0)')
        chk(vT,[vb],[],None,pc)
        a('s_cbranch_vccnz L_s3poll')
        stamp(12)
        rowsum(ss,(8,4,2,1))
    else:
        r=vO+8
        for k in range(8): a(f'v_mov_b32 v{r+k}, 0')
        allmask(2)
        if jwo:
            a('L_wowait:'); poll_full(vT,vFA)
            a(f's_cmp_eq_u32 s{sGend}, 0\ns_cbranch_scc0 L_wowait')
            wo_loads()
        def ofirst():
            a('s_waitcnt vmcnt(0)'); wait_full(jml,vT,vFA); ldo(0); ldo(1)
        if jwo: wo_perm(0,ofirst)
        else: ofirst()
        stamp(14)
        pc=vb+16
        poll('o',2,ldo,lambda i: chk(vT,[po+4*i],[],None,pc+4*i),fp[2],fp[3])
        stamp(10)
        merge(o,pc,pw,0)
        for r_ in range(8):
            u=r_>>1
            for k in range(8): a(f'v_dot2c_f32_bf16_dpp v{r+k}, v{vA+(r_&1)}, v{vWo+8*r_+4+(k>>1) if k&1 else vWl+4*r_+(k>>1)} quad_perm:[{u},{u},{u},{u}] row_mask:0xf bank_mask:0xf')
        tag4(r)
        a(f'buffer_store_dwordx4 v[{r}:{r+3}], v{vS3}, s[{dWS}:{dWS+3}], s{sS3w} offen {s3st}\ns_add_u32 s{sS3w}, s{sS3w}, {1<<SB[8]}')
        tag4(r+4)
        a(f'buffer_store_dwordx4 v[{r+4}:{r+7}], v{vS3}, s[{dWS}:{dWS+3}], s{sS3w} offen {s3st}')
        stamp(11)
        a(f's_cmp_lt_u32 s{sXi}, 16\ns_cbranch_scc0 L_hfin')
        allmask(4)
        cks=lambda i: chk(vT,[vb+4*i],[],None,pc+4*i)
        a(f's_lshl_b32 s{sCnt}, s{sCg}, 3\ns_mov_b32 s{sLoc}, 0x00010001\ns_mov_b32 s{sLoc+1}, 0x00010001')
        if s3w: a('s_waitcnt vmcnt(0)')
        for i in range(4): lds3(i)
        poll('s3',4,lds3,cks,fp[4],fp[5])
        stamp(12)
        ss=vS
        for d,x,y in ((ss,pc,pc+4),(ss+4,pc+8,pc+12),(ss,ss,ss+4)):
            for k in (0,2): a(f'v_pk_add_f32 v[{d+k}:{d+k+1}], v[{x+k}:{x+k+1}], v[{y+k}:{y+k+1}]')
        rowsum(ss,(8,4,2,1))
    bfr(ss,ss); a(f'v_mul_f32 v{ss}, v{ss}, v{gg}'); bfr(ss,ss)
    a(f'v_add_f32 v{ss}, v{ss}, v{gg+4}\nv_cvt_pk_bf16_f32 v{ss}, v{ss}, v{ss}\ns_mov_b64 exec, s[{sLoc}:{sLoc+1}]')
    a(f'buffer_store_short v{ss}, v{gg+5}, s[{dOUT}:{dOUT+3}], s{sCnt} offen\ns_mov_b64 exec, 1')
    a(f's_cmp_eq_u32 s{sCg}, 0\ns_cbranch_scc0 L_hfin\nv_mov_b32 v{vT+1}, s{sT}\nbuffer_store_dword v{vT+1}, off, s[{dWS}:{dWS+3}], 0')
    a('L_hfin:\ns_waitcnt vmcnt(0)')
    stamp(13)
    stamp_out(dWS)
    a('L_end:\ns_endpgm')
    n=a.fix()
    out=HDR+f'; @launch grid=(256,1,1) block=({64*NWAVE},1,1) lds=163840\n'
    out+=f'.amdgcn_target "amdgcn-amd-amdhsa--gfx950"\n.text\n.globl {NAME}\n.p2align 8\n.type {NAME},@function\n'
    out+=a.text()
    out+=f'''.section .rodata,"a"
.p2align 6
.amdhsa_kernel {NAME}
  .amdhsa_next_free_vgpr 256
  .amdhsa_next_free_sgpr 96
  .amdhsa_accum_offset 256
  .amdhsa_group_segment_fixed_size 0
  .amdhsa_kernarg_size 96
  .amdhsa_user_sgpr_count 2
  .amdhsa_user_sgpr_kernarg_segment_ptr 1
  .amdhsa_system_sgpr_workgroup_id_x 1
  .amdhsa_float_denorm_mode_32 3
.end_amdhsa_kernel
'''
    return out
if __name__=='__main__':
    kw=eval('dict(%s)'%(sys.argv[1] if len(sys.argv)>1 else ''))
    sys.stdout.write(gen(**kw))
```
